```python
import torch

def _softmax(x, axis=-1):
    return torch.softmax(x, dim=axis)
def _gelu(x):
    return torch.nn.functional.gelu(x, approximate="tanh")
def _silu(x):
    return torch.nn.functional.silu(x)
def _sigmoid(x):
    return torch.sigmoid(x)
def _layernorm(x, axis=-1, eps=1e-5):
    m = x.mean(dim=axis, keepdim=True)
    v = x.var(dim=axis, keepdim=True, unbiased=False)
    return (x - m) / torch.sqrt(v + eps)
def _scatter_add(tgt, idx, src, axis=0):
    return tgt.clone().index_add_(axis, idx, src)
def _segment_sum(src, seg, n):
    out = torch.zeros((n,) + src.shape[1:], dtype=src.dtype)
    return out.index_add_(0, seg, src)
def _pad(x, pw):
    flat = tuple(v for pair in reversed(pw) for v in pair)
    return torch.nn.functional.pad(x, flat)

kernel_name = 'sequential_preLN__spectral_fnet__moe_arch_mod__prompt'

def setup_inputs():

    _w = (lambda a: (lambda t: t.to(torch.bfloat16) if t.is_floating_point() else t)(torch.as_tensor(a)))
    def _A_setup():
        B, S, D = 1, 2048, 1024
        ns = torch.arange(S)[:, None] * torch.arange(S)[None, :]
        nd = torch.arange(D)[:, None] * torch.arange(D)[None, :]
        Ws_re = torch.cos(-2.0 * torch.pi * ns / S).to(float)
        Ws_im = torch.sin(-2.0 * torch.pi * ns / S).to(float)
        Wd_re = torch.cos(-2.0 * torch.pi * nd / D).to(float)
        Wd_im = torch.sin(-2.0 * torch.pi * nd / D).to(float)
        return {
            "x": _w((lambda *s: torch.randn(*s, dtype=torch.bfloat16) * 0.05)(B, S, D)),
            "dft_seq_re": _w(Ws_re),
            "dft_seq_im": _w(Ws_im),
            "dft_hid_re": _w(Wd_re),
            "dft_hid_im": _w(Wd_im),
        }
    _A_in = _A_setup()

    def _B_setup():
        B, S, D, F, C = 1, 2048, 1024, 3584, 1
        return {
            "x": _w((lambda *s: torch.randn(*s, dtype=torch.bfloat16) * 0.05)(B, S, D)),
            "w_r": _w((lambda *s: torch.randn(*s, dtype=torch.bfloat16) * 1.6)(D)),
            "w_gate": _w((lambda *s: torch.randn(*s, dtype=torch.bfloat16) * 0.4)(D, F)),
            "w_up": _w((lambda *s: torch.randn(*s, dtype=torch.bfloat16) * 0.4)(D, F)),
            "w_down": _w((lambda *s: torch.randn(*s, dtype=torch.bfloat16) * 0.4)(F, D)),
        }
    _B_in = _B_setup()

    return {
        "A_x": _A_in["x"],
        "A_dft_seq_re": _A_in["dft_seq_re"],
        "A_dft_seq_im": _A_in["dft_seq_im"],
        "A_dft_hid_re": _A_in["dft_hid_re"],
        "A_dft_hid_im": _A_in["dft_hid_im"],
        "B_x": _B_in["x"],
        "B_w_r": _B_in["w_r"],
        "B_w_gate": _B_in["w_gate"],
        "B_w_up": _B_in["w_up"],
        "B_w_down": _B_in["w_down"],
    }

def reference(A_x, A_dft_seq_re, A_dft_seq_im, A_dft_hid_re, A_dft_hid_im, B_x, B_w_r, B_w_gate, B_w_up, B_w_down):
    def _A_ref(x, dft_seq_re, dft_seq_im, dft_hid_re, dft_hid_im):
        a = torch.einsum("bsd,ed->bse", x, dft_hid_re)
        b = torch.einsum("bsd,ed->bse", x, dft_hid_im)
        y = torch.einsum("ts,bse->bte", dft_seq_re, a) - torch.einsum("ts,bse->bte", dft_seq_im, b)
        return y

    def _B_ref(x, w_r, w_gate, w_up, w_down):
        B, S, D = x.shape
        C = 1
        r = x @ w_r
        idx = torch.argsort(-r, axis=-1)[:, :C]
        idx_e = (lambda x, n, axis: torch.repeat_interleave(x, n, dim=axis))(idx.reshape(B, C, 1), D, axis=2)
        x_sel = (lambda x, i, axis: torch.take_along_dim(x, i, dim=axis))(x, idx_e, axis=1)
        g = _silu(x_sel @ w_gate)
        u = x_sel @ w_up
        y = (g * u) @ w_down
        r_sel = _sigmoid((lambda x, i, axis: torch.take_along_dim(x, i, dim=axis))(r, idx, axis=1))
        y = y * r_sel.reshape(B, C, 1)
        b_off = (torch.arange(B) * S).reshape(B, 1)
        flat_idx = (idx + b_off).reshape(B * C)
        zero = (x * 0.0).reshape(B * S, D)
        upd = _scatter_add(zero, flat_idx, y.reshape(B * C, D), axis=0)
        return x + upd.reshape(B, S, D)

    x = A_x
    h = x + _A_ref(_layernorm(x, axis=-1), A_dft_seq_re, A_dft_seq_im, A_dft_hid_re, A_dft_hid_im)
    h2 = h + _B_ref(_layernorm(h, axis=-1), B_w_r, B_w_gate, B_w_up, B_w_down)
    return h2
```

```python
import re
TRANS = {'v_exp_f32','v_log_f32','v_rcp_f32','v_rsq_f32','v_sqrt_f32','v_sin_f32','v_cos_f32','v_rcp_iflag_f32'}
def regs_of(op):
    op = op.strip()
    m = re.match(r'^-?\|?(?:abs\()?([vsa])(\d+)\)?\|?$', op)
    if m: return {(m.group(1), int(m.group(2)))}
    m = re.match(r'^-?([vsa])\[(\d+):(\d+)\]$', op)
    if m: return {(m.group(1), i) for i in range(int(m.group(2)), int(m.group(3)) + 1)}
    if op in ('vcc', 'exec', 'm0', 'scc'): return {('x', op)}
    if op in ('vcc_lo', 'vcc_hi'): return {('x', 'vcc')}
    if op in ('exec_lo', 'exec_hi'): return {('x', 'exec')}
    return set()

class Ins:
    __slots__ = ('text','mn','kind','wr','rd','dpp','pos','A','B','C','passes','stdata','wide')

class Asm:
    def __init__(self):
        self.lines = []
        self.hist = []
        self.pos = 0
        self.nops = 0
    def raw(self, s): self.lines.append(s)
    def comment(self, s): self.lines.append('    ; ' + s)
    def label(self, name):
        self.flush()
        self.lines.append(name + ':')
    def flush(self, n=None):
        need = 0
        for h in self.hist[-24:]:
            d = self.pos - h.pos - 1
            if h.kind == 'mfma': req = 12 if h.passes == 8 else 8
            elif h.kind == 'valu': req = 5
            elif h.kind == 'salu': req = 1
            elif h.kind == 'vst' and h.wide: req = 2
            else: req = 0
            need = max(need, req - d)
        self._nop(need)
    def _nop(self, n):
        while n > 0:
            k = min(n, 16)
            self.lines.append('    s_nop %d' % (k - 1))
            self.pos += k; self.nops += k
            n -= k
    def parse(self, text):
        t = text.split(';')[0].strip()
        m = re.match(r'^(\S+)\s*(.*)$', t)
        mn, rest = m.group(1), m.group(2)
        ops, depth, cur = [], 0, ''
        for ch in rest:
            if ch in '[(': depth += 1
            if ch in '])': depth -= 1
            if ch == ',' and depth == 0: ops.append(cur.strip()); cur = ''
            else: cur += ch
        if cur.strip(): ops.append(cur.strip())
        mods = ''
        if ops:
            parts = ops[-1].split(None, 1)
            if len(parts) > 1: ops[-1], mods = parts[0], parts[1]
        I = Ins(); I.text = text; I.mn = mn; I.wr = set(); I.rd = set(); I.dpp = False
        I.A = I.B = I.C = set(); I.passes = 0; I.stdata = set(); I.wide = False
        base = re.sub(r'_(e32|e64|dpp|sdwa)$', '', mn)
        R = [regs_of(o) for o in ops]
        if base.startswith('v_mfma'):
            I.kind = 'mfma'; I.wr = R[0]; I.A = R[1]; I.B = R[2]; I.C = R[3]; I.rd = R[1] | R[2] | R[3]
            I.passes = 8 if '32x32' in base else 4
        elif base.startswith('v_'):
            I.kind = 'valu'
            I.dpp = ('quad_perm' in mods or 'row_' in mods)
            if base.startswith('v_cmpx'):
                I.wr = R[0] | {('x', 'exec')}; I.rd = set().union(*R[1:])
            elif base in ('v_add_co_u32', 'v_sub_co_u32', 'v_addc_co_u32', 'v_subb_co_u32', 'v_div_scale_f32', 'v_mad_u64_u32'):
                I.wr = R[0] | R[1]; I.rd = set().union(*R[2:])
            elif base.startswith('v_permlane') and 'swap' in base:
                I.wr = R[0] | R[1]; I.rd = R[0] | R[1]
            else:
                I.wr = R[0]; I.rd = set().union(*R[1:]) if len(R) > 1 else set()
                if base in ('v_fmac_f32', 'v_dot2c_f32_bf16', 'v_pk_fmac_f16', 'v_writelane_b32') or I.dpp: I.rd = I.rd | R[0]
            I.rd = I.rd | {('x', 'exec')}
        elif base.startswith('buffer_') or base.startswith('global_'):
            lds = ' lds' in (' ' + mods) or base.startswith('global_load_lds')
            if 'store' in base:
                I.kind = 'vst'
                di = 0 if base.startswith('buffer_') else 1
                I.stdata = R[di]; I.rd = set().union(*R); I.wide = ('x3' in base or 'x4' in base)
            elif 'atomic' in base:
                I.kind = 'vst'; I.rd = set().union(*R)
                if 'sc0' in mods: I.wr = R[0]
            else:
                I.kind = 'vld'
                if lds: I.rd = set().union(*R) | {('x', 'm0')}
                else:
                    I.wr = R[0]; I.rd = set().union(*R[1:])
                    if 'd16' in base: I.rd |= R[0]
        elif base.startswith('ds_'):
            I.kind = 'ds'
            if 'read' in base or 'permute' in base or 'swizzle' in base:
                I.wr = R[0]; I.rd = set().union(*R[1:])
                if 'd16' in base: I.rd |= R[0]
            else: I.rd = set().union(*R)
        elif base.startswith('s_'):
            I.kind = 'salu'
            if base in ('s_waitcnt', 's_barrier', 's_endpgm', 's_setprio', 's_sleep', 's_branch') or base.startswith('s_cbranch') or base.startswith('s_cmp'):
                I.rd = set().union(*R) if R else set()
            elif base.startswith('s_load') or base == 's_memtime' or base == 's_memrealtime':
                I.kind = 'smem'; I.wr = R[0]; I.rd = set().union(*R[1:]) if len(R) > 1 else set()
            else:
                I.wr = R[0]; I.rd = set().union(*R[1:]) if len(R) > 1 else set()
                if 'saveexec' in base: I.wr = I.wr | {('x', 'exec')}
        else:
            raise ValueError('unknown instruction ' + text)
        I.mn = base
        return I
    def required(self, P, C):
        req = 0
        sg = lambda s: {r for r in s if r[0] in 's' or r == ('x', 'vcc')}
        vg = lambda s: {r for r in s if r[0] in 'va'}
        if P.kind == 'valu':
            wv = vg(P.wr); ws = sg(P.wr)
            if C.kind == 'valu':
                if C.dpp and wv & C.rd: req = max(req, 2)
                if C.dpp and ('x', 'exec') in P.wr: req = max(req, 5)
                if P.mn in TRANS and C.mn not in TRANS and wv & (C.rd | C.wr): req = max(req, 1)
                if P.mn in TRANS and C.mn in TRANS and wv & C.rd: req = max(req, 1)
                if ws & C.rd:
                    req = max(req, 4 if C.mn in ('v_readlane_b32', 'v_writelane_b32') else 2)
                if C.mn in ('v_readlane_b32', 'v_readfirstlane_b32') and wv & C.rd: req = max(req, 1)
                if C.mn.startswith('v_permlane') and wv & C.rd: req = max(req, 2)
                if ('x', 'exec') in P.wr: req = max(req, 4)
            if C.kind == 'mfma':
                if wv & C.rd: req = max(req, 2)
                if ('x', 'exec') in P.wr: req = max(req, 4)
            if C.kind in ('vld', 'vst') and ws & C.rd: req = max(req, 5)
            if C.kind in ('salu', 'smem') and ws & C.rd: req = max(req, 2)
        if P.kind == 'mfma':
            big = 12 if P.passes == 8 else 8
            if C.kind == 'mfma':
                if P.wr & (C.A | C.B): req = max(req, big)
                if P.wr & C.C:
                    if not (P.wr == C.C and P.passes == C.passes): req = max(req, 10 if P.passes == 8 else 6)
                elif P.wr & C.wr: req = max(req, big)
            elif C.kind in ('valu', 'vld', 'vst', 'ds'):
                if P.wr & (C.rd | C.wr): req = max(req, big)
                if C.kind == 'valu' and P.C & C.wr: req = max(req, 7 if P.passes == 8 else 3)
        if P.kind == 'salu':
            if ('x', 'm0') in P.wr and ('x', 'm0') in C.rd: req = max(req, 1)
        if P.kind == 'vst' and P.wide:
            if P.stdata & C.wr: req = max(req, 2)
        return req
    pending = None
    def inject(self, groups, gap):
        self.pending = list(groups); self.gap = gap; self.cnt = gap
    def inject_flush(self):
        p, self.pending = self.pending, None
        for g in (p or []):
            for x in g: self(x)
    def __call__(self, text):
        if self.pending and text.startswith('v_') and not text.startswith('v_read') and not text.startswith('v_cndmask'):
            self.cnt += 1
            if self.cnt >= self.gap:
                g = self.pending.pop(0); p = self.pending; self.pending = None
                for x in g: self(x)
                self.pending = p if p else None; self.cnt = 0
        I = self.parse(text)
        need = 0
        for h in self.hist[-24:]:
            d = self.pos - h.pos - 1
            r = self.required(h, I)
            if r > d: need = max(need, r - d)
        self._nop(need)
        I.pos = self.pos
        self.pos += 1
        if I.mn == 's_nop':
            self.pos += int(text.split()[1])
        self.hist.append(I)
        self.lines.append('    ' + text)
    stamps_on = False
    real = False
    kidx = 0
    def stamp_reset(self): self.nst = 0; self.kidx += 1
    def stamp(self):
        if not self.stamps_on: return
        self('%s s[%d:%d]' % ('s_memrealtime' if self.real else 's_memtime', 60 + 2 * self.nst, 61 + 2 * self.nst)); self.nst += 1
    def stamp_dump(self, wg=0):
        if not self.stamps_on: return
        lab = 'stskip%d' % len(self.lines)
        if not self.real:
            self('s_cmp_lg_u32 s2, %d' % wg); self('s_cbranch_scc1 %s' % lab)
        self('s_load_dwordx2 s[92:93], s[0:1], %d' % (96 if self.real else 88))
        self('s_waitcnt vmcnt(0) lgkmcnt(0)')
        self('%s s[%d:%d]' % ('s_memrealtime' if self.real else 's_memtime', 60 + 2 * self.nst, 61 + 2 * self.nst)); self.nst += 1
        self('s_waitcnt lgkmcnt(0)')
        if self.real:
            self('s_add_u32 s92, s92, 0x%x' % (0x8000000 + self.kidx * 0x10000)); self('s_addc_u32 s93, s93, 0')
            self('s_mov_b32 s94, 0x10000'); self('s_lshl_b32 s97, s2, 6')
        else:
            self('s_mov_b32 s94, 256'); self('s_mov_b32 s97, 0')
        self('s_mov_b32 s95, 0x00020000')
        self('s_mov_b64 exec, 1'); self('v_mov_b32 v251, 0')
        for i in range(self.nst):
            if self.real: self('v_mov_b32 v250, s%d' % (60 + 2 * i))
            else:
                self('s_sub_u32 s96, s%d, s60' % (60 + 2 * i)); self('v_mov_b32 v250, s96')
            self('buffer_store_dword v250, v251, s[92:95], s97 offen offset:%d' % (4 * i))
        self.label(lab)
    def text(self): return '\n'.join(self.lines) + '\n'
```

```python
import sys, re
sys.path.insert(0, 'dev')
from asmlib import Asm
base = open('diag_k1.s').read()
def build(name, body, grid=256, block=512, lds=100000):
    a = Asm()
    a.raw('.globl probe_kernel\n.p2align 8\n.type probe_kernel,@function\nprobe_kernel:')
    a('s_cmp_ge_u32 s2, %d' % grid); a('s_cbranch_scc1 pr_end')
    body(a)
    a.label('pr_end'); a('s_endpgm')
    d = '''.p2align 6
.amdhsa_kernel probe_kernel
  .amdhsa_next_free_vgpr 128
  .amdhsa_next_free_sgpr 96
  .amdhsa_accum_offset 128
  .amdhsa_group_segment_fixed_size 0
  .amdhsa_kernarg_size 104
  .amdhsa_user_sgpr_count 2
  .amdhsa_user_sgpr_kernarg_segment_ptr 1
  .amdhsa_system_sgpr_workgroup_id_x 1
.end_amdhsa_kernel
'''
    lines = base.split('\n')
    first = min(i for i, l in enumerate(lines) if l.startswith('; @launch'))
    lines[first:first] = ['; @launch kernel=probe_kernel grid=(%d,1,1) block=(%d,1,1) lds=%d' % (grid, block, lds)]
    s = '\n'.join(lines).replace('.section .rodata,"a"', a.text() + '.section .rodata,"a"\n' + d, 1)
    open('exp/%s.s' % name, 'w').write(s)
def nop(a): pass
def weights(fl, which='gud'):
    def f(a):
        a('s_load_dwordx2 s[8:9], s[0:1], 56'); a('s_load_dwordx2 s[12:13], s[0:1], 64'); a('s_load_dwordx2 s[28:29], s[0:1], 72')
        a('v_lshrrev_b32 v1, 6, v0'); a('v_readfirstlane_b32 s16, v1'); a('v_and_b32 v15, 63, v0'); a('v_lshlrev_b32 v4, 4, v15')
        a('v_lshrrev_b32 v1, 3, v15'); a('v_and_b32 v2, 7, v15'); a('v_mul_u32_u24 v3, 7168, v1'); a('v_lshl_add_u32 v3, v2, 4, v3')
        a('s_and_b32 s17, s2, 3'); a('s_lshr_b32 s18, s2, 2')
        a('s_lshl_b32 s19, s17, 8'); a('s_lshl_b32 s20, s16, 5'); a('s_add_u32 s19, s19, s20')
        a('s_mul_i32 s19, s19, 7168'); a('s_lshl_b32 s20, s18, 7'); a('s_add_u32 s19, s19, s20')
        a('s_lshl_b32 s48, s2, 15'); a('s_lshl_b32 s49, s16, 12'); a('s_add_u32 s48, s48, s49')
        for r in (10, 14, 30): a('s_mov_b32 s%d, 0x700000' % r); a('s_mov_b32 s%d, 0x20000' % (r + 1))
        a('s_lshl_b32 s50, s16, 12')
        a('s_waitcnt lgkmcnt(0)')
        for m, sr in ((0, 8), (1, 12)):
            if 'gu'[m] not in which: continue
            for p in range(4):
                a('s_add_u32 s51, s50, %d' % (32768 * m + 1024 * p)); a('s_mov_b32 m0, s51')
                a('s_add_u32 s52, s19, %d' % (p * 8 * 7168))
                a('buffer_load_dwordx4 v3, s[%d:%d], s52 offen %s lds' % (sr, sr + 3, fl))
        if 'd' in which:
            for p in range(4):
                a('s_add_u32 s51, s50, %d' % (65536 + 1024 * p)); a('s_mov_b32 m0, s51')
                a('s_add_u32 s52, s48, %d' % (p * 1024))
                a('buffer_load_dwordx4 v4, s[28:31], s52 offen %s lds' % fl)
        a('s_waitcnt vmcnt(0)')
    return f
def xload(fl, karg=0):
    def f(a):
        a('s_load_dwordx2 s[8:9], s[0:1], %d' % karg)
        a('v_lshlrev_b32 v4, 4, v0'); a('s_lshl_b32 s3, s2, 14'); a('s_mov_b32 s10, 0x400000'); a('s_mov_b32 s11, 0x20000')
        a('s_add_u32 s4, s3, 8192')
        a('s_waitcnt lgkmcnt(0)')
        a('buffer_load_dwordx4 v[8:11], v4, s[8:11], s3 offen %s' % fl); a('buffer_load_dwordx4 v[12:15], v4, s[8:11], s4 offen %s' % fl)
        a('s_waitcnt vmcnt(0)')
    return f
if __name__ == '__main__':
    build('pr_nop', nop)
    build('pr_w', weights(''), grid=224)
    build('pr_wnt', weights('nt'), grid=224)
    build('pr_x', xload(''))
    build('pr_xnt', xload('nt'))
    build('pr_ws', xload('', 96))
```

```python
import re
TRANS = {'v_exp_f32','v_log_f32','v_rcp_f32','v_rsq_f32','v_sqrt_f32','v_sin_f32','v_cos_f32','v_rcp_iflag_f32'}
def regs_of(op):
    op = op.strip()
    m = re.match(r'^-?\|?(?:abs\()?([vsa])(\d+)\)?\|?$', op)
    if m: return {(m.group(1), int(m.group(2)))}
    m = re.match(r'^-?([vsa])\[(\d+):(\d+)\]$', op)
    if m: return {(m.group(1), i) for i in range(int(m.group(2)), int(m.group(3)) + 1)}
    if op in ('vcc', 'exec', 'm0', 'scc'): return {('x', op)}
    if op in ('vcc_lo', 'vcc_hi'): return {('x', 'vcc')}
    if op in ('exec_lo', 'exec_hi'): return {('x', 'exec')}
    return set()

class Ins:
    __slots__ = ('text','mn','kind','wr','rd','dpp','pos','A','B','C','passes','stdata','wide','dsrc')

class Asm:
    def __init__(self):
        self.lines = []
        self.hist = []
        self.pos = 0
        self.nops = 0
    def raw(self, s): self.lines.append(s)
    def comment(self, s): self.lines.append('    ; ' + s)
    def label(self, name):
        self.flush()
        self.lines.append(name + ':')
    def flush(self, n=None):
        need = 0
        for h in self.hist[-24:]:
            d = self.pos - h.pos - 1
            if h.kind == 'mfma': req = 12 if h.passes == 8 else 8
            elif h.kind == 'valu': req = 5
            elif h.kind == 'salu': req = 1
            elif h.kind == 'vst' and h.wide: req = 2
            else: req = 0
            need = max(need, req - d)
        self._nop(need)
    def _nop(self, n):
        while n > 0:
            k = min(n, 16)
            self.lines.append('    s_nop %d' % (k - 1))
            self.pos += k; self.nops += k
            n -= k
    def parse(self, text):
        t = text.split(';')[0].strip()
        m = re.match(r'^(\S+)\s*(.*)$', t)
        mn, rest = m.group(1), m.group(2)
        ops, depth, cur = [], 0, ''
        for ch in rest:
            if ch in '[(': depth += 1
            if ch in '])': depth -= 1
            if ch == ',' and depth == 0: ops.append(cur.strip()); cur = ''
            else: cur += ch
        if cur.strip(): ops.append(cur.strip())
        mods = ''
        if ops:
            parts = ops[-1].split(None, 1)
            if len(parts) > 1: ops[-1], mods = parts[0], parts[1]
        I = Ins(); I.text = text; I.mn = mn; I.wr = set(); I.rd = set(); I.dpp = False
        I.dsrc = set(); I.A = I.B = I.C = set(); I.passes = 0; I.stdata = set(); I.wide = False
        base = re.sub(r'_(e32|e64|dpp|sdwa)$', '', mn)
        R = [regs_of(o) for o in ops]
        if base.startswith('v_mfma'):
            I.kind = 'mfma'; I.wr = R[0]; I.A = R[1]; I.B = R[2]; I.C = R[3]; I.rd = R[1] | R[2] | R[3]
            I.passes = 8 if '32x32' in base else 4
        elif base.startswith('v_'):
            I.kind = 'valu'
            I.dpp = ('quad_perm' in mods or 'row_' in mods)
            if base.startswith('v_cmpx'):
                I.wr = R[0] | {('x', 'exec')}; I.rd = set().union(*R[1:])
            elif base in ('v_add_co_u32', 'v_sub_co_u32', 'v_addc_co_u32', 'v_subb_co_u32', 'v_div_scale_f32', 'v_mad_u64_u32'):
                I.wr = R[0] | R[1]; I.rd = set().union(*R[2:])
            elif base.startswith('v_permlane') and 'swap' in base:
                I.wr = R[0] | R[1]; I.rd = R[0] | R[1]
            else:
                I.wr = R[0]; I.rd = set().union(*R[1:]) if len(R) > 1 else set()
                if base in ('v_fmac_f32', 'v_dot2c_f32_bf16', 'v_pk_fmac_f16', 'v_writelane_b32') or I.dpp: I.rd = I.rd | R[0]
                if base.startswith('v_dot'): I.dsrc = R[1] | R[2]
            I.rd = I.rd | {('x', 'exec')}
        elif base.startswith('buffer_') or base.startswith('global_'):
            lds = ' lds' in (' ' + mods) or base.startswith('global_load_lds')
            if 'store' in base:
                I.kind = 'vst'
                di = 0 if base.startswith('buffer_') else 1
                I.stdata = R[di]; I.rd = set().union(*R); I.wide = ('x3' in base or 'x4' in base)
            elif 'atomic' in base:
                I.kind = 'vst'; I.rd = set().union(*R)
                if 'sc0' in mods: I.wr = R[0]
            else:
                I.kind = 'vld'
                if lds: I.rd = set().union(*R) | {('x', 'm0')}
                else:
                    I.wr = R[0]; I.rd = set().union(*R[1:])
                    if 'd16' in base: I.rd |= R[0]
        elif base.startswith('ds_'):
            I.kind = 'ds'
            if 'read' in base or 'permute' in base or 'swizzle' in base:
                I.wr = R[0]; I.rd = set().union(*R[1:])
                if 'd16' in base: I.rd |= R[0]
            else: I.rd = set().union(*R)
        elif base.startswith('s_'):
            I.kind = 'salu'
            if base in ('s_waitcnt', 's_barrier', 's_endpgm', 's_setprio', 's_sleep', 's_branch') or base.startswith('s_cbranch') or base.startswith('s_cmp') or base.startswith('s_bitcmp'):
                I.rd = set().union(*R) if R else set()
            elif base.startswith('s_load') or base.startswith('s_buffer_load') or base == 's_memtime' or base == 's_memrealtime':
                I.kind = 'smem'; I.wr = R[0]; I.rd = set().union(*R[1:]) if len(R) > 1 else set()
            else:
                I.wr = R[0]; I.rd = set().union(*R[1:]) if len(R) > 1 else set()
                if 'saveexec' in base: I.wr = I.wr | {('x', 'exec')}
        else:
            raise ValueError('unknown instruction ' + text)
        I.mn = base
        return I
    def required(self, P, C):
        req = 0
        sg = lambda s: {r for r in s if r[0] in 's' or r == ('x', 'vcc')}
        vg = lambda s: {r for r in s if r[0] in 'va'}
        if P.kind == 'valu':
            wv = vg(P.wr); ws = sg(P.wr)
            if C.kind == 'valu':
                if C.dpp and wv & C.rd: req = max(req, 2)
                if C.dpp and ('x', 'exec') in P.wr: req = max(req, 5)
                if P.mn in TRANS and C.mn not in TRANS and wv & (C.rd | C.wr): req = max(req, 1)
                if P.mn in TRANS and C.mn in TRANS and wv & C.rd: req = max(req, 1)
                if ws & C.rd:
                    req = max(req, 4 if C.mn in ('v_readlane_b32', 'v_writelane_b32') else 2)
                if C.mn in ('v_readlane_b32', 'v_readfirstlane_b32') and wv & C.rd: req = max(req, 1)
                if C.mn.startswith('v_permlane') and wv & C.rd: req = max(req, 2)
                if ('x', 'exec') in P.wr: req = max(req, 4)
            if C.kind == 'mfma':
                if wv & C.rd: req = max(req, 2)
                if ('x', 'exec') in P.wr: req = max(req, 4)
            if C.kind in ('vld', 'vst') and ws & C.rd: req = max(req, 5)
            if C.kind in ('salu', 'smem') and ws & C.rd: req = max(req, 2)
        if P.kind == 'valu' and P.mn.startswith('v_dot'):
            wv = vg(P.wr)
            if C.kind in ('valu', 'mfma', 'vld', 'vst', 'ds') and wv & (C.rd | C.wr):
                same_c = (C.mn == P.mn and C.wr == P.wr and not (wv & C.dsrc))
                if not same_c: req = max(req, 3)
        if P.kind == 'mfma':
            big = 12 if P.passes == 8 else 8
            if C.kind == 'mfma':
                if P.wr & (C.A | C.B): req = max(req, big)
                if P.wr & C.C:
                    if not (P.wr == C.C and P.passes == C.passes): req = max(req, 10 if P.passes == 8 else 6)
                elif P.wr & C.wr: req = max(req, big)
            elif C.kind in ('valu', 'vld', 'vst', 'ds'):
                if P.wr & (C.rd | C.wr): req = max(req, big)
                if C.kind == 'valu' and P.C & C.wr: req = max(req, 7 if P.passes == 8 else 3)
        if P.kind == 'salu':
            if ('x', 'm0') in P.wr and ('x', 'm0') in C.rd: req = max(req, 1)
        if P.kind == 'vst' and P.wide:
            if P.stdata & C.wr: req = max(req, 2)
        return req
    pending = None
    def inject(self, groups, gap):
        self.pending = list(groups); self.gap = gap; self.cnt = gap
    def inject_flush(self):
        p, self.pending = self.pending, None
        for g in (p or []):
            for x in g: self(x)
    def __call__(self, text):
        if text.startswith('@'):
            self.lines.append(text[1:] + ':'); return
        if self.pending and text.startswith('v_') and not text.startswith('v_read') and not text.startswith('v_cndmask'):
            self.cnt += 1
            if self.cnt >= self.gap:
                g = self.pending.pop(0); p = self.pending; self.pending = None
                for x in g: self(x)
                self.pending = p if p else None; self.cnt = 0
        I = self.parse(text)
        need = 0
        for h in self.hist[-24:]:
            d = self.pos - h.pos - 1
            r = self.required(h, I)
            if r > d: need = max(need, r - d)
        self._nop(need)
        I.pos = self.pos
        self.pos += 1
        if I.mn == 's_nop':
            self.pos += int(text.split()[1])
        self.hist.append(I)
        self.lines.append('    ' + text)
    stamps_on = False
    real = False
    kidx = 0
    def stamp_reset(self): self.nst = 0; self.kidx += 1
    def stamp(self):
        if not self.stamps_on: return
        self('%s s[%d:%d]' % ('s_memrealtime' if self.real else 's_memtime', 60 + 2 * self.nst, 61 + 2 * self.nst)); self.nst += 1
    def stamp_dump(self, wg=0):
        if not self.stamps_on: return
        lab = 'stskip%d' % len(self.lines)
        if not self.real:
            self('s_cmp_lg_u32 s2, %d' % wg); self('s_cbranch_scc1 %s' % lab)
        self('s_load_dwordx2 s[92:93], s[0:1], %d' % (96 if self.real else 88))
        self('s_waitcnt vmcnt(0) lgkmcnt(0)')
        self('%s s[%d:%d]' % ('s_memrealtime' if self.real else 's_memtime', 60 + 2 * self.nst, 61 + 2 * self.nst)); self.nst += 1
        self('s_waitcnt lgkmcnt(0)')
        if self.real:
            self('s_add_u32 s92, s92, 0x%x' % (0x8000000 + self.kidx * 0x10000)); self('s_addc_u32 s93, s93, 0')
            self('s_mov_b32 s94, 0x10000'); self('s_lshl_b32 s97, s2, 6')
        else:
            self('s_mov_b32 s94, 256'); self('s_mov_b32 s97, 0')
        self('s_mov_b32 s95, 0x00020000')
        self('s_mov_b64 exec, 1'); self('v_mov_b32 v251, 0')
        for i in range(self.nst):
            if self.real: self('v_mov_b32 v250, s%d' % (60 + 2 * i))
            else:
                self('s_sub_u32 s96, s%d, s60' % (60 + 2 * i)); self('v_mov_b32 v250, s96')
            self('buffer_store_dword v250, v251, s[92:95], s97 offen offset:%d' % (4 * i))
        self.label(lab)
    def text(self): return '\n'.join(self.lines) + '\n'
```

```python
import sys
sys.path.insert(0, 'dev')
from asmlib import Asm
DPPF = 'row_mask:0xf bank_mask:0xf'
def red(a, r, op):
    for pat in ['quad_perm:[1,0,3,2] ' + DPPF, 'quad_perm:[2,3,0,1] ' + DPPF, 'row_half_mirror ' + DPPF,
                'row_mirror ' + DPPF, 'row_bcast:15 row_mask:0xa bank_mask:0xf', 'row_bcast:31 row_mask:0xc bank_mask:0xf']:
        a('%s_dpp v%d, v%d, v%d %s' % (op, r, r, r, pat))
def build(src, dst, kidx, col, nwg, stat, amp=10, refk=1, refn=256, lo=0, wave=None):
    base = open(src).read()
    a = Asm()
    a.raw('.globl ro_kernel\n.p2align 8\n.type ro_kernel,@function\nro_kernel:')
    a('s_cmp_ge_u32 s2, 1'); a('s_cbranch_scc1 ro_end')
    a('s_load_dwordx2 s[4:5], s[0:1], 96'); a('s_mov_b32 s6, 0x10000000'); a('s_mov_b32 s7, 0x20000')
    a('v_lshlrev_b32 v1, %d, v0' % (6 if wave is None else 10))
    a('s_waitcnt lgkmcnt(0)')
    for i in range(4):
        if wave is None: r0 = 0x8000000 + refk * 0x10000 + i * 4096; r1 = 0x8000000 + kidx * 0x10000 + i * 4096 + 4 * col
        else: r0 = 0x8000000 + i * 65536; r1 = r0 + wave * 128 + 4 * col
        a('s_mov_b32 s8, 0x%x' % r0); a('buffer_load_dword v%d, v1, s[4:7], s8 offen' % (4 + i))
        a('s_mov_b32 s8, 0x%x' % r1); a('buffer_load_dword v%d, v1, s[4:7], s8 offen' % (8 + i))
    a('s_waitcnt vmcnt(0)')
    a('v_readlane_b32 s9, v4, 0')
    a('s_sub_u32 s9, s9, 1000')
    for i in range(8): a('v_subrev_u32 v%d, s9, v%d' % (4 + i, 4 + i))
    for i in range(4):
        a('v_add_u32 v2, %d, v0' % (64 * i)); a('v_cmp_gt_u32 vcc, %d, v2' % refn); a('v_cndmask_b32 v%d, -1, v%d, vcc' % (4 + i, 4 + i))
        neutral = {'max': '0', 'min': '-1', 'mean': '0', 'zero': '0'}[stat]
        a('v_cmp_gt_u32 vcc, %d, v2' % nwg); a('v_cndmask_b32 v%d, %s, v%d, vcc' % (8 + i, neutral, 8 + i))
        if lo: a('v_cmp_le_u32 vcc, %d, v2' % lo); a('v_cndmask_b32 v%d, %s, v%d, vcc' % (8 + i, neutral, 8 + i))
    for i in range(1, 4): a('v_min_u32 v4, v4, v%d' % (4 + i))
    op = {'max': 'v_max_u32', 'min': 'v_min_u32', 'mean': 'v_add_u32', 'zero': 'v_max_u32'}[stat]
    for i in range(1, 4): a('%s v8, v8, v%d' % (op, 8 + i))
    red(a, 4, 'v_min_u32'); red(a, 8, op)
    if stat == 'mean':
        a('v_cvt_f32_u32 v8, v8'); a('v_mul_f32 v8, 0x%08x, v8' % __import__('struct').unpack('<I', __import__('struct').pack('<f', 1.0 / (nwg - lo)))[0]); a('v_cvt_u32_f32 v8, v8')
    a('v_readlane_b32 s10, v4, 63'); a('v_readlane_b32 s11, v8, 63')
    a('s_sub_u32 s10, s11, s10')
    if stat == 'zero': a('s_mov_b32 s10, 0')
    a('s_min_u32 s10, s10, 4000'); a('s_mul_i32 s10, s10, %d' % amp)
    a('s_memrealtime s[12:13]'); a('s_waitcnt lgkmcnt(0)')
    a.label('ro_spin')
    a('s_memrealtime s[14:15]'); a('s_waitcnt lgkmcnt(0)'); a('s_sub_u32 s16, s14, s12'); a('s_cmp_lt_u32 s16, s10'); a('s_cbranch_scc1 ro_spin')
    a.label('ro_end'); a('s_endpgm')
    d = '''.p2align 6
.amdhsa_kernel ro_kernel
  .amdhsa_next_free_vgpr 16
  .amdhsa_next_free_sgpr 32
  .amdhsa_accum_offset 16
  .amdhsa_group_segment_fixed_size 0
  .amdhsa_kernarg_size 104
  .amdhsa_user_sgpr_count 2
  .amdhsa_user_sgpr_kernarg_segment_ptr 1
  .amdhsa_system_sgpr_workgroup_id_x 1
.end_amdhsa_kernel
'''
    lines = base.split('\n')
    idx = [i for i, l in enumerate(lines) if l.startswith('; @launch')]
    if 'kernel=' not in lines[idx[0]]: raise SystemExit('needs a launch list')
    lines[idx[-1] + 1:idx[-1] + 1] = ['; @launch kernel=ro_kernel grid=(1,1,1) block=(64,1,1) lds=0']
    s = '\n'.join(lines).replace('.section .rodata,"a"', a.text() + '.section .rodata,"a"\n' + d, 1)
    open(dst, 'w').write(s)
if __name__ == '__main__':
    if sys.argv[1] == 'f':
        for spec in sys.argv[4:]:
            p = spec.split(':')
            build(sys.argv[2], '%s_%s.s' % (sys.argv[3], '_'.join(p[:3])), 0, int(p[1]), int(p[3]) if len(p) > 3 else 256, p[2], wave=int(p[0]))
    else:
        src, dst, k, c, n, st = sys.argv[1:7]
        build(src, dst, int(k), int(c), int(n), st)
```

```python
import struct, sys
from asmlib import Asm

NAME = 'sequential_preLN__spectral_fnet__moe_arch_mod__prompt'
def fh(x): return '0x%08x' % struct.unpack('<I', struct.pack('<f', x))[0]
OPT = set(a for a in sys.argv[1:] if a.startswith('--'))
def optval(name, default):
    for o in OPT:
        if o.startswith('--%s=' % name): return o[len(name) + 3:]
    return default
STAMPS = '--stamps' in OPT
LIST = '--list' in OPT or STAMPS
OUTF = {'plain': '', 'nt': ' nt', 'sc1': ' sc1'}[optval('out', 'nt')]
OUTAT = optval('outat', 'bf')
KN = 'fk_kernel' if LIST else NAME + '_kernel'

FLAGS = 0x1000; KEYS = 0x9000; G5 = 0x11000; P1 = 0x13000; P2 = 0x30000; CAND = 0x80000
OS = 8320
WOFF = 0x200000; YOFF = 0x410000; WSB = 0x620000
TAGC = 0x9E3779B9
LG, LD, LX = 0, 65536, 98304
LX1024 = LX + 5 * 4096
LWS = LX1024 + 2048
LA2 = LWS + 9472
RS = 2064
LROW = LA2 + 8192
LWR = LROW + 8 * RS
LG5 = LX + 4 * 4096
LMISC = LWR + 2048
LG5S, LY5, LKEY, LWIN, LG5E, LACT, LHN, LSIG = LMISC, LMISC + 32, LMISC + 64, LMISC + 80, LMISC + 96, LMISC + 128, LMISC + 256, LMISC + 768
LDSB = LMISC + 832
assert LDSB <= 163840

def v(i, n=1): return 'v%d' % i if n == 1 else 'v[%d:%d]' % (i, i + n - 1)
def s(i, n=1): return 's%d' % i if n == 1 else 's[%d:%d]' % (i, i + n - 1)
DPPF = 'row_mask:0xf bank_mask:0xf'
ROWRED = ['quad_perm:[1,0,3,2] ' + DPPF, 'quad_perm:[2,3,0,1] ' + DPPF, 'row_half_mirror ' + DPPF, 'row_mirror ' + DPPF]
def wave_reduce(a, regs, op='v_add_f32'):
    for pat in ROWRED + ['row_bcast:15 row_mask:0xa bank_mask:0xf', 'row_bcast:31 row_mask:0xc bank_mask:0xf']:
        for r in regs: a('%s_dpp %s, %s, %s %s' % (op, v(r), v(r), v(r), pat))
def rbf(a, r): a('v_cvt_pk_bf16_f32 %s, 0, %s' % (v(r), v(r)))
def angles(a, mulreg, basereg, ks, tmp):
    for i, k in enumerate(ks):
        if k == 0: a('v_mov_b32 %s, %s' % (v(tmp + i), v(basereg)))
        else: a('v_fmamk_f32 %s, %s, %s, %s' % (v(tmp + i), v(mulreg), fh(float(k)), v(basereg)))
def kr(r): return (r & 3) + 8 * (r >> 2)
def gen_c2s2(a, vln_f, vlh4_f, C2, S2, tmp):
    c, b = tmp, tmp + 1
    a('v_mul_f32 %s, %s, %s' % (v(c), fh(1.0 / 32), v(vln_f)))
    a('v_mul_f32 %s, %s, %s' % (v(b), v(c), v(vlh4_f)))
    ang = tmp + 2
    angles(a, c, b, [kr(r) for r in range(16)], ang)
    for r in range(16): a('v_cos_f32 %s, %s' % (v(ang + 16 + r), v(ang + r)))
    for p in range(8): a('v_cvt_pk_f16_f32 %s, %s, %s' % (v(C2 + p), v(ang + 16 + 2 * p), v(ang + 17 + 2 * p)))
    for r in range(16): a('v_sin_f32 %s, %s' % (v(ang + 16 + r), v(ang + r)))
    for p in range(8): a('v_cvt_pk_f16_f32 %s, %s, %s' % (v(S2 + p), v(ang + 16 + 2 * p), v(ang + 17 + 2 * p)))
def reduce4(a, A, B, C, D):
    a('v_permlane32_swap_b32 %s, %s' % (v(A), v(B))); a('v_permlane32_swap_b32 %s, %s' % (v(C), v(D)))
    a('v_add_f32 %s, %s, %s' % (v(A), v(A), v(B))); a('v_add_f32 %s, %s, %s' % (v(C), v(C), v(D)))
    a('v_permlane16_swap_b32 %s, %s' % (v(A), v(C)))
    a('v_add_f32 %s, %s, %s' % (v(A), v(A), v(C)))
    for pat in ROWRED: a('v_add_f32_dpp %s, %s, %s %s' % (v(A), v(A), v(A), pat))
def ln_chain(a, tot, m, t):
    a('v_mov_b32_dpp %s, %s row_bcast:15 row_mask:0xa bank_mask:0xf' % (v(m), v(tot)))
    a('v_mul_f32 %s, %s, %s' % (v(t), fh(1.0 / 1024), v(tot)))
    a('v_mul_f32 %s, %s, %s' % (v(m), fh(1.0 / 1024), v(m)))
    a('v_fma_f32 %s, -%s, %s, %s' % (v(t), v(m), v(m), v(t)))
    a('v_max_f32 %s, 0, %s' % (v(t), v(t)))
    rbf(a, t); rbf(a, m)
    a('v_add_f32 %s, %s, %s' % (v(t), fh(1e-5), v(t))); rbf(a, t)
    a('v_sqrt_f32 %s, %s' % (v(t), v(t))); rbf(a, t)
    a('v_rcp_f32 %s, %s' % (v(t), v(t)))

NST = 20
EARLY = '--early' in OPT
def stamp(a, i, early=False):
    if STAMPS and (early == EARLY or i < 12 or i == NST - 1): a('s_memrealtime s[%d:%d]' % (60 + 2 * i, 61 + 2 * i))
def stamp_dump(a, tag):
    if not STAMPS: return
    a('s_waitcnt vmcnt(0) lgkmcnt(0)')
    stamp(a, NST - 1)
    a('s_load_dwordx2 s[4:5], s[0:1], 96'); a('s_waitcnt lgkmcnt(0)')
    a('s_add_u32 s4, s4, 0x8000000'); a('s_addc_u32 s5, s5, 0'); a('s_mov_b32 s6, 0x40000'); a('s_mov_b32 s7, 0x00020000')
    a('s_lshl_b32 s12, s2, 3'); a('s_add_u32 s12, s12, s16'); a('s_lshl_b32 s12, s12, 7')
    a('s_mov_b64 exec, 1'); a('v_mov_b32 v1, 0')
    for i in range(NST):
        a('v_mov_b32 v2, s%d' % (60 + 2 * i)); a('buffer_store_dword v2, v1, s[4:7], s12 offen offset:%d' % (4 * i))

LATECLR = '--lateclr' in OPT
REORD = '--c6fok' in OPT
R7 = '--r7' in OPT
F7E = '--f7early' in OPT
NH = int(optval('nh', '4'))
KA = int(optval('ka', '0')); CPOST = '--cpost' in OPT
KB, KE, KC, KD = (int(x) for x in optval('win', '4,0,5,4').split(','))
PB, PE, PC, PD = (int(x) for x in optval('wpace', '99,99,99,99').split(','))
assert '--now' in OPT or 3 * NH + 4 * KA + 4 * KB + 4 * KE + 8 * KC + 7 * KD >= 96, 'units missing'
def unit_setup(a):
    a('v_lshrrev_b32 v208, 3, v15'); a('v_and_b32 v209, 7, v15'); a('v_and_b32 v210, 2, v208'); a('v_xor_b32 v209, v210, v209')
    a('v_mul_u32_u24 v208, 7168, v208'); a('v_lshl_add_u32 v208, v209, 4, v208')
    a('v_lshrrev_b32 v210, 5, v15'); a('v_lshlrev_b32 v210, 11, v210'); a('v_and_b32 v209, 31, v15'); a('v_lshl_add_u32 v210, v209, 4, v210')
    a('s_and_b32 s12, s3, 3'); a('s_mul_i32 s100, s12, %d' % (256 * 7168)); a('s_lshl_b32 s101, s12, 9')
    a('s_lshr_b32 s12, s3, 2'); a('s_lshl_b32 s12, s12, 7'); a('s_add_u32 s100, s100, s12'); a('s_lshl_b32 s12, s12, 10'); a('s_add_u32 s101, s101, s12')
uid = [0]
def window(a, first, k, wreg, wbase, pace=99, skip=None):
    if k == 0 or first >= 96: return
    uid[0] += 1; lab = skip or 'fk_win%d' % uid[0]
    a('s_cmp_gt_u32 s3, 223'); a('s_cbranch_scc1 %s' % lab)
    a('s_mul_i32 s15, %s, %d' % (s(wreg), k)); a('s_add_u32 s15, s15, %d' % (first - wbase * k))
    a('s_mov_b32 s58, 0x700000'); a('s_mov_b32 s59, 0x00020000')
    for i in range(k):
        a('s_cmp_gt_u32 s15, 95'); a('s_cbranch_scc1 %s' % lab)
        a('s_lshl_b32 s12, s15, 10'); a('s_mov_b32 m0, s12')
        a('s_and_b32 s14, s12, 1024'); a('s_lshr_b32 s14, s14, 4'); a('v_xor_b32 v209, s14, v208')
        a('s_cmp_lt_u32 s15, 32'); a('s_cselect_b64 s[56:57], s[44:45], s[48:49]')
        a('s_and_b32 s14, s15, 31'); a('s_mul_i32 s13, s14, %d' % (8 * 7168)); a('s_add_u32 s13, s13, s100')
        a('s_lshl_b32 s14, s14, 12'); a('s_add_u32 s14, s14, s101')
        a('s_cmp_lt_u32 s15, 64'); a('s_cselect_b64 s[56:57], s[56:57], s[52:53]'); a('s_cselect_b32 s13, s13, s14'); a('s_cselect_b64 vcc, -1, 0')
        a('v_cndmask_b32 v209, v210, v209, vcc')
        a('s_add_u32 s15, s15, 1')
        if i >= pace: a('s_waitcnt vmcnt(%d)' % pace)
        a('buffer_load_dwordx4 v209, s[56:59], s13 offen lds')
    if not skip: a.label(lab)
UA = 3 * NH; UB = UA + 4 * KA; UE = UB + 4 * KB; UC = UE + 4 * KE; UD = UC + 8 * KC
LATE = UC < 64 and '--now' not in OPT
DLATE = UD >= 64 and UD < 96 and KD > 0 and '--nodlate' not in OPT
def poll_check(a, regs, tmp, cnt, lab, got, wait=True):
    a('s_add_u32 %s, %s, 1' % (s(cnt), s(cnt)))
    if wait: a('s_waitcnt vmcnt(0)')
    r = list(regs)
    if len(r) == 1: a('v_cmp_eq_u32 vcc, -1, %s' % v(r[0]))
    else:
        if len(r) == 2: a('v_max_u32 %s, %s, %s' % (v(tmp), v(r[0]), v(r[1]))); r = []
        else: a('v_max3_u32 %s, %s, %s, %s' % (v(tmp), v(r[0]), v(r[1]), v(r[2]))); r = r[3:]
        while r:
            if len(r) >= 2: a('v_max3_u32 %s, %s, %s, %s' % (v(tmp), v(tmp), v(r[0]), v(r[1]))); r = r[2:]
            else: a('v_max_u32 %s, %s, %s' % (v(tmp), v(tmp), v(r[0]))); r = []
        a('v_cmp_eq_u32 vcc, -1, %s' % v(tmp))
    a('s_cmp_gt_u32 %s, 0x40000' % s(cnt)); a('s_cbranch_scc1 %s' % got)
    a('s_cbranch_vccnz %s' % lab)
    a.label(got)

def gen(a):
    a.raw('.globl %s' % KN); a.raw('.p2align 8'); a.raw('.type %s,@function' % KN)
    a.lines.append(KN + ':')
    a('s_cmp_gt_u32 s2, 255'); a('s_cbranch_scc1 fk_end')
    if STAMPS:
        for i in range(NST): a('s_mov_b32 s%d, 0' % (60 + 2 * i))
    stamp(a, 0)
    a('s_load_dwordx2 s[8:9], s[0:1], 0'); a('s_load_dwordx2 s[24:25], s[0:1], 96')
    a('s_load_dwordx2 s[32:33], s[0:1], 48'); a('s_load_dwordx2 s[44:45], s[0:1], 56'); a('s_load_dwordx2 s[48:49], s[0:1], 64')
    a('s_load_dwordx2 s[52:53], s[0:1], 72'); a('s_load_dwordx2 s[28:29], s[0:1], 80')
    if '--nocodepf' not in OPT:
        a('s_getpc_b64 s[40:41]'); a.lines.append('fk_pc:')
        a('s_mov_b32 s42, fk_end-fk_pc'); a('s_mov_b32 s43, 0x00020000')
        a('v_lshlrev_b32 v250, 6, v0')
        a('buffer_load_dword v251, v250, s[40:43], 0 offen')
    a('v_lshrrev_b32 v1, 6, v0'); a('v_and_b32 v15, 63, v0')
    a('v_readfirstlane_b32 s16, v1')
    a('s_and_b32 s3, s2, 0xe0'); a('s_and_b32 s17, s2, 7'); a('s_lshl_b32 s17, s17, 2'); a('s_or_b32 s3, s3, s17')
    a('s_bfe_u32 s17, s2, 0x20003'); a('s_or_b32 s3, s3, s17')
    a('s_lshr_b32 s17, s3, 4'); a('s_add_u32 s17, s17, 1'); a('s_cmp_ge_u32 s3, 248'); a('s_cselect_b32 s17, 0, s17')
    a('s_cmp_ge_u32 s3, 240'); a('s_cselect_b32 s18, 7, 15'); a('s_and_b32 s18, s18, s3'); a('s_lshl_b32 s18, s18, 7')
    a('s_add_u32 s18, s18, s17')
    a('v_and_b32 v1, 31, v15'); a('v_lshrrev_b32 v2, 5, v15')
    a('v_lshlrev_b32 v14, 4, v15')
    for r, n in ((8, 2048 * 2048), (24, WSB), (28, 2048 * 2048), (32, 2048), (44, 1024 * 7168), (48, 1024 * 7168), (52, 3584 * 2048)):
        a('s_mov_b32 %s, 0x%x' % (s(r + 2), n)); a('s_mov_b32 %s, 0x00020000' % s(r + 3))
    a('s_cmp_ge_u32 s3, 248'); a('s_cselect_b32 s12, 5, 4')
    a('s_cmp_ge_u32 s16, s12'); a('s_cbranch_scc1 fk_H')
    XA, XB = 16, 32
    F1, TC, TS, B3, C2, S2 = 48, 56, 72, 88, 96, 104
    X, D1, D2, D3, Q16, GA = 112, 128, 144, 160, 176, 184
    T = 128
    a('s_setprio 3')
    a('s_lshl_b32 s19, s16, 5'); a('s_add_u32 s19, s19, s18')
    a('s_sub_u32 s20, 2048, s19'); a('s_and_b32 s20, s20, 2047')
    a('s_lshl_b32 s21, s19, 11'); a('s_lshl_b32 s22, s20, 11')
    a('s_lshl_b32 s12, s16, 12'); a('s_add_u32 s12, s12, %d' % LX)
    a('s_mov_b32 m0, s12')
    for i in range(32): a('v_mov_b32 %s, 0' % v(XA + i))
    a('v_cvt_f32_u32 v200, v1')
    a('v_lshlrev_b32 v7, 2, v2'); a('v_cvt_f32_u32 v7, v7')
    a('v_lshrrev_b32 v8, 1, v1'); a('v_and_b32 v9, 1, v1')
    a('v_lshlrev_b32 v205, 2, v15'); a('v_and_b32 v205, 63, v205'); a('v_add_u32 v205, %d, v205' % LSIG)
    a('ds_write_b32 v205, v16')
    a('s_waitcnt lgkmcnt(0)')
    stamp(a, 1)
    for i, so in enumerate((21, 21, 22, 22)):
        if i: a('s_add_u32 s13, s12, %d' % (1024 * i)); a('s_mov_b32 m0, s13')
        if i & 1: a('s_add_u32 s14, %s, 1024' % s(so))
        a('buffer_load_dwordx4 v14, s[8:11], %s offen lds' % (s(14) if i & 1 else s(so)))
    a('s_cmp_lg_u32 s19, 0'); a('s_cbranch_scc1 fk_no1024')
    for i in range(2):
        a('s_mov_b32 m0, %d' % (LX1024 + 1024 * i)); a('s_mov_b32 s14, %d' % (1024 * 2048 + 1024 * i))
        a('buffer_load_dwordx4 v14, s[8:11], s14 offen lds')
    a.label('fk_no1024')
    a('s_barrier')
    def put(base, n):
        for q in range(n // 4): a('ds_write_b128 v206, %s offset:%d' % (v(base + 4 * q, 4), 1024 * ((base - F1) // 4 + q)))
    a('v_add_u32 v206, %d, v14' % LROW)
    a('s_lshl_b32 s13, s16, 2'); a('s_add_u32 s13, s13, %d' % LSIG); a('v_mov_b32 v201, s13'); a('v_mov_b32 v202, 1')
    a('s_cmp_eq_u32 s16, 1'); a('s_cbranch_scc1 fk_j1')
    a('s_cmp_eq_u32 s16, 2'); a('s_cbranch_scc1 fk_j2')
    a('s_cmp_eq_u32 s16, 3'); a('s_cbranch_scc1 fk_j3')
    a('s_cmp_eq_u32 s16, 4'); a('s_cbranch_scc1 fk_jend')
    a('v_cmp_eq_u32 vcc, 1, v1')
    a('v_cndmask_b32 v10, v8, 16, vcc'); a('v_cndmask_b32 v11, v9, 0, vcc')
    a('v_cvt_f32_u32 v10, v10'); a('v_cvt_f32_u32 v11, v11')
    a('v_mul_f32 v10, %s, v10' % fh(1.0 / 32)); a('v_mul_f32 v11, %s, v11' % fh(0.25))
    a('v_add_f32 v12, v7, v7'); a('v_fma_f32 v11, v10, v12, v11')
    angles(a, 10, 11, list(range(8)) + list(range(16, 24)), T)
    for i in range(16): a('v_cos_f32 %s, %s' % (v(T + 16 + i), v(T + i)))
    for p in range(8): a('v_cvt_pk_f16_f32 %s, %s, %s' % (v(F1 + p), v(T + 16 + 2 * p), v(T + 17 + 2 * p)))
    put(F1, 8)
    a('s_branch fk_jsig')
    a.label('fk_j1')
    a('v_cvt_f32_u32 v10, v8'); a('v_lshlrev_b32 v11, 31, v9')
    a('v_mul_f32 v10, %s, v10' % fh(1.0 / 1024)); a('v_xor_b32 v10, v11, v10'); a('v_mul_f32 v11, v10, v7')
    angles(a, 10, 11, [kr(r) for r in range(16)], T)
    for r in range(16): a('v_cos_f32 %s, %s' % (v(TC + r), v(T + r)))
    put(TC, 16)
    for r in range(16): a('v_sin_f32 %s, %s' % (v(TS + r), v(T + r)))
    put(TS, 16)
    a('s_branch fk_jsig')
    a.label('fk_j2')
    gen_c2s2(a, 200, 7, C2, S2, T)
    put(C2, 16)
    a('s_branch fk_jsig')
    a.label('fk_j3')
    a('v_or_b32 v10, 16, v1'); a('v_cvt_f32_u32 v10, v10'); a('v_mov_b32 v11, %s' % fh(1.0 / 64))
    a('v_fmamk_f32 v10, v10, %s, v11' % fh(1.0 / 32))
    a('v_cmp_gt_u32 vcc, 16, v1'); a('v_mov_b32 v12, %s' % fh(-0.25)); a('v_cndmask_b32 v12, 0, v12, vcc')
    a('v_fma_f32 v11, v10, v7, v12')
    angles(a, 10, 11, [kr(r) for r in range(16)], T)
    for r in range(16): a('v_cos_f32 %s, %s' % (v(T + 16 + r), v(T + r)))
    for p in range(8): a('v_cvt_pk_f16_f32 %s, %s, %s' % (v(B3 + p), v(T + 16 + 2 * p), v(T + 17 + 2 * p)))
    put(B3, 8)
    a.label('fk_jsig')
    a('ds_write_b32 v201, v202 offset:32')
    a.label('fk_jend')
    a('v_lshlrev_b32 v3, 9, v2'); a('v_lshl_add_u32 v3, v1, 1, v3')
    a('v_sub_u32 v4, 576, v3'); a('v_sub_u32 v5, 2048, v3'); a('v_and_b32 v5, 2047, v5')
    a('v_add_u32 v3, s12, v3'); a('v_add_u32 v4, s12, v4'); a('v_add_u32 v5, s12, v5')
    a('s_lshl_b32 s13, s16, 10'); a('s_sub_u32 s14, %d, s13' % (7168 + 64))
    a('s_cmp_ge_u32 s3, 248'); a('s_cselect_b32 s15, 1024, 0'); a('s_add_u32 s14, s14, s15')
    a('s_cmp_eq_u32 s16, 4'); a('s_cselect_b32 s13, %d, s13' % (8192 + 64))
    a('s_add_u32 s13, s13, %d' % LWS); a('s_add_u32 s14, s14, %d' % LWS)
    a('v_cmp_gt_u32 vcc, 16, v1')
    a('v_mov_b32 v8, s13'); a('v_mov_b32 v9, s14')
    a('v_cndmask_b32 v10, v9, v8, vcc'); a('v_cndmask_b32 v11, v8, v9, vcc')
    a('v_lshl_add_u32 v10, v15, 2, v10'); a('v_lshl_add_u32 v11, v15, 2, v11')
    a('v_lshrrev_b32 v6, 1, v15'); a('v_and_b32 v8, 1, v15'); a('v_mul_u32_u24 v9, %d, v8' % (4096 + 64))
    a('v_lshl_add_u32 v9, v6, 2, v9'); a('s_lshl_b32 s13, s16, 8'); a('s_add_u32 s13, s13, %d' % LWS)
    a('v_and_b32 v12, 15, v6'); a('v_lshl_add_u32 v12, v12, 4, v2'); a('v_mul_u32_u24 v12, %d, v12' % OS); a('v_lshl_add_u32 v12, v8, 4, v12')
    a('v_add_u32 v6, s13, v9')
    a('s_mul_i32 s36, s3, %d' % OS); a('s_lshl_b32 s13, s16, 11'); a('s_add_u32 s36, s36, s13'); a('s_add_u32 s36, s36, 0x%x' % WOFF)
    a('s_mul_i32 s37, s16, %d' % (4 * OS)); a('s_lshl_b32 s14, s3, 5'); a('s_add_u32 s37, s37, s14'); a('s_add_u32 s37, s37, 0x%x' % WOFF)
    a('s_add_u32 s38, s37, %d' % (2 * OS))
    a('s_add_u32 s13, s13, %d' % LA2); a('v_add_u32 v7, s13, v14')
    a('s_cmp_eq_u32 s19, s20'); a('s_cselect_b32 s39, 0.5, 1.0')
    a('s_lshl_b32 s13, s16, 2'); a('s_add_u32 s13, s13, %d' % LG5S); a('v_mov_b32 v9, s13')
    a('s_cmp_ge_u32 s3, 248'); a('s_cselect_b32 s43, 63, 47')
    a.label('fk_spinc')
    a('ds_read_b32 v203, v205'); a('s_waitcnt lgkmcnt(0)'); a('v_cmp_eq_u32 vcc, 0, v203')
    a('s_and_b32 s13, vcc_lo, 0xf00'); a('s_cbranch_scc1 fk_spinc')
    for q in range(16):
        a('ds_read_b128 %s, v206 offset:%d' % (v(F1 + 4 * q, 4), 1024 * q))
        if q == 11: a('s_waitcnt lgkmcnt(8)')
    stamp(a, 2)
    a('s_waitcnt vmcnt(0) lgkmcnt(0)')
    stamp(a, 3)
    for j in range(2):
        for i in range(8):
            a('ds_read_u16_d16_hi %s, v3 offset:%d' % (v(XA + 8 * j + i), 1024 * j + 64 * i))
    a('s_waitcnt lgkmcnt(2)')
    for j in range(2):
        for i in range(8):
            if j == 0 and i == 0: a('ds_read_u16_d16_hi %s, v5 offset:2048' % v(XB))
            else: a('ds_read_u16_d16_hi %s, v4 offset:%d' % (v(XB + 8 * j + i), 2048 + 1024 * (1 - j) + 64 * (7 - i)))
            if j == 1 and i == 4: a('s_waitcnt lgkmcnt(8)')
    def sums(R, t):
        for i in range(4): a('v_pk_add_f32 %s, %s, %s' % (v(t + 2 * i, 2), v(R + 4 * i, 2), v(R + 4 * i + 2, 2)))
        a('v_pk_mul_f32 %s, %s, %s' % (v(t + 8, 2), v(R, 2), v(R, 2)))
        a('v_pk_mul_f32 %s, %s, %s' % (v(t + 10, 2), v(R + 2, 2), v(R + 2, 2)))
        for i in range(2, 8):
            acc = t + 8 + 2 * (i & 1)
            a('v_pk_fma_f32 %s, %s, %s, %s' % (v(acc, 2), v(R + 2 * i, 2), v(R + 2 * i, 2), v(acc, 2)))
        a('v_pk_add_f32 %s, %s, %s' % (v(t, 2), v(t, 2), v(t + 2, 2))); a('v_pk_add_f32 %s, %s, %s' % (v(t + 4, 2), v(t + 4, 2), v(t + 6, 2)))
        a('v_pk_add_f32 %s, %s, %s' % (v(t + 8, 2), v(t + 8, 2), v(t + 10, 2)))
        a('v_pk_add_f32 %s, %s, %s' % (v(t, 2), v(t, 2), v(t + 4, 2)))
        a('v_add_f32 %s, %s, %s' % (v(t + 8), v(t + 8), v(t + 9)))
        a('v_add_f32 %s, %s, %s' % (v(t), v(t), v(t + 1)))
    sums(XA, T)
    a('s_waitcnt lgkmcnt(0)')
    sums(XB, T + 12)
    reduce4(a, T, T + 12, T + 8, T + 20)
    ln_chain(a, T, T + 1, T + 2)
    a('v_mul_f32 %s, %s, %s' % (v(T + 2), fh(1.0 / 16), v(T + 2)))
    a('v_mul_f32 %s, %s, %s' % (v(T + 1), v(T + 1), v(T + 2)))
    a('v_readlane_b32 s4, %s, 16' % v(T + 2)); a('v_readlane_b32 s6, %s, 48' % v(T + 2))
    a('v_readlane_b32 s13, %s, 16' % v(T + 1)); a('v_readlane_b32 s14, %s, 48' % v(T + 1))
    a('v_mov_b32 %s, s13' % v(T + 4)); a('v_add_f32 %s, s14, %s' % (v(T + 4), v(T + 4)))
    for i in range(8):
        a('v_pk_fma_f32 %s, %s, s[6:7], %s op_sel_hi:[1,0,0] neg_lo:[0,0,1] neg_hi:[0,0,1]' % (v(XB + 2 * i, 2), v(XB + 2 * i, 2), v(T + 4, 2)))
    for i in range(8):
        a('v_pk_fma_f32 %s, %s, s[4:5], %s op_sel_hi:[1,0,1]' % (v(XA + 2 * i, 2), v(XA + 2 * i, 2), v(XB + 2 * i, 2)))
    for p in range(8): a('v_cvt_pk_f16_f32 %s, %s, %s' % (v(Q16 + p), v(XA + 2 * p), v(XA + 2 * p + 1)))
    a('v_mfma_f32_32x32x16_f16 %s, %s, %s, 0' % (v(X, 16), v(Q16, 4), v(F1, 4)))
    a('v_mfma_f32_32x32x16_f16 %s, %s, %s, %s' % (v(X, 16), v(Q16 + 4, 4), v(F1 + 4, 4), v(X, 16)))
    W = XA
    for r in range(8): a('v_pk_mul_f32 %s, %s, %s' % (v(W + 2 * r, 2), v(X + 2 * r, 2), v(TC + 2 * r, 2)))
    for r in range(8): a('v_fmac_f32_dpp %s, %s, %s quad_perm:[1,0,3,2] %s' % (v(W + r), v(X + r), v(TS + r), DPPF))
    for p in range(4): a('v_cvt_pk_f16_f32 %s, %s, %s' % (v(Q16 + p), v(W + 2 * p), v(W + 2 * p + 1)))
    a('v_fmac_f32_dpp %s, %s, %s quad_perm:[1,0,3,2] %s' % (v(W + 8), v(X + 8), v(TS + 8), DPPF))
    a('v_fmac_f32_dpp %s, %s, %s quad_perm:[1,0,3,2] %s' % (v(W + 9), v(X + 9), v(TS + 9), DPPF))
    mm = [(D1, C2), (D2, S2), (D3, B3)]
    rest = ['v_fmac_f32_dpp %s, %s, %s quad_perm:[1,0,3,2] %s' % (v(W + r), v(X + r), v(TS + r), DPPF) for r in range(10, 16)]
    rest += ['v_cvt_pk_f16_f32 %s, %s, %s' % (v(Q16 + p), v(W + 2 * p), v(W + 2 * p + 1)) for p in range(4, 8)]
    for n, (Dd, B) in enumerate(mm):
        a('v_mfma_f32_32x32x16_f16 %s, %s, %s, 0' % (v(Dd, 16), v(Q16, 4), v(B, 4)))
        for x in rest[4 * n:4 * n + 4]: a(x)
    for (Dd, B) in mm:
        a('v_mfma_f32_32x32x16_f16 %s, %s, %s, %s' % (v(Dd, 16), v(Q16 + 4, 4), v(B + 4, 4), v(Dd, 16)))
    a('v_cmp_gt_u32 vcc, 16, v15')
    a('v_cmp_gt_u32 s[40:41], 32, v15')
    Z = XA
    P = XB
    def zz(u):
        a('v_pk_add_f32 %s, %s, %s op_sel:[0,1] op_sel_hi:[1,0] neg_hi:[0,1]' % (v(Z + 2 * u, 2), v(D1 + 2 * u, 2), v(D2 + 2 * u, 2)))
    def pp(p):
        A_, B_ = v(Z + 4 * p, 2), v(Z + 4 * p + 2, 2)
        a('v_pk_add_f32 %s, %s, %s op_sel:[0,1] op_sel_hi:[1,0] neg_lo:[0,1]' % (v(P + 4 * p, 2), A_, B_))
        a('v_pk_add_f32 %s, %s, %s op_sel:[0,1] op_sel_hi:[1,0] neg_hi:[1,0]' % (v(P + 4 * p + 2, 2), A_, B_))
        a('v_cvt_pk_f16_f32 %s, %s, %s' % (v(Q16 + 2 * p), v(P + 4 * p), v(P + 4 * p + 1)))
        a('v_cvt_pk_f16_f32 %s, %s, %s' % (v(Q16 + 2 * p + 1), v(P + 4 * p + 2), v(P + 4 * p + 3)))
        a('ds_write_b32 v10, %s offset:%d' % (v(Q16 + 2 * p), 256 * p))
        a('ds_write_b32 v11, %s offset:%d' % (v(Q16 + 2 * p + 1), 256 * p))
    ZR, ZI = Z, Z + 1
    for p in (1, 2, 3):
        zz(2 * p); zz(2 * p + 1); pp(p)
    zz(0); zz(1)
    a('v_mul_f32 v8, s39, %s' % v(D1))
    a('v_mov_b32 v3, %s' % v(D3 + 1))
    a('v_permlane16_swap_b32 v4, v3')
    a('v_cndmask_b32 v5, %s, %s, vcc' % (v(D3 + 1), v(D1)))
    a('v_cndmask_b32 v4, v4, %s, vcc' % v(D2))
    a('v_cndmask_b32 %s, %s, v5, s[40:41]' % (v(ZR), v(ZR)))
    a('v_cndmask_b32 %s, %s, -v4, s[40:41]' % (v(ZI), v(ZI)))
    pp(0)
    a('s_mov_b64 exec, 0x10000')
    a('ds_write_b32 v9, v8')
    a('ds_write_b32 v201, v202')
    a('s_mov_b64 exec, -1')
    a('s_cmp_eq_u32 s16, 4'); a('s_cbranch_scc1 fk_w4')
    stamp(a, 4)
    a.label('fk_spin')
    a('ds_read_b32 v3, v205'); a('s_waitcnt lgkmcnt(0)'); a('v_cmp_eq_u32 vcc, 0, v3')
    a('s_and_b32 s13, vcc_lo, s43'); a('s_cbranch_scc1 fk_spin')
    a.label('fk_staged')
    stamp(a, 12, True)
    for q in range(2):
        a('ds_read2st64_b32 %s, v6 offset0:%d offset1:%d' % (v(GA + 4 * q, 2), 0, 4) if q == 0 else
          'ds_read2st64_b32 %s, v8 offset0:%d offset1:%d' % (v(GA + 4 * q, 2), 0, 4))
        a('ds_read2st64_b32 %s, %s offset0:%d offset1:%d' % (v(GA + 4 * q + 2, 2), 'v6' if q == 0 else 'v8', 8, 12))
        if q == 0: a('v_add_u32 v8, 128, v6')
    for q in range(2):
        a('s_waitcnt lgkmcnt(%d)' % (2 - 2 * q))
        for i in range(4): a('v_min_u32 %s, -2, %s' % (v(GA + 4 * q + i), v(GA + 4 * q + i)))
        a('buffer_store_dwordx4 %s, v14, s[24:27], s36 offen offset:%d sc1' % (v(GA + 4 * q, 4), 1024 * q))
    unit_setup(a)
    a('s_mov_b32 s42, 0')
    a('s_waitcnt vmcnt(0)')
    stamp(a, 5)
    a.label('fk_spinf')
    a('ds_read_b32 v3, v205'); a('s_waitcnt lgkmcnt(0)'); a('v_cmp_eq_u32 vcc, 0, v3')
    a('s_and_b32 s13, vcc_lo, 64'); a('s_cbranch_scc1 fk_spinf')
    stamp(a, 13, True)
    if KA:
        a('buffer_load_dwordx4 %s, v12, s[24:27], s37 offen sc1' % v(GA, 4))
        a('buffer_load_dwordx4 %s, v12, s[24:27], s38 offen sc1' % v(GA + 4, 4))
        window(a, UA, KA, 16, 0, skip='fk_waitw')
        a('s_waitcnt vmcnt(%d)' % KA)
        a('s_branch fk_chkw')
    a.label('fk_pollw')
    a('buffer_load_dwordx4 %s, v12, s[24:27], s37 offen sc1' % v(GA, 4))
    a('buffer_load_dwordx4 %s, v12, s[24:27], s38 offen sc1' % v(GA + 4, 4))
    a.label('fk_waitw')
    a('s_waitcnt vmcnt(0)')
    a.label('fk_chkw')
    poll_check(a, list(range(GA, GA + 8)), 3, 42, 'fk_pollw', 'fk_gotw', wait=False)
    stamp(a, 6)
    a('ds_write_b128 v7, %s' % v(GA, 4)); a('ds_write_b128 v7, %s offset:1024' % v(GA + 4, 4))
    a('s_waitcnt lgkmcnt(0)')
    a('s_barrier')
    a('s_setprio 0')
    stamp(a, 7)
    a('s_lshl_b32 s13, s16, 10'); a('s_add_u32 s14, s13, 0x%x' % G5); a('s_add_u32 s13, s13, %d' % LG5)
    a('v_add_u32 v7, s13, v14'); a('v_mov_b32 v3, 4096'); a('s_mov_b32 s15, 0x%x' % G5); a('v_mov_b32 v8, %d' % LG5E)
    a('buffer_load_dwordx4 %s, v14, s[24:27], s14 offen sc1' % v(GA, 4))
    a('buffer_load_dword %s, v3, s[24:27], s15 offen sc1' % v(GA + 4))
    a('s_mov_b32 s40, s14'); a('s_mov_b32 s41, s15')
    window(a, UB, KB, 16, 0, PB)
    a('s_mov_b32 s42, 0')
    a('s_cmp_gt_u32 s3, 223'); a('s_cbranch_scc1 fk_pollg')
    a('s_waitcnt vmcnt(%d)' % (min(KB, PB + 1) if UB + 4 * KB <= 96 else 0))
    a('s_branch fk_chkg')
    a.label('fk_pollg')
    a('buffer_load_dwordx4 %s, v14, s[24:27], s40 offen sc1' % v(GA, 4))
    a('buffer_load_dword %s, v3, s[24:27], s41 offen sc1' % v(GA + 4))
    a('s_waitcnt vmcnt(0)')
    a.label('fk_chkg')
    poll_check(a, list(range(GA, GA + 5)), 4, 42, 'fk_pollg', 'fk_gotg', wait=False)
    a('ds_write_b128 v7, %s' % v(GA, 4)); a('ds_write_b32 v8, %s' % v(GA + 4))
    stamp(a, 14, True)
    a('s_branch fk_common')
    a.label('fk_w4')
    a('s_setprio 0')
    a('s_branch fk_Hconst')
    a.label('fk_H')
    A, B1, TC, TS, C2, S2, V, D1, D2, T16, AD, CS = 16, 48, 80, 96, 112, 120, 128, 144, 160, 176, 184, 192
    a('s_barrier')
    a('s_cmp_eq_u32 s16, 6'); a('s_cbranch_scc1 fk_h6')
    a('s_cmp_lg_u32 s16, 7'); a('s_cbranch_scc1 fk_Hconst')
    for i in range(4): a('v_mov_b32 %s, -1' % v(4 + i))
    a('s_mul_i32 s36, s3, %d' % OS); a('s_add_u32 s38, s36, 0x%x' % YOFF); a('s_add_u32 s39, s38, 4096')
    a('s_add_u32 s36, s36, 0x%x' % WOFF); a('s_add_u32 s37, s36, 4096')
    a('v_mov_b32 v3, %d' % LKEY); a('v_mov_b32 v8, 0'); a('ds_write_b32 v3, v8')
    a('v_lshlrev_b32 v3, 12, v15'); a('s_lshl_b32 s13, s3, 4'); a('s_add_u32 s14, s13, 0x%x' % KEYS); a('s_add_u32 s15, s13, 0x%x' % G5)
    a('s_add_u32 s13, s13, 0x%x' % FLAGS)
    a('s_waitcnt lgkmcnt(0)')
    stamp(a, 1)
    a('s_load_dword s56, s[24:25], 0')
    for i in range(8): a('buffer_store_dwordx4 v[4:7], v14, s[24:27], %s offen offset:%d sc1' % (s(36 + (i >> 2)), 1024 * (i & 3)))
    a('s_cmp_eq_u32 s3, 255'); a('s_cselect_b64 exec, 3, 1')
    a('buffer_store_dwordx4 v[4:7], v14, s[24:27], s15 offen sc1')
    a('s_mov_b64 exec, -1')
    stamp(a, 12, True)
    a('s_waitcnt lgkmcnt(0)')
    a('s_add_u32 s56, s56, 1'); a('s_xor_b32 s57, s56, 0x%x' % TAGC)
    a('v_mov_b32 v202, s56'); a('v_mov_b32 v203, s57'); a('v_mov_b32 v201, %d' % (LSIG + 20)); a('v_mov_b32 v204, 1')
    if not R7:
        a('s_waitcnt vmcnt(0)')
        a('s_mov_b64 exec, 0xff')
        a('buffer_store_dwordx2 v[202:203], v3, s[24:27], s13 offen sc1')
        a('s_mov_b64 exec, -1')
        a('ds_write_b32 v201, v204')
        stamp(a, 2)
        for i in range(2):
            a('s_mov_b32 m0, %d' % (LWR + 1024 * i)); a('s_mov_b32 s12, %d' % (1024 * i))
            a('buffer_load_dwordx4 v14, s[32:35], s12 offen lds')
    if F7E: a('s_waitcnt vmcnt(2)'); a('s_branch fk_f7')
    a('s_branch fk_Hconst')
    a.label('fk_h6')
    if not REORD:
        for i in range(4): a('v_mov_b32 %s, -1' % v(4 + i))
        a('s_mul_i32 s38, s3, %d' % OS); a('s_add_u32 s38, s38, 0x%x' % YOFF); a('s_add_u32 s39, s38, 4096')
        a('v_lshlrev_b32 v3, 12, v15'); a('s_lshl_b32 s14, s3, 4'); a('s_add_u32 s14, s14, 0x%x' % KEYS)
        a('v_mov_b32 v205, %d' % (LSIG + 20))
        a.label('fk_h6s')
        a('s_sleep 1')
        a('ds_read_b32 v8, v205'); a('s_waitcnt lgkmcnt(0)'); a('v_readfirstlane_b32 s13, v8')
        a('s_cmp_eq_u32 s13, 0'); a('s_cbranch_scc1 fk_h6s')
        for i in range(8): a('buffer_store_dwordx4 v[4:7], v14, s[24:27], %s offen offset:%d sc1' % (s(38 + (i >> 2)), 1024 * (i & 3)))
        if not LATECLR:
            a('s_lshl_b32 s12, s3, 12'); a('s_add_u32 s12, s12, 0x%x' % CAND)
            for i in range(4): a('buffer_store_dwordx4 v[4:7], v14, s[24:27], s12 offen offset:%d sc1' % (1024 * i))
            a('s_lshl_b32 s12, s3, 10'); a('s_add_u32 s12, s12, 0x%x' % P2)
            a('s_cmp_gt_u32 s3, 223'); a('s_cselect_b32 s12, 0x%x, s12' % WSB)
            a('buffer_store_dwordx4 v[4:7], v14, s[24:27], s12 offen sc1')
            a('s_lshl_b32 s12, s3, 9'); a('s_add_u32 s12, s12, 0x%x' % P1)
            a('s_cmp_gt_u32 s3, 223'); a('s_cselect_b32 s12, 0x%x, s12' % WSB)
            a('s_mov_b32 exec_hi, 0')
            a('buffer_store_dwordx4 v[4:7], v14, s[24:27], s12 offen sc1')
            a('s_mov_b32 exec_lo, 0xff')
            a('buffer_store_dwordx4 v[4:7], v3, s[24:27], s14 offen sc1')
        a('s_mov_b64 exec, -1')
    a.label('fk_Hconst')
    a('s_sub_u32 s20, s16, 4')
    unit_setup(a)
    a('s_and_b32 s12, s20, 1'); a('s_lshl_b32 s12, s12, 6'); a('v_xor_b32 v206, s12, v208'); a('v_xor_b32 v207, 64, v206')
    a('s_mov_b32 s6, 0x700000'); a('s_mov_b32 s7, 0x00020000')
    a('s_cmp_gt_u32 s3, 223'); a('s_cselect_b32 s36, 3, s20')
    a('s_waitcnt lgkmcnt(0)')
    TLB = int(optval('tlb', '0'))
    if TLB:
        a('s_cmp_lg_u32 s16, 5'); a('s_cbranch_scc1 fk_notlb')
        a('v_lshlrev_b32 v252, %d, v15' % TLB)
        for sr in [int(x) for x in optval('tlbl', '48,52,28').split(',')]: a('buffer_load_dword v253, v252, %s, 0 offen' % s(sr, 4))
        a.label('fk_notlb')
    PACE = int(optval('pace', '99')); GAP = int(optval('gap', '8')); FIRST = int(optval('first', '4')); DELAY = int(optval('delay', '0'))
    def gu(n):
        g = ['s_cmp_eq_u32 s36, 3', 's_cbranch_scc1 fk_gu%d' % n, 's_add_u32 s37, s20, %d' % (3 * n),
             's_lshl_b32 s12, s37, 10', 's_mov_b32 m0, s12', 's_cmp_lt_u32 s37, 32', 's_cselect_b64 s[4:5], s[44:45], s[48:49]',
             's_and_b32 s37, s37, 31', 's_mul_i32 s37, s37, %d' % (8 * 7168), 's_add_u32 s37, s37, s100']
        if n >= PACE: g.append('s_waitcnt vmcnt(%d)' % PACE)
        g.append('buffer_load_dwordx4 %s, s[4:7], s37 offen lds' % ('v207' if n & 1 else 'v206'))
        g.append('@fk_gu%d' % n)
        return g
    assert NH <= 21
    groups = [sum([gu(n) for n in range(min(FIRST, NH))], [])] + [gu(n) for n in range(FIRST, NH)]
    a.inject(groups, GAP); a.cnt = GAP - DELAY
    a('v_lshrrev_b32 v4, 1, v1')
    a('v_and_b32 v5, 1, v4'); a('v_lshrrev_b32 v6, 2, v4'); a('v_lshl_add_u32 v5, v6, 1, v5')
    a('v_and_b32 v6, 2, v4'); a('v_lshl_add_u32 v5, v6, 2, v5')
    a('s_and_b32 s13, s20, 1'); a('s_mul_i32 s13, s13, 15'); a('v_xor_b32 v5, s13, v5')
    a('s_lshl_b32 s13, s20, 4'); a('v_add_u32 v5, s13, v5')
    a('v_cvt_f32_u32 v5, v5')
    a('v_and_b32 v9, 1, v1')
    a('v_lshlrev_b32 v7, 2, v2'); a('v_cvt_f32_u32 v7, v7')
    a('v_cvt_f32_u32 v10, v9')
    a('v_mul_f32 v8, %s, v5' % fh(1.0 / 64))
    a('v_mul_f32 v10, %s, v10' % fh(0.25))
    a('v_fma_f32 v10, v8, v7, v10')
    T = V
    for half in range(2):
        ks = [8 * kap + u for kap in range(4 * half, 4 * half + 4) for u in range(4)]
        angles(a, 8, 10, ks, T)
        for i in range(16): a('v_cos_f32 %s, %s' % (v(T + 16 + i), v(T + i)))
        for i in range(16): a('v_sin_f32 %s, %s' % (v(T + 32 + i), v(T + i)))
        for i in range(16): a('v_cvt_pk_f16_f32 %s, %s, %s' % (v(B1 + 16 * half + i), v(T + 16 + i), v(T + 32 + i)))
    pend, a.pending = a.pending, None
    a('s_cmp_lg_u32 s16, 6'); a('s_cbranch_scc1 fk_H7')
    if REORD:
        for i in range(4): a('v_mov_b32 %s, -1' % v(16 + i))
        a('s_mul_i32 s38, s3, %d' % OS); a('s_add_u32 s38, s38, 0x%x' % YOFF); a('s_add_u32 s39, s38, 4096')
        a('v_lshlrev_b32 v3, 12, v15'); a('s_lshl_b32 s14, s3, 4'); a('s_add_u32 s14, s14, 0x%x' % KEYS)
        a('v_mov_b32 v205, %d' % (LSIG + 24))
        a.label('fk_h6s')
        a('s_sleep 1')
        a('ds_read_b32 v20, v205'); a('s_waitcnt lgkmcnt(0)'); a('v_readfirstlane_b32 s13, v20')
        a('s_cmp_eq_u32 s13, 0'); a('s_cbranch_scc1 fk_h6s')
        for i in range(8): a('buffer_store_dwordx4 v[16:19], v14, s[24:27], %s offen offset:%d sc1' % (s(38 + (i >> 2)), 1024 * (i & 3)))
        if not LATECLR:
            a('s_lshl_b32 s12, s3, 12'); a('s_add_u32 s12, s12, 0x%x' % CAND)
            for i in range(4): a('buffer_store_dwordx4 v[16:19], v14, s[24:27], s12 offen offset:%d sc1' % (1024 * i))
            a('s_lshl_b32 s12, s3, 10'); a('s_add_u32 s12, s12, 0x%x' % P2)
            a('s_cmp_gt_u32 s3, 223'); a('s_cselect_b32 s12, 0x%x, s12' % WSB)
            a('buffer_store_dwordx4 v[16:19], v14, s[24:27], s12 offen sc1')
            a('s_lshl_b32 s12, s3, 9'); a('s_add_u32 s12, s12, 0x%x' % P1)
            a('s_cmp_gt_u32 s3, 223'); a('s_cselect_b32 s12, 0x%x, s12' % WSB)
            a('s_mov_b32 exec_hi, 0')
            a('buffer_store_dwordx4 v[16:19], v14, s[24:27], s12 offen sc1')
            a('s_mov_b32 exec_lo, 0xff')
            a('buffer_store_dwordx4 v[16:19], v3, s[24:27], s14 offen sc1')
        a('s_mov_b64 exec, -1')
    else:
        a('v_lshlrev_b32 v205, 2, v15'); a('v_and_b32 v205, 63, v205'); a('v_add_u32 v205, %d, v205' % LSIG)
        a('s_cmp_ge_u32 s3, 248'); a('s_cselect_b32 s43, 31, 15')
        a('v_and_b32 v3, 16, v14'); a('v_add_u32 v3, %d, v3' % LG5S)
        a('s_lshl_b32 s13, s3, 4'); a('s_add_u32 s13, s13, 0x%x' % G5)
        a('s_waitcnt vmcnt(0)')
        a.label('fk_h6t')
        a('ds_read_b32 v4, v205'); a('s_waitcnt lgkmcnt(0)'); a('v_cmp_eq_u32 vcc, 0, v4')
        a('s_and_b32 s12, vcc_lo, s43'); a('s_cbranch_scc1 fk_h6t')
        a('ds_read_b128 v[16:19], v3')
        a('s_waitcnt lgkmcnt(0)')
        for i in range(4): a('v_min_u32 %s, -2, %s' % (v(16 + i), v(16 + i)))
        a('s_cmp_eq_u32 s3, 255'); a('s_cselect_b64 exec, 3, 1')
        a('buffer_store_dwordx4 v[16:19], v14, s[24:27], s13 offen sc1')
        a('s_mov_b64 exec, -1')
        stamp(a, 4)
    a.label('fk_H7')
    if F7E:
        a('s_branch fk_Hb')
        a.label('fk_f7')
        if R7:
            a('v_lshlrev_b32 v200, 12, v15'); a('s_lshl_b32 s59, s3, 4'); a('s_add_u32 s59, s59, 0x%x' % FLAGS)
            a('s_waitcnt vmcnt(0)')
            a('s_mov_b64 exec, 0xff')
            a('buffer_store_dwordx2 v[202:203], v200, s[24:27], s59 offen sc1')
            a('s_mov_b64 exec, -1')
            a('ds_write_b32 v201, v204')
            stamp(a, 2)
            for i in range(2):
                a('s_mov_b32 m0, %d' % (LWR + 1024 * i)); a('s_mov_b32 s12, %d' % (1024 * i))
                a('buffer_load_dwordx4 v14, s[32:35], s12 offen lds')
            a('s_waitcnt vmcnt(2)')
        a('s_and_b32 s13, s2, 7'); a('s_lshl_b32 s13, s13, 12'); a('s_add_u32 s13, s13, 0x%x' % FLAGS)
        a('s_mov_b32 s59, 0')
        stamp(a, 3)
        a.label('fk_pollf')
        for i in range(4): a('buffer_load_dwordx2 %s, v14, s[24:27], s13 offen offset:%d sc1' % (v(A + 2 * i, 2), 1024 * i))
        a('s_add_u32 s59, s59, 1')
        a('s_waitcnt vmcnt(0)')
        for i in range(4):
            a('v_xor_b32 %s, s56, %s' % (v(A + 2 * i), v(A + 2 * i))); a('v_xor_b32 %s, s57, %s' % (v(A + 2 * i + 1), v(A + 2 * i + 1)))
        a('v_or3_b32 %s, %s, %s, %s' % (v(A), v(A), v(A + 1), v(A + 2))); a('v_or3_b32 %s, %s, %s, %s' % (v(A + 3), v(A + 3), v(A + 4), v(A + 5)))
        a('v_or3_b32 %s, %s, %s, %s' % (v(A), v(A), v(A + 6), v(A + 7))); a('v_or_b32 %s, %s, %s' % (v(A), v(A), v(A + 3)))
        a('v_cmp_ne_u32 vcc, 0, %s' % v(A))
        a('s_cmp_gt_u32 s59, 0x40000'); a('s_cbranch_scc1 fk_gotf')
        a('s_cbranch_vccnz fk_pollf')
        a.label('fk_gotf')
        a('ds_write_b32 v201, v204 offset:4')
        stamp(a, 4)
        a('s_cmp_lg_u32 s3, 0'); a('s_cbranch_scc1 fk_Hconst')
        a('v_mov_b32 v3, s56'); a('s_mov_b64 exec, 1')
        a('buffer_store_dword v3, v14, s[24:27], 0 offen sc1')
        a('s_mov_b64 exec, -1')
        a('s_branch fk_Hconst')
    else:
        a('s_cmp_lg_u32 s16, 7'); a('s_cbranch_scc1 fk_Hb')
        if R7:
            a('v_lshlrev_b32 v200, 12, v15'); a('s_lshl_b32 s59, s3, 4'); a('s_add_u32 s59, s59, 0x%x' % FLAGS)
            a('s_waitcnt vmcnt(0)')
            a('s_mov_b64 exec, 0xff')
            a('buffer_store_dwordx2 v[202:203], v200, s[24:27], s59 offen sc1')
            a('s_mov_b64 exec, -1')
            a('ds_write_b32 v201, v204')
            stamp(a, 2)
            for i in range(2):
                a('s_mov_b32 m0, %d' % (LWR + 1024 * i)); a('s_mov_b32 s12, %d' % (1024 * i))
                a('buffer_load_dwordx4 v14, s[32:35], s12 offen lds')
            a('s_waitcnt vmcnt(2)')
        a('s_and_b32 s13, s2, 7'); a('s_lshl_b32 s13, s13, 12'); a('s_add_u32 s13, s13, 0x%x' % FLAGS)
        a('s_mov_b32 s59, 0')
        stamp(a, 3)
        a.label('fk_pollf')
        for i in range(4): a('buffer_load_dwordx2 %s, v14, s[24:27], s13 offen offset:%d sc1' % (v(A + 2 * i, 2), 1024 * i))
        a('s_add_u32 s59, s59, 1')
        a('s_waitcnt vmcnt(0)')
        for i in range(4):
            a('v_xor_b32 %s, s56, %s' % (v(A + 2 * i), v(A + 2 * i))); a('v_xor_b32 %s, s57, %s' % (v(A + 2 * i + 1), v(A + 2 * i + 1)))
        a('v_or3_b32 %s, %s, %s, %s' % (v(A), v(A), v(A + 1), v(A + 2))); a('v_or3_b32 %s, %s, %s, %s' % (v(A + 3), v(A + 3), v(A + 4), v(A + 5)))
        a('v_or3_b32 %s, %s, %s, %s' % (v(A), v(A), v(A + 6), v(A + 7))); a('v_or_b32 %s, %s, %s' % (v(A), v(A), v(A + 3)))
        a('v_cmp_ne_u32 vcc, 0, %s' % v(A))
        a('s_cmp_gt_u32 s59, 0x40000'); a('s_cbranch_scc1 fk_gotf')
        a('s_cbranch_vccnz fk_pollf')
        a.label('fk_gotf')
        a('ds_write_b32 v201, v204 offset:4')
        stamp(a, 4)
        a('s_cmp_lg_u32 s3, 0'); a('s_cbranch_scc1 fk_Hb')
        a('v_mov_b32 v3, s56'); a('s_mov_b64 exec, 1')
        a('buffer_store_dword v3, v14, s[24:27], 0 offen sc1')
        a('s_mov_b64 exec, -1')
    a.label('fk_Hb')
    a.pending = pend
    a('v_lshlrev_b32 v11, 31, v9')
    a('v_mul_f32 v10, %s, v5' % fh(1.0 / 2048)); a('v_xor_b32 v10, v11, v10'); a('v_mul_f32 v11, v10, v7')
    angles(a, 10, 11, [kr(r) for r in range(16)], T)
    for r in range(16): a('v_cos_f32 %s, %s' % (v(TC + r), v(T + r)))
    for r in range(16): a('v_sin_f32 %s, %s' % (v(TS + r), v(T + r)))
    a('v_sub_u32 v4, 31, v1'); a('v_subrev_u32 v5, 1, v1')
    a('v_cmp_lt_u32 vcc, 16, v1')
    a('v_cndmask_b32 v4, v5, v4, vcc'); a('v_and_b32 v4, 15, v4')
    a('v_lshlrev_b32 v4, 5, v4'); a('v_add_u32 v4, %d, v4' % LA2)
    a('v_lshlrev_b32 v5, 9, v2')
    a('v_add_u32 v6, v4, v5')
    a('v_sub_u32 v7, v4, v5'); a('v_add_u32 v7, %d, v7' % (15 * 512 + 16))
    a('v_cmp_eq_u32 s[38:39], 0, v1')
    a('v_mov_b32 v8, 4096')
    a('v_cndmask_b32 v8, 0, v8, s[38:39]')
    a('v_add_u32 v6, v6, v8'); a('v_add_u32 v7, v7, v8')
    a('v_and_b32 v8, 15, v1'); a('v_cmp_eq_u32 s[38:39], 0, v8')
    a('s_or_b64 s[40:41], s[38:39], vcc')
    for k in range(8):
        a('v_add_u32 %s, %d, v6' % (v(AD + k), 1024 * k)); a('v_subrev_u32 v8, %d, v7' % (1024 * k))
        a('v_cndmask_b32 %s, %s, v8, %s' % (v(AD + k), v(AD + k), 'vcc' if k < 4 else 's[40:41]'))
    def posD(d, x, t):
        a('v_and_b32 %s, 3, %s' % (v(t), v(x))); a('v_lshlrev_b32 %s, 2, %s' % (v(t), v(t))); a('v_lshlrev_b32 %s, 3, %s' % (v(d), v(x))); a('v_sub_u32 %s, %s, %s' % (v(d), v(d), v(t)))
    def posM(d, x, t):
        a('v_and_b32 %s, 3, %s' % (v(t), v(x))); a('v_mul_u32_u24 %s, 12, %s' % (v(t), v(t))); a('v_lshlrev_b32 %s, 3, %s' % (v(d), v(x))); a('v_sub_u32 %s, %s, %s' % (v(d), v(d), v(t))); a('v_add_u32 %s, 28, %s' % (v(d), v(d)))
    a('s_lshr_b32 s13, s20, 1'); a('v_lshl_add_u32 v3, v1, 1, s13')
    a('s_and_b32 s13, s20, 1'); a('s_sub_u32 s14, 64, s13')
    posD(4, 3, 8)
    a('v_sub_u32 v5, 63, v3'); posM(6, 5, 8)
    a('v_sub_u32 v5, s14, v3'); posM(7, 5, 8)
    a('v_cmp_gt_u32 vcc, 32, v3'); a('v_cndmask_b32 v7, v7, v4, vcc')
    a('v_cmp_eq_u32 vcc, 32, v5'); a('v_cndmask_b32 v7, v7, 28, vcc')
    a('s_cmp_eq_u32 s13, 0'); a('s_cselect_b32 s14, 256, 0'); a('s_cselect_b32 s15, 576, 0')
    a('s_cselect_b64 s[38:39], -1, 0')
    a('s_add_u32 s14, s14, %d' % (240 * 32)); a('s_sub_u32 s15, %d, s15' % LWS)
    a('v_cmp_gt_u32 vcc, 32, v3'); a('v_cndmask_b32 v7, v7, v4, vcc')
    a('v_add_u32 v7, s14, v7')
    a('v_cndmask_b32 v4, v6, v4, s[38:39]'); a('v_lshl_add_u32 v4, v2, 12, v4')
    for r in (4, 7): a('v_lshrrev_b32 v8, 7, %s' % v(r)); a('v_lshl_add_u32 %s, v8, 4, %s' % (v(r), v(r)))
    a('v_add_u32 v11, s15, v4'); a('v_add_u32 v7, %d, v7' % LWS)
    a('v_add_u32 v12, %d, v11' % (7 * 576))
    a('v_cmp_eq_u32 vcc, s13, v2')
    a('s_and_b64 s[40:41], vcc, s[38:39]'); a('s_andn2_b64 s[38:39], vcc, s[38:39]')
    a('v_cndmask_b32 v10, v11, v7, s[40:41]'); a('v_cndmask_b32 v12, v12, v7, s[38:39]')
    a('s_lshl_b32 s23, s20, 5'); a('s_add_u32 s23, s23, s18')
    def y5cos():
        a('v_and_b32 v3, 15, v15'); a('v_lshrrev_b32 v4, 4, v15'); a('v_lshl_add_u32 v3, v3, 7, v4'); a('v_add_u32 v3, 1, v3')
        a('v_cmp_le_u32 vcc, 56, v15'); a('v_mov_b32 v4, %d' % (2048 - 1040)); a('v_cndmask_b32 v4, 0, v4, vcc'); a('v_add_u32 v4, v3, v4')
        for r in (3, 4):
            a('v_mul_u32_u24 %s, s23, %s' % (v(r), v(r))); a('v_and_b32 %s, 2047, %s' % (v(r), v(r)))
            a('v_cvt_f32_u32 %s, %s' % (v(r), v(r))); a('v_mul_f32 %s, %s, %s' % (v(r), fh(1.0 / 2048), v(r)))
        a('v_cvt_f32_u32 v5, s23'); a('v_mul_f32 v5, %s, v5' % fh(1.0 / 2048))
        angles(a, 5, 3, [32 * w + 4 * q for q in range(3) for w in range(4)], CS)
        angles(a, 5, 4, [32 * w + 12 for w in range(4)], CS + 12)
        for i in range(16): a('v_cos_f32 %s, %s' % (v(CS + i), v(CS + i)))
    a.inject_flush()
    stamp(a, 5)
    y5cos()
    if LATECLR:
        a('s_cmp_lg_u32 s16, 7'); a('s_cbranch_scc1 fk_nolc')
        for i in range(4): a('v_mov_b32 %s, -1' % v(4 + i))
        a('v_lshlrev_b32 v3, 12, v15'); a('s_lshl_b32 s14, s3, 4'); a('s_add_u32 s14, s14, 0x%x' % KEYS)
        a('s_lshl_b32 s12, s3, 12'); a('s_add_u32 s12, s12, 0x%x' % CAND)
        for i in range(4): a('buffer_store_dwordx4 v[4:7], v14, s[24:27], s12 offen offset:%d sc1' % (1024 * i))
        a('s_lshl_b32 s12, s3, 10'); a('s_add_u32 s12, s12, 0x%x' % P2)
        a('s_cmp_gt_u32 s3, 223'); a('s_cselect_b32 s12, 0x%x, s12' % WSB)
        a('buffer_store_dwordx4 v[4:7], v14, s[24:27], s12 offen sc1')
        a('s_lshl_b32 s12, s3, 9'); a('s_add_u32 s12, s12, 0x%x' % P1)
        a('s_cmp_gt_u32 s3, 223'); a('s_cselect_b32 s12, 0x%x, s12' % WSB)
        a('s_mov_b32 exec_hi, 0')
        a('buffer_store_dwordx4 v[4:7], v14, s[24:27], s12 offen sc1')
        a('s_mov_b32 exec_lo, 0xff')
        a('buffer_store_dwordx4 v[4:7], v3, s[24:27], s14 offen sc1')
        a('s_mov_b64 exec, -1')
        a.label('fk_nolc')
    if REORD:
        a('s_cmp_lg_u32 s16, 6'); a('s_cbranch_scc1 fk_H8')
        a('v_lshlrev_b32 v21, 2, v15'); a('v_and_b32 v21, 63, v21'); a('v_add_u32 v21, %d, v21' % LSIG)
        a('s_cmp_ge_u32 s3, 248'); a('s_cselect_b32 s43, 31, 15')
        a('v_and_b32 v3, 16, v14'); a('v_add_u32 v3, %d, v3' % LG5S)
        a('s_lshl_b32 s13, s3, 4'); a('s_add_u32 s13, s13, 0x%x' % G5)
        a('s_waitcnt vmcnt(7)')
        a.label('fk_h6u')
        a('ds_read_b32 v4, v21'); a('s_waitcnt lgkmcnt(0)'); a('v_cmp_eq_u32 vcc, 0, v4')
        a('s_and_b32 s12, vcc_lo, s43'); a('s_cbranch_scc1 fk_h6u')
        a('ds_read_b128 v[16:19], v3')
        a('s_waitcnt lgkmcnt(0)')
        for i in range(4): a('v_min_u32 %s, -2, %s' % (v(16 + i), v(16 + i)))
        a('s_cmp_eq_u32 s3, 255'); a('s_cselect_b64 exec, 3, 1')
        a('buffer_store_dwordx4 v[16:19], v14, s[24:27], s13 offen sc1')
        a('s_mov_b64 exec, -1')
        stamp(a, 4)
        a.label('fk_H8')
    a('v_add_u32 v9, %d, v14' % LROW)
    a('s_setprio 2')
    stamp(a, 6)
    a('s_barrier')
    stamp(a, 7)
    for k in range(8): a('ds_read_b128 %s, %s' % (v(A + 4 * k, 4), v(AD + k)))
    for q in range(4): a('ds_read_b128 %s, v9 offset:%d' % (v(C2 + 4 * q, 4), 1024 * (12 + q)))
    for k in range(8):
        a('s_waitcnt lgkmcnt(%d)' % (11 - k))
        a('v_mfma_f32_32x32x16_f16 %s, %s, %s, %s' % (v(V, 16), v(A + 4 * k, 4), v(B1 + 4 * k, 4), '0' if k == 0 else v(V, 16)))
    W = A
    for r in range(8): a('v_pk_mul_f32 %s, %s, %s' % (v(W + 2 * r, 2), v(V + 2 * r, 2), v(TC + 2 * r, 2)))
    for r in range(8): a('v_fmac_f32_dpp %s, %s, %s quad_perm:[1,0,3,2] %s' % (v(W + r), v(V + r), v(TS + r), DPPF))
    for p in range(4): a('v_cvt_pk_f16_f32 %s, %s, %s' % (v(T16 + p), v(W + 2 * p), v(W + 2 * p + 1)))
    rest = ['v_fmac_f32_dpp %s, %s, %s quad_perm:[1,0,3,2] %s' % (v(W + r), v(V + r), v(TS + r), DPPF) for r in range(8, 16)]
    rest += ['v_cvt_pk_f16_f32 %s, %s, %s' % (v(T16 + p), v(W + 2 * p), v(W + 2 * p + 1)) for p in range(4, 8)]
    for x in rest[0:2]: a(x)
    a('s_waitcnt lgkmcnt(0)')
    a('v_mfma_f32_32x32x16_f16 %s, %s, %s, 0' % (v(D1, 16), v(T16, 4), v(C2, 4)))
    for x in rest[2:7]: a(x)
    a('v_mfma_f32_32x32x16_f16 %s, %s, %s, 0' % (v(D2, 16), v(T16, 4), v(S2, 4)))
    for x in rest[7:]: a(x)
    for (Dd, B) in ((D1, C2), (D2, S2)):
        a('v_mfma_f32_32x32x16_f16 %s, %s, %s, %s' % (v(Dd, 16), v(T16 + 4, 4), v(B + 4, 4), v(Dd, 16)))
    for u in range(8):
        a('v_pk_add_f32 %s, %s, %s op_sel:[0,1] op_sel_hi:[1,0] neg_hi:[0,1]' % (v(A + 2 * u, 2), v(D1 + 2 * u, 2), v(D2 + 2 * u, 2)))
    for u in range(8):
        a('v_cvt_pk_bf16_f32 %s, %s, %s' % (v(B1 + u), v(A + 2 * u), v(A + 2 * u + 1)))
        if u == 0: a('ds_write_b32 v10, %s' % v(B1))
        elif u == 7: a('ds_write_b32 v12, %s' % v(B1 + 7))
        else: a('ds_write_b32 v11, %s offset:%d' % (v(B1 + u), 576 * u))
    stamp(a, 14, True)
    if LATECLR: a('s_waitcnt vmcnt(0)')
    if REORD: a('s_waitcnt vmcnt(0)')
    a.label('fk_common')
    a('v_lshlrev_b32 v4, 4, v0'); a('v_lshrrev_b32 v5, 3, v0'); a('v_lshl_add_u32 v5, v5, 4, v4'); a('v_add_u32 v5, %d, v5' % LWS)
    a('s_mul_i32 s17, s3, %d' % OS); a('s_add_u32 s17, s17, 0x%x' % YOFF)
    a('s_waitcnt lgkmcnt(0)'); a('s_barrier')
    stamp(a, 8)
    a('s_setprio 0')
    a('ds_read_b128 v[16:19], v5')
    XR, WP, YR, H, HN, HP, TMP, OUT = 20, 28, 36, 48, 64, 80, 96, 112
    a('s_sub_u32 s13, 7, s16'); a('s_cmp_lt_u32 s16, 4'); a('s_cselect_b32 s13, s16, s13'); a('s_cselect_b32 s14, 0, 2048')
    a('s_lshl_b32 s21, s13, 5'); a('s_add_u32 s21, s21, s18'); a('s_sub_u32 s22, 2048, s21'); a('s_and_b32 s22, s22, 2047')
    a('s_cmp_lt_u32 s16, 4'); a('s_cselect_b32 s21, s21, s22')
    a('s_lshl_b32 s13, s13, 12'); a('s_add_u32 s13, s13, s14'); a('s_add_u32 s13, s13, %d' % LX)
    a('s_lshl_b32 s14, s3, 3'); a('s_add_u32 s19, s14, s16')
    a('s_cmp_eq_u32 s19, %d' % (248 * 8 + 7)); a('s_cselect_b32 s21, 1024, s21'); a('s_cselect_b32 s13, %d, s13' % LX1024)
    a('s_lshl_b32 s22, s21, 11')
    a('v_add_u32 v6, s13, v14'); a('v_add_u32 v7, %d, v14' % LWR)
    a('s_waitcnt lgkmcnt(0)')
    for i in range(4): a('v_min_u32 %s, -2, %s' % (v(16 + i), v(16 + i)))
    a('buffer_store_dwordx4 v[16:19], v4, s[24:27], s17 offen sc1')
    a('ds_read_b128 %s, v6' % v(XR, 4)); a('ds_read_b128 %s, v6 offset:1024' % v(XR + 4, 4))
    a('ds_read_b128 %s, v7' % v(WP, 4)); a('ds_read_b128 %s, v7 offset:1024' % v(WP + 4, 4))
    a('s_cmp_lt_u32 s16, 4'); a('s_cbranch_scc1 fk_noy5')
    window(a, UE, KE, 16, 4, PE)
    G5R = 128
    a('v_add_u32 v3, %d, v14' % LG5); a('v_mov_b32 v4, %d' % LG5E)
    for q in range(4): a('ds_read_b128 %s, v3 offset:%d' % (v(G5R + 4 * q, 4), 1024 * q))
    a('ds_read_b32 v9, v4')
    a('s_lshl_b32 s38, s20, 2'); a('s_sub_u32 s39, 28, s38')
    a('s_waitcnt lgkmcnt(0)')
    a.label('fk_y5')
    for kk in range(2): a('v_pk_mul_f32 %s, %s, %s' % (v(144 + 2 * kk, 2), v(G5R + 2 * kk, 2), v(CS + 2 * kk, 2)))
    for kk in range(2, 8): a('v_pk_fma_f32 %s, %s, %s, %s' % (v(144 + 2 * (kk & 1), 2), v(G5R + 2 * kk, 2), v(CS + 2 * kk, 2), v(144 + 2 * (kk & 1), 2)))
    a('v_pk_add_f32 v[144:145], v[144:145], v[146:147]')
    a('v_add_f32 v144, v144, v145')
    a('s_lshl_b32 s13, s23, 31'); a('v_xor_b32 v12, s13, v9')
    wave_reduce(a, [144])
    a('v_add_f32 v144, v144, v12'); a('v_add_f32 v144, v144, v144'); rbf(a, 144)
    a('s_add_u32 s13, s38, %d' % LY5); a('s_add_u32 s14, s39, %d' % LY5)
    a('v_mov_b32 v10, s13'); a('v_mov_b32 v11, s14')
    a('s_mov_b32 exec_lo, 0'); a('s_mov_b32 exec_hi, 0x80000000')
    a('ds_write_b32 v10, v144'); a('ds_write_b32 v11, v144')
    a('s_mov_b64 exec, -1')
    a('s_cmp_lg_u32 s23, 0'); a('s_cbranch_scc1 fk_noy5')
    a('s_mov_b32 s23, 1024'); a('s_mov_b32 s38, 28')
    y5cos()
    a('s_branch fk_y5')
    a.label('fk_noy5')
    a('v_lshrrev_b32 v1, 1, v0'); a('v_and_b32 v45, 1, v0')
    a('v_lshrrev_b32 v2, 4, v1'); a('v_and_b32 v3, 15, v1')
    a('v_cmp_gt_u32 vcc, 8, v3')
    a('v_sub_u32 v6, 16, v3'); a('v_and_b32 v6, 7, v6'); a('v_sub_u32 v5, 31, v2')
    a('v_cndmask_b32 v6, v6, v3, vcc'); a('v_cndmask_b32 v5, v5, v2, vcc')
    a('v_lshl_add_u32 v4, v6, 5, v5'); a('v_mul_u32_u24 v4, %d, v4' % OS); a('v_lshl_add_u32 v4, v45, 4, v4')
    a('s_lshl_b32 s17, s3, 5'); a('s_add_u32 s17, s17, 0x%x' % YOFF)
    a('v_cndmask_b32 v6, -1, 1, vcc')
    a('v_cmp_eq_u32 vcc, 8, v3')
    a('v_mul_u32_u24 v46, %d, v45' % (4 * RS)); a('v_add_u32 v46, %d, v46' % LROW)
    a('v_cndmask_b32 v6, v6, 15, vcc')
    a('v_lshlrev_b32 v9, 2, v1'); a('v_lshl_add_u32 v10, v6, 1, v9')
    a('v_add_u32 v9, v46, v9'); a('v_add_u32 v10, v46, v10')
    a('s_mul_i32 s36, s16, %d' % RS); a('s_add_u32 s36, s36, %d' % LROW); a('v_add_u32 v5, s36, v14')
    a('s_sub_u32 s36, 7, s16'); a('s_cmp_eq_u32 s21, 0'); a('s_cselect_b32 s36, 0, s36'); a('s_cmp_eq_u32 s21, 1024'); a('s_cselect_b32 s36, 7, s36')
    a('s_mul_i32 s36, s36, %d' % RS); a('s_add_u32 s36, s36, %d' % (LROW + 1008)); a('v_sub_u32 v11, s36, v14')
    a('v_mov_b32 v8, 0x10000')
    a('s_lshl_b32 s36, s16, 2'); a('s_add_u32 s36, s36, %d' % LY5); a('v_mov_b32 v6, s36')
    a('s_mov_b32 s36, 0xffff0000'); a('s_mov_b32 s37, 0x3f803f80'); a('s_mov_b32 s38, 8.0')
    a('s_waitcnt lgkmcnt(0)')
    for k in range(8):
        a('v_lshlrev_b32 %s, 16, %s' % (v(H + 2 * k), v(XR + k))); a('v_and_b32 %s, s36, %s' % (v(H + 2 * k + 1), v(XR + k)))
    a('v_mov_b32 v44, 0')
    for k in range(8): a('v_dot2c_f32_bf16 v44, s37, %s' % v(WP + k))
    wave_reduce(a, [44])
    a('v_readlane_b32 s39, v44, 63')
    a('s_mov_b32 s42, 0')
    a('s_waitcnt vmcnt(0)')
    stamp(a, 9)
    if CPOST and KC and UC < 96:
        a('buffer_load_dwordx4 %s, v4, s[24:27], s17 offen sc1' % v(YR, 4))
        window(a, UC, KC, 16, 0, skip='fk_waity')
        a('s_waitcnt vmcnt(%d)' % KC)
        a('s_branch fk_chky')
    a.label('fk_polly')
    a('buffer_load_dwordx4 %s, v4, s[24:27], s17 offen sc1' % v(YR, 4))
    a.label('fk_waity')
    a('s_waitcnt vmcnt(0)')
    a.label('fk_chky')
    poll_check(a, list(range(YR, YR + 4)), 46, 42, 'fk_polly', 'fk_goty', wait=False)
    stamp(a, 10)
    for u in range(4):
        a('ds_write_b16 v9, %s offset:%d' % (v(YR + u), u * RS))
        a('ds_write_b16_d16_hi v10, %s offset:%d' % (v(YR + u), u * RS))
    if not CPOST: window(a, UC, KC, 16, 0, PC)
    a('v_mov_b32 v2, 0'); a('v_mov_b32 v3, 0'); a('v_mov_b32 v4, 0'); a('v_mov_b32 v7, 0')
    a('v_mov_b32 v12, %d' % LKEY)
    a('s_waitcnt lgkmcnt(0)')
    a('s_barrier')
    stamp(a, 11)
    a('ds_read_b128 %s, v5' % v(YR, 4)); a('ds_read_b128 %s, v11' % v(YR + 4, 4)); a('ds_read_b32 v44, v6')
    a('s_waitcnt lgkmcnt(2)')
    for k in range(4):
        a('v_lshlrev_b32 %s, 16, %s' % (v(HN + 2 * k), v(YR + k))); a('v_and_b32 %s, s36, %s' % (v(HN + 2 * k + 1), v(YR + k)))
    a('s_waitcnt lgkmcnt(0)')
    stamp(a, 15, True)
    a('v_readfirstlane_b32 s13, v44')
    a('v_mul_u32_u24_dpp %s, %s, v8 wave_shr:1 row_mask:0xf bank_mask:0xf' % (v(HN + 8), v(YR + 4)))
    for j in (3, 2, 1, 0):
        a('v_and_b32 %s, s36, %s' % (v(HN + 15 - 2 * j), v(YR + 4 + j)))
        if j: a('v_lshlrev_b32 %s, 16, %s' % (v(HN + 16 - 2 * j), v(YR + 4 + j)))
    a('v_writelane_b32 %s, s13, 0' % v(HN + 8))
    for k in [0, 1, 2, 3, 5, 6, 7, 4]:
        a('v_pk_fma_f32 %s, %s, s[38:39], %s op_sel_hi:[1,0,1]' % (v(H + 2 * k, 2), v(HN + 2 * k, 2), v(H + 2 * k, 2)))
    for k in [0, 1, 2, 3, 5, 6, 7, 4]: a('v_cvt_pk_bf16_f32 %s, %s, %s' % (v(HP + k), v(H + 2 * k), v(H + 2 * k + 1)))
    for k in [0, 1, 2, 3, 5, 6, 7, 4]:
        a('v_dot2c_f32_bf16 v2, s37, %s' % v(HP + k)); a('v_dot2c_f32_bf16 v3, %s, %s' % (v(HP + k), v(HP + k)))
        a('v_dot2c_f32_bf16 v4, %s, %s' % (v(HP + k), v(WP + k)))
    reduce4(a, 2, 4, 3, 7)
    a('v_readlane_b32 s13, v2, 32')
    ln_chain(a, 2, 8, 9)
    a('v_mov_b32 v10, s13'); a('v_fma_f32 v10, -v8, s39, v10'); a('v_mul_f32 v10, v10, v9'); a('v_mul_f32 v8, v8, v9')
    a('v_readlane_b32 s43, v10, 16'); a('v_readlane_b32 s4, v9, 16'); a('v_readlane_b32 s6, v8, 16')
    a('s_ashr_i32 s13, s43, 31'); a('s_or_b32 s13, s13, 0x80000000'); a('s_xor_b32 s43, s43, s13')
    a('s_and_b32 s43, s43, 0xfffff800'); a('s_or_b32 s43, s43, s19'); a('s_min_u32 s43, s43, -2')
    a('v_mov_b32 v2, s43')
    a('s_mov_b64 exec, 1')
    a('ds_max_u32 v12, v2')
    a('s_mov_b64 exec, -1')
    stamp(a, 16, True)
    a('v_mov_b32 v10, s6'); a('v_add_f32 v8, 1.0, v9')
    a('v_lshlrev_b32 v4, 12, v15'); a('s_lshl_b32 s17, s3, 4'); a('s_add_u32 s17, s17, 0x%x' % KEYS)
    a('v_readlane_b32 s14, v8, 16')
    a('s_waitcnt lgkmcnt(0)')
    a('s_barrier')
    a('ds_read_b32 v3, v12')
    for k in range(8):
        a('v_lshlrev_b32 %s, 16, %s' % (v(H + 2 * k), v(HP + k))); a('v_and_b32 %s, s36, %s' % (v(H + 2 * k + 1), v(HP + k)))
    a('s_waitcnt lgkmcnt(0)')
    a('v_readfirstlane_b32 s13, v3')
    stamp(a, 12)
    stamp(a, 17, True)
    def out_regs():
        for k in range(8):
            a('v_pk_fma_f32 %s, %s, s[14:15], v[10:11] op_sel_hi:[1,0,0] neg_lo:[0,0,1] neg_hi:[0,0,1]' % (v(HN + 2 * k, 2), v(H + 2 * k, 2)))
        for k in range(8): a('v_cvt_pk_bf16_f32 %s, %s, %s' % (v(OUT + k), v(HN + 2 * k), v(HN + 2 * k + 1)))
    def out_store():
        a('buffer_store_dwordx4 %s, v14, s[28:31], s22 offen%s' % (v(OUT, 4), OUTF))
        a('buffer_store_dwordx4 %s, v14, s[28:31], s22 offen offset:1024%s' % (v(OUT + 4, 4), OUTF))
    AH, BF, BD, ACC, KEY, PP, D2R = 16, 128, 160, 176, 180, 184, 192
    def frag_preload():
        a('v_lshrrev_b32 v1, 4, v15'); a('v_bfe_u32 v2, v15, 2, 2')
        a('v_lshl_add_u32 v8, v1, 3, v2'); a('v_lshlrev_b32 v8, 7, v8')
        a('v_bfe_u32 v9, v15, 1, 1'); a('s_and_b32 s15, s16, 3'); a('s_lshl_b32 s15, s15, 1'); a('v_add_u32 v9, s15, v9')
        a('v_and_b32 v3, 2, v2'); a('v_xor_b32 v9, v3, v9'); a('v_and_b32 v3, 1, v1'); a('v_lshlrev_b32 v4, 2, v3'); a('v_xor_b32 v9, v4, v9')
        a('v_lshl_add_u32 v8, v9, 4, v8'); a('v_and_b32 v9, 1, v15'); a('v_lshl_add_u32 v8, v9, 3, v8')
        a('s_lshr_b32 s15, s16, 2'); a('s_lshl_b32 s15, s15, 15'); a('v_add_u32 v8, s15, v8')
        a('v_lshrrev_b32 v7, 1, v1'); a('v_lshl_add_u32 v7, v7, 3, v2'); a('v_lshlrev_b32 v7, 9, v7'); a('v_lshl_add_u32 v7, v3, 5, v7')
        a('v_and_b32 v3, 3, v15'); a('v_lshl_add_u32 v7, v3, 3, v7'); a('s_lshl_b32 s15, s16, 6'); a('s_add_u32 s15, s15, %d' % LD); a('v_add_u32 v7, s15, v7')
        a('v_lshlrev_b32 v9, 4, v1'); a('v_add_u32 v9, %d, v9' % LHN)
    def landed_add():
        if LATE:
            a('v_mov_b32 v1, %d' % (LSIG + 48)); a('v_mov_b32 v2, 1'); a('s_mov_b64 exec, 1'); a('ds_add_u32 v1, v2'); a('s_mov_b64 exec, -1')
    def frag_reads(tag):
        if LATE:
            a.label('fk_land' + tag)
            a('ds_read_b32 v2, v1'); a('s_waitcnt lgkmcnt(0)'); a('v_readfirstlane_b32 s15, v2')
            a('s_cmp_lt_u32 s15, 8'); a('s_cbranch_scc1 fk_land' + tag)
        for k in range(8):
            a('ds_read_b64_tr_b16 %s, v8 offset:%d' % (v(BF + 4 * k, 2), 4096 * k))
            a('ds_read_b64_tr_b16 %s, v8 offset:%d' % (v(BF + 4 * k + 2, 2), 4096 * k + 512))
            if k == 5: a('s_waitcnt lgkmcnt(4)')
    a('s_cmp_lg_u32 s13, s43'); a('s_cbranch_scc1 fk_other')
    a('s_mov_b64 exec, 0xff')
    a('buffer_store_dword v2, v4, s[24:27], s17 offen sc1')
    a('s_mov_b64 exec, -1')
    for k in range(8):
        a('v_pk_fma_f32 %s, %s, s[4:5], v[10:11] op_sel_hi:[1,0,0] neg_lo:[0,0,1] neg_hi:[0,0,1]' % (v(HN + 2 * k, 2), v(H + 2 * k, 2)))
    for k in range(8): a('v_cvt_pk_bf16_f32 %s, %s, %s' % (v(TMP + k), v(HN + 2 * k), v(HN + 2 * k + 1)))
    for k in range(8): a('v_min_u32 %s, -2, %s' % (v(TMP + k), v(TMP + k)))
    a('s_lshl_b32 s13, s3, 12'); a('s_add_u32 s13, s13, 0x%x' % CAND)
    a('buffer_store_dwordx4 %s, v14, s[24:27], s13 offen sc1' % v(TMP, 4))
    a('buffer_store_dwordx4 %s, v14, s[24:27], s13 offen offset:1024 sc1' % v(TMP + 4, 4))
    for k in range(8): a('v_min_u32 %s, -2, %s' % (v(HP + k), v(HP + k)))
    a('buffer_store_dwordx4 %s, v14, s[24:27], s13 offen offset:2048 sc1' % v(HP, 4))
    a('buffer_store_dwordx4 %s, v14, s[24:27], s13 offen offset:3072 sc1' % v(HP + 4, 4))
    out_regs()
    frag_preload()
    if not LATE: frag_reads('a')
    a('s_and_b32 s13, s2, 7'); a('s_lshl_b32 s13, s13, 12'); a('s_add_u32 s13, s13, 0x%x' % KEYS)
    a('s_mov_b32 s42, 0')
    a('s_waitcnt vmcnt(4)')
    landed_add()
    a.label('fk_pollk')
    for i in range(4): a('buffer_load_dword %s, v14, s[24:27], s13 offen offset:%d sc1' % (v(KEY + i), 1024 * i))
    poll_check(a, list(range(KEY, KEY + 4)), 3, 42, 'fk_pollk', 'fk_gotk')
    stamp(a, 13)
    wave_reduce(a, [3], op='v_max_u32')
    a('v_readlane_b32 s40, v3, 63')
    a('v_mov_b32 v4, %d' % LWIN)
    a('s_bfe_u32 s13, s40, 0x80003'); a('s_lshl_b32 s13, s13, 12'); a('s_and_b32 s14, s3, 3'); a('s_lshl_b32 s14, s14, 9')
    a('s_add_u32 s13, s13, s14'); a('s_add_u32 s13, s13, 0x%x' % CAND)
    a('v_lshlrev_b32 v5, 3, v15'); a('v_mov_b32 v3, s40')
    a('s_cmp_gt_u32 s3, 223'); a('s_cbranch_scc1 fk_norow')
    a('s_mov_b32 s42, 0')
    if LATE:
        a('buffer_load_dwordx2 %s, v5, s[24:27], s13 offen sc1' % v(KEY, 2))
        frag_reads('a')
        a('s_branch fk_chkr')
    a.label('fk_pollr')
    a('buffer_load_dwordx2 %s, v5, s[24:27], s13 offen sc1' % v(KEY, 2))
    a.label('fk_chkr')
    poll_check(a, [KEY, KEY + 1], 6, 42, 'fk_pollr', 'fk_gotr')
    a('v_add_u32 v5, %d, v5' % LHN)
    a('ds_write_b64 v5, %s' % v(KEY, 2))
    a.label('fk_norow')
    a('ds_write_b32 v4, v3')
    a('s_waitcnt lgkmcnt(0)')
    a('s_barrier')
    a('s_cmp_eq_u32 s40, s43')
    if OUTAT == 'early':
        a('s_cbranch_scc1 fk_ffn')
        out_store()
    else: a('s_cselect_b32 s22, 0x400000, s22')
    a('s_branch fk_ffn')
    a.label('fk_other')
    out_regs()
    if OUTAT == 'early': out_store()
    a('s_and_b32 s13, s13, 7'); a('s_cmp_gt_u32 s16, s13'); a('s_cselect_b32 s13, 1, 0'); a('s_sub_u32 s17, s16, s13')
    if UD >= 64:
        if LATE: a('s_waitcnt vmcnt(0)')
        frag_preload()
        landed_add()
        window(a, UD, KD, 17, 0, PD)
        frag_reads('b')
        a('s_waitcnt lgkmcnt(0)' if DLATE else 's_waitcnt vmcnt(0) lgkmcnt(0)')
    else:
        window(a, UD, KD, 17, 0, PD)
        frag_preload()
        a('s_waitcnt vmcnt(0)')
        landed_add()
        frag_reads('b')
        a('s_waitcnt lgkmcnt(0)')
    a('s_barrier')
    a.label('fk_ffn')
    stamp(a, 14)
    if OUTAT == 'bf': out_store()
    a('s_cmp_gt_u32 s3, 223'); a('s_cbranch_scc1 %s' % ('fk_lateout' if OUTAT in ('p1', 'end') else 'fk_fin'))
    for k in range(8): a('ds_read_b128 %s, v9 offset:%d' % (v(AH + 4 * k, 4), 64 * k))
    a('v_mov_b32 v3, %d' % LWIN); a('ds_read_b32 v12, v3')
    a('v_and_b32 v4, 15, v15'); a('v_lshlrev_b32 v4, 3, v4')
    a('s_lshl_b32 s13, s3, 9'); a('s_and_b32 s14, s16, 3'); a('s_lshl_b32 s14, s14, 7'); a('s_add_u32 s13, s13, s14')
    a('s_lshr_b32 s14, s16, 2'); a('s_lshl_b32 s14, s14, 2'); a('s_add_u32 s13, s13, s14'); a('s_add_u32 s13, s13, 0x%x' % P1)
    for k in range(8):
        a('s_waitcnt lgkmcnt(%d)' % (8 - k))
        a('v_mfma_f32_16x16x32_bf16 %s, %s, %s, %s' % (v(ACC, 4), v(AH + 4 * k, 4), v(BF + 4 * k, 4), '0' if k == 0 else v(ACC, 4)))
    a('v_lshlrev_b32 v5, 3, v15'); a('v_lshlrev_b32 v6, 2, v15')
    a('v_lshrrev_b32 v9, 5, v15'); a('v_lshlrev_b32 v9, 4, v9'); a('v_add_u32 v9, %d, v9' % LACT)
    a('s_lshl_b32 s41, s3, 10'); a('s_lshl_b32 s14, s16, 7'); a('s_add_u32 s41, s41, s14'); a('s_add_u32 s41, s41, 0x%x' % P2)
    a('v_min_u32 %s, -2, %s' % (v(ACC), v(ACC)))
    a('s_mov_b64 exec, 0xffff')
    a('buffer_store_dword %s, v4, s[24:27], s13 offen sc1' % v(ACC))
    a('s_mov_b64 exec, -1')
    if OUTAT == 'p1': out_store()
    def bd_reads(tag, add=True):
        if DLATE:
            if add:
                a('s_waitcnt vmcnt(0)')
                a('s_mov_b64 exec, 1'); a('ds_add_u32 v1, v8'); a('s_mov_b64 exec, -1')
            a.label('fk_dl' + tag)
            a('ds_read_b32 v13, v1'); a('s_waitcnt lgkmcnt(0)'); a('v_readfirstlane_b32 s15, v13')
            a('s_cmp_lt_u32 s15, 8'); a('s_cbranch_scc1 fk_dl' + tag)
        for kk in range(4):
            a('ds_read_b64_tr_b16 %s, v7 offset:%d' % (v(BD + 4 * kk, 2), 8192 * kk))
            a('ds_read_b64_tr_b16 %s, v7 offset:%d' % (v(BD + 4 * kk + 2, 2), 8192 * kk + 2048))
    a('v_mov_b32 v1, %d' % (LSIG + 52)); a('v_mov_b32 v8, 1')
    if not DLATE: bd_reads('')
    a('s_cmp_eq_u32 s16, 7'); a('s_cbranch_scc1 fk_c1')
    a('s_cmp_lg_u32 s16, 0'); a('s_cbranch_scc1 %s' % ('fk_bd' if DLATE else 'fk_wait1'))
    a('s_lshr_b32 s13, s3, 2'); a('s_lshl_b32 s13, s13, 11'); a('s_add_u32 s13, s13, 0x%x' % P1)
    a('s_mov_b32 s42, 0')
    a('v_lshrrev_b32 v10, 2, v5'); a('v_add_u32 v10, %d, v10' % LACT)
    a('s_waitcnt vmcnt(%d)' % (2 if OUTAT == 'p1' else 0))
    if DLATE: a('s_mov_b64 exec, 1'); a('ds_add_u32 v1, v8'); a('s_mov_b64 exec, -1')
    a.label('fk_poll1')
    for i in range(4): a('buffer_load_dwordx2 %s, v5, s[24:27], s13 offen offset:%d sc1' % (v(PP + 2 * i, 2), 512 * i))
    poll_check(a, list(range(PP, PP + 8)), 11, 42, 'fk_poll1', 'fk_got1')
    stamp(a, 15)
    a('v_pk_add_f32 %s, %s, %s' % (v(PP, 2), v(PP, 2), v(PP + 2, 2))); a('v_pk_add_f32 %s, %s, %s' % (v(PP + 4, 2), v(PP + 4, 2), v(PP + 6, 2)))
    a('v_pk_add_f32 %s, %s, %s' % (v(PP, 2), v(PP, 2), v(PP + 4, 2)))
    rbf(a, PP); rbf(a, PP + 1)
    a('v_mul_f32 %s, %s, %s' % (v(PP + 2), fh(-1.4426950408889634), v(PP)))
    a('v_exp_f32 %s, %s' % (v(PP + 2), v(PP + 2)))
    a('v_add_f32 %s, 1.0, %s' % (v(PP + 2), v(PP + 2)))
    a('v_rcp_f32 %s, %s' % (v(PP + 2), v(PP + 2)))
    a('v_mul_f32 %s, %s, %s' % (v(PP), v(PP), v(PP + 2)))
    rbf(a, PP)
    a('v_mul_f32 %s, %s, %s' % (v(PP), v(PP), v(PP + 1)))
    rbf(a, PP)
    a('ds_write_b16_d16_hi v10, %s' % v(PP))
    if DLATE: bd_reads('a', False)
    a('s_branch fk_wait1')
    a.label('fk_c1')
    a('s_cmp_gt_u32 s3, 127'); a('s_cbranch_scc1 %s' % ('fk_bd' if DLATE else 'fk_wait1'))
    a('s_waitcnt lgkmcnt(0)')
    a('v_readfirstlane_b32 s40, v12')
    a('v_lshrrev_b32 v10, 4, v15'); a('v_and_b32 v11, 1, v15'); a('v_lshl_add_u32 v12, v11, 2, v10'); a('v_lshlrev_b32 v12, 1, v12')
    a('v_and_b32 v11, 12, v12'); a('v_and_b32 v10, 1, v10')
    a('s_bfe_u32 s13, s40, 0x80003'); a('s_lshl_b32 s14, s13, 12'); a('s_lshl_b32 s15, s3, 4'); a('s_add_u32 s14, s14, s15'); a('s_add_u32 s14, s14, 0x%x' % CAND)
    a('s_mov_b32 s42, 0')
    a.label('fk_pollh')
    a('buffer_load_dword v2, v11, s[24:27], s14 offen sc1')
    a('buffer_load_dword v3, v11, s[24:27], s14 offen offset:2048 sc1')
    poll_check(a, [2, 3], 4, 42, 'fk_pollh', 'fk_goth')
    a('v_cmp_eq_u32 vcc, 1, v10')
    for r in (2, 3):
        a('v_lshlrev_b32 v4, 16, %s' % v(r)); a('v_and_b32 %s, s36, %s' % (v(r), v(r))); a('v_cndmask_b32 %s, v4, %s, vcc' % (v(r), v(r)))
    a('s_lshr_b32 s14, s13, 4'); a('s_add_u32 s14, s14, 1'); a('s_cmp_ge_u32 s13, 248'); a('s_cselect_b32 s14, 0, s14')
    a('s_cmp_ge_u32 s13, 240'); a('s_cselect_b32 s15, 7, 15'); a('s_and_b32 s15, s15, s13'); a('s_lshl_b32 s15, s15, 7'); a('s_add_u32 s14, s14, s15')
    a('s_and_b32 s13, s40, 7'); a('s_sub_u32 s15, 7, s13'); a('s_min_u32 s15, s15, s13'); a('s_lshl_b32 s15, s15, 5'); a('s_add_u32 s14, s14, s15')
    a('s_sub_u32 s15, 2048, s14'); a('s_and_b32 s15, s15, 2047'); a('s_cmp_lt_u32 s13, 4'); a('s_cselect_b32 s14, s14, s15')
    a('s_and_b32 s13, s40, 0x7ff'); a('s_cmp_eq_u32 s13, %d' % (248 * 8 + 7)); a('s_cselect_b32 s14, 1024, s14')
    a('s_lshl_b32 s21, s14, 11'); a('s_lshl_b32 s15, s3, 4'); a('s_add_u32 s21, s21, s15')
    a('s_ashr_i32 s13, s40, 31'); a('s_not_b32 s13, s13'); a('s_or_b32 s13, s13, 0x80000000'); a('s_xor_b32 s13, s40, s13'); a('s_and_b32 s13, s13, 0xfffff800')
    a('v_mov_b32 v11, s13'); rbf(a, 11)
    a('v_mul_f32 v11, %s, v11' % fh(-1.4426950408889634))
    a('v_exp_f32 v11, v11'); a('v_add_f32 v11, 1.0, v11'); a('v_rcp_f32 v11, v11'); rbf(a, 11)
    a('v_lshrrev_b32 v4, 1, v15'); a('v_lshlrev_b32 v4, 12, v4'); a('v_and_b32 v5, 1, v15'); a('v_lshl_add_u32 v4, v5, 4, v4')
    a('v_add_u32 v5, %d, v4' % (32 * 4096)); a('v_cmp_gt_u32 vcc, 48, v15'); a('v_cndmask_b32 v5, -16, v5, vcc')
    a('s_lshl_b32 s40, s3, 5'); a('s_add_u32 s40, s40, 0x%x' % P2)
    if DLATE:
        a.label('fk_bd')
        bd_reads('b')
    a.label('fk_wait1')
    a('s_waitcnt lgkmcnt(0)'); a('s_barrier')
    stamp(a, 16)
    for kk in range(4): a('ds_read_b128 %s, v9 offset:%d' % (v(AH + 4 * kk, 4), 32 * kk))
    for kk in range(4):
        a('s_waitcnt lgkmcnt(%d)' % (3 - kk))
        a('v_mfma_f32_32x32x16_bf16 %s, %s, %s, %s' % (v(D2R, 16), v(AH + 4 * kk, 4), v(BD + 4 * kk, 4), '0' if kk == 0 else v(D2R, 16)))
    a('v_min_u32 %s, -2, %s' % (v(D2R), v(D2R)))
    a('s_mov_b32 exec_hi, 0')
    a('buffer_store_dword %s, v6, s[24:27], s41 offen sc1' % v(D2R))
    a('s_mov_b32 exec_hi, -1')
    if OUTAT == 'end': out_store()
    stamp(a, 17)
    a('s_cmp_lg_u32 s16, 7'); a('s_cbranch_scc1 fk_fin')
    a('s_cmp_gt_u32 s3, 127'); a('s_cbranch_scc1 fk_fin')
    PQ = 16
    a('s_mov_b32 s42, 0')
    a('s_waitcnt vmcnt(%d)' % (2 if OUTAT == 'end' else 0))
    a.label('fk_poll2')
    a('buffer_load_dwordx4 %s, v4, s[24:27], s40 offen sc1' % v(PQ, 4))
    a('buffer_load_dwordx4 %s, v5, s[24:27], s40 offen sc1' % v(PQ + 4, 4))
    poll_check(a, list(range(PQ, PQ + 8)), 6, 42, 'fk_poll2', 'fk_got2')
    stamp(a, 18)
    for h in range(2): a('v_pk_add_f32 %s, %s, %s' % (v(PQ + 2 * h, 2), v(PQ + 2 * h, 2), v(PQ + 4 + 2 * h, 2)))
    for i in range(2): a('v_permlane32_swap_b32 %s, %s' % (v(PQ + i), v(PQ + 2 + i)))
    for i in range(2): a('v_add_f32 %s, %s, %s' % (v(PQ + i), v(PQ + i), v(PQ + 2 + i)))
    a('v_permlane16_swap_b32 %s, %s' % (v(PQ), v(PQ + 1)))
    a('v_add_f32 %s, %s, %s' % (v(PQ), v(PQ), v(PQ + 1)))
    a('v_add_f32_dpp %s, %s, %s quad_perm:[2,3,0,1] %s' % (v(PQ), v(PQ), v(PQ), DPPF))
    a('v_add_f32_dpp %s, %s, %s row_ror:4 %s' % (v(PQ), v(PQ), v(PQ), DPPF))
    a('v_add_f32_dpp %s, %s, %s row_ror:8 %s' % (v(PQ), v(PQ), v(PQ), DPPF))
    rbf(a, PQ); a('v_mul_f32 %s, %s, v11' % (v(PQ), v(PQ))); rbf(a, PQ)
    a('v_add_f32 %s, %s, v2' % (v(PQ), v(PQ))); rbf(a, PQ)
    a('v_add_f32 %s, %s, v3' % (v(PQ), v(PQ))); rbf(a, PQ)
    a('s_mov_b32 exec_lo, 0x00030003'); a('s_mov_b32 exec_hi, 0x00030003')
    a('buffer_store_short_d16_hi %s, v12, s[28:31], s21 offen' % v(PQ))
    if OUTAT in ('p1', 'end'):
        a('s_branch fk_fin')
        a.label('fk_lateout')
        out_store()
    a.label('fk_fin')
    stamp_dump(a, 'x')
    a.label('fk_end')
    a('s_endpgm')

def main(path):
    a = Asm()
    ref = open('%s/%s.s.ref' % (optval('ref', '/code'), NAME)).read().splitlines()
    for l in ref:
        if l.startswith('; Override'): break
        a.raw(l)
    if LIST: a.raw('; @launch kernel=%s grid=(256,1,1) block=(512,1,1) lds=%d' % (KN, LDSB))
    else: a.raw('; @launch grid=(256,1,1) block=(512,1,1) lds=%d' % LDSB)
    a.raw('.amdgcn_target "amdgcn-amd-amdhsa--gfx950"'); a.raw('.text')
    gen(a)
    a.raw('.section .rodata,"a"')
    a.raw('\n'.join(['.p2align 6', '.amdhsa_kernel %s' % KN, '  .amdhsa_next_free_vgpr 256',
        '  .amdhsa_next_free_sgpr 102', '  .amdhsa_accum_offset 256', '  .amdhsa_group_segment_fixed_size 0',
        '  .amdhsa_kernarg_size 104', '  .amdhsa_user_sgpr_count 2', '  .amdhsa_user_sgpr_kernarg_segment_ptr 1',
        '  .amdhsa_system_sgpr_workgroup_id_x 1', '.end_amdhsa_kernel', '']))
    open(path, 'w').write(a.text())
    print('wrote', path, 'lines', len(a.lines), 'nops', a.nops, 'lds', LDSB)

if __name__ == '__main__':
    ps = [x for x in sys.argv[1:] if x.endswith('.s')]
    main(ps[0] if ps else '/code/%s.s' % NAME)
```

```python
import sys, struct
sys.path.insert(0, 'dev')
from asmlib import Asm
from readout import red
def build(src, dst, wa, ca, wb, cb, n=256, stat='mean', amp=20):
    base = open(src).read()
    a = Asm()
    a.raw('.globl ro_kernel\n.p2align 8\n.type ro_kernel,@function\nro_kernel:')
    a('s_cmp_ge_u32 s2, 1'); a('s_cbranch_scc1 ro_end')
    a('s_load_dwordx2 s[4:5], s[0:1], 96'); a('s_mov_b32 s6, 0x10000000'); a('s_mov_b32 s7, 0x20000')
    a('v_lshlrev_b32 v1, 10, v0')
    a('s_waitcnt lgkmcnt(0)')
    for i in range(4):
        r0 = 0x8000000 + i * 65536
        a('s_mov_b32 s8, 0x%x' % (r0 + wa * 128 + 4 * ca)); a('buffer_load_dword v%d, v1, s[4:7], s8 offen' % (4 + i))
        a('s_mov_b32 s8, 0x%x' % (r0 + wb * 128 + 4 * cb)); a('buffer_load_dword v%d, v1, s[4:7], s8 offen' % (8 + i))
    a('s_waitcnt vmcnt(0)')
    for i in range(4):
        a('v_sub_u32 v%d, v%d, v%d' % (8 + i, 8 + i, 4 + i)); a('v_max_i32 v%d, 0, v%d' % (8 + i, 8 + i))
        a('v_add_u32 v2, %d, v0' % (64 * i)); a('v_cmp_gt_u32 vcc, %d, v2' % n); a('v_cndmask_b32 v%d, 0, v%d, vcc' % (8 + i, 8 + i))
    op = 'v_add_u32' if stat == 'mean' else 'v_max_u32'
    for i in range(1, 4): a('%s v8, v8, v%d' % (op, 8 + i))
    red(a, 8, op)
    a('v_cvt_f32_u32 v8, v8'); a('v_mul_f32 v8, 0x%08x, v8' % struct.unpack('<I', struct.pack('<f', amp / (n if stat == 'mean' else 1)))[0]); a('v_cvt_u32_f32 v8, v8')
    a('v_readlane_b32 s10, v8, 63')
    a('s_min_u32 s10, s10, 40000')
    a('s_memrealtime s[12:13]'); a('s_waitcnt lgkmcnt(0)')
    a.label('ro_spin')
    a('s_memrealtime s[14:15]'); a('s_waitcnt lgkmcnt(0)'); a('s_sub_u32 s16, s14, s12'); a('s_cmp_lt_u32 s16, s10'); a('s_cbranch_scc1 ro_spin')
    a.label('ro_end'); a('s_endpgm')
    d = '''.p2align 6
.amdhsa_kernel ro_kernel
  .amdhsa_next_free_vgpr 16
  .amdhsa_next_free_sgpr 32
  .amdhsa_accum_offset 16
  .amdhsa_group_segment_fixed_size 0
  .amdhsa_kernarg_size 104
  .amdhsa_user_sgpr_count 2
  .amdhsa_user_sgpr_kernarg_segment_ptr 1
  .amdhsa_system_sgpr_workgroup_id_x 1
.end_amdhsa_kernel
'''
    lines = base.split('\n')
    idx = [i for i, l in enumerate(lines) if l.startswith('; @launch')]
    lines[idx[-1] + 1:idx[-1] + 1] = ['; @launch kernel=ro_kernel grid=(1,1,1) block=(64,1,1) lds=0']
    open(dst, 'w').write('\n'.join(lines).replace('.section .rodata,"a"', a.text() + '.section .rodata,"a"\n' + d, 1))
if __name__ == '__main__':
    out = []
    for spec in sys.argv[3:]:
        p = spec.split(':'); f = '%s_%s.s' % (sys.argv[2], '_'.join(p[:4]))
        build(sys.argv[1], f, int(p[0]), int(p[1]), int(p[2]), int(p[3]), int(p[4]) if len(p) > 4 else 256, p[5] if len(p) > 5 else 'mean')
        out.append('"cdna_kernels/exp/%s"' % f.split('/')[-1])
    print('[' + ', '.join(out) + ']')
```

```python
import struct, sys
from asmlib import Asm

NAME = 'sequential_preLN__spectral_fnet__moe_arch_mod__prompt'
def fh(x): return '0x%08x' % struct.unpack('<I', struct.pack('<f', x))[0]
OPT = set(a for a in sys.argv[1:] if a.startswith('--'))
def optval(name, default):
    for o in OPT:
        if o.startswith('--%s=' % name): return o[len(name) + 3:]
    return default
STAMPS = '--stamps' in OPT
LIST = '--list' in OPT or STAMPS
OUTF = {'plain': '', 'nt': ' nt', 'sc1': ' sc1'}[optval('out', 'nt')]
OUTAT = optval('outat', 'bf')
KN = 'fk_kernel' if LIST else NAME + '_kernel'

KEYS = 0x9000; G5 = 0x11000; P1 = 0x13000; P2 = 0x30000; CAND = 0x80000
OS = 9344
WOFF = 0x200000; YOFF = 0x448000; WSB = 0x690000
LG, LD, LX = 0, 65536, 98304
LX1024 = LX + 5 * 4096
LWS = LX1024 + 2048
LA2 = LWS + 9472
RS = 2064
LROW = LA2 + 8192
LWR = LROW + 8 * RS
LG5 = LX + 4 * 4096
LMISC = LWR + 2048
LG5S, LY5, LKEY, LWIN, LG5E, LACT, LHN, LSIG = LMISC, LMISC + 32, LMISC + 64, LMISC + 80, LMISC + 96, LMISC + 128, LMISC + 256, LMISC + 768
LDSB = LMISC + 832
assert LDSB <= 163840

def v(i, n=1): return 'v%d' % i if n == 1 else 'v[%d:%d]' % (i, i + n - 1)
def s(i, n=1): return 's%d' % i if n == 1 else 's[%d:%d]' % (i, i + n - 1)
DPPF = 'row_mask:0xf bank_mask:0xf'
ROWRED = ['quad_perm:[1,0,3,2] ' + DPPF, 'quad_perm:[2,3,0,1] ' + DPPF, 'row_half_mirror ' + DPPF, 'row_mirror ' + DPPF]
def wave_reduce(a, regs, op='v_add_f32'):
    for pat in ROWRED + ['row_bcast:15 row_mask:0xa bank_mask:0xf', 'row_bcast:31 row_mask:0xc bank_mask:0xf']:
        for r in regs: a('%s_dpp %s, %s, %s %s' % (op, v(r), v(r), v(r), pat))
def rbf(a, r): a('v_cvt_pk_bf16_f32 %s, 0, %s' % (v(r), v(r)))
def angles(a, mulreg, basereg, ks, tmp):
    for i, k in enumerate(ks):
        if k == 0: a('v_mov_b32 %s, %s' % (v(tmp + i), v(basereg)))
        else: a('v_fmamk_f32 %s, %s, %s, %s' % (v(tmp + i), v(mulreg), fh(float(k)), v(basereg)))
def kr(r): return (r & 3) + 8 * (r >> 2)
def gen_c2s2(a, vln_f, vlh4_f, C2, S2, tmp):
    c, b = tmp, tmp + 1
    a('v_mul_f32 %s, %s, %s' % (v(c), fh(1.0 / 32), v(vln_f)))
    a('v_mul_f32 %s, %s, %s' % (v(b), v(c), v(vlh4_f)))
    ang = tmp + 2
    angles(a, c, b, [kr(r) for r in range(16)], ang)
    for r in range(16): a('v_cos_f32 %s, %s' % (v(ang + 16 + r), v(ang + r)))
    for p in range(8): a('v_cvt_pk_f16_f32 %s, %s, %s' % (v(C2 + p), v(ang + 16 + 2 * p), v(ang + 17 + 2 * p)))
    for r in range(16): a('v_sin_f32 %s, %s' % (v(ang + 16 + r), v(ang + r)))
    for p in range(8): a('v_cvt_pk_f16_f32 %s, %s, %s' % (v(S2 + p), v(ang + 16 + 2 * p), v(ang + 17 + 2 * p)))
def reduce4(a, A, B, C, D):
    a('v_permlane32_swap_b32 %s, %s' % (v(A), v(B))); a('v_permlane32_swap_b32 %s, %s' % (v(C), v(D)))
    a('v_add_f32 %s, %s, %s' % (v(A), v(A), v(B))); a('v_add_f32 %s, %s, %s' % (v(C), v(C), v(D)))
    a('v_permlane16_swap_b32 %s, %s' % (v(A), v(C)))
    a('v_add_f32 %s, %s, %s' % (v(A), v(A), v(C)))
    for pat in ROWRED: a('v_add_f32_dpp %s, %s, %s %s' % (v(A), v(A), v(A), pat))
def ln_chain(a, tot, m, t):
    a('v_mov_b32_dpp %s, %s row_bcast:15 row_mask:0xa bank_mask:0xf' % (v(m), v(tot)))
    a('v_mul_f32 %s, %s, %s' % (v(t), fh(1.0 / 1024), v(tot)))
    a('v_mul_f32 %s, %s, %s' % (v(m), fh(1.0 / 1024), v(m)))
    a('v_fma_f32 %s, -%s, %s, %s' % (v(t), v(m), v(m), v(t)))
    a('v_max_f32 %s, 0, %s' % (v(t), v(t)))
    rbf(a, t); rbf(a, m)
    a('v_add_f32 %s, %s, %s' % (v(t), fh(1e-5), v(t))); rbf(a, t)
    a('v_sqrt_f32 %s, %s' % (v(t), v(t))); rbf(a, t)
    a('v_rcp_f32 %s, %s' % (v(t), v(t)))

NST = 20
EARLY = '--early' in OPT
def stamp(a, i, early=False):
    if STAMPS and (early == EARLY or i < 12 or i == NST - 1): a('s_memrealtime s[%d:%d]' % (60 + 2 * i, 61 + 2 * i))
def stamp_dump(a, tag):
    if not STAMPS: return
    a('s_waitcnt vmcnt(0) lgkmcnt(0)')
    stamp(a, NST - 1)
    a('s_load_dwordx2 s[4:5], s[0:1], 96'); a('s_waitcnt lgkmcnt(0)')
    a('s_add_u32 s4, s4, 0x8000000'); a('s_addc_u32 s5, s5, 0'); a('s_mov_b32 s6, 0x40000'); a('s_mov_b32 s7, 0x00020000')
    a('s_lshl_b32 s12, s2, 3'); a('s_add_u32 s12, s12, s16'); a('s_lshl_b32 s12, s12, 7')
    a('s_mov_b64 exec, 1'); a('v_mov_b32 v1, 0')
    for i in range(NST):
        a('v_mov_b32 v2, s%d' % (60 + 2 * i)); a('buffer_store_dword v2, v1, s[4:7], s12 offen offset:%d' % (4 * i))

YCHK = '--ysent' not in OPT
G2 = '--g2' in OPT
NH = int(optval('nh', '4'))
KA = int(optval('ka', '0')); CPOST = '--cpost' in OPT
KB, KE, KC, KD = (int(x) for x in optval('win', '4,0,5,4').split(','))
PB, PE, PC, PD = (int(x) for x in optval('wpace', '99,99,99,99').split(','))
assert '--now' in OPT or 3 * NH + 4 * KA + 4 * KB + 4 * KE + 8 * KC + 7 * KD >= 96, 'units missing'
def unit_setup(a):
    a('v_lshrrev_b32 v208, 3, v15'); a('v_and_b32 v209, 7, v15'); a('v_and_b32 v210, 2, v208'); a('v_xor_b32 v209, v210, v209')
    a('v_mul_u32_u24 v208, 7168, v208'); a('v_lshl_add_u32 v208, v209, 4, v208')
    a('v_lshrrev_b32 v210, 5, v15'); a('v_lshlrev_b32 v210, 11, v210'); a('v_and_b32 v209, 31, v15'); a('v_lshl_add_u32 v210, v209, 4, v210')
    a('s_and_b32 s12, s3, 3'); a('s_mul_i32 s100, s12, %d' % (256 * 7168)); a('s_lshl_b32 s101, s12, 9')
    a('s_lshr_b32 s12, s3, 2'); a('s_lshl_b32 s12, s12, 7'); a('s_add_u32 s100, s100, s12'); a('s_lshl_b32 s12, s12, 10'); a('s_add_u32 s101, s101, s12')
uid = [0]
def window(a, first, k, wreg, wbase, pace=99, skip=None):
    if k == 0 or first >= 96: return
    uid[0] += 1; lab = skip or 'fk_win%d' % uid[0]
    a('s_cmp_gt_u32 s3, 223'); a('s_cbranch_scc1 %s' % lab)
    a('s_mul_i32 s15, %s, %d' % (s(wreg), k)); a('s_add_u32 s15, s15, %d' % (first - wbase * k))
    a('s_mov_b32 s58, 0x700000'); a('s_mov_b32 s59, 0x00020000')
    for i in range(k):
        a('s_cmp_gt_u32 s15, 95'); a('s_cbranch_scc1 %s' % lab)
        a('s_lshl_b32 s12, s15, 10'); a('s_mov_b32 m0, s12')
        a('s_and_b32 s14, s12, 1024'); a('s_lshr_b32 s14, s14, 4'); a('v_xor_b32 v209, s14, v208')
        a('s_cmp_lt_u32 s15, 32'); a('s_cselect_b64 s[56:57], s[44:45], s[48:49]')
        a('s_and_b32 s14, s15, 31'); a('s_mul_i32 s13, s14, %d' % (8 * 7168)); a('s_add_u32 s13, s13, s100')
        a('s_lshl_b32 s14, s14, 12'); a('s_add_u32 s14, s14, s101')
        a('s_cmp_lt_u32 s15, 64'); a('s_cselect_b64 s[56:57], s[56:57], s[52:53]'); a('s_cselect_b32 s13, s13, s14'); a('s_cselect_b64 vcc, -1, 0')
        a('v_cndmask_b32 v209, v210, v209, vcc')
        a('s_add_u32 s15, s15, 1')
        if i >= pace: a('s_waitcnt vmcnt(%d)' % pace)
        a('buffer_load_dwordx4 v209, s[56:59], s13 offen lds')
    if not skip: a.label(lab)
UA = 3 * NH; UB = UA + 4 * KA; UE = UB + 4 * KB; UC = UE + 4 * KE; UD = UC + 8 * KC
LATE = UC < 64 and '--now' not in OPT
DLATE = UD >= 64 and UD < 96 and KD > 0 and '--nodlate' not in OPT
def chkpos(a, d):
    a('s_bfe_u32 %s, s3, 0x30002' % s(d)); a('s_lshl_b32 %s, %s, 7' % (s(d), s(d))); a('s_lshr_b32 s12, s3, 5'); a('s_lshl_b32 s12, s12, 4')
    a('s_add_u32 %s, %s, s12' % (s(d), s(d))); a('s_and_b32 s12, s3, 3'); a('s_lshl_b32 s12, s12, 2'); a('s_add_u32 %s, %s, s12' % (s(d), s(d)))
    a('s_add_u32 %s, %s, 8192' % (s(d), s(d)))
def piece_sum(a, d, r, tag):
    a('v_add3_u32 %s, %s, %s, %s' % (v(d), v(r), v(r + 1), v(r + 2)))
    a('v_add_u32 %s, %s, %s' % (v(d), v(d), v(r + 3)))
    return ['v_add_u32_dpp %s, %s, %s quad_perm:[1,0,3,2] %s' % (v(d), v(d), v(d), DPPF)]
def quad_gather(a, r, step):
    for i in range(1, 4): a('v_mov_b32_dpp %s, %s row_shl:%d %s' % (v(r + i), v(r), i * step, DPPF))
def poll_tail(a, cnt, lab, got):
    a('s_add_u32 %s, %s, 1' % (s(cnt), s(cnt)))
    a('s_cmp_gt_u32 %s, 0x40000' % s(cnt)); a('s_cbranch_scc1 %s' % got)
    a('s_cbranch_vccnz %s' % lab)
    a.label(got)
def poll_check(a, regs, tmp, cnt, lab, got, wait=True):
    a('s_add_u32 %s, %s, 1' % (s(cnt), s(cnt)))
    if wait: a('s_waitcnt vmcnt(0)')
    r = list(regs)
    if len(r) == 1: a('v_cmp_eq_u32 vcc, -1, %s' % v(r[0]))
    else:
        if len(r) == 2: a('v_max_u32 %s, %s, %s' % (v(tmp), v(r[0]), v(r[1]))); r = []
        else: a('v_max3_u32 %s, %s, %s, %s' % (v(tmp), v(r[0]), v(r[1]), v(r[2]))); r = r[3:]
        while r:
            if len(r) >= 2: a('v_max3_u32 %s, %s, %s, %s' % (v(tmp), v(tmp), v(r[0]), v(r[1]))); r = r[2:]
            else: a('v_max_u32 %s, %s, %s' % (v(tmp), v(tmp), v(r[0]))); r = []
        a('v_cmp_eq_u32 vcc, -1, %s' % v(tmp))
    a('s_cmp_gt_u32 %s, 0x40000' % s(cnt)); a('s_cbranch_scc1 %s' % got)
    a('s_cbranch_vccnz %s' % lab)
    a.label(got)

def gen(a):
    a.raw('.globl %s' % KN); a.raw('.p2align 8'); a.raw('.type %s,@function' % KN)
    a.lines.append(KN + ':')
    a('s_cmp_gt_u32 s2, 255'); a('s_cbranch_scc1 fk_end')
    if STAMPS:
        for i in range(NST): a('s_mov_b32 s%d, 0' % (60 + 2 * i))
    stamp(a, 0)
    a('s_load_dwordx2 s[8:9], s[0:1], 0'); a('s_load_dwordx2 s[24:25], s[0:1], 96')
    a('s_load_dwordx2 s[32:33], s[0:1], 48'); a('s_load_dwordx2 s[44:45], s[0:1], 56'); a('s_load_dwordx2 s[48:49], s[0:1], 64')
    a('s_load_dwordx2 s[52:53], s[0:1], 72'); a('s_load_dwordx2 s[28:29], s[0:1], 80')
    if '--nocodepf' not in OPT:
        a('s_getpc_b64 s[40:41]'); a.lines.append('fk_pc:')
        a('s_mov_b32 s42, fk_end-fk_pc'); a('s_mov_b32 s43, 0x00020000')
        a('v_lshlrev_b32 v250, 6, v0')
        a('buffer_load_dword v251, v250, s[40:43], 0 offen')
    a('v_lshrrev_b32 v1, 6, v0'); a('v_and_b32 v15, 63, v0')
    a('v_readfirstlane_b32 s16, v1')
    a('s_and_b32 s3, s2, 0xe0'); a('s_and_b32 s17, s2, 7'); a('s_lshl_b32 s17, s17, 2'); a('s_or_b32 s3, s3, s17')
    a('s_bfe_u32 s17, s2, 0x20003'); a('s_or_b32 s3, s3, s17')
    a('s_lshr_b32 s17, s3, 4'); a('s_add_u32 s17, s17, 1'); a('s_cmp_ge_u32 s3, 248'); a('s_cselect_b32 s17, 0, s17')
    a('s_cmp_ge_u32 s3, 240'); a('s_cselect_b32 s18, 7, 15'); a('s_and_b32 s18, s18, s3'); a('s_lshl_b32 s18, s18, 7')
    a('s_add_u32 s18, s18, s17')
    a('v_and_b32 v1, 31, v15'); a('v_lshrrev_b32 v2, 5, v15')
    a('v_lshlrev_b32 v14, 4, v15')
    for r, n in ((8, 2048 * 2048), (24, WSB), (28, 2048 * 2048), (32, 2048), (44, 1024 * 7168), (48, 1024 * 7168), (52, 3584 * 2048)):
        a('s_mov_b32 %s, 0x%x' % (s(r + 2), n)); a('s_mov_b32 %s, 0x00020000' % s(r + 3))
    a('s_cmp_ge_u32 s3, 248'); a('s_cselect_b32 s12, 5, 4')
    a('s_cmp_ge_u32 s16, s12'); a('s_cbranch_scc1 fk_H')
    XA, XB = 16, 32
    F1, TC, TS, B3, C2, S2 = 48, 56, 72, 88, 96, 104
    X, D1, D2, D3, Q16, GA = 112, 128, 144, 160, 176, 184
    T = 128
    a('s_setprio 3')
    a('s_lshl_b32 s19, s16, 5'); a('s_add_u32 s19, s19, s18')
    a('s_sub_u32 s20, 2048, s19'); a('s_and_b32 s20, s20, 2047')
    a('s_lshl_b32 s21, s19, 11'); a('s_lshl_b32 s22, s20, 11')
    a('s_lshl_b32 s12, s16, 12'); a('s_add_u32 s12, s12, %d' % LX)
    a('s_mov_b32 m0, s12')
    for i in range(32): a('v_mov_b32 %s, 0' % v(XA + i))
    a('v_cvt_f32_u32 v200, v1')
    a('v_lshlrev_b32 v7, 2, v2'); a('v_cvt_f32_u32 v7, v7')
    a('v_lshrrev_b32 v8, 1, v1'); a('v_and_b32 v9, 1, v1')
    a('v_lshlrev_b32 v205, 2, v15'); a('v_and_b32 v205, 63, v205'); a('v_add_u32 v205, %d, v205' % LSIG)
    a('ds_write_b32 v205, v16')
    a('s_waitcnt lgkmcnt(0)')
    stamp(a, 1)
    for i, so in enumerate((21, 21, 22, 22)):
        if i: a('s_add_u32 s13, s12, %d' % (1024 * i)); a('s_mov_b32 m0, s13')
        if i & 1: a('s_add_u32 s14, %s, 1024' % s(so))
        a('buffer_load_dwordx4 v14, s[8:11], %s offen lds' % (s(14) if i & 1 else s(so)))
    a('s_cmp_lg_u32 s19, 0'); a('s_cbranch_scc1 fk_no1024')
    for i in range(2):
        a('s_mov_b32 m0, %d' % (LX1024 + 1024 * i)); a('s_mov_b32 s14, %d' % (1024 * 2048 + 1024 * i))
        a('buffer_load_dwordx4 v14, s[8:11], s14 offen lds')
    a.label('fk_no1024')
    a('s_barrier')
    def put(base, n):
        for q in range(n // 4): a('ds_write_b128 v206, %s offset:%d' % (v(base + 4 * q, 4), 1024 * ((base - F1) // 4 + q)))
    a('v_add_u32 v206, %d, v14' % LROW)
    a('s_lshl_b32 s13, s16, 2'); a('s_add_u32 s13, s13, %d' % LSIG); a('v_mov_b32 v201, s13'); a('v_mov_b32 v202, 1')
    a('s_cmp_eq_u32 s16, 1'); a('s_cbranch_scc1 fk_j1')
    a('s_cmp_eq_u32 s16, 2'); a('s_cbranch_scc1 fk_j2')
    a('s_cmp_eq_u32 s16, 3'); a('s_cbranch_scc1 fk_j3')
    a('s_cmp_eq_u32 s16, 4'); a('s_cbranch_scc1 fk_jend')
    a('v_cmp_eq_u32 vcc, 1, v1')
    a('v_cndmask_b32 v10, v8, 16, vcc'); a('v_cndmask_b32 v11, v9, 0, vcc')
    a('v_cvt_f32_u32 v10, v10'); a('v_cvt_f32_u32 v11, v11')
    a('v_mul_f32 v10, %s, v10' % fh(1.0 / 32)); a('v_mul_f32 v11, %s, v11' % fh(0.25))
    a('v_add_f32 v12, v7, v7'); a('v_fma_f32 v11, v10, v12, v11')
    angles(a, 10, 11, list(range(8)) + list(range(16, 24)), T)
    for i in range(16): a('v_cos_f32 %s, %s' % (v(T + 16 + i), v(T + i)))
    for p in range(8): a('v_cvt_pk_f16_f32 %s, %s, %s' % (v(F1 + p), v(T + 16 + 2 * p), v(T + 17 + 2 * p)))
    put(F1, 8)
    a('s_branch fk_jsig')
    a.label('fk_j1')
    a('v_cvt_f32_u32 v10, v8'); a('v_lshlrev_b32 v11, 31, v9')
    a('v_mul_f32 v10, %s, v10' % fh(1.0 / 1024)); a('v_xor_b32 v10, v11, v10'); a('v_mul_f32 v11, v10, v7')
    angles(a, 10, 11, [kr(r) for r in range(16)], T)
    for r in range(16): a('v_cos_f32 %s, %s' % (v(TC + r), v(T + r)))
    put(TC, 16)
    for r in range(16): a('v_sin_f32 %s, %s' % (v(TS + r), v(T + r)))
    put(TS, 16)
    a('s_branch fk_jsig')
    a.label('fk_j2')
    gen_c2s2(a, 200, 7, C2, S2, T)
    put(C2, 16)
    a('s_branch fk_jsig')
    a.label('fk_j3')
    a('v_or_b32 v10, 16, v1'); a('v_cvt_f32_u32 v10, v10'); a('v_mov_b32 v11, %s' % fh(1.0 / 64))
    a('v_fmamk_f32 v10, v10, %s, v11' % fh(1.0 / 32))
    a('v_cmp_gt_u32 vcc, 16, v1'); a('v_mov_b32 v12, %s' % fh(-0.25)); a('v_cndmask_b32 v12, 0, v12, vcc')
    a('v_fma_f32 v11, v10, v7, v12')
    angles(a, 10, 11, [kr(r) for r in range(16)], T)
    for r in range(16): a('v_cos_f32 %s, %s' % (v(T + 16 + r), v(T + r)))
    for p in range(8): a('v_cvt_pk_f16_f32 %s, %s, %s' % (v(B3 + p), v(T + 16 + 2 * p), v(T + 17 + 2 * p)))
    put(B3, 8)
    a.label('fk_jsig')
    a('ds_write_b32 v201, v202 offset:32')
    a.label('fk_jend')
    a('v_lshlrev_b32 v3, 9, v2'); a('v_lshl_add_u32 v3, v1, 1, v3')
    a('v_sub_u32 v4, 576, v3'); a('v_sub_u32 v5, 2048, v3'); a('v_and_b32 v5, 2047, v5')
    a('v_add_u32 v3, s12, v3'); a('v_add_u32 v4, s12, v4'); a('v_add_u32 v5, s12, v5')
    a('s_lshl_b32 s13, s16, 10'); a('s_sub_u32 s14, %d, s13' % (7168 + 64))
    a('s_cmp_ge_u32 s3, 248'); a('s_cselect_b32 s15, 1024, 0'); a('s_add_u32 s14, s14, s15')
    a('s_cmp_eq_u32 s16, 4'); a('s_cselect_b32 s13, %d, s13' % (8192 + 64))
    a('s_add_u32 s13, s13, %d' % LWS); a('s_add_u32 s14, s14, %d' % LWS)
    a('v_cmp_gt_u32 vcc, 16, v1')
    a('v_mov_b32 v8, s13'); a('v_mov_b32 v9, s14')
    a('v_cndmask_b32 v10, v9, v8, vcc'); a('v_cndmask_b32 v11, v8, v9, vcc')
    a('v_lshl_add_u32 v10, v15, 2, v10'); a('v_lshl_add_u32 v11, v15, 2, v11')
    a('v_lshrrev_b32 v6, 1, v15'); a('v_and_b32 v8, 1, v15'); a('v_mul_u32_u24 v9, %d, v8' % (4096 + 64))
    a('v_and_b32 v12, 15, v6'); a('v_lshl_add_u32 v12, v12, 4, v2'); a('v_mul_u32_u24 v12, %d, v12' % OS)
    a('v_mul_u32_u24 v192, %d, v8' % (2 * OS)); a('v_add_u32 v192, v192, v12')
    a('v_lshl_add_u32 v12, v8, 4, v12')
    a('v_lshrrev_b32 v194, 3, v15'); a('v_lshlrev_b32 v193, 4, v194'); a('v_lshl_add_u32 v193, v8, 7, v193')
    a('v_and_b32 v6, 3, v6'); a('v_lshl_add_u32 v9, v6, 2, v9'); a('v_lshl_add_u32 v9, v194, 7, v9')
    a('v_lshlrev_b32 v194, 10, v194'); a('v_and_b32 v6, 7, v15'); a('v_lshl_add_u32 v194, v6, 4, v194')
    a('s_lshl_b32 s13, s16, 5'); a('s_add_u32 s13, s13, %d' % LWS); a('v_add_u32 v6, s13, v9')
    a('s_mul_i32 s36, s3, %d' % OS); a('s_lshl_b32 s13, s16, 8'); a('s_add_u32 s36, s36, s13'); a('s_add_u32 s36, s36, 0x%x' % WOFF)
    a('s_mul_i32 s37, s16, %d' % (4 * OS)); a('s_add_u32 s37, s37, 0x%x' % WOFF)
    chkpos(a, 23)
    a('s_add_u32 s23, s23, s37')
    a('s_lshl_b32 s14, s3, 5'); a('s_add_u32 s37, s37, s14')
    a('s_add_u32 s38, s37, %d' % (2 * OS))
    a('s_lshl_b32 s13, s16, 11'); a('s_add_u32 s13, s13, %d' % LA2); a('v_add_u32 v7, s13, v14')
    a('v_cmp_eq_u32 s[58:59], 1, v8')
    a('s_cmp_eq_u32 s19, s20'); a('s_cselect_b32 s39, 0.5, 1.0')
    a('s_lshl_b32 s13, s16, 2'); a('s_add_u32 s13, s13, %d' % LG5S); a('v_mov_b32 v9, s13')
    a('s_cmp_ge_u32 s3, 248'); a('s_cselect_b32 s57, 63, 47')
    a.label('fk_spinc')
    a('ds_read_b32 v203, v205'); a('s_waitcnt lgkmcnt(0)'); a('v_cmp_eq_u32 vcc, 0, v203')
    a('s_and_b32 s13, vcc_lo, 0xf00'); a('s_cbranch_scc1 fk_spinc')
    for q in range(16):
        a('ds_read_b128 %s, v206 offset:%d' % (v(F1 + 4 * q, 4), 1024 * q))
        if q == 11: a('s_waitcnt lgkmcnt(8)')
    stamp(a, 2)
    a('s_waitcnt vmcnt(0) lgkmcnt(0)')
    stamp(a, 3)
    for j in range(2):
        for i in range(8):
            a('ds_read_u16_d16_hi %s, v3 offset:%d' % (v(XA + 8 * j + i), 1024 * j + 64 * i))
    a('s_waitcnt lgkmcnt(2)')
    for j in range(2):
        for i in range(8):
            if j == 0 and i == 0: a('ds_read_u16_d16_hi %s, v5 offset:2048' % v(XB))
            else: a('ds_read_u16_d16_hi %s, v4 offset:%d' % (v(XB + 8 * j + i), 2048 + 1024 * (1 - j) + 64 * (7 - i)))
            if j == 1 and i == 4: a('s_waitcnt lgkmcnt(8)')
    def sums(R, t):
        for i in range(4): a('v_pk_add_f32 %s, %s, %s' % (v(t + 2 * i, 2), v(R + 4 * i, 2), v(R + 4 * i + 2, 2)))
        a('v_pk_mul_f32 %s, %s, %s' % (v(t + 8, 2), v(R, 2), v(R, 2)))
        a('v_pk_mul_f32 %s, %s, %s' % (v(t + 10, 2), v(R + 2, 2), v(R + 2, 2)))
        for i in range(2, 8):
            acc = t + 8 + 2 * (i & 1)
            a('v_pk_fma_f32 %s, %s, %s, %s' % (v(acc, 2), v(R + 2 * i, 2), v(R + 2 * i, 2), v(acc, 2)))
        a('v_pk_add_f32 %s, %s, %s' % (v(t, 2), v(t, 2), v(t + 2, 2))); a('v_pk_add_f32 %s, %s, %s' % (v(t + 4, 2), v(t + 4, 2), v(t + 6, 2)))
        a('v_pk_add_f32 %s, %s, %s' % (v(t + 8, 2), v(t + 8, 2), v(t + 10, 2)))
        a('v_pk_add_f32 %s, %s, %s' % (v(t, 2), v(t, 2), v(t + 4, 2)))
        a('v_add_f32 %s, %s, %s' % (v(t + 8), v(t + 8), v(t + 9)))
        a('v_add_f32 %s, %s, %s' % (v(t), v(t), v(t + 1)))
    sums(XA, T)
    a('s_waitcnt lgkmcnt(0)')
    sums(XB, T + 12)
    reduce4(a, T, T + 12, T + 8, T + 20)
    ln_chain(a, T, T + 1, T + 2)
    a('v_mul_f32 %s, %s, %s' % (v(T + 2), fh(1.0 / 16), v(T + 2)))
    a('v_mul_f32 %s, %s, %s' % (v(T + 1), v(T + 1), v(T + 2)))
    a('v_readlane_b32 s4, %s, 16' % v(T + 2)); a('v_readlane_b32 s6, %s, 48' % v(T + 2))
    a('v_readlane_b32 s13, %s, 16' % v(T + 1)); a('v_readlane_b32 s14, %s, 48' % v(T + 1))
    a('v_mov_b32 %s, s13' % v(T + 4)); a('v_add_f32 %s, s14, %s' % (v(T + 4), v(T + 4)))
    for i in range(8):
        a('v_pk_fma_f32 %s, %s, s[6:7], %s op_sel_hi:[1,0,0] neg_lo:[0,0,1] neg_hi:[0,0,1]' % (v(XB + 2 * i, 2), v(XB + 2 * i, 2), v(T + 4, 2)))
    for i in range(8):
        a('v_pk_fma_f32 %s, %s, s[4:5], %s op_sel_hi:[1,0,1]' % (v(XA + 2 * i, 2), v(XA + 2 * i, 2), v(XB + 2 * i, 2)))
    for p in range(8): a('v_cvt_pk_f16_f32 %s, %s, %s' % (v(Q16 + p), v(XA + 2 * p), v(XA + 2 * p + 1)))
    a('v_mfma_f32_32x32x16_f16 %s, %s, %s, 0' % (v(X, 16), v(Q16, 4), v(F1, 4)))
    a('v_mfma_f32_32x32x16_f16 %s, %s, %s, %s' % (v(X, 16), v(Q16 + 4, 4), v(F1 + 4, 4), v(X, 16)))
    W = XA
    for r in range(8): a('v_pk_mul_f32 %s, %s, %s' % (v(W + 2 * r, 2), v(X + 2 * r, 2), v(TC + 2 * r, 2)))
    for r in range(8): a('v_fmac_f32_dpp %s, %s, %s quad_perm:[1,0,3,2] %s' % (v(W + r), v(X + r), v(TS + r), DPPF))
    for p in range(4): a('v_cvt_pk_f16_f32 %s, %s, %s' % (v(Q16 + p), v(W + 2 * p), v(W + 2 * p + 1)))
    a('v_fmac_f32_dpp %s, %s, %s quad_perm:[1,0,3,2] %s' % (v(W + 8), v(X + 8), v(TS + 8), DPPF))
    a('v_fmac_f32_dpp %s, %s, %s quad_perm:[1,0,3,2] %s' % (v(W + 9), v(X + 9), v(TS + 9), DPPF))
    mm = [(D1, C2), (D2, S2), (D3, B3)]
    rest = ['v_fmac_f32_dpp %s, %s, %s quad_perm:[1,0,3,2] %s' % (v(W + r), v(X + r), v(TS + r), DPPF) for r in range(10, 16)]
    rest += ['v_cvt_pk_f16_f32 %s, %s, %s' % (v(Q16 + p), v(W + 2 * p), v(W + 2 * p + 1)) for p in range(4, 8)]
    for n, (Dd, B) in enumerate(mm):
        a('v_mfma_f32_32x32x16_f16 %s, %s, %s, 0' % (v(Dd, 16), v(Q16, 4), v(B, 4)))
        for x in rest[4 * n:4 * n + 4]: a(x)
    for (Dd, B) in mm:
        a('v_mfma_f32_32x32x16_f16 %s, %s, %s, %s' % (v(Dd, 16), v(Q16 + 4, 4), v(B + 4, 4), v(Dd, 16)))
    a('v_cmp_gt_u32 vcc, 16, v15')
    a('v_cmp_gt_u32 s[40:41], 32, v15')
    Z = XA
    P = XB
    def zz(u):
        a('v_pk_add_f32 %s, %s, %s op_sel:[0,1] op_sel_hi:[1,0] neg_hi:[0,1]' % (v(Z + 2 * u, 2), v(D1 + 2 * u, 2), v(D2 + 2 * u, 2)))
    def pp(p):
        A_, B_ = v(Z + 4 * p, 2), v(Z + 4 * p + 2, 2)
        a('v_pk_add_f32 %s, %s, %s op_sel:[0,1] op_sel_hi:[1,0] neg_lo:[0,1]' % (v(P + 4 * p, 2), A_, B_))
        a('v_pk_add_f32 %s, %s, %s op_sel:[0,1] op_sel_hi:[1,0] neg_hi:[1,0]' % (v(P + 4 * p + 2, 2), A_, B_))
        a('v_cvt_pk_f16_f32 %s, %s, %s' % (v(Q16 + 2 * p), v(P + 4 * p), v(P + 4 * p + 1)))
        a('v_cvt_pk_f16_f32 %s, %s, %s' % (v(Q16 + 2 * p + 1), v(P + 4 * p + 2), v(P + 4 * p + 3)))
        a('ds_write_b32 v10, %s offset:%d' % (v(Q16 + 2 * p), 256 * p))
        a('ds_write_b32 v11, %s offset:%d' % (v(Q16 + 2 * p + 1), 256 * p))
    ZR, ZI = Z, Z + 1
    for p in (1, 2, 3):
        zz(2 * p); zz(2 * p + 1); pp(p)
    zz(0); zz(1)
    a('v_mul_f32 v8, s39, %s' % v(D1))
    a('v_mov_b32 v3, %s' % v(D3 + 1))
    a('v_permlane16_swap_b32 v4, v3')
    a('v_cndmask_b32 v5, %s, %s, vcc' % (v(D3 + 1), v(D1)))
    a('v_cndmask_b32 v4, v4, %s, vcc' % v(D2))
    a('v_cndmask_b32 %s, %s, v5, s[40:41]' % (v(ZR), v(ZR)))
    a('v_cndmask_b32 %s, %s, -v4, s[40:41]' % (v(ZI), v(ZI)))
    pp(0)
    a('s_mov_b64 exec, 0x10000')
    a('ds_write_b32 v9, v8')
    a('ds_write_b32 v201, v202')
    a('s_mov_b64 exec, -1')
    a('s_cmp_eq_u32 s16, 4'); a('s_cbranch_scc1 fk_w4')
    stamp(a, 4)
    a.label('fk_spin')
    a('ds_read_b32 v3, v205'); a('s_waitcnt lgkmcnt(0)'); a('v_cmp_eq_u32 vcc, 0, v3')
    a('s_and_b32 s13, vcc_lo, s57'); a('s_cbranch_scc1 fk_spin')
    a.label('fk_staged')
    stamp(a, 12, True)
    for q in range(2):
        a('ds_read2st64_b32 %s, %s offset0:0 offset1:4' % (v(GA + 4 * q, 2), 'v8' if q else 'v6'))
        a('ds_read2st64_b32 %s, %s offset0:8 offset1:12' % (v(GA + 4 * q + 2, 2), 'v8' if q else 'v6'))
        if q == 0: a('v_add_u32 v8, 16, v6')
    a('v_readlane_b32 s43, v3, 7')
    for q in range(2):
        a('s_waitcnt lgkmcnt(%d)' % (2 - 2 * q))
        a('buffer_store_dwordx4 %s, v194, s[24:27], s36 offen offset:%d sc1' % (v(GA + 4 * q, 4), 128 * q))
    d0 = piece_sum(a, 3, GA, 0); d1 = piece_sum(a, 4, GA + 4, 0)
    a('s_add_u32 s36, s36, 8192')
    a(d0[0]); a(d1[0])
    a('v_cndmask_b32 v3, v3, v4, s[58:59]'); a('v_add_u32 v196, s43, v3')
    quad_gather(a, 196, 2)
    a('s_mov_b32 exec_lo, 0x03030303'); a('s_mov_b32 exec_hi, 0x03030303')
    a('buffer_store_dwordx4 v[196:199], v193, s[24:27], s36 offen sc1')
    a('s_mov_b64 exec, -1')
    if not G2:
        a('s_cmp_lg_u32 s16, 0'); a('s_cbranch_scc1 fk_nog5')
        a('v_and_b32 v9, 16, v14'); a('v_add_u32 v9, %d, v9' % LG5S)
        a('ds_read_b128 v[16:19], v9')
        a('s_lshl_b32 s13, s3, 4'); a('s_add_u32 s13, s13, 0x%x' % G5)
        a('s_waitcnt lgkmcnt(0)')
        for i in range(4): a('v_min_u32 %s, -2, %s' % (v(16 + i), v(16 + i)))
        a('s_cmp_eq_u32 s3, 255'); a('s_cselect_b64 exec, 3, 1')
        a('buffer_store_dwordx4 v[16:19], v14, s[24:27], s13 offen sc1')
        a('s_mov_b64 exec, -1')
        a.label('fk_nog5')
    unit_setup(a)
    a('s_mov_b32 s42, 0')
    a('s_waitcnt vmcnt(0)')
    stamp(a, 5)
    a.label('fk_pollw')
    a('buffer_load_dwordx4 %s, v12, s[24:27], s37 offen sc1' % v(GA, 4))
    a('buffer_load_dwordx4 %s, v12, s[24:27], s38 offen sc1' % v(GA + 4, 4))
    a('buffer_load_dword v5, v192, s[24:27], s23 offen sc1')
    a('s_waitcnt vmcnt(1)')
    d0 = piece_sum(a, 3, GA, 0); d1 = piece_sum(a, 4, GA + 4, 0)
    a('ds_write_b128 v7, %s' % v(GA, 4))
    a(d0[0]); a(d1[0])
    a('ds_write_b128 v7, %s offset:1024' % v(GA + 4, 4))
    a('v_cndmask_b32 v3, v3, v4, s[58:59]'); a('v_add_u32 v3, s43, v3')
    a('s_waitcnt vmcnt(0)')
    a('v_cmp_ne_u32 vcc, v3, v5')
    poll_tail(a, 42, 'fk_pollw', 'fk_gotw')
    stamp(a, 6)
    a('s_waitcnt lgkmcnt(0)')
    a('s_barrier')
    a('s_setprio 0')
    stamp(a, 7)
    a('s_or_b32 s13, s3, s16'); a('s_cbranch_scc1 fk_nobump')
    a('v_mov_b32 v3, s43'); a('s_mov_b64 exec, 1')
    a('buffer_store_dword v3, v14, s[24:27], 0 offen sc1')
    a('s_mov_b64 exec, -1')
    a.label('fk_nobump')
    a('s_lshl_b32 s13, s16, 10'); a('s_add_u32 s14, s13, 0x%x' % G5); a('s_add_u32 s13, s13, %d' % LG5)
    a('v_add_u32 v7, s13, v14'); a('v_mov_b32 v3, 4096'); a('s_mov_b32 s15, 0x%x' % G5); a('v_mov_b32 v8, %d' % LG5E)
    a('buffer_load_dwordx4 %s, v14, s[24:27], s14 offen sc1' % v(GA, 4))
    a('buffer_load_dword %s, v3, s[24:27], s15 offen sc1' % v(GA + 4))
    a('s_mov_b32 s40, s14'); a('s_mov_b32 s41, s15')
    window(a, UB, KB, 16, 0, PB)
    a('s_mov_b32 s42, 0')
    a('s_cmp_gt_u32 s3, 223'); a('s_cbranch_scc1 fk_pollg')
    a('s_waitcnt vmcnt(%d)' % (min(KB, PB + 1) if UB + 4 * KB <= 96 else 0))
    a('s_branch fk_chkg')
    a.label('fk_pollg')
    a('buffer_load_dwordx4 %s, v14, s[24:27], s40 offen sc1' % v(GA, 4))
    a('buffer_load_dword %s, v3, s[24:27], s41 offen sc1' % v(GA + 4))
    a('s_waitcnt vmcnt(0)')
    a.label('fk_chkg')
    poll_check(a, list(range(GA, GA + 5)), 4, 42, 'fk_pollg', 'fk_gotg', wait=False)
    a('ds_write_b128 v7, %s' % v(GA, 4)); a('ds_write_b32 v8, %s' % v(GA + 4))
    stamp(a, 14, True)
    a('s_branch fk_common')
    a.label('fk_w4')
    a('s_setprio 0')
    a('s_branch fk_Hconst')
    a.label('fk_H')
    A, B1, TC, TS, C2, S2, V, D1, D2, T16, AD, CS = 16, 48, 80, 96, 112, 120, 128, 144, 160, 176, 184, 192
    a('s_barrier')
    if G2: a('s_cmp_eq_u32 s16, 6'); a('s_cbranch_scc1 fk_h6')
    a('s_cmp_lg_u32 s16, 7'); a('s_cbranch_scc1 fk_Hconst')
    for i in range(4): a('v_mov_b32 %s, -1' % v(4 + i))
    a('v_mov_b32 v3, %d' % LKEY); a('v_mov_b32 v8, 0'); a('ds_write_b32 v3, v8')
    a('v_lshlrev_b32 v3, 12, v15'); a('s_lshl_b32 s13, s3, 4'); a('s_add_u32 s14, s13, 0x%x' % KEYS); a('s_add_u32 s15, s13, 0x%x' % G5)
    a('v_mov_b32 v201, %d' % (LSIG + 20)); a('v_mov_b32 v204, 1')
    a('s_waitcnt lgkmcnt(0)')
    stamp(a, 1)
    a('s_load_dword s56, s[24:25], 0')
    if '--wwarm' in OPT:
        a('s_mul_i32 s36, s3, %d' % OS); a('s_add_u32 s36, s36, 0x%x' % WOFF); a('s_add_u32 s37, s36, 4096'); a('s_add_u32 s40, s36, 8192')
        for i in range(9): a('buffer_store_dwordx4 v[4:7], v14, s[24:27], %s offen offset:%d sc1' % (s((36, 37, 40)[i >> 2]), 1024 * (i & 3)))
    def group2():
        if '--ywarm' in OPT:
            a('s_mul_i32 s36, s3, %d' % OS); a('s_add_u32 s36, s36, 0x%x' % YOFF); a('s_add_u32 s37, s36, 4096'); a('s_add_u32 s40, s36, 8192')
            for i in range(9): a('buffer_store_dwordx4 v[4:7], v14, s[24:27], %s offen offset:%d sc1' % (s((36, 37, 40)[i >> 2]), 1024 * (i & 3)))
        if '--ptouch' in OPT:
            a('v_mul_u32_u24 v252, %d, v15' % (8 * OS)); a('s_mov_b32 s12, 0x%x' % (WOFF + 9216))
            a('buffer_load_dword v253, v252, s[24:27], s12 offen')
        if not YCHK:
            a('s_mul_i32 s38, s3, %d' % OS); a('s_add_u32 s38, s38, 0x%x' % YOFF); a('s_add_u32 s39, s38, 4096')
            for i in range(8): a('buffer_store_dwordx4 v[4:7], v14, s[24:27], %s offen offset:%d sc1' % (s(38 + (i >> 2)), 1024 * (i & 3)))
        a('s_lshl_b32 s12, s3, 12'); a('s_add_u32 s12, s12, 0x%x' % CAND)
        for i in range(4): a('buffer_store_dwordx4 v[4:7], v14, s[24:27], s12 offen offset:%d sc1' % (1024 * i))
        a('s_lshl_b32 s12, s3, 10'); a('s_add_u32 s12, s12, 0x%x' % P2)
        a('s_cmp_gt_u32 s3, 223'); a('s_cselect_b32 s12, 0x%x, s12' % WSB)
        a('buffer_store_dwordx4 v[4:7], v14, s[24:27], s12 offen sc1')
        a('s_lshl_b32 s12, s3, 9'); a('s_add_u32 s12, s12, 0x%x' % P1)
        a('s_cmp_gt_u32 s3, 223'); a('s_cselect_b32 s12, 0x%x, s12' % WSB)
        a('s_mov_b32 exec_hi, 0')
        a('buffer_store_dwordx4 v[4:7], v14, s[24:27], s12 offen sc1')
        a('s_mov_b32 exec_lo, 0xff')
        a('buffer_store_dwordx4 v[4:7], v3, s[24:27], s14 offen sc1')
    if not G2: group2()
    a('s_mov_b32 exec_hi, 0')
    a('s_cmp_eq_u32 s3, 255'); a('s_cselect_b32 exec_lo, 3, 1')
    a('buffer_store_dwordx4 v[4:7], v14, s[24:27], s15 offen sc1')
    a('s_mov_b64 exec, -1')
    for i in range(2):
        a('s_mov_b32 m0, %d' % (LWR + 1024 * i)); a('s_mov_b32 s12, %d' % (1024 * i))
        a('buffer_load_dwordx4 v14, s[32:35], s12 offen lds')
    a('s_waitcnt lgkmcnt(0)')
    a('s_add_u32 s56, s56, 1'); a('v_mov_b32 v202, s56')
    a('ds_write_b32 v201, v202 offset:8')
    a('s_waitcnt vmcnt(0)')
    a('ds_write_b32 v201, v204')
    stamp(a, 2)
    if G2:
        a('s_branch fk_Hconst')
        a.label('fk_h6')
        for i in range(4): a('v_mov_b32 %s, -1' % v(4 + i))
        a('v_lshlrev_b32 v3, 12, v15'); a('s_lshl_b32 s14, s3, 4'); a('s_add_u32 s14, s14, 0x%x' % KEYS)
        a('v_mov_b32 v205, %d' % (LSIG + 20))
        a.label('fk_h6s')
        a('s_sleep 1')
        a('ds_read_b32 v8, v205'); a('s_waitcnt lgkmcnt(0)'); a('v_readfirstlane_b32 s13, v8')
        a('s_cmp_eq_u32 s13, 0'); a('s_cbranch_scc1 fk_h6s')
        group2()
        a('s_mov_b64 exec, -1')
    a.label('fk_Hconst')
    a('s_sub_u32 s20, s16, 4')
    unit_setup(a)
    a('s_and_b32 s12, s20, 1'); a('s_lshl_b32 s12, s12, 6'); a('v_xor_b32 v206, s12, v208'); a('v_xor_b32 v207, 64, v206')
    a('s_mov_b32 s6, 0x700000'); a('s_mov_b32 s7, 0x00020000')
    a('s_cmp_gt_u32 s3, 223'); a('s_cselect_b32 s36, 3, s20')
    a('s_waitcnt lgkmcnt(0)')
    TLB = int(optval('tlb', '0'))
    if TLB:
        a('s_cmp_lg_u32 s16, 5'); a('s_cbranch_scc1 fk_notlb')
        a('v_lshlrev_b32 v252, %d, v15' % TLB)
        for sr in [int(x) for x in optval('tlbl', '48,52,28').split(',')]: a('buffer_load_dword v253, v252, %s, 0 offen' % s(sr, 4))
        a.label('fk_notlb')
    PACE = int(optval('pace', '99')); GAP = int(optval('gap', '8')); FIRST = int(optval('first', '4')); DELAY = int(optval('delay', '0'))
    def gu(n):
        g = ['s_cmp_eq_u32 s36, 3', 's_cbranch_scc1 fk_gu%d' % n, 's_add_u32 s37, s20, %d' % (3 * n),
             's_lshl_b32 s12, s37, 10', 's_mov_b32 m0, s12', 's_cmp_lt_u32 s37, 32', 's_cselect_b64 s[4:5], s[44:45], s[48:49]',
             's_and_b32 s37, s37, 31', 's_mul_i32 s37, s37, %d' % (8 * 7168), 's_add_u32 s37, s37, s100']
        if n >= PACE: g.append('s_waitcnt vmcnt(%d)' % PACE)
        g.append('buffer_load_dwordx4 %s, s[4:7], s37 offen lds' % ('v207' if n & 1 else 'v206'))
        g.append('@fk_gu%d' % n)
        return g
    assert NH <= 21
    groups = [sum([gu(n) for n in range(min(FIRST, NH))], [])] + [gu(n) for n in range(FIRST, NH)]
    a.inject(groups, GAP); a.cnt = GAP - DELAY
    a('v_lshrrev_b32 v4, 1, v1')
    a('v_and_b32 v5, 1, v4'); a('v_lshrrev_b32 v6, 2, v4'); a('v_lshl_add_u32 v5, v6, 1, v5')
    a('v_and_b32 v6, 2, v4'); a('v_lshl_add_u32 v5, v6, 2, v5')
    a('s_and_b32 s13, s20, 1'); a('s_mul_i32 s13, s13, 15'); a('v_xor_b32 v5, s13, v5')
    a('s_lshl_b32 s13, s20, 4'); a('v_add_u32 v5, s13, v5')
    a('v_cvt_f32_u32 v5, v5')
    a('v_and_b32 v9, 1, v1')
    a('v_lshlrev_b32 v7, 2, v2'); a('v_cvt_f32_u32 v7, v7')
    a('v_cvt_f32_u32 v10, v9')
    a('v_mul_f32 v8, %s, v5' % fh(1.0 / 64))
    a('v_mul_f32 v10, %s, v10' % fh(0.25))
    a('v_fma_f32 v10, v8, v7, v10')
    T = V
    for half in range(2):
        ks = [8 * kap + u for kap in range(4 * half, 4 * half + 4) for u in range(4)]
        angles(a, 8, 10, ks, T)
        for i in range(16): a('v_cos_f32 %s, %s' % (v(T + 16 + i), v(T + i)))
        for i in range(16): a('v_sin_f32 %s, %s' % (v(T + 32 + i), v(T + i)))
        for i in range(16): a('v_cvt_pk_f16_f32 %s, %s, %s' % (v(B1 + 16 * half + i), v(T + 16 + i), v(T + 32 + i)))
    if G2:
        pend, a.pending = a.pending, None
        a('s_cmp_lg_u32 s16, 6'); a('s_cbranch_scc1 fk_H7')
        a('v_lshlrev_b32 v205, 2, v15'); a('v_and_b32 v205, 63, v205'); a('v_add_u32 v205, %d, v205' % LSIG)
        a('s_cmp_ge_u32 s3, 248'); a('s_cselect_b32 s43, 31, 15')
        a('v_and_b32 v3, 16, v14'); a('v_add_u32 v3, %d, v3' % LG5S)
        a('s_lshl_b32 s13, s3, 4'); a('s_add_u32 s13, s13, 0x%x' % G5)
        a('s_waitcnt vmcnt(0)')
        a.label('fk_h6t')
        a('ds_read_b32 v4, v205'); a('s_waitcnt lgkmcnt(0)'); a('v_cmp_eq_u32 vcc, 0, v4')
        a('s_and_b32 s12, vcc_lo, s43'); a('s_cbranch_scc1 fk_h6t')
        a('ds_read_b128 v[16:19], v3')
        a('s_waitcnt lgkmcnt(0)')
        for i in range(4): a('v_min_u32 %s, -2, %s' % (v(16 + i), v(16 + i)))
        a('s_cmp_eq_u32 s3, 255'); a('s_cselect_b64 exec, 3, 1')
        a('buffer_store_dwordx4 v[16:19], v14, s[24:27], s13 offen sc1')
        a('s_mov_b64 exec, -1')
        stamp(a, 4)
        a.label('fk_H7')
        a.pending = pend
    a('v_lshlrev_b32 v11, 31, v9')
    a('v_mul_f32 v10, %s, v5' % fh(1.0 / 2048)); a('v_xor_b32 v10, v11, v10'); a('v_mul_f32 v11, v10, v7')
    angles(a, 10, 11, [kr(r) for r in range(16)], T)
    for r in range(16): a('v_cos_f32 %s, %s' % (v(TC + r), v(T + r)))
    for r in range(16): a('v_sin_f32 %s, %s' % (v(TS + r), v(T + r)))
    a('v_sub_u32 v4, 31, v1'); a('v_subrev_u32 v5, 1, v1')
    a('v_cmp_lt_u32 vcc, 16, v1')
    a('v_cndmask_b32 v4, v5, v4, vcc'); a('v_and_b32 v4, 15, v4')
    a('v_lshlrev_b32 v4, 5, v4'); a('v_add_u32 v4, %d, v4' % LA2)
    a('v_lshlrev_b32 v5, 9, v2')
    a('v_add_u32 v6, v4, v5')
    a('v_sub_u32 v7, v4, v5'); a('v_add_u32 v7, %d, v7' % (15 * 512 + 16))
    a('v_cmp_eq_u32 s[38:39], 0, v1')
    a('v_mov_b32 v8, 4096')
    a('v_cndmask_b32 v8, 0, v8, s[38:39]')
    a('v_add_u32 v6, v6, v8'); a('v_add_u32 v7, v7, v8')
    a('v_and_b32 v8, 15, v1'); a('v_cmp_eq_u32 s[38:39], 0, v8')
    a('s_or_b64 s[40:41], s[38:39], vcc')
    for k in range(8):
        a('v_add_u32 %s, %d, v6' % (v(AD + k), 1024 * k)); a('v_subrev_u32 v8, %d, v7' % (1024 * k))
        a('v_cndmask_b32 %s, %s, v8, %s' % (v(AD + k), v(AD + k), 'vcc' if k < 4 else 's[40:41]'))
    def posD(d, x, t):
        a('v_and_b32 %s, 3, %s' % (v(t), v(x))); a('v_lshlrev_b32 %s, 2, %s' % (v(t), v(t))); a('v_lshlrev_b32 %s, 3, %s' % (v(d), v(x))); a('v_sub_u32 %s, %s, %s' % (v(d), v(d), v(t)))
    def posM(d, x, t):
        a('v_and_b32 %s, 3, %s' % (v(t), v(x))); a('v_mul_u32_u24 %s, 12, %s' % (v(t), v(t))); a('v_lshlrev_b32 %s, 3, %s' % (v(d), v(x))); a('v_sub_u32 %s, %s, %s' % (v(d), v(d), v(t))); a('v_add_u32 %s, 28, %s' % (v(d), v(d)))
    a('s_lshr_b32 s13, s20, 1'); a('v_lshl_add_u32 v3, v1, 1, s13')
    a('s_and_b32 s13, s20, 1'); a('s_sub_u32 s14, 64, s13')
    posD(4, 3, 8)
    a('v_sub_u32 v5, 63, v3'); posM(6, 5, 8)
    a('v_sub_u32 v5, s14, v3'); posM(7, 5, 8)
    a('v_cmp_gt_u32 vcc, 32, v3'); a('v_cndmask_b32 v7, v7, v4, vcc')
    a('v_cmp_eq_u32 vcc, 32, v5'); a('v_cndmask_b32 v7, v7, 28, vcc')
    a('s_cmp_eq_u32 s13, 0'); a('s_cselect_b32 s14, 256, 0'); a('s_cselect_b32 s15, 576, 0')
    a('s_cselect_b64 s[38:39], -1, 0')
    a('s_add_u32 s14, s14, %d' % (240 * 32)); a('s_sub_u32 s15, %d, s15' % LWS)
    a('v_cmp_gt_u32 vcc, 32, v3'); a('v_cndmask_b32 v7, v7, v4, vcc')
    a('v_add_u32 v7, s14, v7')
    a('v_cndmask_b32 v4, v6, v4, s[38:39]'); a('v_lshl_add_u32 v4, v2, 12, v4')
    for r in (4, 7): a('v_lshrrev_b32 v8, 7, %s' % v(r)); a('v_lshl_add_u32 %s, v8, 4, %s' % (v(r), v(r)))
    a('v_add_u32 v11, s15, v4'); a('v_add_u32 v7, %d, v7' % LWS)
    a('v_add_u32 v12, %d, v11' % (7 * 576))
    a('v_cmp_eq_u32 vcc, s13, v2')
    a('s_and_b64 s[40:41], vcc, s[38:39]'); a('s_andn2_b64 s[38:39], vcc, s[38:39]')
    a('v_cndmask_b32 v10, v11, v7, s[40:41]'); a('v_cndmask_b32 v12, v12, v7, s[38:39]')
    a('s_lshl_b32 s23, s20, 5'); a('s_add_u32 s23, s23, s18')
    def y5cos():
        a('v_and_b32 v3, 15, v15'); a('v_lshrrev_b32 v4, 4, v15'); a('v_lshl_add_u32 v3, v3, 7, v4'); a('v_add_u32 v3, 1, v3')
        a('v_cmp_le_u32 vcc, 56, v15'); a('v_mov_b32 v4, %d' % (2048 - 1040)); a('v_cndmask_b32 v4, 0, v4, vcc'); a('v_add_u32 v4, v3, v4')
        for r in (3, 4):
            a('v_mul_u32_u24 %s, s23, %s' % (v(r), v(r))); a('v_and_b32 %s, 2047, %s' % (v(r), v(r)))
            a('v_cvt_f32_u32 %s, %s' % (v(r), v(r))); a('v_mul_f32 %s, %s, %s' % (v(r), fh(1.0 / 2048), v(r)))
        a('v_cvt_f32_u32 v5, s23'); a('v_mul_f32 v5, %s, v5' % fh(1.0 / 2048))
        angles(a, 5, 3, [32 * w + 4 * q for q in range(3) for w in range(4)], CS)
        angles(a, 5, 4, [32 * w + 12 for w in range(4)], CS + 12)
        for i in range(16): a('v_cos_f32 %s, %s' % (v(CS + i), v(CS + i)))
    a.inject_flush()
    stamp(a, 5)
    y5cos()
    a('v_add_u32 v9, %d, v14' % LROW)
    a('s_setprio 2')
    stamp(a, 6)
    a('s_barrier')
    stamp(a, 7)
    for k in range(8): a('ds_read_b128 %s, %s' % (v(A + 4 * k, 4), v(AD + k)))
    for q in range(4): a('ds_read_b128 %s, v9 offset:%d' % (v(C2 + 4 * q, 4), 1024 * (12 + q)))
    for k in range(8):
        a('s_waitcnt lgkmcnt(%d)' % (11 - k))
        a('v_mfma_f32_32x32x16_f16 %s, %s, %s, %s' % (v(V, 16), v(A + 4 * k, 4), v(B1 + 4 * k, 4), '0' if k == 0 else v(V, 16)))
    W = A
    for r in range(8): a('v_pk_mul_f32 %s, %s, %s' % (v(W + 2 * r, 2), v(V + 2 * r, 2), v(TC + 2 * r, 2)))
    for r in range(8): a('v_fmac_f32_dpp %s, %s, %s quad_perm:[1,0,3,2] %s' % (v(W + r), v(V + r), v(TS + r), DPPF))
    for p in range(4): a('v_cvt_pk_f16_f32 %s, %s, %s' % (v(T16 + p), v(W + 2 * p), v(W + 2 * p + 1)))
    rest = ['v_fmac_f32_dpp %s, %s, %s quad_perm:[1,0,3,2] %s' % (v(W + r), v(V + r), v(TS + r), DPPF) for r in range(8, 16)]
    rest += ['v_cvt_pk_f16_f32 %s, %s, %s' % (v(T16 + p), v(W + 2 * p), v(W + 2 * p + 1)) for p in range(4, 8)]
    for x in rest[0:2]: a(x)
    a('s_waitcnt lgkmcnt(0)')
    a('v_mfma_f32_32x32x16_f16 %s, %s, %s, 0' % (v(D1, 16), v(T16, 4), v(C2, 4)))
    for x in rest[2:7]: a(x)
    a('v_mfma_f32_32x32x16_f16 %s, %s, %s, 0' % (v(D2, 16), v(T16, 4), v(S2, 4)))
    for x in rest[7:]: a(x)
    for (Dd, B) in ((D1, C2), (D2, S2)):
        a('v_mfma_f32_32x32x16_f16 %s, %s, %s, %s' % (v(Dd, 16), v(T16 + 4, 4), v(B + 4, 4), v(Dd, 16)))
    for u in range(8):
        a('v_pk_add_f32 %s, %s, %s op_sel:[0,1] op_sel_hi:[1,0] neg_hi:[0,1]' % (v(A + 2 * u, 2), v(D1 + 2 * u, 2), v(D2 + 2 * u, 2)))
    for u in range(8):
        a('v_cvt_pk_bf16_f32 %s, %s, %s' % (v(B1 + u), v(A + 2 * u), v(A + 2 * u + 1)))
        if u == 0: a('ds_write_b32 v10, %s' % v(B1))
        elif u == 7: a('ds_write_b32 v12, %s' % v(B1 + 7))
        else: a('ds_write_b32 v11, %s offset:%d' % (v(B1 + u), 576 * u))
    stamp(a, 14, True)
    a.label('fk_common')
    a('v_lshrrev_b32 v5, 3, v15'); a('v_lshlrev_b32 v4, 10, v5'); a('v_and_b32 v6, 7, v15'); a('v_lshl_add_u32 v4, v6, 4, v4')
    a('s_mul_i32 s13, s16, 144'); a('s_add_u32 s13, s13, %d' % LWS)
    a('v_lshl_add_u32 v5, v5, 7, v4'); a('v_add_u32 v5, s13, v5')
    a('s_mul_i32 s17, s3, %d' % OS); a('s_lshl_b32 s13, s16, 7'); a('s_add_u32 s17, s17, s13'); a('s_add_u32 s17, s17, 0x%x' % YOFF)
    a('v_mov_b32 v3, %d' % (LSIG + 28)); a('v_lshrrev_b32 v47, 3, v15'); a('v_lshlrev_b32 v47, 4, v47')
    a('ds_read_b32 v3, v3')
    a('s_waitcnt lgkmcnt(0)'); a('s_barrier')
    stamp(a, 8)
    a('s_setprio 0')
    a('ds_read_b128 v[16:19], v5')
    a('v_readfirstlane_b32 s43, v3')
    XR, WP, YR, H, HN, HP, TMP, OUT = 20, 28, 36, 48, 64, 80, 96, 112
    a('s_sub_u32 s13, 7, s16'); a('s_cmp_lt_u32 s16, 4'); a('s_cselect_b32 s13, s16, s13'); a('s_cselect_b32 s14, 0, 2048')
    a('s_lshl_b32 s21, s13, 5'); a('s_add_u32 s21, s21, s18'); a('s_sub_u32 s22, 2048, s21'); a('s_and_b32 s22, s22, 2047')
    a('s_cmp_lt_u32 s16, 4'); a('s_cselect_b32 s21, s21, s22')
    a('s_lshl_b32 s13, s13, 12'); a('s_add_u32 s13, s13, s14'); a('s_add_u32 s13, s13, %d' % LX)
    a('s_lshl_b32 s14, s3, 3'); a('s_add_u32 s19, s14, s16')
    a('s_cmp_eq_u32 s19, %d' % (248 * 8 + 7)); a('s_cselect_b32 s21, 1024, s21'); a('s_cselect_b32 s13, %d, s13' % LX1024)
    a('s_lshl_b32 s22, s21, 11')
    a('v_add_u32 v6, s13, v14'); a('v_add_u32 v7, %d, v14' % LWR)
    a('s_waitcnt lgkmcnt(0)')
    if not YCHK:
        for i in range(4): a('v_min_u32 %s, -2, %s' % (v(16 + i), v(16 + i)))
    a('buffer_store_dwordx4 v[16:19], v4, s[24:27], s17 offen sc1')
    if YCHK:
        d0 = piece_sum(a, 46, 16, 0)
        a('s_add_u32 s17, s17, 8192')
        a(d0[0]); a('v_add_u32 v40, s43, v46')
        quad_gather(a, 40, 2)
        a('s_mov_b32 exec_lo, 0x01010101'); a('s_mov_b32 exec_hi, 0x01010101')
        a('buffer_store_dwordx4 v[40:43], v47, s[24:27], s17 offen sc1')
        a('s_mov_b64 exec, -1')
    a('ds_read_b128 %s, v6' % v(XR, 4)); a('ds_read_b128 %s, v6 offset:1024' % v(XR + 4, 4))
    a('ds_read_b128 %s, v7' % v(WP, 4)); a('ds_read_b128 %s, v7 offset:1024' % v(WP + 4, 4))
    a('s_cmp_lt_u32 s16, 4'); a('s_cbranch_scc1 fk_noy5')
    window(a, UE, KE, 16, 4, PE)
    G5R = 128
    a('v_add_u32 v3, %d, v14' % LG5); a('v_mov_b32 v4, %d' % LG5E)
    for q in range(4): a('ds_read_b128 %s, v3 offset:%d' % (v(G5R + 4 * q, 4), 1024 * q))
    a('ds_read_b32 v9, v4')
    a('s_lshl_b32 s38, s20, 2'); a('s_sub_u32 s39, 28, s38')
    a('s_waitcnt lgkmcnt(0)')
    a.label('fk_y5')
    for kk in range(2): a('v_pk_mul_f32 %s, %s, %s' % (v(144 + 2 * kk, 2), v(G5R + 2 * kk, 2), v(CS + 2 * kk, 2)))
    for kk in range(2, 8): a('v_pk_fma_f32 %s, %s, %s, %s' % (v(144 + 2 * (kk & 1), 2), v(G5R + 2 * kk, 2), v(CS + 2 * kk, 2), v(144 + 2 * (kk & 1), 2)))
    a('v_pk_add_f32 v[144:145], v[144:145], v[146:147]')
    a('v_add_f32 v144, v144, v145')
    a('s_lshl_b32 s13, s23, 31'); a('v_xor_b32 v12, s13, v9')
    wave_reduce(a, [144])
    a('v_add_f32 v144, v144, v12'); a('v_add_f32 v144, v144, v144'); rbf(a, 144)
    a('s_add_u32 s13, s38, %d' % LY5); a('s_add_u32 s14, s39, %d' % LY5)
    a('v_mov_b32 v10, s13'); a('v_mov_b32 v11, s14')
    a('s_mov_b32 exec_lo, 0'); a('s_mov_b32 exec_hi, 0x80000000')
    a('ds_write_b32 v10, v144'); a('ds_write_b32 v11, v144')
    a('s_mov_b64 exec, -1')
    a('s_cmp_lg_u32 s23, 0'); a('s_cbranch_scc1 fk_noy5')
    a('s_mov_b32 s23, 1024'); a('s_mov_b32 s38, 28')
    y5cos()
    a('s_branch fk_y5')
    a.label('fk_noy5')
    a('v_lshrrev_b32 v1, 1, v0'); a('v_and_b32 v45, 1, v0')
    a('v_lshrrev_b32 v2, 4, v1'); a('v_and_b32 v3, 15, v1')
    a('v_cmp_gt_u32 vcc, 8, v3')
    a('v_sub_u32 v6, 16, v3'); a('v_and_b32 v6, 7, v6'); a('v_sub_u32 v5, 31, v2')
    a('v_cndmask_b32 v6, v6, v3, vcc'); a('v_cndmask_b32 v5, v5, v2, vcc')
    a('v_lshl_add_u32 v4, v6, 5, v5'); a('v_mul_u32_u24 v47, %d, v4' % OS); a('v_lshl_add_u32 v4, v45, 4, v47')
    chkpos(a, 23); a('s_add_u32 s23, s23, 0x%x' % YOFF)
    a('s_lshl_b32 s17, s3, 5'); a('s_add_u32 s17, s17, 0x%x' % YOFF)
    a('v_cndmask_b32 v6, -1, 1, vcc')
    a('v_cmp_eq_u32 vcc, 8, v3')
    a('v_mul_u32_u24 v46, %d, v45' % (4 * RS)); a('v_add_u32 v46, %d, v46' % LROW)
    a('v_cndmask_b32 v6, v6, 15, vcc')
    a('v_lshlrev_b32 v9, 2, v1'); a('v_lshl_add_u32 v10, v6, 1, v9')
    a('v_add_u32 v9, v46, v9'); a('v_add_u32 v10, v46, v10')
    a('s_mul_i32 s36, s16, %d' % RS); a('s_add_u32 s36, s36, %d' % LROW); a('v_add_u32 v5, s36, v14')
    a('s_sub_u32 s36, 7, s16'); a('s_cmp_eq_u32 s21, 0'); a('s_cselect_b32 s36, 0, s36'); a('s_cmp_eq_u32 s21, 1024'); a('s_cselect_b32 s36, 7, s36')
    a('s_mul_i32 s36, s36, %d' % RS); a('s_add_u32 s36, s36, %d' % (LROW + 1008)); a('v_sub_u32 v11, s36, v14')
    a('v_mov_b32 v8, 0x10000')
    a('s_lshl_b32 s36, s16, 2'); a('s_add_u32 s36, s36, %d' % LY5); a('v_mov_b32 v6, s36')
    a('s_mov_b32 s36, 0xffff0000'); a('s_mov_b32 s37, 0x3f803f80'); a('s_mov_b32 s38, 8.0')
    a('s_waitcnt lgkmcnt(0)')
    for k in range(8):
        a('v_lshlrev_b32 %s, 16, %s' % (v(H + 2 * k), v(XR + k))); a('v_and_b32 %s, s36, %s' % (v(H + 2 * k + 1), v(XR + k)))
    a('v_mov_b32 v44, 0')
    for k in range(8): a('v_dot2c_f32_bf16 v44, s37, %s' % v(WP + k))
    wave_reduce(a, [44])
    a('v_readlane_b32 s39, v44, 63')
    a('s_mov_b32 s42, 0')
    a('s_waitcnt vmcnt(0)')
    stamp(a, 9)
    def scatter():
        for u in range(4):
            a('ds_write_b16 v9, %s offset:%d' % (v(YR + u), u * RS))
            a('ds_write_b16_d16_hi v10, %s offset:%d' % (v(YR + u), u * RS))
    a.label('fk_polly')
    a('buffer_load_dwordx4 %s, v4, s[24:27], s17 offen sc1' % v(YR, 4))
    if YCHK:
        a('buffer_load_dword v45, v47, s[24:27], s23 offen sc1')
        a('s_waitcnt vmcnt(1)')
        d0 = piece_sum(a, 46, YR, 0)
        scatter()
        a(d0[0]); a('v_add_u32 v46, s43, v46')
        a('s_waitcnt vmcnt(0)')
        a('v_cmp_ne_u32 vcc, v46, v45')
        poll_tail(a, 42, 'fk_polly', 'fk_goty')
    else:
        poll_check(a, list(range(YR, YR + 4)), 46, 42, 'fk_polly', 'fk_goty')
        scatter()
    stamp(a, 10)
    window(a, UC, KC, 16, 0, PC)
    a('v_mov_b32 v2, 0'); a('v_mov_b32 v3, 0'); a('v_mov_b32 v4, 0'); a('v_mov_b32 v7, 0')
    a('v_mov_b32 v12, %d' % LKEY)
    a('s_waitcnt lgkmcnt(0)')
    a('s_barrier')
    stamp(a, 11)
    a('ds_read_b128 %s, v5' % v(YR, 4)); a('ds_read_b128 %s, v11' % v(YR + 4, 4)); a('ds_read_b32 v44, v6')
    a('s_waitcnt lgkmcnt(2)')
    for k in range(4):
        a('v_lshlrev_b32 %s, 16, %s' % (v(HN + 2 * k), v(YR + k))); a('v_and_b32 %s, s36, %s' % (v(HN + 2 * k + 1), v(YR + k)))
    a('s_waitcnt lgkmcnt(0)')
    stamp(a, 15, True)
    a('v_readfirstlane_b32 s13, v44')
    a('v_mul_u32_u24_dpp %s, %s, v8 wave_shr:1 row_mask:0xf bank_mask:0xf' % (v(HN + 8), v(YR + 4)))
    for j in (3, 2, 1, 0):
        a('v_and_b32 %s, s36, %s' % (v(HN + 15 - 2 * j), v(YR + 4 + j)))
        if j: a('v_lshlrev_b32 %s, 16, %s' % (v(HN + 16 - 2 * j), v(YR + 4 + j)))
    a('v_writelane_b32 %s, s13, 0' % v(HN + 8))
    for k in [0, 1, 2, 3, 5, 6, 7, 4]:
        a('v_pk_fma_f32 %s, %s, s[38:39], %s op_sel_hi:[1,0,1]' % (v(H + 2 * k, 2), v(HN + 2 * k, 2), v(H + 2 * k, 2)))
    for k in [0, 1, 2, 3, 5, 6, 7, 4]: a('v_cvt_pk_bf16_f32 %s, %s, %s' % (v(HP + k), v(H + 2 * k), v(H + 2 * k + 1)))
    for k in [0, 1, 2, 3, 5, 6, 7, 4]:
        a('v_dot2c_f32_bf16 v2, s37, %s' % v(HP + k)); a('v_dot2c_f32_bf16 v3, %s, %s' % (v(HP + k), v(HP + k)))
        a('v_dot2c_f32_bf16 v4, %s, %s' % (v(HP + k), v(WP + k)))
    reduce4(a, 2, 4, 3, 7)
    a('v_readlane_b32 s13, v2, 32')
    ln_chain(a, 2, 8, 9)
    a('v_mov_b32 v10, s13'); a('v_fma_f32 v10, -v8, s39, v10'); a('v_mul_f32 v10, v10, v9'); a('v_mul_f32 v8, v8, v9')
    a('v_readlane_b32 s43, v10, 16'); a('v_readlane_b32 s4, v9, 16'); a('v_readlane_b32 s6, v8, 16')
    a('s_ashr_i32 s13, s43, 31'); a('s_or_b32 s13, s13, 0x80000000'); a('s_xor_b32 s43, s43, s13')
    a('s_and_b32 s43, s43, 0xfffff800'); a('s_or_b32 s43, s43, s19'); a('s_min_u32 s43, s43, -2')
    a('v_mov_b32 v2, s43')
    a('s_mov_b64 exec, 1')
    a('ds_max_u32 v12, v2')
    a('s_mov_b64 exec, -1')
    stamp(a, 16, True)
    a('v_mov_b32 v10, s6'); a('v_add_f32 v8, 1.0, v9')
    a('v_lshlrev_b32 v4, 12, v15'); a('s_lshl_b32 s17, s3, 4'); a('s_add_u32 s17, s17, 0x%x' % KEYS)
    a('v_readlane_b32 s14, v8, 16')
    a('s_waitcnt lgkmcnt(0)')
    a('s_barrier')
    a('ds_read_b32 v3, v12')
    for k in range(8):
        a('v_lshlrev_b32 %s, 16, %s' % (v(H + 2 * k), v(HP + k))); a('v_and_b32 %s, s36, %s' % (v(H + 2 * k + 1), v(HP + k)))
    a('s_waitcnt lgkmcnt(0)')
    a('v_readfirstlane_b32 s13, v3')
    stamp(a, 12)
    stamp(a, 17, True)
    def out_regs():
        for k in range(8):
            a('v_pk_fma_f32 %s, %s, s[14:15], v[10:11] op_sel_hi:[1,0,0] neg_lo:[0,0,1] neg_hi:[0,0,1]' % (v(HN + 2 * k, 2), v(H + 2 * k, 2)))
        for k in range(8): a('v_cvt_pk_bf16_f32 %s, %s, %s' % (v(OUT + k), v(HN + 2 * k), v(HN + 2 * k + 1)))
    def out_store():
        a('buffer_store_dwordx4 %s, v14, s[28:31], s22 offen%s' % (v(OUT, 4), OUTF))
        a('buffer_store_dwordx4 %s, v14, s[28:31], s22 offen offset:1024%s' % (v(OUT + 4, 4), OUTF))
    AH, BF, BD, ACC, KEY, PP, D2R = 16, 128, 160, 176, 180, 184, 192
    def frag_preload():
        a('v_lshrrev_b32 v1, 4, v15'); a('v_bfe_u32 v2, v15, 2, 2')
        a('v_lshl_add_u32 v8, v1, 3, v2'); a('v_lshlrev_b32 v8, 7, v8')
        a('v_and_b32 v3, 2, v2'); a('v_xor_b32 v9, s16, v3'); a('v_and_b32 v3, 1, v1'); a('v_lshlrev_b32 v4, 2, v3'); a('v_xor_b32 v9, v4, v9')
        a('v_lshl_add_u32 v8, v9, 4, v8'); a('v_and_b32 v9, 1, v15'); a('v_lshl_add_u32 v8, v9, 3, v8')
        a('v_bfe_u32 v9, v15, 1, 1'); a('v_lshl_add_u32 v8, v9, 15, v8')
        a('v_lshrrev_b32 v7, 1, v1'); a('v_lshl_add_u32 v7, v7, 3, v2'); a('v_lshlrev_b32 v7, 9, v7'); a('v_lshl_add_u32 v7, v3, 5, v7')
        a('v_and_b32 v3, 3, v15'); a('v_lshl_add_u32 v7, v3, 3, v7'); a('s_lshl_b32 s15, s16, 6'); a('s_add_u32 s15, s15, %d' % LD); a('v_add_u32 v7, s15, v7')
        a('v_lshlrev_b32 v9, 4, v1'); a('v_add_u32 v9, %d, v9' % LHN)
    def landed_add():
        if LATE:
            a('v_mov_b32 v1, %d' % (LSIG + 48)); a('v_mov_b32 v2, 1'); a('s_mov_b64 exec, 1'); a('ds_add_u32 v1, v2'); a('s_mov_b64 exec, -1')
    def frag_reads(tag):
        if LATE:
            a.label('fk_land' + tag)
            a('ds_read_b32 v2, v1'); a('s_waitcnt lgkmcnt(0)'); a('v_readfirstlane_b32 s15, v2')
            a('s_cmp_lt_u32 s15, 8'); a('s_cbranch_scc1 fk_land' + tag)
        for k in range(8):
            a('ds_read_b64_tr_b16 %s, v8 offset:%d' % (v(BF + 4 * k, 2), 4096 * k))
            a('ds_read_b64_tr_b16 %s, v8 offset:%d' % (v(BF + 4 * k + 2, 2), 4096 * k + 512))
            if k == 5: a('s_waitcnt lgkmcnt(4)')
    a('s_cmp_lg_u32 s13, s43'); a('s_cbranch_scc1 fk_other')
    a('s_mov_b64 exec, 0xff')
    a('buffer_store_dword v2, v4, s[24:27], s17 offen sc1')
    a('s_mov_b64 exec, -1')
    for k in range(8):
        a('v_pk_fma_f32 %s, %s, s[4:5], v[10:11] op_sel_hi:[1,0,0] neg_lo:[0,0,1] neg_hi:[0,0,1]' % (v(HN + 2 * k, 2), v(H + 2 * k, 2)))
    for k in range(8): a('v_cvt_pk_bf16_f32 %s, %s, %s' % (v(TMP + k), v(HN + 2 * k), v(HN + 2 * k + 1)))
    for k in range(8): a('v_min_u32 %s, -2, %s' % (v(TMP + k), v(TMP + k)))
    a('s_lshl_b32 s13, s3, 12'); a('s_add_u32 s13, s13, 0x%x' % CAND)
    a('buffer_store_dwordx4 %s, v14, s[24:27], s13 offen sc1' % v(TMP, 4))
    a('buffer_store_dwordx4 %s, v14, s[24:27], s13 offen offset:1024 sc1' % v(TMP + 4, 4))
    for k in range(8): a('v_min_u32 %s, -2, %s' % (v(HP + k), v(HP + k)))
    a('buffer_store_dwordx4 %s, v14, s[24:27], s13 offen offset:2048 sc1' % v(HP, 4))
    a('buffer_store_dwordx4 %s, v14, s[24:27], s13 offen offset:3072 sc1' % v(HP + 4, 4))
    out_regs()
    frag_preload()
    if not LATE: frag_reads('a')
    a('s_and_b32 s13, s2, 7'); a('s_lshl_b32 s13, s13, 12'); a('s_add_u32 s13, s13, 0x%x' % KEYS)
    a('s_mov_b32 s42, 0')
    a('s_waitcnt vmcnt(4)')
    landed_add()
    a.label('fk_pollk')
    for i in range(4): a('buffer_load_dword %s, v14, s[24:27], s13 offen offset:%d sc1' % (v(KEY + i), 1024 * i))
    poll_check(a, list(range(KEY, KEY + 4)), 3, 42, 'fk_pollk', 'fk_gotk')
    stamp(a, 13)
    wave_reduce(a, [3], op='v_max_u32')
    a('v_readlane_b32 s40, v3, 63')
    a('v_mov_b32 v4, %d' % LWIN)
    a('s_bfe_u32 s13, s40, 0x80003'); a('s_lshl_b32 s13, s13, 12'); a('s_and_b32 s14, s3, 3'); a('s_lshl_b32 s14, s14, 9')
    a('s_add_u32 s13, s13, s14'); a('s_add_u32 s13, s13, 0x%x' % CAND)
    a('v_lshlrev_b32 v5, 3, v15'); a('v_mov_b32 v3, s40')
    a('s_cmp_gt_u32 s3, 223'); a('s_cbranch_scc1 fk_norow')
    a('s_mov_b32 s42, 0')
    if LATE:
        a('buffer_load_dwordx2 %s, v5, s[24:27], s13 offen sc1' % v(KEY, 2))
        frag_reads('a')
        a('s_branch fk_chkr')
    a.label('fk_pollr')
    a('buffer_load_dwordx2 %s, v5, s[24:27], s13 offen sc1' % v(KEY, 2))
    a.label('fk_chkr')
    poll_check(a, [KEY, KEY + 1], 6, 42, 'fk_pollr', 'fk_gotr')
    a('v_add_u32 v5, %d, v5' % LHN)
    a('ds_write_b64 v5, %s' % v(KEY, 2))
    a.label('fk_norow')
    a('ds_write_b32 v4, v3')
    a('s_waitcnt lgkmcnt(0)')
    a('s_barrier')
    a('s_cmp_eq_u32 s40, s43')
    if OUTAT == 'early':
        a('s_cbranch_scc1 fk_ffn')
        out_store()
    else: a('s_cselect_b32 s22, 0x400000, s22')
    a('s_branch fk_ffn')
    a.label('fk_other')
    out_regs()
    if OUTAT == 'early': out_store()
    a('s_and_b32 s13, s13, 7'); a('s_cmp_gt_u32 s16, s13'); a('s_cselect_b32 s13, 1, 0'); a('s_sub_u32 s17, s16, s13')
    if UD >= 64:
        if LATE: a('s_waitcnt vmcnt(0)')
        frag_preload()
        landed_add()
        window(a, UD, KD, 17, 0, PD)
        frag_reads('b')
        a('s_waitcnt lgkmcnt(0)' if DLATE else 's_waitcnt vmcnt(0) lgkmcnt(0)')
    else:
        window(a, UD, KD, 17, 0, PD)
        frag_preload()
        a('s_waitcnt vmcnt(0)')
        landed_add()
        frag_reads('b')
        a('s_waitcnt lgkmcnt(0)')
    a('s_barrier')
    a.label('fk_ffn')
    stamp(a, 14)
    if OUTAT == 'bf': out_store()
    a('s_cmp_gt_u32 s3, 223'); a('s_cbranch_scc1 %s' % ('fk_lateout' if OUTAT in ('p1', 'end') else 'fk_fin'))
    for k in range(8): a('ds_read_b128 %s, v9 offset:%d' % (v(AH + 4 * k, 4), 64 * k))
    a('v_mov_b32 v3, %d' % LWIN); a('ds_read_b32 v12, v3')
    a('v_lshlrev_b32 v4, 3, v15')
    a('s_lshl_b32 s13, s3, 9'); a('s_lshl_b32 s14, s16, 6'); a('s_add_u32 s13, s13, s14'); a('s_add_u32 s13, s13, 0x%x' % P1)
    for k in range(8):
        a('s_waitcnt lgkmcnt(%d)' % (8 - k))
        a('v_mfma_f32_16x16x32_bf16 %s, %s, %s, %s' % (v(ACC, 4), v(AH + 4 * k, 4), v(BF + 4 * k, 4), '0' if k == 0 else v(ACC, 4)))
    a('v_lshlrev_b32 v5, 3, v15'); a('v_lshlrev_b32 v6, 2, v15')
    a('v_lshrrev_b32 v9, 5, v15'); a('v_lshlrev_b32 v9, 4, v9'); a('v_add_u32 v9, %d, v9' % LACT)
    a('s_lshl_b32 s41, s3, 10'); a('s_lshl_b32 s14, s16, 7'); a('s_add_u32 s41, s41, s14'); a('s_add_u32 s41, s41, 0x%x' % P2)
    a('v_min_u32 %s, -2, %s' % (v(ACC), v(ACC)))
    a('v_mov_b32_dpp %s, %s row_shl:8 %s' % (v(ACC + 1), v(ACC), DPPF))
    a('v_mov_b32_dpp %s, %s row_shl:1 %s' % (v(ACC + 2), v(ACC), DPPF))
    a('v_mov_b32_dpp %s, %s row_shl:9 %s' % (v(ACC + 3), v(ACC), DPPF))
    a('s_mov_b64 exec, 0x55')
    a('buffer_store_dwordx4 %s, v4, s[24:27], s13 offen sc1' % v(ACC, 4))
    a('s_mov_b64 exec, -1')
    if OUTAT == 'p1': out_store()
    def bd_reads(tag, add=True):
        if DLATE:
            if add:
                a('s_waitcnt vmcnt(0)')
                a('s_mov_b64 exec, 1'); a('ds_add_u32 v1, v8'); a('s_mov_b64 exec, -1')
            a.label('fk_dl' + tag)
            a('ds_read_b32 v13, v1'); a('s_waitcnt lgkmcnt(0)'); a('v_readfirstlane_b32 s15, v13')
            a('s_cmp_lt_u32 s15, 8'); a('s_cbranch_scc1 fk_dl' + tag)
        for kk in range(4):
            a('ds_read_b64_tr_b16 %s, v7 offset:%d' % (v(BD + 4 * kk, 2), 8192 * kk))
            a('ds_read_b64_tr_b16 %s, v7 offset:%d' % (v(BD + 4 * kk + 2, 2), 8192 * kk + 2048))
    a('v_mov_b32 v1, %d' % (LSIG + 52)); a('v_mov_b32 v8, 1')
    if not DLATE: bd_reads('')
    a('s_cmp_eq_u32 s16, 7'); a('s_cbranch_scc1 fk_c1')
    a('s_cmp_lg_u32 s16, 0'); a('s_cbranch_scc1 %s' % ('fk_bd' if DLATE else 'fk_wait1'))
    a('s_lshr_b32 s13, s3, 2'); a('s_lshl_b32 s13, s13, 11'); a('s_add_u32 s13, s13, 0x%x' % P1)
    a('s_mov_b32 s42, 0')
    a('v_lshrrev_b32 v10, 2, v5'); a('v_add_u32 v10, %d, v10' % LACT)
    a('s_waitcnt vmcnt(%d)' % (2 if OUTAT == 'p1' else 0))
    if DLATE: a('s_mov_b64 exec, 1'); a('ds_add_u32 v1, v8'); a('s_mov_b64 exec, -1')
    a.label('fk_poll1')
    for i in range(4): a('buffer_load_dwordx2 %s, v5, s[24:27], s13 offen offset:%d sc1' % (v(PP + 2 * i, 2), 512 * i))
    poll_check(a, list(range(PP, PP + 8)), 11, 42, 'fk_poll1', 'fk_got1')
    stamp(a, 15)
    a('v_pk_add_f32 %s, %s, %s' % (v(PP, 2), v(PP, 2), v(PP + 2, 2))); a('v_pk_add_f32 %s, %s, %s' % (v(PP + 4, 2), v(PP + 4, 2), v(PP + 6, 2)))
    a('v_pk_add_f32 %s, %s, %s' % (v(PP, 2), v(PP, 2), v(PP + 4, 2)))
    rbf(a, PP); rbf(a, PP + 1)
    a('v_mul_f32 %s, %s, %s' % (v(PP + 2), fh(-1.4426950408889634), v(PP)))
    a('v_exp_f32 %s, %s' % (v(PP + 2), v(PP + 2)))
    a('v_add_f32 %s, 1.0, %s' % (v(PP + 2), v(PP + 2)))
    a('v_rcp_f32 %s, %s' % (v(PP + 2), v(PP + 2)))
    a('v_mul_f32 %s, %s, %s' % (v(PP), v(PP), v(PP + 2)))
    rbf(a, PP)
    a('v_mul_f32 %s, %s, %s' % (v(PP), v(PP), v(PP + 1)))
    rbf(a, PP)
    a('ds_write_b16_d16_hi v10, %s' % v(PP))
    if DLATE: bd_reads('a', False)
    a('s_branch fk_wait1')
    a.label('fk_c1')
    a('s_cmp_gt_u32 s3, 127'); a('s_cbranch_scc1 %s' % ('fk_bd' if DLATE else 'fk_wait1'))
    a('s_waitcnt lgkmcnt(0)')
    a('v_readfirstlane_b32 s40, v12')
    a('v_lshrrev_b32 v10, 4, v15'); a('v_and_b32 v11, 1, v15'); a('v_lshl_add_u32 v12, v11, 2, v10'); a('v_lshlrev_b32 v12, 1, v12')
    a('v_and_b32 v11, 12, v12'); a('v_and_b32 v10, 1, v10')
    a('s_bfe_u32 s13, s40, 0x80003'); a('s_lshl_b32 s14, s13, 12'); a('s_lshl_b32 s15, s3, 4'); a('s_add_u32 s14, s14, s15'); a('s_add_u32 s14, s14, 0x%x' % CAND)
    a('s_mov_b32 s42, 0')
    a.label('fk_pollh')
    a('buffer_load_dword v2, v11, s[24:27], s14 offen sc1')
    a('buffer_load_dword v3, v11, s[24:27], s14 offen offset:2048 sc1')
    poll_check(a, [2, 3], 4, 42, 'fk_pollh', 'fk_goth')
    a('v_cmp_eq_u32 vcc, 1, v10')
    for r in (2, 3):
        a('v_lshlrev_b32 v4, 16, %s' % v(r)); a('v_and_b32 %s, s36, %s' % (v(r), v(r))); a('v_cndmask_b32 %s, v4, %s, vcc' % (v(r), v(r)))
    a('s_lshr_b32 s14, s13, 4'); a('s_add_u32 s14, s14, 1'); a('s_cmp_ge_u32 s13, 248'); a('s_cselect_b32 s14, 0, s14')
    a('s_cmp_ge_u32 s13, 240'); a('s_cselect_b32 s15, 7, 15'); a('s_and_b32 s15, s15, s13'); a('s_lshl_b32 s15, s15, 7'); a('s_add_u32 s14, s14, s15')
    a('s_and_b32 s13, s40, 7'); a('s_sub_u32 s15, 7, s13'); a('s_min_u32 s15, s15, s13'); a('s_lshl_b32 s15, s15, 5'); a('s_add_u32 s14, s14, s15')
    a('s_sub_u32 s15, 2048, s14'); a('s_and_b32 s15, s15, 2047'); a('s_cmp_lt_u32 s13, 4'); a('s_cselect_b32 s14, s14, s15')
    a('s_and_b32 s13, s40, 0x7ff'); a('s_cmp_eq_u32 s13, %d' % (248 * 8 + 7)); a('s_cselect_b32 s14, 1024, s14')
    a('s_lshl_b32 s21, s14, 11'); a('s_lshl_b32 s15, s3, 4'); a('s_add_u32 s21, s21, s15')
    a('s_ashr_i32 s13, s40, 31'); a('s_not_b32 s13, s13'); a('s_or_b32 s13, s13, 0x80000000'); a('s_xor_b32 s13, s40, s13'); a('s_and_b32 s13, s13, 0xfffff800')
    a('v_mov_b32 v11, s13'); rbf(a, 11)
    a('v_mul_f32 v11, %s, v11' % fh(-1.4426950408889634))
    a('v_exp_f32 v11, v11'); a('v_add_f32 v11, 1.0, v11'); a('v_rcp_f32 v11, v11'); rbf(a, 11)
    a('v_lshrrev_b32 v4, 1, v15'); a('v_lshlrev_b32 v4, 12, v4'); a('v_and_b32 v5, 1, v15'); a('v_lshl_add_u32 v4, v5, 4, v4')
    a('v_add_u32 v5, %d, v4' % (32 * 4096)); a('v_cmp_gt_u32 vcc, 48, v15'); a('v_cndmask_b32 v5, -16, v5, vcc')
    a('s_lshl_b32 s40, s3, 5'); a('s_add_u32 s40, s40, 0x%x' % P2)
    if DLATE:
        a.label('fk_bd')
        bd_reads('b')
    a.label('fk_wait1')
    a('s_waitcnt lgkmcnt(0)'); a('s_barrier')
    stamp(a, 16)
    for kk in range(4): a('ds_read_b128 %s, v9 offset:%d' % (v(AH + 4 * kk, 4), 32 * kk))
    for kk in range(4):
        a('s_waitcnt lgkmcnt(%d)' % (3 - kk))
        a('v_mfma_f32_32x32x16_bf16 %s, %s, %s, %s' % (v(D2R, 16), v(AH + 4 * kk, 4), v(BD + 4 * kk, 4), '0' if kk == 0 else v(D2R, 16)))
    a('v_min_u32 %s, -2, %s' % (v(D2R), v(D2R)))
    quad_gather(a, D2R, 1)
    a('s_mov_b32 exec_lo, 0x11111111'); a('s_mov_b32 exec_hi, 0')
    a('buffer_store_dwordx4 %s, v6, s[24:27], s41 offen sc1' % v(D2R, 4))
    a('s_mov_b64 exec, -1')
    if OUTAT == 'end': out_store()
    stamp(a, 17)
    a('s_cmp_lg_u32 s16, 7'); a('s_cbranch_scc1 fk_fin')
    a('s_cmp_gt_u32 s3, 127'); a('s_cbranch_scc1 fk_fin')
    PQ = 16
    a('s_mov_b32 s42, 0')
    a('s_waitcnt vmcnt(%d)' % (2 if OUTAT == 'end' else 0))
    a.label('fk_poll2')
    a('buffer_load_dwordx4 %s, v4, s[24:27], s40 offen sc1' % v(PQ, 4))
    a('buffer_load_dwordx4 %s, v5, s[24:27], s40 offen sc1' % v(PQ + 4, 4))
    poll_check(a, list(range(PQ, PQ + 8)), 6, 42, 'fk_poll2', 'fk_got2')
    stamp(a, 18)
    for h in range(2): a('v_pk_add_f32 %s, %s, %s' % (v(PQ + 2 * h, 2), v(PQ + 2 * h, 2), v(PQ + 4 + 2 * h, 2)))
    for i in range(2): a('v_permlane32_swap_b32 %s, %s' % (v(PQ + i), v(PQ + 2 + i)))
    for i in range(2): a('v_add_f32 %s, %s, %s' % (v(PQ + i), v(PQ + i), v(PQ + 2 + i)))
    a('v_permlane16_swap_b32 %s, %s' % (v(PQ), v(PQ + 1)))
    a('v_add_f32 %s, %s, %s' % (v(PQ), v(PQ), v(PQ + 1)))
    a('v_add_f32_dpp %s, %s, %s quad_perm:[2,3,0,1] %s' % (v(PQ), v(PQ), v(PQ), DPPF))
    a('v_add_f32_dpp %s, %s, %s row_ror:4 %s' % (v(PQ), v(PQ), v(PQ), DPPF))
    a('v_add_f32_dpp %s, %s, %s row_ror:8 %s' % (v(PQ), v(PQ), v(PQ), DPPF))
    rbf(a, PQ); a('v_mul_f32 %s, %s, v11' % (v(PQ), v(PQ))); rbf(a, PQ)
    a('v_add_f32 %s, %s, v2' % (v(PQ), v(PQ))); rbf(a, PQ)
    a('v_add_f32 %s, %s, v3' % (v(PQ), v(PQ))); rbf(a, PQ)
    a('s_mov_b32 exec_lo, 0x00030003'); a('s_mov_b32 exec_hi, 0x00030003')
    a('buffer_store_short_d16_hi %s, v12, s[28:31], s21 offen' % v(PQ))
    if OUTAT in ('p1', 'end'):
        a('s_branch fk_fin')
        a.label('fk_lateout')
        out_store()
    a.label('fk_fin')
    stamp_dump(a, 'x')
    a.label('fk_end')
    a('s_endpgm')

def main(path):
    a = Asm()
    ref = open('%s/%s.s.ref' % (optval('ref', '/code'), NAME)).read().splitlines()
    for l in ref:
        if l.startswith('; Override'): break
        a.raw(l)
    if LIST: a.raw('; @launch kernel=%s grid=(256,1,1) block=(512,1,1) lds=%d' % (KN, LDSB))
    else: a.raw('; @launch grid=(256,1,1) block=(512,1,1) lds=%d' % LDSB)
    a.raw('.amdgcn_target "amdgcn-amd-amdhsa--gfx950"'); a.raw('.text')
    gen(a)
    a.raw('.section .rodata,"a"')
    a.raw('\n'.join(['.p2align 6', '.amdhsa_kernel %s' % KN, '  .amdhsa_next_free_vgpr 256',
        '  .amdhsa_next_free_sgpr 102', '  .amdhsa_accum_offset 256', '  .amdhsa_group_segment_fixed_size 0',
        '  .amdhsa_kernarg_size 104', '  .amdhsa_user_sgpr_count 2', '  .amdhsa_user_sgpr_kernarg_segment_ptr 1',
        '  .amdhsa_system_sgpr_workgroup_id_x 1', '.end_amdhsa_kernel', '']))
    open(path, 'w').write(a.text())
    print('wrote', path, 'lines', len(a.lines), 'nops', a.nops, 'lds', LDSB)

if __name__ == '__main__':
    ps = [x for x in sys.argv[1:] if x.endswith('.s')]
    main(ps[0] if ps else '/code/%s.s' % NAME)
```

```python
import struct, sys
from asmlib import Asm

NAME = 'sequential_preLN__spectral_fnet__moe_arch_mod__prompt'
def fh(x): return '0x%08x' % struct.unpack('<I', struct.pack('<f', x))[0]
OPT = set(a for a in sys.argv[1:] if a.startswith('--'))
def optval(name, default):
    for o in OPT:
        if o.startswith('--%s=' % name): return o[len(name) + 3:]
    return default
STAMPS = '--stamps' in OPT
LIST = '--list' in OPT or STAMPS
OUTF = {'plain': '', 'nt': ' nt', 'sc1': ' sc1'}[optval('out', 'nt')]
OUTAT = optval('outat', 'bf')
KN = 'fk_kernel' if LIST else NAME + '_kernel'

KEYS = 0x9000; G5 = 0x11000; P1 = 0x13000; P2 = 0x30000; CAND = 0x80000
OS = 9344
WOFF = 0x200000; YOFF = 0x448000; WSB = 0x690000
LG, LD, LX = 0, 65536, 98304
LX1024 = LX + 5 * 4096
LWS = LX1024 + 2048
LA2 = LWS + 9472
RS = 2064
LROW = LA2 + 8192
LWR = LROW + 8 * RS
LG5 = LX + 4 * 4096
LMISC = LWR + 2048
LG5S, LY5, LKEY, LWIN, LG5E, LACT, LHN, LSIG = LMISC, LMISC + 32, LMISC + 64, LMISC + 80, LMISC + 96, LMISC + 128, LMISC + 256, LMISC + 768
LDSB = LMISC + 832
assert LDSB <= 163840

def v(i, n=1): return 'v%d' % i if n == 1 else 'v[%d:%d]' % (i, i + n - 1)
def s(i, n=1): return 's%d' % i if n == 1 else 's[%d:%d]' % (i, i + n - 1)
DPPF = 'row_mask:0xf bank_mask:0xf'
ROWRED = ['quad_perm:[1,0,3,2] ' + DPPF, 'quad_perm:[2,3,0,1] ' + DPPF, 'row_half_mirror ' + DPPF, 'row_mirror ' + DPPF]
def wave_reduce(a, regs, op='v_add_f32'):
    for pat in ROWRED + ['row_bcast:15 row_mask:0xa bank_mask:0xf', 'row_bcast:31 row_mask:0xc bank_mask:0xf']:
        for r in regs: a('%s_dpp %s, %s, %s %s' % (op, v(r), v(r), v(r), pat))
def rbf(a, r): a('v_cvt_pk_bf16_f32 %s, 0, %s' % (v(r), v(r)))
def angles(a, mulreg, basereg, ks, tmp):
    for i, k in enumerate(ks):
        if k == 0: a('v_mov_b32 %s, %s' % (v(tmp + i), v(basereg)))
        else: a('v_fmamk_f32 %s, %s, %s, %s' % (v(tmp + i), v(mulreg), fh(float(k)), v(basereg)))
def kr(r): return (r & 3) + 8 * (r >> 2)
def gen_c2s2(a, vln_f, vlh4_f, C2, S2, tmp):
    c, b = tmp, tmp + 1
    a('v_mul_f32 %s, %s, %s' % (v(c), fh(1.0 / 32), v(vln_f)))
    a('v_mul_f32 %s, %s, %s' % (v(b), v(c), v(vlh4_f)))
    ang = tmp + 2
    angles(a, c, b, [kr(r) for r in range(16)], ang)
    for r in range(16): a('v_cos_f32 %s, %s' % (v(ang + 16 + r), v(ang + r)))
    for p in range(8): a('v_cvt_pk_f16_f32 %s, %s, %s' % (v(C2 + p), v(ang + 16 + 2 * p), v(ang + 17 + 2 * p)))
    for r in range(16): a('v_sin_f32 %s, %s' % (v(ang + 16 + r), v(ang + r)))
    for p in range(8): a('v_cvt_pk_f16_f32 %s, %s, %s' % (v(S2 + p), v(ang + 16 + 2 * p), v(ang + 17 + 2 * p)))
def reduce4(a, A, B, C, D):
    a('v_permlane32_swap_b32 %s, %s' % (v(A), v(B))); a('v_permlane32_swap_b32 %s, %s' % (v(C), v(D)))
    a('v_add_f32 %s, %s, %s' % (v(A), v(A), v(B))); a('v_add_f32 %s, %s, %s' % (v(C), v(C), v(D)))
    a('v_permlane16_swap_b32 %s, %s' % (v(A), v(C)))
    a('v_add_f32 %s, %s, %s' % (v(A), v(A), v(C)))
    for pat in ROWRED: a('v_add_f32_dpp %s, %s, %s %s' % (v(A), v(A), v(A), pat))
def ln_chain(a, tot, m, t):
    a('v_mov_b32_dpp %s, %s row_bcast:15 row_mask:0xa bank_mask:0xf' % (v(m), v(tot)))
    a('v_mul_f32 %s, %s, %s' % (v(t), fh(1.0 / 1024), v(tot)))
    a('v_mul_f32 %s, %s, %s' % (v(m), fh(1.0 / 1024), v(m)))
    a('v_fma_f32 %s, -%s, %s, %s' % (v(t), v(m), v(m), v(t)))
    a('v_max_f32 %s, 0, %s' % (v(t), v(t)))
    rbf(a, t); rbf(a, m)
    a('v_add_f32 %s, %s, %s' % (v(t), fh(1e-5), v(t))); rbf(a, t)
    a('v_sqrt_f32 %s, %s' % (v(t), v(t))); rbf(a, t)
    a('v_rcp_f32 %s, %s' % (v(t), v(t)))

NST = 20
EARLY = '--early' in OPT
def stamp(a, i, early=False):
    if STAMPS and (early == EARLY or i < 12 or i == NST - 1): a('s_memrealtime s[%d:%d]' % (60 + 2 * i, 61 + 2 * i))
def stamp_dump(a, tag):
    if not STAMPS: return
    a('s_waitcnt vmcnt(0) lgkmcnt(0)')
    stamp(a, NST - 1)
    a('s_load_dwordx2 s[4:5], s[0:1], 96'); a('s_waitcnt lgkmcnt(0)')
    a('s_add_u32 s4, s4, 0x8000000'); a('s_addc_u32 s5, s5, 0'); a('s_mov_b32 s6, 0x40000'); a('s_mov_b32 s7, 0x00020000')
    a('s_lshl_b32 s12, s2, 3'); a('s_add_u32 s12, s12, s16'); a('s_lshl_b32 s12, s12, 7')
    a('s_mov_b64 exec, 1'); a('v_mov_b32 v1, 0')
    for i in range(NST):
        a('v_mov_b32 v2, s%d' % (60 + 2 * i)); a('buffer_store_dword v2, v1, s[4:7], s12 offen offset:%d' % (4 * i))

YCHK = '--ychk' in OPT
G2 = '--g2' in OPT
NH = int(optval('nh', '4'))
KA = int(optval('ka', '0')); CPOST = '--cpost' in OPT
KB, KE, KC, KD = (int(x) for x in optval('win', '4,0,5,4').split(','))
PB, PE, PC, PD = (int(x) for x in optval('wpace', '99,99,99,99').split(','))
assert '--now' in OPT or 3 * NH + 4 * KA + 4 * KB + 4 * KE + 8 * KC + 7 * KD >= 96, 'units missing'
def unit_setup(a):
    a('v_lshrrev_b32 v208, 3, v15'); a('v_and_b32 v209, 7, v15'); a('v_and_b32 v210, 2, v208'); a('v_xor_b32 v209, v210, v209')
    a('v_mul_u32_u24 v208, 7168, v208'); a('v_lshl_add_u32 v208, v209, 4, v208')
    a('v_lshrrev_b32 v210, 5, v15'); a('v_lshlrev_b32 v210, 11, v210'); a('v_and_b32 v209, 31, v15'); a('v_lshl_add_u32 v210, v209, 4, v210')
    a('s_and_b32 s12, s3, 3'); a('s_mul_i32 s100, s12, %d' % (256 * 7168)); a('s_lshl_b32 s101, s12, 9')
    a('s_lshr_b32 s12, s3, 2'); a('s_lshl_b32 s12, s12, 7'); a('s_add_u32 s100, s100, s12'); a('s_lshl_b32 s12, s12, 10'); a('s_add_u32 s101, s101, s12')
uid = [0]
def window(a, first, k, wreg, wbase, pace=99, skip=None):
    if k == 0 or first >= 96: return
    uid[0] += 1; lab = skip or 'fk_win%d' % uid[0]
    a('s_cmp_gt_u32 s3, 223'); a('s_cbranch_scc1 %s' % lab)
    a('s_mul_i32 s15, %s, %d' % (s(wreg), k)); a('s_add_u32 s15, s15, %d' % (first - wbase * k))
    a('s_mov_b32 s58, 0x700000'); a('s_mov_b32 s59, 0x00020000')
    for i in range(k):
        a('s_cmp_gt_u32 s15, 95'); a('s_cbranch_scc1 %s' % lab)
        a('s_lshl_b32 s12, s15, 10'); a('s_mov_b32 m0, s12')
        a('s_and_b32 s14, s12, 1024'); a('s_lshr_b32 s14, s14, 4'); a('v_xor_b32 v209, s14, v208')
        a('s_cmp_lt_u32 s15, 32'); a('s_cselect_b64 s[56:57], s[44:45], s[48:49]')
        a('s_and_b32 s14, s15, 31'); a('s_mul_i32 s13, s14, %d' % (8 * 7168)); a('s_add_u32 s13, s13, s100')
        a('s_lshl_b32 s14, s14, 12'); a('s_add_u32 s14, s14, s101')
        a('s_cmp_lt_u32 s15, 64'); a('s_cselect_b64 s[56:57], s[56:57], s[52:53]'); a('s_cselect_b32 s13, s13, s14'); a('s_cselect_b64 vcc, -1, 0')
        a('v_cndmask_b32 v209, v210, v209, vcc')
        a('s_add_u32 s15, s15, 1')
        if i >= pace: a('s_waitcnt vmcnt(%d)' % pace)
        a('buffer_load_dwordx4 v209, s[56:59], s13 offen lds')
    if not skip: a.label(lab)
UA = 3 * NH; UB = UA + 4 * KA; UE = UB + 4 * KB; UC = UE + 4 * KE; UD = UC + 8 * KC
LATE = UC < 64 and '--now' not in OPT
DLATE = UD >= 64 and UD < 96 and KD > 0 and '--nodlate' not in OPT
BASE = int(optval('base', '0'), 0)
def rebase(a):
    if BASE: a('s_add_u32 s24, s24, 0x%x' % BASE); a('s_addc_u32 s25, s25, 0')
def chkpos(a, d):
    a('s_bfe_u32 %s, s3, 0x30002' % s(d)); a('s_lshl_b32 %s, %s, 7' % (s(d), s(d))); a('s_lshr_b32 s12, s3, 5'); a('s_lshl_b32 s12, s12, 4')
    a('s_add_u32 %s, %s, s12' % (s(d), s(d))); a('s_and_b32 s12, s3, 3'); a('s_lshl_b32 s12, s12, 2'); a('s_add_u32 %s, %s, s12' % (s(d), s(d)))
    a('s_add_u32 %s, %s, 8192' % (s(d), s(d)))
def piece_sum(a, d, r, tag):
    a('v_add3_u32 %s, %s, %s, %s' % (v(d), v(r), v(r + 1), v(r + 2)))
    a('v_add_u32 %s, %s, %s' % (v(d), v(d), v(r + 3)))
    return ['v_add_u32_dpp %s, %s, %s quad_perm:[1,0,3,2] %s' % (v(d), v(d), v(d), DPPF)]
def quad_gather(a, r, step):
    for i in range(1, 4): a('v_mov_b32_dpp %s, %s row_shl:%d %s' % (v(r + i), v(r), i * step, DPPF))
def poll_tail(a, cnt, lab, got):
    a('s_add_u32 %s, %s, 1' % (s(cnt), s(cnt)))
    a('s_cmp_gt_u32 %s, 0x40000' % s(cnt)); a('s_cbranch_scc1 %s' % got)
    a('s_cbranch_vccnz %s' % lab)
    a.label(got)
def poll_check(a, regs, tmp, cnt, lab, got, wait=True):
    a('s_add_u32 %s, %s, 1' % (s(cnt), s(cnt)))
    if wait: a('s_waitcnt vmcnt(0)')
    r = list(regs)
    if len(r) == 1: a('v_cmp_eq_u32 vcc, -1, %s' % v(r[0]))
    else:
        if len(r) == 2: a('v_max_u32 %s, %s, %s' % (v(tmp), v(r[0]), v(r[1]))); r = []
        else: a('v_max3_u32 %s, %s, %s, %s' % (v(tmp), v(r[0]), v(r[1]), v(r[2]))); r = r[3:]
        while r:
            if len(r) >= 2: a('v_max3_u32 %s, %s, %s, %s' % (v(tmp), v(tmp), v(r[0]), v(r[1]))); r = r[2:]
            else: a('v_max_u32 %s, %s, %s' % (v(tmp), v(tmp), v(r[0]))); r = []
        a('v_cmp_eq_u32 vcc, -1, %s' % v(tmp))
    a('s_cmp_gt_u32 %s, 0x40000' % s(cnt)); a('s_cbranch_scc1 %s' % got)
    a('s_cbranch_vccnz %s' % lab)
    a.label(got)

def gen(a):
    a.raw('.globl %s' % KN); a.raw('.p2align 8'); a.raw('.type %s,@function' % KN)
    a.lines.append(KN + ':')
    a('s_cmp_gt_u32 s2, 255'); a('s_cbranch_scc1 fk_end')
    if STAMPS:
        for i in range(NST): a('s_mov_b32 s%d, 0' % (60 + 2 * i))
    stamp(a, 0)
    a('s_load_dwordx2 s[8:9], s[0:1], 0'); a('s_load_dwordx2 s[24:25], s[0:1], 96')
    a('s_load_dwordx2 s[32:33], s[0:1], 48'); a('s_load_dwordx2 s[44:45], s[0:1], 56'); a('s_load_dwordx2 s[48:49], s[0:1], 64')
    a('s_load_dwordx2 s[52:53], s[0:1], 72'); a('s_load_dwordx2 s[28:29], s[0:1], 80')
    if '--nocodepf' not in OPT:
        a('s_getpc_b64 s[40:41]'); a.lines.append('fk_pc:')
        a('s_mov_b32 s42, fk_end-fk_pc'); a('s_mov_b32 s43, 0x00020000')
        a('v_lshlrev_b32 v250, 6, v0')
        a('buffer_load_dword v251, v250, s[40:43], 0 offen')
    a('v_lshrrev_b32 v1, 6, v0'); a('v_and_b32 v15, 63, v0')
    a('v_readfirstlane_b32 s16, v1')
    a('s_and_b32 s3, s2, 0xe0'); a('s_and_b32 s17, s2, 7'); a('s_lshl_b32 s17, s17, 2'); a('s_or_b32 s3, s3, s17')
    a('s_bfe_u32 s17, s2, 0x20003'); a('s_or_b32 s3, s3, s17')
    a('s_lshr_b32 s17, s3, 4'); a('s_add_u32 s17, s17, 1'); a('s_cmp_ge_u32 s3, 248'); a('s_cselect_b32 s17, 0, s17')
    a('s_cmp_ge_u32 s3, 240'); a('s_cselect_b32 s18, 7, 15'); a('s_and_b32 s18, s18, s3'); a('s_lshl_b32 s18, s18, 7')
    a('s_add_u32 s18, s18, s17')
    a('v_and_b32 v1, 31, v15'); a('v_lshrrev_b32 v2, 5, v15')
    a('v_lshlrev_b32 v14, 4, v15')
    for r, n in ((8, 2048 * 2048), (24, WSB), (28, 2048 * 2048), (32, 2048), (44, 1024 * 7168), (48, 1024 * 7168), (52, 3584 * 2048)):
        a('s_mov_b32 %s, 0x%x' % (s(r + 2), n)); a('s_mov_b32 %s, 0x00020000' % s(r + 3))
    a('s_cmp_ge_u32 s3, 248'); a('s_cselect_b32 s12, 5, 4')
    a('s_cmp_ge_u32 s16, s12'); a('s_cbranch_scc1 fk_H')
    XA, XB = 16, 32
    F1, TC, TS, B3, C2, S2 = 48, 56, 72, 88, 96, 104
    X, D1, D2, D3, Q16, GA = 112, 128, 144, 160, 176, 184
    T = 128
    a('s_setprio 3')
    a('s_lshl_b32 s19, s16, 5'); a('s_add_u32 s19, s19, s18')
    a('s_sub_u32 s20, 2048, s19'); a('s_and_b32 s20, s20, 2047')
    a('s_lshl_b32 s21, s19, 11'); a('s_lshl_b32 s22, s20, 11')
    a('s_lshl_b32 s12, s16, 12'); a('s_add_u32 s12, s12, %d' % LX)
    a('s_mov_b32 m0, s12')
    for i in range(32): a('v_mov_b32 %s, 0' % v(XA + i))
    a('v_cvt_f32_u32 v200, v1')
    a('v_lshlrev_b32 v7, 2, v2'); a('v_cvt_f32_u32 v7, v7')
    a('v_lshrrev_b32 v8, 1, v1'); a('v_and_b32 v9, 1, v1')
    a('v_lshlrev_b32 v205, 2, v15'); a('v_and_b32 v205, 63, v205'); a('v_add_u32 v205, %d, v205' % LSIG)
    a('ds_write_b32 v205, v16')
    a('s_waitcnt lgkmcnt(0)')
    rebase(a)
    stamp(a, 1)
    for i, so in enumerate((21, 21, 22, 22)):
        if i: a('s_add_u32 s13, s12, %d' % (1024 * i)); a('s_mov_b32 m0, s13')
        if i & 1: a('s_add_u32 s14, %s, 1024' % s(so))
        a('buffer_load_dwordx4 v14, s[8:11], %s offen lds' % (s(14) if i & 1 else s(so)))
    a('s_cmp_lg_u32 s19, 0'); a('s_cbranch_scc1 fk_no1024')
    for i in range(2):
        a('s_mov_b32 m0, %d' % (LX1024 + 1024 * i)); a('s_mov_b32 s14, %d' % (1024 * 2048 + 1024 * i))
        a('buffer_load_dwordx4 v14, s[8:11], s14 offen lds')
    a.label('fk_no1024')
    a('s_barrier')
    def put(base, n):
        for q in range(n // 4): a('ds_write_b128 v206, %s offset:%d' % (v(base + 4 * q, 4), 1024 * ((base - F1) // 4 + q)))
    a('v_add_u32 v206, %d, v14' % LROW)
    a('s_lshl_b32 s13, s16, 2'); a('s_add_u32 s13, s13, %d' % LSIG); a('v_mov_b32 v201, s13'); a('v_mov_b32 v202, 1')
    a('s_cmp_eq_u32 s16, 1'); a('s_cbranch_scc1 fk_j1')
    a('s_cmp_eq_u32 s16, 2'); a('s_cbranch_scc1 fk_j2')
    a('s_cmp_eq_u32 s16, 3'); a('s_cbranch_scc1 fk_j3')
    a('s_cmp_eq_u32 s16, 4'); a('s_cbranch_scc1 fk_jend')
    a('v_cmp_eq_u32 vcc, 1, v1')
    a('v_cndmask_b32 v10, v8, 16, vcc'); a('v_cndmask_b32 v11, v9, 0, vcc')
    a('v_cvt_f32_u32 v10, v10'); a('v_cvt_f32_u32 v11, v11')
    a('v_mul_f32 v10, %s, v10' % fh(1.0 / 32)); a('v_mul_f32 v11, %s, v11' % fh(0.25))
    a('v_add_f32 v12, v7, v7'); a('v_fma_f32 v11, v10, v12, v11')
    angles(a, 10, 11, list(range(8)) + list(range(16, 24)), T)
    for i in range(16): a('v_cos_f32 %s, %s' % (v(T + 16 + i), v(T + i)))
    for p in range(8): a('v_cvt_pk_f16_f32 %s, %s, %s' % (v(F1 + p), v(T + 16 + 2 * p), v(T + 17 + 2 * p)))
    put(F1, 8)
    a('s_branch fk_jsig')
    a.label('fk_j1')
    a('v_cvt_f32_u32 v10, v8'); a('v_lshlrev_b32 v11, 31, v9')
    a('v_mul_f32 v10, %s, v10' % fh(1.0 / 1024)); a('v_xor_b32 v10, v11, v10'); a('v_mul_f32 v11, v10, v7')
    angles(a, 10, 11, [kr(r) for r in range(16)], T)
    for r in range(16): a('v_cos_f32 %s, %s' % (v(TC + r), v(T + r)))
    put(TC, 16)
    for r in range(16): a('v_sin_f32 %s, %s' % (v(TS + r), v(T + r)))
    put(TS, 16)
    a('s_branch fk_jsig')
    a.label('fk_j2')
    gen_c2s2(a, 200, 7, C2, S2, T)
    put(C2, 16)
    a('s_branch fk_jsig')
    a.label('fk_j3')
    a('v_or_b32 v10, 16, v1'); a('v_cvt_f32_u32 v10, v10'); a('v_mov_b32 v11, %s' % fh(1.0 / 64))
    a('v_fmamk_f32 v10, v10, %s, v11' % fh(1.0 / 32))
    a('v_cmp_gt_u32 vcc, 16, v1'); a('v_mov_b32 v12, %s' % fh(-0.25)); a('v_cndmask_b32 v12, 0, v12, vcc')
    a('v_fma_f32 v11, v10, v7, v12')
    angles(a, 10, 11, [kr(r) for r in range(16)], T)
    for r in range(16): a('v_cos_f32 %s, %s' % (v(T + 16 + r), v(T + r)))
    for p in range(8): a('v_cvt_pk_f16_f32 %s, %s, %s' % (v(B3 + p), v(T + 16 + 2 * p), v(T + 17 + 2 * p)))
    put(B3, 8)
    a.label('fk_jsig')
    a('ds_write_b32 v201, v202 offset:32')
    a.label('fk_jend')
    a('v_lshlrev_b32 v3, 9, v2'); a('v_lshl_add_u32 v3, v1, 1, v3')
    a('v_sub_u32 v4, 576, v3'); a('v_sub_u32 v5, 2048, v3'); a('v_and_b32 v5, 2047, v5')
    a('v_add_u32 v3, s12, v3'); a('v_add_u32 v4, s12, v4'); a('v_add_u32 v5, s12, v5')
    a('s_lshl_b32 s13, s16, 10'); a('s_sub_u32 s14, %d, s13' % (7168 + 64))
    a('s_cmp_ge_u32 s3, 248'); a('s_cselect_b32 s15, 1024, 0'); a('s_add_u32 s14, s14, s15')
    a('s_cmp_eq_u32 s16, 4'); a('s_cselect_b32 s13, %d, s13' % (8192 + 64))
    a('s_add_u32 s13, s13, %d' % LWS); a('s_add_u32 s14, s14, %d' % LWS)
    a('v_cmp_gt_u32 vcc, 16, v1')
    a('v_mov_b32 v8, s13'); a('v_mov_b32 v9, s14')
    a('v_cndmask_b32 v10, v9, v8, vcc'); a('v_cndmask_b32 v11, v8, v9, vcc')
    a('v_lshl_add_u32 v10, v15, 2, v10'); a('v_lshl_add_u32 v11, v15, 2, v11')
    a('v_lshrrev_b32 v6, 1, v15'); a('v_and_b32 v8, 1, v15'); a('v_mul_u32_u24 v9, %d, v8' % (4096 + 64))
    a('v_and_b32 v12, 15, v6'); a('v_lshl_add_u32 v12, v12, 4, v2'); a('v_mul_u32_u24 v12, %d, v12' % OS)
    a('v_mul_u32_u24 v192, %d, v8' % (2 * OS)); a('v_add_u32 v192, v192, v12')
    a('v_lshl_add_u32 v12, v8, 4, v12')
    a('v_lshrrev_b32 v194, 3, v15'); a('v_lshlrev_b32 v193, 4, v194'); a('v_lshl_add_u32 v193, v8, 7, v193')
    a('v_and_b32 v6, 3, v6'); a('v_lshl_add_u32 v9, v6, 2, v9'); a('v_lshl_add_u32 v9, v194, 7, v9')
    a('v_lshlrev_b32 v194, 10, v194'); a('v_and_b32 v6, 7, v15'); a('v_lshl_add_u32 v194, v6, 4, v194')
    a('s_lshl_b32 s13, s16, 5'); a('s_add_u32 s13, s13, %d' % LWS); a('v_add_u32 v6, s13, v9')
    a('s_mul_i32 s36, s3, %d' % OS); a('s_lshl_b32 s13, s16, 8'); a('s_add_u32 s36, s36, s13'); a('s_add_u32 s36, s36, 0x%x' % WOFF)
    a('s_mul_i32 s37, s16, %d' % (4 * OS)); a('s_add_u32 s37, s37, 0x%x' % WOFF)
    chkpos(a, 23)
    a('s_add_u32 s23, s23, s37')
    a('s_lshl_b32 s14, s3, 5'); a('s_add_u32 s37, s37, s14')
    a('s_add_u32 s38, s37, %d' % (2 * OS))
    a('s_lshl_b32 s13, s16, 11'); a('s_add_u32 s13, s13, %d' % LA2); a('v_add_u32 v7, s13, v14')
    a('v_cmp_eq_u32 s[58:59], 1, v8')
    a('s_cmp_eq_u32 s19, s20'); a('s_cselect_b32 s39, 0.5, 1.0')
    a('s_lshl_b32 s13, s16, 2'); a('s_add_u32 s13, s13, %d' % LG5S); a('v_mov_b32 v9, s13')
    a('s_cmp_ge_u32 s3, 248'); a('s_cselect_b32 s57, 63, 47')
    a.label('fk_spinc')
    a('ds_read_b32 v203, v205'); a('s_waitcnt lgkmcnt(0)'); a('v_cmp_eq_u32 vcc, 0, v203')
    a('s_and_b32 s13, vcc_lo, 0xf00'); a('s_cbranch_scc1 fk_spinc')
    for q in range(16):
        a('ds_read_b128 %s, v206 offset:%d' % (v(F1 + 4 * q, 4), 1024 * q))
        if q == 11: a('s_waitcnt lgkmcnt(8)')
    stamp(a, 2)
    a('s_waitcnt vmcnt(0) lgkmcnt(0)')
    stamp(a, 3)
    for j in range(2):
        for i in range(8):
            a('ds_read_u16_d16_hi %s, v3 offset:%d' % (v(XA + 8 * j + i), 1024 * j + 64 * i))
    a('s_waitcnt lgkmcnt(2)')
    for j in range(2):
        for i in range(8):
            if j == 0 and i == 0: a('ds_read_u16_d16_hi %s, v5 offset:2048' % v(XB))
            else: a('ds_read_u16_d16_hi %s, v4 offset:%d' % (v(XB + 8 * j + i), 2048 + 1024 * (1 - j) + 64 * (7 - i)))
            if j == 1 and i == 4: a('s_waitcnt lgkmcnt(8)')
    def sums(R, t):
        for i in range(4): a('v_pk_add_f32 %s, %s, %s' % (v(t + 2 * i, 2), v(R + 4 * i, 2), v(R + 4 * i + 2, 2)))
        a('v_pk_mul_f32 %s, %s, %s' % (v(t + 8, 2), v(R, 2), v(R, 2)))
        a('v_pk_mul_f32 %s, %s, %s' % (v(t + 10, 2), v(R + 2, 2), v(R + 2, 2)))
        for i in range(2, 8):
            acc = t + 8 + 2 * (i & 1)
            a('v_pk_fma_f32 %s, %s, %s, %s' % (v(acc, 2), v(R + 2 * i, 2), v(R + 2 * i, 2), v(acc, 2)))
        a('v_pk_add_f32 %s, %s, %s' % (v(t, 2), v(t, 2), v(t + 2, 2))); a('v_pk_add_f32 %s, %s, %s' % (v(t + 4, 2), v(t + 4, 2), v(t + 6, 2)))
        a('v_pk_add_f32 %s, %s, %s' % (v(t + 8, 2), v(t + 8, 2), v(t + 10, 2)))
        a('v_pk_add_f32 %s, %s, %s' % (v(t, 2), v(t, 2), v(t + 4, 2)))
        a('v_add_f32 %s, %s, %s' % (v(t + 8), v(t + 8), v(t + 9)))
        a('v_add_f32 %s, %s, %s' % (v(t), v(t), v(t + 1)))
    sums(XA, T)
    a('s_waitcnt lgkmcnt(0)')
    sums(XB, T + 12)
    reduce4(a, T, T + 12, T + 8, T + 20)
    ln_chain(a, T, T + 1, T + 2)
    a('v_mul_f32 %s, %s, %s' % (v(T + 2), fh(1.0 / 16), v(T + 2)))
    a('v_mul_f32 %s, %s, %s' % (v(T + 1), v(T + 1), v(T + 2)))
    a('v_readlane_b32 s4, %s, 16' % v(T + 2)); a('v_readlane_b32 s6, %s, 48' % v(T + 2))
    a('v_readlane_b32 s13, %s, 16' % v(T + 1)); a('v_readlane_b32 s14, %s, 48' % v(T + 1))
    a('v_mov_b32 %s, s13' % v(T + 4)); a('v_add_f32 %s, s14, %s' % (v(T + 4), v(T + 4)))
    for i in range(8):
        a('v_pk_fma_f32 %s, %s, s[6:7], %s op_sel_hi:[1,0,0] neg_lo:[0,0,1] neg_hi:[0,0,1]' % (v(XB + 2 * i, 2), v(XB + 2 * i, 2), v(T + 4, 2)))
    for i in range(8):
        a('v_pk_fma_f32 %s, %s, s[4:5], %s op_sel_hi:[1,0,1]' % (v(XA + 2 * i, 2), v(XA + 2 * i, 2), v(XB + 2 * i, 2)))
    for p in range(8): a('v_cvt_pk_f16_f32 %s, %s, %s' % (v(Q16 + p), v(XA + 2 * p), v(XA + 2 * p + 1)))
    a('v_mfma_f32_32x32x16_f16 %s, %s, %s, 0' % (v(X, 16), v(Q16, 4), v(F1, 4)))
    a('v_mfma_f32_32x32x16_f16 %s, %s, %s, %s' % (v(X, 16), v(Q16 + 4, 4), v(F1 + 4, 4), v(X, 16)))
    W = XA
    for r in range(8): a('v_pk_mul_f32 %s, %s, %s' % (v(W + 2 * r, 2), v(X + 2 * r, 2), v(TC + 2 * r, 2)))
    for r in range(8): a('v_fmac_f32_dpp %s, %s, %s quad_perm:[1,0,3,2] %s' % (v(W + r), v(X + r), v(TS + r), DPPF))
    for p in range(4): a('v_cvt_pk_f16_f32 %s, %s, %s' % (v(Q16 + p), v(W + 2 * p), v(W + 2 * p + 1)))
    a('v_fmac_f32_dpp %s, %s, %s quad_perm:[1,0,3,2] %s' % (v(W + 8), v(X + 8), v(TS + 8), DPPF))
    a('v_fmac_f32_dpp %s, %s, %s quad_perm:[1,0,3,2] %s' % (v(W + 9), v(X + 9), v(TS + 9), DPPF))
    mm = [(D1, C2), (D2, S2), (D3, B3)]
    rest = ['v_fmac_f32_dpp %s, %s, %s quad_perm:[1,0,3,2] %s' % (v(W + r), v(X + r), v(TS + r), DPPF) for r in range(10, 16)]
    rest += ['v_cvt_pk_f16_f32 %s, %s, %s' % (v(Q16 + p), v(W + 2 * p), v(W + 2 * p + 1)) for p in range(4, 8)]
    for n, (Dd, B) in enumerate(mm):
        a('v_mfma_f32_32x32x16_f16 %s, %s, %s, 0' % (v(Dd, 16), v(Q16, 4), v(B, 4)))
        for x in rest[4 * n:4 * n + 4]: a(x)
    for (Dd, B) in mm:
        a('v_mfma_f32_32x32x16_f16 %s, %s, %s, %s' % (v(Dd, 16), v(Q16 + 4, 4), v(B + 4, 4), v(Dd, 16)))
    a('v_cmp_gt_u32 vcc, 16, v15')
    a('v_cmp_gt_u32 s[40:41], 32, v15')
    Z = XA
    P = XB
    def zz(u):
        a('v_pk_add_f32 %s, %s, %s op_sel:[0,1] op_sel_hi:[1,0] neg_hi:[0,1]' % (v(Z + 2 * u, 2), v(D1 + 2 * u, 2), v(D2 + 2 * u, 2)))
    def pp(p):
        A_, B_ = v(Z + 4 * p, 2), v(Z + 4 * p + 2, 2)
        a('v_pk_add_f32 %s, %s, %s op_sel:[0,1] op_sel_hi:[1,0] neg_lo:[0,1]' % (v(P + 4 * p, 2), A_, B_))
        a('v_pk_add_f32 %s, %s, %s op_sel:[0,1] op_sel_hi:[1,0] neg_hi:[1,0]' % (v(P + 4 * p + 2, 2), A_, B_))
        a('v_cvt_pk_f16_f32 %s, %s, %s' % (v(Q16 + 2 * p), v(P + 4 * p), v(P + 4 * p + 1)))
        a('v_cvt_pk_f16_f32 %s, %s, %s' % (v(Q16 + 2 * p + 1), v(P + 4 * p + 2), v(P + 4 * p + 3)))
        a('ds_write_b32 v10, %s offset:%d' % (v(Q16 + 2 * p), 256 * p))
        a('ds_write_b32 v11, %s offset:%d' % (v(Q16 + 2 * p + 1), 256 * p))
    ZR, ZI = Z, Z + 1
    for p in (1, 2, 3):
        zz(2 * p); zz(2 * p + 1); pp(p)
    zz(0); zz(1)
    a('v_mul_f32 v8, s39, %s' % v(D1))
    a('v_mov_b32 v3, %s' % v(D3 + 1))
    a('v_permlane16_swap_b32 v4, v3')
    a('v_cndmask_b32 v5, %s, %s, vcc' % (v(D3 + 1), v(D1)))
    a('v_cndmask_b32 v4, v4, %s, vcc' % v(D2))
    a('v_cndmask_b32 %s, %s, v5, s[40:41]' % (v(ZR), v(ZR)))
    a('v_cndmask_b32 %s, %s, -v4, s[40:41]' % (v(ZI), v(ZI)))
    pp(0)
    a('s_mov_b64 exec, 0x10000')
    a('ds_write_b32 v9, v8')
    a('ds_write_b32 v201, v202')
    a('s_mov_b64 exec, -1')
    a('s_cmp_eq_u32 s16, 4'); a('s_cbranch_scc1 fk_w4')
    stamp(a, 4)
    a.label('fk_spin')
    a('ds_read_b32 v3, v205'); a('s_waitcnt lgkmcnt(0)'); a('v_cmp_eq_u32 vcc, 0, v3')
    a('s_and_b32 s13, vcc_lo, s57'); a('s_cbranch_scc1 fk_spin')
    a.label('fk_staged')
    stamp(a, 12, True)
    for q in range(2):
        a('ds_read2st64_b32 %s, %s offset0:0 offset1:4' % (v(GA + 4 * q, 2), 'v8' if q else 'v6'))
        a('ds_read2st64_b32 %s, %s offset0:8 offset1:12' % (v(GA + 4 * q + 2, 2), 'v8' if q else 'v6'))
        if q == 0: a('v_add_u32 v8, 16, v6')
    a('v_readlane_b32 s43, v3, 7')
    for q in range(2):
        a('s_waitcnt lgkmcnt(%d)' % (2 - 2 * q))
        a('buffer_store_dwordx4 %s, v194, s[24:27], s36 offen offset:%d sc1' % (v(GA + 4 * q, 4), 128 * q))
    d0 = piece_sum(a, 3, GA, 0); d1 = piece_sum(a, 4, GA + 4, 0)
    a('s_add_u32 s36, s36, 8192')
    a(d0[0]); a(d1[0])
    a('v_cndmask_b32 v3, v3, v4, s[58:59]'); a('v_add_u32 v196, s43, v3')
    quad_gather(a, 196, 2)
    a('s_mov_b32 exec_lo, 0x03030303'); a('s_mov_b32 exec_hi, 0x03030303')
    a('buffer_store_dwordx4 v[196:199], v193, s[24:27], s36 offen sc1')
    a('s_mov_b64 exec, -1')
    if not G2:
        a('s_cmp_lg_u32 s16, 0'); a('s_cbranch_scc1 fk_nog5')
        a('v_and_b32 v9, 16, v14'); a('v_add_u32 v9, %d, v9' % LG5S)
        a('ds_read_b128 v[16:19], v9')
        a('s_lshl_b32 s13, s3, 4'); a('s_add_u32 s13, s13, 0x%x' % G5)
        a('s_waitcnt lgkmcnt(0)')
        for i in range(4): a('v_min_u32 %s, -2, %s' % (v(16 + i), v(16 + i)))
        a('s_cmp_eq_u32 s3, 255'); a('s_cselect_b64 exec, 3, 1')
        a('buffer_store_dwordx4 v[16:19], v14, s[24:27], s13 offen sc1')
        a('s_mov_b64 exec, -1')
        a.label('fk_nog5')
    unit_setup(a)
    a('s_mov_b32 s42, 0')
    a('s_waitcnt vmcnt(0)')
    stamp(a, 5)
    a.label('fk_pollw')
    a('buffer_load_dwordx4 %s, v12, s[24:27], s37 offen sc1' % v(GA, 4))
    a('buffer_load_dwordx4 %s, v12, s[24:27], s38 offen sc1' % v(GA + 4, 4))
    a('buffer_load_dword v5, v192, s[24:27], s23 offen sc1')
    a('s_waitcnt vmcnt(1)')
    d0 = piece_sum(a, 3, GA, 0); d1 = piece_sum(a, 4, GA + 4, 0)
    a('ds_write_b128 v7, %s' % v(GA, 4))
    a(d0[0]); a(d1[0])
    a('ds_write_b128 v7, %s offset:1024' % v(GA + 4, 4))
    a('v_cndmask_b32 v3, v3, v4, s[58:59]'); a('v_add_u32 v3, s43, v3')
    a('s_waitcnt vmcnt(0)')
    a('v_cmp_ne_u32 vcc, v3, v5')
    poll_tail(a, 42, 'fk_pollw', 'fk_gotw')
    stamp(a, 6)
    a('s_waitcnt lgkmcnt(0)')
    a('s_barrier')
    a('s_setprio 0')
    stamp(a, 7)
    a('s_or_b32 s13, s3, s16'); a('s_cbranch_scc1 fk_nobump')
    a('v_mov_b32 v3, s43'); a('s_mov_b64 exec, 1')
    a('buffer_store_dword v3, v14, s[24:27], 0 offen sc1')
    a('s_mov_b64 exec, -1')
    a.label('fk_nobump')
    a('s_lshl_b32 s13, s16, 10'); a('s_add_u32 s14, s13, 0x%x' % G5); a('s_add_u32 s13, s13, %d' % LG5)
    a('v_add_u32 v7, s13, v14'); a('v_mov_b32 v3, 4096'); a('s_mov_b32 s15, 0x%x' % G5); a('v_mov_b32 v8, %d' % LG5E)
    a('buffer_load_dwordx4 %s, v14, s[24:27], s14 offen sc1' % v(GA, 4))
    a('buffer_load_dword %s, v3, s[24:27], s15 offen sc1' % v(GA + 4))
    a('s_mov_b32 s40, s14'); a('s_mov_b32 s41, s15')
    window(a, UB, KB, 16, 0, PB)
    a('s_mov_b32 s42, 0')
    a('s_cmp_gt_u32 s3, 223'); a('s_cbranch_scc1 fk_pollg')
    a('s_waitcnt vmcnt(%d)' % (min(KB, PB + 1) if UB + 4 * KB <= 96 else 0))
    a('s_branch fk_chkg')
    a.label('fk_pollg')
    a('buffer_load_dwordx4 %s, v14, s[24:27], s40 offen sc1' % v(GA, 4))
    a('buffer_load_dword %s, v3, s[24:27], s41 offen sc1' % v(GA + 4))
    a('s_waitcnt vmcnt(0)')
    a.label('fk_chkg')
    poll_check(a, list(range(GA, GA + 5)), 4, 42, 'fk_pollg', 'fk_gotg', wait=False)
    a('ds_write_b128 v7, %s' % v(GA, 4)); a('ds_write_b32 v8, %s' % v(GA + 4))
    stamp(a, 14, True)
    a('s_branch fk_common')
    a.label('fk_w4')
    a('s_setprio 0')
    a('s_branch fk_Hconst')
    a.label('fk_H')
    A, B1, TC, TS, C2, S2, V, D1, D2, T16, AD, CS = 16, 48, 80, 96, 112, 120, 128, 144, 160, 176, 184, 192
    a('s_barrier')
    if BASE: a('s_waitcnt lgkmcnt(0)'); rebase(a)
    if G2: a('s_cmp_eq_u32 s16, 6'); a('s_cbranch_scc1 fk_h6')
    a('s_cmp_lg_u32 s16, 7'); a('s_cbranch_scc1 fk_Hconst')
    for i in range(4): a('v_mov_b32 %s, -1' % v(4 + i))
    a('v_mov_b32 v3, %d' % LKEY); a('v_mov_b32 v8, 0'); a('ds_write_b32 v3, v8')
    a('v_lshlrev_b32 v3, 12, v15'); a('s_lshl_b32 s13, s3, 4'); a('s_add_u32 s14, s13, 0x%x' % KEYS); a('s_add_u32 s15, s13, 0x%x' % G5)
    a('v_mov_b32 v201, %d' % (LSIG + 20)); a('v_mov_b32 v204, 1')
    a('s_waitcnt lgkmcnt(0)')
    stamp(a, 1)
    a('s_load_dword s56, s[24:25], 0')
    if '--wwarm' in OPT:
        a('s_mul_i32 s36, s3, %d' % OS); a('s_add_u32 s36, s36, 0x%x' % WOFF); a('s_add_u32 s37, s36, 4096'); a('s_add_u32 s40, s36, 8192')
        for i in range(9): a('buffer_store_dwordx4 v[4:7], v14, s[24:27], %s offen offset:%d sc1' % (s((36, 37, 40)[i >> 2]), 1024 * (i & 3)))
    def group2():
        if '--ywarm' in OPT:
            a('s_mul_i32 s36, s3, %d' % OS); a('s_add_u32 s36, s36, 0x%x' % YOFF); a('s_add_u32 s37, s36, 4096'); a('s_add_u32 s40, s36, 8192')
            for i in range(9): a('buffer_store_dwordx4 v[4:7], v14, s[24:27], %s offen offset:%d sc1' % (s((36, 37, 40)[i >> 2]), 1024 * (i & 3)))
        if '--ptouch' in OPT:
            a('v_mul_u32_u24 v252, %d, v15' % (8 * OS)); a('s_mov_b32 s12, 0x%x' % (WOFF + 9216))
            a('buffer_load_dword v253, v252, s[24:27], s12 offen')
        if not YCHK:
            a('s_mul_i32 s38, s3, %d' % OS); a('s_add_u32 s38, s38, 0x%x' % YOFF); a('s_add_u32 s39, s38, 4096')
            for i in range(8): a('buffer_store_dwordx4 v[4:7], v14, s[24:27], %s offen offset:%d sc1' % (s(38 + (i >> 2)), 1024 * (i & 3)))
        a('s_lshl_b32 s12, s3, 12'); a('s_add_u32 s12, s12, 0x%x' % CAND)
        for i in range(4): a('buffer_store_dwordx4 v[4:7], v14, s[24:27], s12 offen offset:%d sc1' % (1024 * i))
        a('s_lshl_b32 s12, s3, 10'); a('s_add_u32 s12, s12, 0x%x' % P2)
        a('s_cmp_gt_u32 s3, 223'); a('s_cselect_b32 s12, 0x%x, s12' % WSB)
        a('buffer_store_dwordx4 v[4:7], v14, s[24:27], s12 offen sc1')
        a('s_lshl_b32 s12, s3, 9'); a('s_add_u32 s12, s12, 0x%x' % P1)
        a('s_cmp_gt_u32 s3, 223'); a('s_cselect_b32 s12, 0x%x, s12' % WSB)
        a('s_mov_b32 exec_hi, 0')
        a('buffer_store_dwordx4 v[4:7], v14, s[24:27], s12 offen sc1')
        a('s_mov_b32 exec_lo, 0xff')
        a('buffer_store_dwordx4 v[4:7], v3, s[24:27], s14 offen sc1')
    if not G2: group2()
    a('s_mov_b32 exec_hi, 0')
    a('s_cmp_eq_u32 s3, 255'); a('s_cselect_b32 exec_lo, 3, 1')
    a('buffer_store_dwordx4 v[4:7], v14, s[24:27], s15 offen sc1')
    a('s_mov_b64 exec, -1')
    for i in range(2):
        a('s_mov_b32 m0, %d' % (LWR + 1024 * i)); a('s_mov_b32 s12, %d' % (1024 * i))
        a('buffer_load_dwordx4 v14, s[32:35], s12 offen lds')
    a('s_waitcnt lgkmcnt(0)')
    a('s_add_u32 s56, s56, 1'); a('v_mov_b32 v202, s56')
    a('ds_write_b32 v201, v202 offset:8')
    a('s_waitcnt vmcnt(0)')
    a('ds_write_b32 v201, v204')
    stamp(a, 2)
    if G2:
        a('s_branch fk_Hconst')
        a.label('fk_h6')
        for i in range(4): a('v_mov_b32 %s, -1' % v(4 + i))
        a('v_lshlrev_b32 v3, 12, v15'); a('s_lshl_b32 s14, s3, 4'); a('s_add_u32 s14, s14, 0x%x' % KEYS)
        a('v_mov_b32 v205, %d' % (LSIG + 20))
        a.label('fk_h6s')
        a('s_sleep 1')
        a('ds_read_b32 v8, v205'); a('s_waitcnt lgkmcnt(0)'); a('v_readfirstlane_b32 s13, v8')
        a('s_cmp_eq_u32 s13, 0'); a('s_cbranch_scc1 fk_h6s')
        group2()
        a('s_mov_b64 exec, -1')
    a.label('fk_Hconst')
    a('s_sub_u32 s20, s16, 4')
    unit_setup(a)
    a('s_and_b32 s12, s20, 1'); a('s_lshl_b32 s12, s12, 6'); a('v_xor_b32 v206, s12, v208'); a('v_xor_b32 v207, 64, v206')
    a('s_mov_b32 s6, 0x700000'); a('s_mov_b32 s7, 0x00020000')
    a('s_cmp_gt_u32 s3, 223'); a('s_cselect_b32 s36, 3, s20')
    a('s_waitcnt lgkmcnt(0)')
    TLB = int(optval('tlb', '0'))
    if TLB:
        a('s_cmp_lg_u32 s16, 5'); a('s_cbranch_scc1 fk_notlb')
        a('v_lshlrev_b32 v252, %d, v15' % TLB)
        for sr in [int(x) for x in optval('tlbl', '48,52,28').split(',')]: a('buffer_load_dword v253, v252, %s, 0 offen' % s(sr, 4))
        a.label('fk_notlb')
    PACE = int(optval('pace', '99')); GAP = int(optval('gap', '8')); FIRST = int(optval('first', '4')); DELAY = int(optval('delay', '0'))
    def gu(n):
        g = ['s_cmp_eq_u32 s36, 3', 's_cbranch_scc1 fk_gu%d' % n, 's_add_u32 s37, s20, %d' % (3 * n),
             's_lshl_b32 s12, s37, 10', 's_mov_b32 m0, s12', 's_cmp_lt_u32 s37, 32', 's_cselect_b64 s[4:5], s[44:45], s[48:49]',
             's_and_b32 s37, s37, 31', 's_mul_i32 s37, s37, %d' % (8 * 7168), 's_add_u32 s37, s37, s100']
        if n >= PACE: g.append('s_waitcnt vmcnt(%d)' % PACE)
        g.append('buffer_load_dwordx4 %s, s[4:7], s37 offen lds' % ('v207' if n & 1 else 'v206'))
        g.append('@fk_gu%d' % n)
        return g
    assert NH <= 21
    groups = [sum([gu(n) for n in range(min(FIRST, NH))], [])] + [gu(n) for n in range(FIRST, NH)]
    a.inject(groups, GAP); a.cnt = GAP - DELAY
    a('v_lshrrev_b32 v4, 1, v1')
    a('v_and_b32 v5, 1, v4'); a('v_lshrrev_b32 v6, 2, v4'); a('v_lshl_add_u32 v5, v6, 1, v5')
    a('v_and_b32 v6, 2, v4'); a('v_lshl_add_u32 v5, v6, 2, v5')
    a('s_and_b32 s13, s20, 1'); a('s_mul_i32 s13, s13, 15'); a('v_xor_b32 v5, s13, v5')
    a('s_lshl_b32 s13, s20, 4'); a('v_add_u32 v5, s13, v5')
    a('v_cvt_f32_u32 v5, v5')
    a('v_and_b32 v9, 1, v1')
    a('v_lshlrev_b32 v7, 2, v2'); a('v_cvt_f32_u32 v7, v7')
    a('v_cvt_f32_u32 v10, v9')
    a('v_mul_f32 v8, %s, v5' % fh(1.0 / 64))
    a('v_mul_f32 v10, %s, v10' % fh(0.25))
    a('v_fma_f32 v10, v8, v7, v10')
    T = V
    for half in range(2):
        ks = [8 * kap + u for kap in range(4 * half, 4 * half + 4) for u in range(4)]
        angles(a, 8, 10, ks, T)
        for i in range(16): a('v_cos_f32 %s, %s' % (v(T + 16 + i), v(T + i)))
        for i in range(16): a('v_sin_f32 %s, %s' % (v(T + 32 + i), v(T + i)))
        for i in range(16): a('v_cvt_pk_f16_f32 %s, %s, %s' % (v(B1 + 16 * half + i), v(T + 16 + i), v(T + 32 + i)))
    if G2:
        pend, a.pending = a.pending, None
        a('s_cmp_lg_u32 s16, 6'); a('s_cbranch_scc1 fk_H7')
        a('v_lshlrev_b32 v205, 2, v15'); a('v_and_b32 v205, 63, v205'); a('v_add_u32 v205, %d, v205' % LSIG)
        a('s_cmp_ge_u32 s3, 248'); a('s_cselect_b32 s43, 31, 15')
        a('v_and_b32 v3, 16, v14'); a('v_add_u32 v3, %d, v3' % LG5S)
        a('s_lshl_b32 s13, s3, 4'); a('s_add_u32 s13, s13, 0x%x' % G5)
        a('s_waitcnt vmcnt(0)')
        a.label('fk_h6t')
        a('ds_read_b32 v4, v205'); a('s_waitcnt lgkmcnt(0)'); a('v_cmp_eq_u32 vcc, 0, v4')
        a('s_and_b32 s12, vcc_lo, s43'); a('s_cbranch_scc1 fk_h6t')
        a('ds_read_b128 v[16:19], v3')
        a('s_waitcnt lgkmcnt(0)')
        for i in range(4): a('v_min_u32 %s, -2, %s' % (v(16 + i), v(16 + i)))
        a('s_cmp_eq_u32 s3, 255'); a('s_cselect_b64 exec, 3, 1')
        a('buffer_store_dwordx4 v[16:19], v14, s[24:27], s13 offen sc1')
        a('s_mov_b64 exec, -1')
        stamp(a, 4)
        a.label('fk_H7')
        a.pending = pend
    a('v_lshlrev_b32 v11, 31, v9')
    a('v_mul_f32 v10, %s, v5' % fh(1.0 / 2048)); a('v_xor_b32 v10, v11, v10'); a('v_mul_f32 v11, v10, v7')
    angles(a, 10, 11, [kr(r) for r in range(16)], T)
    for r in range(16): a('v_cos_f32 %s, %s' % (v(TC + r), v(T + r)))
    for r in range(16): a('v_sin_f32 %s, %s' % (v(TS + r), v(T + r)))
    a('v_sub_u32 v4, 31, v1'); a('v_subrev_u32 v5, 1, v1')
    a('v_cmp_lt_u32 vcc, 16, v1')
    a('v_cndmask_b32 v4, v5, v4, vcc'); a('v_and_b32 v4, 15, v4')
    a('v_lshlrev_b32 v4, 5, v4'); a('v_add_u32 v4, %d, v4' % LA2)
    a('v_lshlrev_b32 v5, 9, v2')
    a('v_add_u32 v6, v4, v5')
    a('v_sub_u32 v7, v4, v5'); a('v_add_u32 v7, %d, v7' % (15 * 512 + 16))
    a('v_cmp_eq_u32 s[38:39], 0, v1')
    a('v_mov_b32 v8, 4096')
    a('v_cndmask_b32 v8, 0, v8, s[38:39]')
    a('v_add_u32 v6, v6, v8'); a('v_add_u32 v7, v7, v8')
    a('v_and_b32 v8, 15, v1'); a('v_cmp_eq_u32 s[38:39], 0, v8')
    a('s_or_b64 s[40:41], s[38:39], vcc')
    for k in range(8):
        a('v_add_u32 %s, %d, v6' % (v(AD + k), 1024 * k)); a('v_subrev_u32 v8, %d, v7' % (1024 * k))
        a('v_cndmask_b32 %s, %s, v8, %s' % (v(AD + k), v(AD + k), 'vcc' if k < 4 else 's[40:41]'))
    def posD(d, x, t):
        a('v_and_b32 %s, 3, %s' % (v(t), v(x))); a('v_lshlrev_b32 %s, 2, %s' % (v(t), v(t))); a('v_lshlrev_b32 %s, 3, %s' % (v(d), v(x))); a('v_sub_u32 %s, %s, %s' % (v(d), v(d), v(t)))
    def posM(d, x, t):
        a('v_and_b32 %s, 3, %s' % (v(t), v(x))); a('v_mul_u32_u24 %s, 12, %s' % (v(t), v(t))); a('v_lshlrev_b32 %s, 3, %s' % (v(d), v(x))); a('v_sub_u32 %s, %s, %s' % (v(d), v(d), v(t))); a('v_add_u32 %s, 28, %s' % (v(d), v(d)))
    a('s_lshr_b32 s13, s20, 1'); a('v_lshl_add_u32 v3, v1, 1, s13')
    a('s_and_b32 s13, s20, 1'); a('s_sub_u32 s14, 64, s13')
    posD(4, 3, 8)
    a('v_sub_u32 v5, 63, v3'); posM(6, 5, 8)
    a('v_sub_u32 v5, s14, v3'); posM(7, 5, 8)
    a('v_cmp_gt_u32 vcc, 32, v3'); a('v_cndmask_b32 v7, v7, v4, vcc')
    a('v_cmp_eq_u32 vcc, 32, v5'); a('v_cndmask_b32 v7, v7, 28, vcc')
    a('s_cmp_eq_u32 s13, 0'); a('s_cselect_b32 s14, 256, 0'); a('s_cselect_b32 s15, 576, 0')
    a('s_cselect_b64 s[38:39], -1, 0')
    a('s_add_u32 s14, s14, %d' % (240 * 32)); a('s_sub_u32 s15, %d, s15' % LWS)
    a('v_cmp_gt_u32 vcc, 32, v3'); a('v_cndmask_b32 v7, v7, v4, vcc')
    a('v_add_u32 v7, s14, v7')
    a('v_cndmask_b32 v4, v6, v4, s[38:39]'); a('v_lshl_add_u32 v4, v2, 12, v4')
    for r in (4, 7): a('v_lshrrev_b32 v8, 7, %s' % v(r)); a('v_lshl_add_u32 %s, v8, 4, %s' % (v(r), v(r)))
    a('v_add_u32 v11, s15, v4'); a('v_add_u32 v7, %d, v7' % LWS)
    a('v_add_u32 v12, %d, v11' % (7 * 576))
    a('v_cmp_eq_u32 vcc, s13, v2')
    a('s_and_b64 s[40:41], vcc, s[38:39]'); a('s_andn2_b64 s[38:39], vcc, s[38:39]')
    a('v_cndmask_b32 v10, v11, v7, s[40:41]'); a('v_cndmask_b32 v12, v12, v7, s[38:39]')
    a('s_lshl_b32 s23, s20, 5'); a('s_add_u32 s23, s23, s18')
    def y5cos():
        a('v_and_b32 v3, 15, v15'); a('v_lshrrev_b32 v4, 4, v15'); a('v_lshl_add_u32 v3, v3, 7, v4'); a('v_add_u32 v3, 1, v3')
        a('v_cmp_le_u32 vcc, 56, v15'); a('v_mov_b32 v4, %d' % (2048 - 1040)); a('v_cndmask_b32 v4, 0, v4, vcc'); a('v_add_u32 v4, v3, v4')
        for r in (3, 4):
            a('v_mul_u32_u24 %s, s23, %s' % (v(r), v(r))); a('v_and_b32 %s, 2047, %s' % (v(r), v(r)))
            a('v_cvt_f32_u32 %s, %s' % (v(r), v(r))); a('v_mul_f32 %s, %s, %s' % (v(r), fh(1.0 / 2048), v(r)))
        a('v_cvt_f32_u32 v5, s23'); a('v_mul_f32 v5, %s, v5' % fh(1.0 / 2048))
        angles(a, 5, 3, [32 * w + 4 * q for q in range(3) for w in range(4)], CS)
        angles(a, 5, 4, [32 * w + 12 for w in range(4)], CS + 12)
        for i in range(16): a('v_cos_f32 %s, %s' % (v(CS + i), v(CS + i)))
    a.inject_flush()
    stamp(a, 5)
    y5cos()
    a('v_add_u32 v9, %d, v14' % LROW)
    a('s_setprio 2')
    stamp(a, 6)
    a('s_barrier')
    stamp(a, 7)
    for k in range(8): a('ds_read_b128 %s, %s' % (v(A + 4 * k, 4), v(AD + k)))
    for q in range(4): a('ds_read_b128 %s, v9 offset:%d' % (v(C2 + 4 * q, 4), 1024 * (12 + q)))
    for k in range(8):
        a('s_waitcnt lgkmcnt(%d)' % (11 - k))
        a('v_mfma_f32_32x32x16_f16 %s, %s, %s, %s' % (v(V, 16), v(A + 4 * k, 4), v(B1 + 4 * k, 4), '0' if k == 0 else v(V, 16)))
    W = A
    for r in range(8): a('v_pk_mul_f32 %s, %s, %s' % (v(W + 2 * r, 2), v(V + 2 * r, 2), v(TC + 2 * r, 2)))
    for r in range(8): a('v_fmac_f32_dpp %s, %s, %s quad_perm:[1,0,3,2] %s' % (v(W + r), v(V + r), v(TS + r), DPPF))
    for p in range(4): a('v_cvt_pk_f16_f32 %s, %s, %s' % (v(T16 + p), v(W + 2 * p), v(W + 2 * p + 1)))
    rest = ['v_fmac_f32_dpp %s, %s, %s quad_perm:[1,0,3,2] %s' % (v(W + r), v(V + r), v(TS + r), DPPF) for r in range(8, 16)]
    rest += ['v_cvt_pk_f16_f32 %s, %s, %s' % (v(T16 + p), v(W + 2 * p), v(W + 2 * p + 1)) for p in range(4, 8)]
    for x in rest[0:2]: a(x)
    a('s_waitcnt lgkmcnt(0)')
    a('v_mfma_f32_32x32x16_f16 %s, %s, %s, 0' % (v(D1, 16), v(T16, 4), v(C2, 4)))
    for x in rest[2:7]: a(x)
    a('v_mfma_f32_32x32x16_f16 %s, %s, %s, 0' % (v(D2, 16), v(T16, 4), v(S2, 4)))
    for x in rest[7:]: a(x)
    for (Dd, B) in ((D1, C2), (D2, S2)):
        a('v_mfma_f32_32x32x16_f16 %s, %s, %s, %s' % (v(Dd, 16), v(T16 + 4, 4), v(B + 4, 4), v(Dd, 16)))
    for u in range(8):
        a('v_pk_add_f32 %s, %s, %s op_sel:[0,1] op_sel_hi:[1,0] neg_hi:[0,1]' % (v(A + 2 * u, 2), v(D1 + 2 * u, 2), v(D2 + 2 * u, 2)))
    for u in range(8):
        a('v_cvt_pk_bf16_f32 %s, %s, %s' % (v(B1 + u), v(A + 2 * u), v(A + 2 * u + 1)))
        if u == 0: a('ds_write_b32 v10, %s' % v(B1))
        elif u == 7: a('ds_write_b32 v12, %s' % v(B1 + 7))
        else: a('ds_write_b32 v11, %s offset:%d' % (v(B1 + u), 576 * u))
    stamp(a, 14, True)
    a.label('fk_common')
    a('v_lshrrev_b32 v5, 3, v15'); a('v_lshlrev_b32 v4, 10, v5'); a('v_and_b32 v6, 7, v15'); a('v_lshl_add_u32 v4, v6, 4, v4')
    a('s_mul_i32 s13, s16, 144'); a('s_add_u32 s13, s13, %d' % LWS)
    a('v_lshl_add_u32 v5, v5, 7, v4'); a('v_add_u32 v5, s13, v5')
    a('s_mul_i32 s17, s3, %d' % OS); a('s_lshl_b32 s13, s16, 7'); a('s_add_u32 s17, s17, s13'); a('s_add_u32 s17, s17, 0x%x' % YOFF)
    a('v_mov_b32 v3, %d' % (LSIG + 28)); a('v_lshrrev_b32 v47, 3, v15'); a('v_lshlrev_b32 v47, 4, v47')
    a('ds_read_b32 v3, v3')
    a('s_waitcnt lgkmcnt(0)'); a('s_barrier')
    stamp(a, 8)
    a('s_setprio 0')
    a('ds_read_b128 v[16:19], v5')
    a('v_readfirstlane_b32 s43, v3')
    XR, WP, YR, H, HN, HP, TMP, OUT = 20, 28, 36, 48, 64, 80, 96, 112
    a('s_sub_u32 s13, 7, s16'); a('s_cmp_lt_u32 s16, 4'); a('s_cselect_b32 s13, s16, s13'); a('s_cselect_b32 s14, 0, 2048')
    a('s_lshl_b32 s21, s13, 5'); a('s_add_u32 s21, s21, s18'); a('s_sub_u32 s22, 2048, s21'); a('s_and_b32 s22, s22, 2047')
    a('s_cmp_lt_u32 s16, 4'); a('s_cselect_b32 s21, s21, s22')
    a('s_lshl_b32 s13, s13, 12'); a('s_add_u32 s13, s13, s14'); a('s_add_u32 s13, s13, %d' % LX)
    a('s_lshl_b32 s14, s3, 3'); a('s_add_u32 s19, s14, s16')
    a('s_cmp_eq_u32 s19, %d' % (248 * 8 + 7)); a('s_cselect_b32 s21, 1024, s21'); a('s_cselect_b32 s13, %d, s13' % LX1024)
    a('s_lshl_b32 s22, s21, 11')
    a('v_add_u32 v6, s13, v14'); a('v_add_u32 v7, %d, v14' % LWR)
    a('s_waitcnt lgkmcnt(0)')
    if not YCHK:
        for i in range(4): a('v_min_u32 %s, -2, %s' % (v(16 + i), v(16 + i)))
    a('buffer_store_dwordx4 v[16:19], v4, s[24:27], s17 offen sc1')
    if YCHK:
        d0 = piece_sum(a, 46, 16, 0)
        a('s_add_u32 s17, s17, 8192')
        a(d0[0]); a('v_add_u32 v40, s43, v46')
        quad_gather(a, 40, 2)
        a('s_mov_b32 exec_lo, 0x01010101'); a('s_mov_b32 exec_hi, 0x01010101')
        a('buffer_store_dwordx4 v[40:43], v47, s[24:27], s17 offen sc1')
        a('s_mov_b64 exec, -1')
    a('ds_read_b128 %s, v6' % v(XR, 4)); a('ds_read_b128 %s, v6 offset:1024' % v(XR + 4, 4))
    a('ds_read_b128 %s, v7' % v(WP, 4)); a('ds_read_b128 %s, v7 offset:1024' % v(WP + 4, 4))
    a('s_cmp_lt_u32 s16, 4'); a('s_cbranch_scc1 fk_noy5')
    window(a, UE, KE, 16, 4, PE)
    G5R = 128
    a('v_add_u32 v3, %d, v14' % LG5); a('v_mov_b32 v4, %d' % LG5E)
    for q in range(4): a('ds_read_b128 %s, v3 offset:%d' % (v(G5R + 4 * q, 4), 1024 * q))
    a('ds_read_b32 v9, v4')
    a('s_lshl_b32 s38, s20, 2'); a('s_sub_u32 s39, 28, s38')
    a('s_waitcnt lgkmcnt(0)')
    a.label('fk_y5')
    for kk in range(2): a('v_pk_mul_f32 %s, %s, %s' % (v(144 + 2 * kk, 2), v(G5R + 2 * kk, 2), v(CS + 2 * kk, 2)))
    for kk in range(2, 8): a('v_pk_fma_f32 %s, %s, %s, %s' % (v(144 + 2 * (kk & 1), 2), v(G5R + 2 * kk, 2), v(CS + 2 * kk, 2), v(144 + 2 * (kk & 1), 2)))
    a('v_pk_add_f32 v[144:145], v[144:145], v[146:147]')
    a('v_add_f32 v144, v144, v145')
    a('s_lshl_b32 s13, s23, 31'); a('v_xor_b32 v12, s13, v9')
    wave_reduce(a, [144])
    a('v_add_f32 v144, v144, v12'); a('v_add_f32 v144, v144, v144'); rbf(a, 144)
    a('s_add_u32 s13, s38, %d' % LY5); a('s_add_u32 s14, s39, %d' % LY5)
    a('v_mov_b32 v10, s13'); a('v_mov_b32 v11, s14')
    a('s_mov_b32 exec_lo, 0'); a('s_mov_b32 exec_hi, 0x80000000')
    a('ds_write_b32 v10, v144'); a('ds_write_b32 v11, v144')
    a('s_mov_b64 exec, -1')
    a('s_cmp_lg_u32 s23, 0'); a('s_cbranch_scc1 fk_noy5')
    a('s_mov_b32 s23, 1024'); a('s_mov_b32 s38, 28')
    y5cos()
    a('s_branch fk_y5')
    a.label('fk_noy5')
    a('v_lshrrev_b32 v1, 1, v0'); a('v_and_b32 v45, 1, v0')
    a('v_lshrrev_b32 v2, 4, v1'); a('v_and_b32 v3, 15, v1')
    a('v_cmp_gt_u32 vcc, 8, v3')
    a('v_sub_u32 v6, 16, v3'); a('v_and_b32 v6, 7, v6'); a('v_sub_u32 v5, 31, v2')
    a('v_cndmask_b32 v6, v6, v3, vcc'); a('v_cndmask_b32 v5, v5, v2, vcc')
    a('v_lshl_add_u32 v4, v6, 5, v5'); a('v_mul_u32_u24 v47, %d, v4' % OS); a('v_lshl_add_u32 v4, v45, 4, v47')
    chkpos(a, 23); a('s_add_u32 s23, s23, 0x%x' % YOFF)
    a('s_lshl_b32 s17, s3, 5'); a('s_add_u32 s17, s17, 0x%x' % YOFF)
    a('v_cndmask_b32 v6, -1, 1, vcc')
    a('v_cmp_eq_u32 vcc, 8, v3')
    a('v_mul_u32_u24 v46, %d, v45' % (4 * RS)); a('v_add_u32 v46, %d, v46' % LROW)
    a('v_cndmask_b32 v6, v6, 15, vcc')
    a('v_lshlrev_b32 v9, 2, v1'); a('v_lshl_add_u32 v10, v6, 1, v9')
    a('v_add_u32 v9, v46, v9'); a('v_add_u32 v10, v46, v10')
    a('s_mul_i32 s36, s16, %d' % RS); a('s_add_u32 s36, s36, %d' % LROW); a('v_add_u32 v5, s36, v14')
    a('s_sub_u32 s36, 7, s16'); a('s_cmp_eq_u32 s21, 0'); a('s_cselect_b32 s36, 0, s36'); a('s_cmp_eq_u32 s21, 1024'); a('s_cselect_b32 s36, 7, s36')
    a('s_mul_i32 s36, s36, %d' % RS); a('s_add_u32 s36, s36, %d' % (LROW + 1008)); a('v_sub_u32 v11, s36, v14')
    a('v_mov_b32 v8, 0x10000')
    a('s_lshl_b32 s36, s16, 2'); a('s_add_u32 s36, s36, %d' % LY5); a('v_mov_b32 v6, s36')
    a('s_mov_b32 s36, 0xffff0000'); a('s_mov_b32 s37, 0x3f803f80'); a('s_mov_b32 s38, 8.0')
    a('s_waitcnt lgkmcnt(0)')
    for k in range(8):
        a('v_lshlrev_b32 %s, 16, %s' % (v(H + 2 * k), v(XR + k))); a('v_and_b32 %s, s36, %s' % (v(H + 2 * k + 1), v(XR + k)))
    a('v_mov_b32 v44, 0')
    for k in range(8): a('v_dot2c_f32_bf16 v44, s37, %s' % v(WP + k))
    wave_reduce(a, [44])
    a('v_readlane_b32 s39, v44, 63')
    a('s_mov_b32 s42, 0')
    a('s_waitcnt vmcnt(0)')
    stamp(a, 9)
    def scatter():
        for u in range(4):
            a('ds_write_b16 v9, %s offset:%d' % (v(YR + u), u * RS))
            a('ds_write_b16_d16_hi v10, %s offset:%d' % (v(YR + u), u * RS))
    a.label('fk_polly')
    a('buffer_load_dwordx4 %s, v4, s[24:27], s17 offen sc1' % v(YR, 4))
    if YCHK:
        a('buffer_load_dword v45, v47, s[24:27], s23 offen sc1')
        a('s_waitcnt vmcnt(1)')
        d0 = piece_sum(a, 46, YR, 0)
        scatter()
        a(d0[0]); a('v_add_u32 v46, s43, v46')
        a('s_waitcnt vmcnt(0)')
        a('v_cmp_ne_u32 vcc, v46, v45')
        poll_tail(a, 42, 'fk_polly', 'fk_goty')
    else:
        poll_check(a, list(range(YR, YR + 4)), 46, 42, 'fk_polly', 'fk_goty')
        scatter()
    stamp(a, 10)
    window(a, UC, KC, 16, 0, PC)
    a('v_mov_b32 v2, 0'); a('v_mov_b32 v3, 0'); a('v_mov_b32 v4, 0'); a('v_mov_b32 v7, 0')
    a('v_mov_b32 v12, %d' % LKEY)
    a('s_waitcnt lgkmcnt(0)')
    a('s_barrier')
    stamp(a, 11)
    a('ds_read_b128 %s, v5' % v(YR, 4)); a('ds_read_b128 %s, v11' % v(YR + 4, 4)); a('ds_read_b32 v44, v6')
    a('s_waitcnt lgkmcnt(2)')
    for k in range(4):
        a('v_lshlrev_b32 %s, 16, %s' % (v(HN + 2 * k), v(YR + k))); a('v_and_b32 %s, s36, %s' % (v(HN + 2 * k + 1), v(YR + k)))
    a('s_waitcnt lgkmcnt(0)')
    stamp(a, 15, True)
    a('v_readfirstlane_b32 s13, v44')
    a('v_mul_u32_u24_dpp %s, %s, v8 wave_shr:1 row_mask:0xf bank_mask:0xf' % (v(HN + 8), v(YR + 4)))
    for j in (3, 2, 1, 0):
        a('v_and_b32 %s, s36, %s' % (v(HN + 15 - 2 * j), v(YR + 4 + j)))
        if j: a('v_lshlrev_b32 %s, 16, %s' % (v(HN + 16 - 2 * j), v(YR + 4 + j)))
    a('v_writelane_b32 %s, s13, 0' % v(HN + 8))
    for k in [0, 1, 2, 3, 5, 6, 7, 4]:
        a('v_pk_fma_f32 %s, %s, s[38:39], %s op_sel_hi:[1,0,1]' % (v(H + 2 * k, 2), v(HN + 2 * k, 2), v(H + 2 * k, 2)))
    for k in [0, 1, 2, 3, 5, 6, 7, 4]: a('v_cvt_pk_bf16_f32 %s, %s, %s' % (v(HP + k), v(H + 2 * k), v(H + 2 * k + 1)))
    for k in [0, 1, 2, 3, 5, 6, 7, 4]:
        a('v_dot2c_f32_bf16 v2, s37, %s' % v(HP + k)); a('v_dot2c_f32_bf16 v3, %s, %s' % (v(HP + k), v(HP + k)))
        a('v_dot2c_f32_bf16 v4, %s, %s' % (v(HP + k), v(WP + k)))
    reduce4(a, 2, 4, 3, 7)
    a('v_readlane_b32 s13, v2, 32')
    ln_chain(a, 2, 8, 9)
    a('v_mov_b32 v10, s13'); a('v_fma_f32 v10, -v8, s39, v10'); a('v_mul_f32 v10, v10, v9'); a('v_mul_f32 v8, v8, v9')
    a('v_readlane_b32 s43, v10, 16'); a('v_readlane_b32 s4, v9, 16'); a('v_readlane_b32 s6, v8, 16')
    a('s_ashr_i32 s13, s43, 31'); a('s_or_b32 s13, s13, 0x80000000'); a('s_xor_b32 s43, s43, s13')
    a('s_and_b32 s43, s43, 0xfffff800'); a('s_or_b32 s43, s43, s19'); a('s_min_u32 s43, s43, -2')
    a('v_mov_b32 v2, s43')
    a('s_mov_b64 exec, 1')
    a('ds_max_u32 v12, v2')
    a('s_mov_b64 exec, -1')
    stamp(a, 16, True)
    a('v_mov_b32 v10, s6'); a('v_add_f32 v8, 1.0, v9')
    a('v_lshlrev_b32 v4, 12, v15'); a('s_lshl_b32 s17, s3, 4'); a('s_add_u32 s17, s17, 0x%x' % KEYS)
    a('v_readlane_b32 s14, v8, 16')
    a('s_waitcnt lgkmcnt(0)')
    a('s_barrier')
    a('ds_read_b32 v3, v12')
    for k in range(8):
        a('v_lshlrev_b32 %s, 16, %s' % (v(H + 2 * k), v(HP + k))); a('v_and_b32 %s, s36, %s' % (v(H + 2 * k + 1), v(HP + k)))
    a('s_waitcnt lgkmcnt(0)')
    a('v_readfirstlane_b32 s13, v3')
    stamp(a, 12)
    stamp(a, 17, True)
    def out_regs():
        for k in range(8):
            a('v_pk_fma_f32 %s, %s, s[14:15], v[10:11] op_sel_hi:[1,0,0] neg_lo:[0,0,1] neg_hi:[0,0,1]' % (v(HN + 2 * k, 2), v(H + 2 * k, 2)))
        for k in range(8): a('v_cvt_pk_bf16_f32 %s, %s, %s' % (v(OUT + k), v(HN + 2 * k), v(HN + 2 * k + 1)))
    def out_store():
        a('buffer_store_dwordx4 %s, v14, s[28:31], s22 offen%s' % (v(OUT, 4), OUTF))
        a('buffer_store_dwordx4 %s, v14, s[28:31], s22 offen offset:1024%s' % (v(OUT + 4, 4), OUTF))
    AH, BF, BD, ACC, KEY, PP, D2R = 16, 128, 160, 176, 180, 184, 192
    def frag_preload():
        a('v_lshrrev_b32 v1, 4, v15'); a('v_bfe_u32 v2, v15, 2, 2')
        a('v_lshl_add_u32 v8, v1, 3, v2'); a('v_lshlrev_b32 v8, 7, v8')
        a('v_and_b32 v3, 2, v2'); a('v_xor_b32 v9, s16, v3'); a('v_and_b32 v3, 1, v1'); a('v_lshlrev_b32 v4, 2, v3'); a('v_xor_b32 v9, v4, v9')
        a('v_lshl_add_u32 v8, v9, 4, v8'); a('v_and_b32 v9, 1, v15'); a('v_lshl_add_u32 v8, v9, 3, v8')
        a('v_bfe_u32 v9, v15, 1, 1'); a('v_lshl_add_u32 v8, v9, 15, v8')
        a('v_lshrrev_b32 v7, 1, v1'); a('v_lshl_add_u32 v7, v7, 3, v2'); a('v_lshlrev_b32 v7, 9, v7'); a('v_lshl_add_u32 v7, v3, 5, v7')
        a('v_and_b32 v3, 3, v15'); a('v_lshl_add_u32 v7, v3, 3, v7'); a('s_lshl_b32 s15, s16, 6'); a('s_add_u32 s15, s15, %d' % LD); a('v_add_u32 v7, s15, v7')
        a('v_lshlrev_b32 v9, 4, v1'); a('v_add_u32 v9, %d, v9' % LHN)
    def landed_add():
        if LATE:
            a('v_mov_b32 v1, %d' % (LSIG + 48)); a('v_mov_b32 v2, 1'); a('s_mov_b64 exec, 1'); a('ds_add_u32 v1, v2'); a('s_mov_b64 exec, -1')
    def frag_reads(tag):
        if LATE:
            a.label('fk_land' + tag)
            a('ds_read_b32 v2, v1'); a('s_waitcnt lgkmcnt(0)'); a('v_readfirstlane_b32 s15, v2')
            a('s_cmp_lt_u32 s15, 8'); a('s_cbranch_scc1 fk_land' + tag)
        for k in range(8):
            a('ds_read_b64_tr_b16 %s, v8 offset:%d' % (v(BF + 4 * k, 2), 4096 * k))
            a('ds_read_b64_tr_b16 %s, v8 offset:%d' % (v(BF + 4 * k + 2, 2), 4096 * k + 512))
            if k == 5: a('s_waitcnt lgkmcnt(4)')
    a('s_cmp_lg_u32 s13, s43'); a('s_cbranch_scc1 fk_other')
    a('s_mov_b64 exec, 0xff')
    a('buffer_store_dword v2, v4, s[24:27], s17 offen sc1')
    a('s_mov_b64 exec, -1')
    for k in range(8):
        a('v_pk_fma_f32 %s, %s, s[4:5], v[10:11] op_sel_hi:[1,0,0] neg_lo:[0,0,1] neg_hi:[0,0,1]' % (v(HN + 2 * k, 2), v(H + 2 * k, 2)))
    for k in range(8): a('v_cvt_pk_bf16_f32 %s, %s, %s' % (v(TMP + k), v(HN + 2 * k), v(HN + 2 * k + 1)))
    for k in range(8): a('v_min_u32 %s, -2, %s' % (v(TMP + k), v(TMP + k)))
    a('s_lshl_b32 s13, s3, 12'); a('s_add_u32 s13, s13, 0x%x' % CAND)
    a('buffer_store_dwordx4 %s, v14, s[24:27], s13 offen sc1' % v(TMP, 4))
    a('buffer_store_dwordx4 %s, v14, s[24:27], s13 offen offset:1024 sc1' % v(TMP + 4, 4))
    for k in range(8): a('v_min_u32 %s, -2, %s' % (v(HP + k), v(HP + k)))
    a('buffer_store_dwordx4 %s, v14, s[24:27], s13 offen offset:2048 sc1' % v(HP, 4))
    a('buffer_store_dwordx4 %s, v14, s[24:27], s13 offen offset:3072 sc1' % v(HP + 4, 4))
    out_regs()
    frag_preload()
    if not LATE: frag_reads('a')
    a('s_and_b32 s13, s2, 7'); a('s_lshl_b32 s13, s13, 12'); a('s_add_u32 s13, s13, 0x%x' % KEYS)
    a('s_mov_b32 s42, 0')
    a('s_waitcnt vmcnt(4)')
    landed_add()
    a.label('fk_pollk')
    for i in range(4): a('buffer_load_dword %s, v14, s[24:27], s13 offen offset:%d sc1' % (v(KEY + i), 1024 * i))
    poll_check(a, list(range(KEY, KEY + 4)), 3, 42, 'fk_pollk', 'fk_gotk')
    stamp(a, 13)
    wave_reduce(a, [3], op='v_max_u32')
    a('v_readlane_b32 s40, v3, 63')
    a('v_mov_b32 v4, %d' % LWIN)
    a('s_bfe_u32 s13, s40, 0x80003'); a('s_lshl_b32 s13, s13, 12'); a('s_and_b32 s14, s3, 3'); a('s_lshl_b32 s14, s14, 9')
    a('s_add_u32 s13, s13, s14'); a('s_add_u32 s13, s13, 0x%x' % CAND)
    a('v_lshlrev_b32 v5, 3, v15'); a('v_mov_b32 v3, s40')
    a('s_cmp_gt_u32 s3, 223'); a('s_cbranch_scc1 fk_norow')
    a('s_mov_b32 s42, 0')
    if LATE:
        a('buffer_load_dwordx2 %s, v5, s[24:27], s13 offen sc1' % v(KEY, 2))
        frag_reads('a')
        a('s_branch fk_chkr')
    a.label('fk_pollr')
    a('buffer_load_dwordx2 %s, v5, s[24:27], s13 offen sc1' % v(KEY, 2))
    a.label('fk_chkr')
    poll_check(a, [KEY, KEY + 1], 6, 42, 'fk_pollr', 'fk_gotr')
    a('v_add_u32 v5, %d, v5' % LHN)
    a('ds_write_b64 v5, %s' % v(KEY, 2))
    a.label('fk_norow')
    a('ds_write_b32 v4, v3')
    a('s_waitcnt lgkmcnt(0)')
    a('s_barrier')
    a('s_cmp_eq_u32 s40, s43')
    if OUTAT == 'early':
        a('s_cbranch_scc1 fk_ffn')
        out_store()
    else: a('s_cselect_b32 s22, 0x400000, s22')
    a('s_branch fk_ffn')
    a.label('fk_other')
    out_regs()
    if OUTAT == 'early': out_store()
    a('s_and_b32 s13, s13, 7'); a('s_cmp_gt_u32 s16, s13'); a('s_cselect_b32 s13, 1, 0'); a('s_sub_u32 s17, s16, s13')
    if UD >= 64:
        if LATE: a('s_waitcnt vmcnt(0)')
        frag_preload()
        landed_add()
        window(a, UD, KD, 17, 0, PD)
        frag_reads('b')
        a('s_waitcnt lgkmcnt(0)' if DLATE else 's_waitcnt vmcnt(0) lgkmcnt(0)')
    else:
        window(a, UD, KD, 17, 0, PD)
        frag_preload()
        a('s_waitcnt vmcnt(0)')
        landed_add()
        frag_reads('b')
        a('s_waitcnt lgkmcnt(0)')
    a('s_barrier')
    a.label('fk_ffn')
    stamp(a, 14)
    if OUTAT == 'bf': out_store()
    a('s_cmp_gt_u32 s3, 223'); a('s_cbranch_scc1 %s' % ('fk_lateout' if OUTAT in ('p1', 'end') else 'fk_fin'))
    for k in range(8): a('ds_read_b128 %s, v9 offset:%d' % (v(AH + 4 * k, 4), 64 * k))
    a('v_mov_b32 v3, %d' % LWIN); a('ds_read_b32 v12, v3')
    a('v_lshlrev_b32 v4, 3, v15')
    a('s_lshl_b32 s13, s3, 9'); a('s_lshl_b32 s14, s16, 6'); a('s_add_u32 s13, s13, s14'); a('s_add_u32 s13, s13, 0x%x' % P1)
    for k in range(8):
        a('s_waitcnt lgkmcnt(%d)' % (8 - k))
        a('v_mfma_f32_16x16x32_bf16 %s, %s, %s, %s' % (v(ACC, 4), v(AH + 4 * k, 4), v(BF + 4 * k, 4), '0' if k == 0 else v(ACC, 4)))
    a('v_lshlrev_b32 v5, 3, v15'); a('v_lshlrev_b32 v6, 2, v15')
    a('v_lshrrev_b32 v9, 5, v15'); a('v_lshlrev_b32 v9, 4, v9'); a('v_add_u32 v9, %d, v9' % LACT)
    a('s_lshl_b32 s41, s3, 10'); a('s_lshl_b32 s14, s16, 7'); a('s_add_u32 s41, s41, s14'); a('s_add_u32 s41, s41, 0x%x' % P2)
    a('v_min_u32 %s, -2, %s' % (v(ACC), v(ACC)))
    a('v_mov_b32_dpp %s, %s row_shl:8 %s' % (v(ACC + 1), v(ACC), DPPF))
    a('v_mov_b32_dpp %s, %s row_shl:1 %s' % (v(ACC + 2), v(ACC), DPPF))
    a('v_mov_b32_dpp %s, %s row_shl:9 %s' % (v(ACC + 3), v(ACC), DPPF))
    a('s_mov_b64 exec, 0x55')
    a('buffer_store_dwordx4 %s, v4, s[24:27], s13 offen sc1' % v(ACC, 4))
    a('s_mov_b64 exec, -1')
    if OUTAT == 'p1': out_store()
    def bd_reads(tag, add=True):
        if DLATE:
            if add:
                a('s_waitcnt vmcnt(0)')
                a('s_mov_b64 exec, 1'); a('ds_add_u32 v1, v8'); a('s_mov_b64 exec, -1')
            a.label('fk_dl' + tag)
            a('ds_read_b32 v13, v1'); a('s_waitcnt lgkmcnt(0)'); a('v_readfirstlane_b32 s15, v13')
            a('s_cmp_lt_u32 s15, 8'); a('s_cbranch_scc1 fk_dl' + tag)
        for kk in range(4):
            a('ds_read_b64_tr_b16 %s, v7 offset:%d' % (v(BD + 4 * kk, 2), 8192 * kk))
            a('ds_read_b64_tr_b16 %s, v7 offset:%d' % (v(BD + 4 * kk + 2, 2), 8192 * kk + 2048))
    a('v_mov_b32 v1, %d' % (LSIG + 52)); a('v_mov_b32 v8, 1')
    if not DLATE: bd_reads('')
    a('s_cmp_eq_u32 s16, 7'); a('s_cbranch_scc1 fk_c1')
    a('s_cmp_lg_u32 s16, 0'); a('s_cbranch_scc1 %s' % ('fk_bd' if DLATE else 'fk_wait1'))
    a('s_lshr_b32 s13, s3, 2'); a('s_lshl_b32 s13, s13, 11'); a('s_add_u32 s13, s13, 0x%x' % P1)
    a('s_mov_b32 s42, 0')
    a('v_lshrrev_b32 v10, 2, v5'); a('v_add_u32 v10, %d, v10' % LACT)
    a('s_waitcnt vmcnt(%d)' % (2 if OUTAT == 'p1' else 0))
    if DLATE: a('s_mov_b64 exec, 1'); a('ds_add_u32 v1, v8'); a('s_mov_b64 exec, -1')
    a.label('fk_poll1')
    for i in range(4): a('buffer_load_dwordx2 %s, v5, s[24:27], s13 offen offset:%d sc1' % (v(PP + 2 * i, 2), 512 * i))
    poll_check(a, list(range(PP, PP + 8)), 11, 42, 'fk_poll1', 'fk_got1')
    stamp(a, 15)
    a('v_pk_add_f32 %s, %s, %s' % (v(PP, 2), v(PP, 2), v(PP + 2, 2))); a('v_pk_add_f32 %s, %s, %s' % (v(PP + 4, 2), v(PP + 4, 2), v(PP + 6, 2)))
    a('v_pk_add_f32 %s, %s, %s' % (v(PP, 2), v(PP, 2), v(PP + 4, 2)))
    rbf(a, PP); rbf(a, PP + 1)
    a('v_mul_f32 %s, %s, %s' % (v(PP + 2), fh(-1.4426950408889634), v(PP)))
    a('v_exp_f32 %s, %s' % (v(PP + 2), v(PP + 2)))
    a('v_add_f32 %s, 1.0, %s' % (v(PP + 2), v(PP + 2)))
    a('v_rcp_f32 %s, %s' % (v(PP + 2), v(PP + 2)))
    a('v_mul_f32 %s, %s, %s' % (v(PP), v(PP), v(PP + 2)))
    rbf(a, PP)
    a('v_mul_f32 %s, %s, %s' % (v(PP), v(PP), v(PP + 1)))
    rbf(a, PP)
    a('ds_write_b16_d16_hi v10, %s' % v(PP))
    if DLATE: bd_reads('a', False)
    a('s_branch fk_wait1')
    a.label('fk_c1')
    a('s_cmp_gt_u32 s3, 127'); a('s_cbranch_scc1 %s' % ('fk_bd' if DLATE else 'fk_wait1'))
    a('s_waitcnt lgkmcnt(0)')
    a('v_readfirstlane_b32 s40, v12')
    a('v_lshrrev_b32 v10, 4, v15'); a('v_and_b32 v11, 1, v15'); a('v_lshl_add_u32 v12, v11, 2, v10'); a('v_lshlrev_b32 v12, 1, v12')
    a('v_and_b32 v11, 12, v12'); a('v_and_b32 v10, 1, v10')
    a('s_bfe_u32 s13, s40, 0x80003'); a('s_lshl_b32 s14, s13, 12'); a('s_lshl_b32 s15, s3, 4'); a('s_add_u32 s14, s14, s15'); a('s_add_u32 s14, s14, 0x%x' % CAND)
    a('s_mov_b32 s42, 0')
    a.label('fk_pollh')
    a('buffer_load_dword v2, v11, s[24:27], s14 offen sc1')
    a('buffer_load_dword v3, v11, s[24:27], s14 offen offset:2048 sc1')
    poll_check(a, [2, 3], 4, 42, 'fk_pollh', 'fk_goth')
    a('v_cmp_eq_u32 vcc, 1, v10')
    for r in (2, 3):
        a('v_lshlrev_b32 v4, 16, %s' % v(r)); a('v_and_b32 %s, s36, %s' % (v(r), v(r))); a('v_cndmask_b32 %s, v4, %s, vcc' % (v(r), v(r)))
    a('s_lshr_b32 s14, s13, 4'); a('s_add_u32 s14, s14, 1'); a('s_cmp_ge_u32 s13, 248'); a('s_cselect_b32 s14, 0, s14')
    a('s_cmp_ge_u32 s13, 240'); a('s_cselect_b32 s15, 7, 15'); a('s_and_b32 s15, s15, s13'); a('s_lshl_b32 s15, s15, 7'); a('s_add_u32 s14, s14, s15')
    a('s_and_b32 s13, s40, 7'); a('s_sub_u32 s15, 7, s13'); a('s_min_u32 s15, s15, s13'); a('s_lshl_b32 s15, s15, 5'); a('s_add_u32 s14, s14, s15')
    a('s_sub_u32 s15, 2048, s14'); a('s_and_b32 s15, s15, 2047'); a('s_cmp_lt_u32 s13, 4'); a('s_cselect_b32 s14, s14, s15')
    a('s_and_b32 s13, s40, 0x7ff'); a('s_cmp_eq_u32 s13, %d' % (248 * 8 + 7)); a('s_cselect_b32 s14, 1024, s14')
    a('s_lshl_b32 s21, s14, 11'); a('s_lshl_b32 s15, s3, 4'); a('s_add_u32 s21, s21, s15')
    a('s_ashr_i32 s13, s40, 31'); a('s_not_b32 s13, s13'); a('s_or_b32 s13, s13, 0x80000000'); a('s_xor_b32 s13, s40, s13'); a('s_and_b32 s13, s13, 0xfffff800')
    a('v_mov_b32 v11, s13'); rbf(a, 11)
    a('v_mul_f32 v11, %s, v11' % fh(-1.4426950408889634))
    a('v_exp_f32 v11, v11'); a('v_add_f32 v11, 1.0, v11'); a('v_rcp_f32 v11, v11'); rbf(a, 11)
    a('v_lshrrev_b32 v4, 1, v15'); a('v_lshlrev_b32 v4, 12, v4'); a('v_and_b32 v5, 1, v15'); a('v_lshl_add_u32 v4, v5, 4, v4')
    a('v_add_u32 v5, %d, v4' % (32 * 4096)); a('v_cmp_gt_u32 vcc, 48, v15'); a('v_cndmask_b32 v5, -16, v5, vcc')
    a('s_lshl_b32 s40, s3, 5'); a('s_add_u32 s40, s40, 0x%x' % P2)
    if DLATE:
        a.label('fk_bd')
        bd_reads('b')
    a.label('fk_wait1')
    a('s_waitcnt lgkmcnt(0)'); a('s_barrier')
    stamp(a, 16)
    for kk in range(4): a('ds_read_b128 %s, v9 offset:%d' % (v(AH + 4 * kk, 4), 32 * kk))
    for kk in range(4):
        a('s_waitcnt lgkmcnt(%d)' % (3 - kk))
        a('v_mfma_f32_32x32x16_bf16 %s, %s, %s, %s' % (v(D2R, 16), v(AH + 4 * kk, 4), v(BD + 4 * kk, 4), '0' if kk == 0 else v(D2R, 16)))
    a('v_min_u32 %s, -2, %s' % (v(D2R), v(D2R)))
    quad_gather(a, D2R, 1)
    a('s_mov_b32 exec_lo, 0x11111111'); a('s_mov_b32 exec_hi, 0')
    a('buffer_store_dwordx4 %s, v6, s[24:27], s41 offen sc1' % v(D2R, 4))
    a('s_mov_b64 exec, -1')
    if OUTAT == 'end': out_store()
    stamp(a, 17)
    a('s_cmp_lg_u32 s16, 7'); a('s_cbranch_scc1 fk_fin')
    a('s_cmp_gt_u32 s3, 127'); a('s_cbranch_scc1 fk_fin')
    PQ = 16
    a('s_mov_b32 s42, 0')
    a('s_waitcnt vmcnt(%d)' % (2 if OUTAT == 'end' else 0))
    a.label('fk_poll2')
    a('buffer_load_dwordx4 %s, v4, s[24:27], s40 offen sc1' % v(PQ, 4))
    a('buffer_load_dwordx4 %s, v5, s[24:27], s40 offen sc1' % v(PQ + 4, 4))
    poll_check(a, list(range(PQ, PQ + 8)), 6, 42, 'fk_poll2', 'fk_got2')
    stamp(a, 18)
    for h in range(2): a('v_pk_add_f32 %s, %s, %s' % (v(PQ + 2 * h, 2), v(PQ + 2 * h, 2), v(PQ + 4 + 2 * h, 2)))
    for i in range(2): a('v_permlane32_swap_b32 %s, %s' % (v(PQ + i), v(PQ + 2 + i)))
    for i in range(2): a('v_add_f32 %s, %s, %s' % (v(PQ + i), v(PQ + i), v(PQ + 2 + i)))
    a('v_permlane16_swap_b32 %s, %s' % (v(PQ), v(PQ + 1)))
    a('v_add_f32 %s, %s, %s' % (v(PQ), v(PQ), v(PQ + 1)))
    a('v_add_f32_dpp %s, %s, %s quad_perm:[2,3,0,1] %s' % (v(PQ), v(PQ), v(PQ), DPPF))
    a('v_add_f32_dpp %s, %s, %s row_ror:4 %s' % (v(PQ), v(PQ), v(PQ), DPPF))
    a('v_add_f32_dpp %s, %s, %s row_ror:8 %s' % (v(PQ), v(PQ), v(PQ), DPPF))
    rbf(a, PQ); a('v_mul_f32 %s, %s, v11' % (v(PQ), v(PQ))); rbf(a, PQ)
    a('v_add_f32 %s, %s, v2' % (v(PQ), v(PQ))); rbf(a, PQ)
    a('v_add_f32 %s, %s, v3' % (v(PQ), v(PQ))); rbf(a, PQ)
    a('s_mov_b32 exec_lo, 0x00030003'); a('s_mov_b32 exec_hi, 0x00030003')
    a('buffer_store_short_d16_hi %s, v12, s[28:31], s21 offen' % v(PQ))
    if OUTAT in ('p1', 'end'):
        a('s_branch fk_fin')
        a.label('fk_lateout')
        out_store()
    a.label('fk_fin')
    stamp_dump(a, 'x')
    a.label('fk_end')
    a('s_endpgm')

def main(path):
    a = Asm()
    ref = open('%s/%s.s.ref' % (optval('ref', '/code'), NAME)).read().splitlines()
    for l in ref:
        if l.startswith('; Override'): break
        a.raw(l)
    if LIST: a.raw('; @launch kernel=%s grid=(256,1,1) block=(512,1,1) lds=%d' % (KN, LDSB))
    else: a.raw('; @launch grid=(256,1,1) block=(512,1,1) lds=%d' % LDSB)
    a.raw('.amdgcn_target "amdgcn-amd-amdhsa--gfx950"'); a.raw('.text')
    gen(a)
    a.raw('.section .rodata,"a"')
    a.raw('\n'.join(['.p2align 6', '.amdhsa_kernel %s' % KN, '  .amdhsa_next_free_vgpr 256',
        '  .amdhsa_next_free_sgpr 102', '  .amdhsa_accum_offset 256', '  .amdhsa_group_segment_fixed_size 0',
        '  .amdhsa_kernarg_size 104', '  .amdhsa_user_sgpr_count 2', '  .amdhsa_user_sgpr_kernarg_segment_ptr 1',
        '  .amdhsa_system_sgpr_workgroup_id_x 1', '.end_amdhsa_kernel', '']))
    open(path, 'w').write(a.text())
    print('wrote', path, 'lines', len(a.lines), 'nops', a.nops, 'lds', LDSB)

if __name__ == '__main__':
    ps = [x for x in sys.argv[1:] if x.endswith('.s')]
    main(ps[0] if ps else '/code/%s.s' % NAME)
```

```python
import struct, sys
from asmlib import Asm

NAME = 'sequential_preLN__spectral_fnet__moe_arch_mod__prompt'
def fh(x): return '0x%08x' % struct.unpack('<I', struct.pack('<f', x))[0]
OPT = set(a for a in sys.argv[1:] if a.startswith('--'))
def optval(name, default):
    for o in OPT:
        if o.startswith('--%s=' % name): return o[len(name) + 3:]
    return default
STAMPS = '--stamps' in OPT
LIST = '--list' in OPT or STAMPS
OUTF = {'plain': '', 'nt': ' nt', 'sc1': ' sc1'}[optval('out', 'nt')]
OUTAT = optval('outat', 'bf')
KN = 'fk_kernel' if LIST else NAME + '_kernel'

KEYS = 0x9000; G5 = 0x11000; P1 = 0x13000; P2 = 0x30000; CAND = 0x80000
OS = 9344
WOFF = 0x200000; YOFF = 0x448000; WSB = 0x690000
LG, LD, LX = 0, 65536, 98304
LX1024 = LX + 5 * 4096
LWS = LX1024 + 2048
LA2 = LWS + 9472
RS = 2064
LROW = LA2 + 8192
LWR = LROW + 8 * RS
LG5 = LX + 4 * 4096
LMISC = LWR + 2048
LG5S, LY5, LKEY, LWIN, LG5E, LACT, LHN, LSIG = LMISC, LMISC + 32, LMISC + 64, LMISC + 80, LMISC + 96, LMISC + 128, LMISC + 256, LMISC + 768
LDSB = LMISC + 832
assert LDSB <= 163840

def v(i, n=1): return 'v%d' % i if n == 1 else 'v[%d:%d]' % (i, i + n - 1)
def s(i, n=1): return 's%d' % i if n == 1 else 's[%d:%d]' % (i, i + n - 1)
DPPF = 'row_mask:0xf bank_mask:0xf'
ROWRED = ['quad_perm:[1,0,3,2] ' + DPPF, 'quad_perm:[2,3,0,1] ' + DPPF, 'row_half_mirror ' + DPPF, 'row_mirror ' + DPPF]
def wave_reduce(a, regs, op='v_add_f32'):
    for pat in ROWRED + ['row_bcast:15 row_mask:0xa bank_mask:0xf', 'row_bcast:31 row_mask:0xc bank_mask:0xf']:
        for r in regs: a('%s_dpp %s, %s, %s %s' % (op, v(r), v(r), v(r), pat))
def rbf(a, r): a('v_cvt_pk_bf16_f32 %s, 0, %s' % (v(r), v(r)))
def angles(a, mulreg, basereg, ks, tmp):
    for i, k in enumerate(ks):
        if k == 0: a('v_mov_b32 %s, %s' % (v(tmp + i), v(basereg)))
        else: a('v_fmamk_f32 %s, %s, %s, %s' % (v(tmp + i), v(mulreg), fh(float(k)), v(basereg)))
def kr(r): return (r & 3) + 8 * (r >> 2)
def gen_c2s2(a, vln_f, vlh4_f, C2, S2, tmp):
    c, b = tmp, tmp + 1
    a('v_mul_f32 %s, %s, %s' % (v(c), fh(1.0 / 32), v(vln_f)))
    a('v_mul_f32 %s, %s, %s' % (v(b), v(c), v(vlh4_f)))
    ang = tmp + 2
    angles(a, c, b, [kr(r) for r in range(16)], ang)
    for r in range(16): a('v_cos_f32 %s, %s' % (v(ang + 16 + r), v(ang + r)))
    for p in range(8): a('v_cvt_pk_f16_f32 %s, %s, %s' % (v(C2 + p), v(ang + 16 + 2 * p), v(ang + 17 + 2 * p)))
    for r in range(16): a('v_sin_f32 %s, %s' % (v(ang + 16 + r), v(ang + r)))
    for p in range(8): a('v_cvt_pk_f16_f32 %s, %s, %s' % (v(S2 + p), v(ang + 16 + 2 * p), v(ang + 17 + 2 * p)))
def reduce4(a, A, B, C, D):
    a('v_permlane32_swap_b32 %s, %s' % (v(A), v(B))); a('v_permlane32_swap_b32 %s, %s' % (v(C), v(D)))
    a('v_add_f32 %s, %s, %s' % (v(A), v(A), v(B))); a('v_add_f32 %s, %s, %s' % (v(C), v(C), v(D)))
    a('v_permlane16_swap_b32 %s, %s' % (v(A), v(C)))
    a('v_add_f32 %s, %s, %s' % (v(A), v(A), v(C)))
    for pat in ROWRED: a('v_add_f32_dpp %s, %s, %s %s' % (v(A), v(A), v(A), pat))
def ln_chain(a, tot, m, t):
    a('v_mov_b32_dpp %s, %s row_bcast:15 row_mask:0xa bank_mask:0xf' % (v(m), v(tot)))
    a('v_mul_f32 %s, %s, %s' % (v(t), fh(1.0 / 1024), v(tot)))
    a('v_mul_f32 %s, %s, %s' % (v(m), fh(1.0 / 1024), v(m)))
    a('v_fma_f32 %s, -%s, %s, %s' % (v(t), v(m), v(m), v(t)))
    a('v_max_f32 %s, 0, %s' % (v(t), v(t)))
    rbf(a, t); rbf(a, m)
    a('v_add_f32 %s, %s, %s' % (v(t), fh(1e-5), v(t))); rbf(a, t)
    a('v_sqrt_f32 %s, %s' % (v(t), v(t))); rbf(a, t)
    a('v_rcp_f32 %s, %s' % (v(t), v(t)))

NST = 20
EARLY = '--early' in OPT
def stamp(a, i, early=False):
    if STAMPS and (early == EARLY or i < 12 or i == NST - 1): a('s_memrealtime s[%d:%d]' % (60 + 2 * i, 61 + 2 * i))
def stamp_dump(a, tag):
    if not STAMPS: return
    a('s_waitcnt vmcnt(0) lgkmcnt(0)')
    stamp(a, NST - 1)
    a('s_load_dwordx2 s[4:5], s[0:1], 96'); a('s_waitcnt lgkmcnt(0)')
    a('s_add_u32 s4, s4, 0x8000000'); a('s_addc_u32 s5, s5, 0'); a('s_mov_b32 s6, 0x40000'); a('s_mov_b32 s7, 0x00020000')
    a('s_lshl_b32 s12, s2, 3'); a('s_add_u32 s12, s12, s16'); a('s_lshl_b32 s12, s12, 7')
    a('s_mov_b64 exec, 1'); a('v_mov_b32 v1, 0')
    for i in range(NST):
        a('v_mov_b32 v2, s%d' % (60 + 2 * i)); a('buffer_store_dword v2, v1, s[4:7], s12 offen offset:%d' % (4 * i))

YCHK = '--ychk' in OPT
G2 = '--g2' in OPT
NH = int(optval('nh', '4'))
KA = int(optval('ka', '0')); CPOST = '--cpost' in OPT
KB, KE, KC, KD = (int(x) for x in optval('win', '4,0,5,4').split(','))
PB, PE, PC, PD = (int(x) for x in optval('wpace', '99,99,99,99').split(','))
assert '--now' in OPT or 3 * NH + 4 * KA + 4 * KB + 4 * KE + 8 * KC + 7 * KD >= 96, 'units missing'
def unit_setup(a):
    a('v_lshrrev_b32 v208, 3, v15'); a('v_and_b32 v209, 7, v15'); a('v_and_b32 v210, 2, v208'); a('v_xor_b32 v209, v210, v209')
    a('v_mul_u32_u24 v208, 7168, v208'); a('v_lshl_add_u32 v208, v209, 4, v208')
    a('v_lshrrev_b32 v210, 5, v15'); a('v_lshlrev_b32 v210, 11, v210'); a('v_and_b32 v209, 31, v15'); a('v_lshl_add_u32 v210, v209, 4, v210')
    a('s_and_b32 s12, s3, 3'); a('s_mul_i32 s100, s12, %d' % (256 * 7168)); a('s_lshl_b32 s101, s12, 9')
    a('s_lshr_b32 s12, s3, 2'); a('s_lshl_b32 s12, s12, 7'); a('s_add_u32 s100, s100, s12'); a('s_lshl_b32 s12, s12, 10'); a('s_add_u32 s101, s101, s12')
uid = [0]
def window(a, first, k, wreg, wbase, pace=99, skip=None):
    if k == 0 or first >= 96: return
    uid[0] += 1; lab = skip or 'fk_win%d' % uid[0]
    a('s_cmp_gt_u32 s3, 223'); a('s_cbranch_scc1 %s' % lab)
    a('s_mul_i32 s15, %s, %d' % (s(wreg), k)); a('s_add_u32 s15, s15, %d' % (first - wbase * k))
    a('s_mov_b32 s58, 0x700000'); a('s_mov_b32 s59, 0x00020000')
    for i in range(k):
        a('s_cmp_gt_u32 s15, 95'); a('s_cbranch_scc1 %s' % lab)
        a('s_lshl_b32 s12, s15, 10'); a('s_mov_b32 m0, s12')
        a('s_and_b32 s14, s12, 1024'); a('s_lshr_b32 s14, s14, 4'); a('v_xor_b32 v209, s14, v208')
        a('s_cmp_lt_u32 s15, 32'); a('s_cselect_b64 s[56:57], s[44:45], s[48:49]')
        a('s_and_b32 s14, s15, 31'); a('s_mul_i32 s13, s14, %d' % (8 * 7168)); a('s_add_u32 s13, s13, s100')
        a('s_lshl_b32 s14, s14, 12'); a('s_add_u32 s14, s14, s101')
        a('s_cmp_lt_u32 s15, 64'); a('s_cselect_b64 s[56:57], s[56:57], s[52:53]'); a('s_cselect_b32 s13, s13, s14'); a('s_cselect_b64 vcc, -1, 0')
        a('v_cndmask_b32 v209, v210, v209, vcc')
        a('s_add_u32 s15, s15, 1')
        if i >= pace: a('s_waitcnt vmcnt(%d)' % pace)
        a('buffer_load_dwordx4 v209, s[56:59], s13 offen lds')
    if not skip: a.label(lab)
UA = 3 * NH; UB = UA + 4 * KA; UE = UB + 4 * KB; UC = UE + 4 * KE; UD = UC + 8 * KC
LATE = UC < 64 and '--now' not in OPT
DLATE = UD >= 64 and UD < 96 and KD > 0 and '--nodlate' not in OPT
BASE = int(optval('base', '0'), 0)
WOUT = '--wout' in OPT
WSRD = 's[28:31]' if WOUT else 's[24:27]'
if WOUT: WOFF = 0
def rebase(a):
    if BASE: a('s_add_u32 s24, s24, 0x%x' % BASE); a('s_addc_u32 s25, s25, 0')
def chkpos(a, d):
    a('s_bfe_u32 %s, s3, 0x30002' % s(d)); a('s_lshl_b32 %s, %s, 7' % (s(d), s(d))); a('s_lshr_b32 s12, s3, 5'); a('s_lshl_b32 s12, s12, 4')
    a('s_add_u32 %s, %s, s12' % (s(d), s(d))); a('s_and_b32 s12, s3, 3'); a('s_lshl_b32 s12, s12, 2'); a('s_add_u32 %s, %s, s12' % (s(d), s(d)))
    a('s_add_u32 %s, %s, 8192' % (s(d), s(d)))
def piece_sum(a, d, r, tag):
    a('v_add3_u32 %s, %s, %s, %s' % (v(d), v(r), v(r + 1), v(r + 2)))
    a('v_add_u32 %s, %s, %s' % (v(d), v(d), v(r + 3)))
    return ['v_add_u32_dpp %s, %s, %s quad_perm:[1,0,3,2] %s' % (v(d), v(d), v(d), DPPF)]
def quad_gather(a, r, step):
    for i in range(1, 4): a('v_mov_b32_dpp %s, %s row_shl:%d %s' % (v(r + i), v(r), i * step, DPPF))
def poll_tail(a, cnt, lab, got):
    a('s_add_u32 %s, %s, 1' % (s(cnt), s(cnt)))
    a('s_cmp_gt_u32 %s, 0x40000' % s(cnt)); a('s_cbranch_scc1 %s' % got)
    a('s_cbranch_vccnz %s' % lab)
    a.label(got)
def poll_check(a, regs, tmp, cnt, lab, got, wait=True):
    a('s_add_u32 %s, %s, 1' % (s(cnt), s(cnt)))
    if wait: a('s_waitcnt vmcnt(0)')
    r = list(regs)
    if len(r) == 1: a('v_cmp_eq_u32 vcc, -1, %s' % v(r[0]))
    else:
        if len(r) == 2: a('v_max_u32 %s, %s, %s' % (v(tmp), v(r[0]), v(r[1]))); r = []
        else: a('v_max3_u32 %s, %s, %s, %s' % (v(tmp), v(r[0]), v(r[1]), v(r[2]))); r = r[3:]
        while r:
            if len(r) >= 2: a('v_max3_u32 %s, %s, %s, %s' % (v(tmp), v(tmp), v(r[0]), v(r[1]))); r = r[2:]
            else: a('v_max_u32 %s, %s, %s' % (v(tmp), v(tmp), v(r[0]))); r = []
        a('v_cmp_eq_u32 vcc, -1, %s' % v(tmp))
    a('s_cmp_gt_u32 %s, 0x40000' % s(cnt)); a('s_cbranch_scc1 %s' % got)
    a('s_cbranch_vccnz %s' % lab)
    a.label(got)

def gen(a):
    a.raw('.globl %s' % KN); a.raw('.p2align 8'); a.raw('.type %s,@function' % KN)
    a.lines.append(KN + ':')
    a('s_cmp_gt_u32 s2, 255'); a('s_cbranch_scc1 fk_end')
    if STAMPS:
        for i in range(NST): a('s_mov_b32 s%d, 0' % (60 + 2 * i))
    stamp(a, 0)
    a('s_load_dwordx2 s[8:9], s[0:1], 0'); a('s_load_dwordx2 s[24:25], s[0:1], 96')
    a('s_load_dwordx2 s[32:33], s[0:1], 48'); a('s_load_dwordx2 s[44:45], s[0:1], 56'); a('s_load_dwordx2 s[48:49], s[0:1], 64')
    a('s_load_dwordx2 s[52:53], s[0:1], 72'); a('s_load_dwordx2 s[28:29], s[0:1], 80')
    if '--nocodepf' not in OPT:
        a('s_getpc_b64 s[40:41]'); a.lines.append('fk_pc:')
        a('s_mov_b32 s42, fk_end-fk_pc'); a('s_mov_b32 s43, 0x00020000')
        a('v_lshlrev_b32 v250, 6, v0')
        a('buffer_load_dword v251, v250, s[40:43], 0 offen')
    a('v_lshrrev_b32 v1, 6, v0'); a('v_and_b32 v15, 63, v0')
    a('v_readfirstlane_b32 s16, v1')
    a('s_and_b32 s3, s2, 0xe0'); a('s_and_b32 s17, s2, 7'); a('s_lshl_b32 s17, s17, 2'); a('s_or_b32 s3, s3, s17')
    a('s_bfe_u32 s17, s2, 0x20003'); a('s_or_b32 s3, s3, s17')
    a('s_lshr_b32 s17, s3, 4'); a('s_add_u32 s17, s17, 1'); a('s_cmp_ge_u32 s3, 248'); a('s_cselect_b32 s17, 0, s17')
    a('s_cmp_ge_u32 s3, 240'); a('s_cselect_b32 s18, 7, 15'); a('s_and_b32 s18, s18, s3'); a('s_lshl_b32 s18, s18, 7')
    a('s_add_u32 s18, s18, s17')
    a('v_and_b32 v1, 31, v15'); a('v_lshrrev_b32 v2, 5, v15')
    a('v_lshlrev_b32 v14, 4, v15')
    for r, n in ((8, 2048 * 2048), (24, WSB), (28, 2048 * 2048), (32, 2048), (44, 1024 * 7168), (48, 1024 * 7168), (52, 3584 * 2048)):
        a('s_mov_b32 %s, 0x%x' % (s(r + 2), n)); a('s_mov_b32 %s, 0x00020000' % s(r + 3))
    a('s_cmp_ge_u32 s3, 248'); a('s_cselect_b32 s12, 5, 4')
    a('s_cmp_ge_u32 s16, s12'); a('s_cbranch_scc1 fk_H')
    XA, XB = 16, 32
    F1, TC, TS, B3, C2, S2 = 48, 56, 72, 88, 96, 104
    X, D1, D2, D3, Q16, GA = 112, 128, 144, 160, 176, 184
    T = 128
    a('s_setprio 3')
    a('s_lshl_b32 s19, s16, 5'); a('s_add_u32 s19, s19, s18')
    a('s_sub_u32 s20, 2048, s19'); a('s_and_b32 s20, s20, 2047')
    a('s_lshl_b32 s21, s19, 11'); a('s_lshl_b32 s22, s20, 11')
    a('s_lshl_b32 s12, s16, 12'); a('s_add_u32 s12, s12, %d' % LX)
    a('s_mov_b32 m0, s12')
    for i in range(32): a('v_mov_b32 %s, 0' % v(XA + i))
    a('v_cvt_f32_u32 v200, v1')
    a('v_lshlrev_b32 v7, 2, v2'); a('v_cvt_f32_u32 v7, v7')
    a('v_lshrrev_b32 v8, 1, v1'); a('v_and_b32 v9, 1, v1')
    a('v_lshlrev_b32 v205, 2, v15'); a('v_and_b32 v205, 63, v205'); a('v_add_u32 v205, %d, v205' % LSIG)
    a('ds_write_b32 v205, v16')
    a('s_waitcnt lgkmcnt(0)')
    rebase(a)
    stamp(a, 1)
    for i, so in enumerate((21, 21, 22, 22)):
        if i: a('s_add_u32 s13, s12, %d' % (1024 * i)); a('s_mov_b32 m0, s13')
        if i & 1: a('s_add_u32 s14, %s, 1024' % s(so))
        a('buffer_load_dwordx4 v14, s[8:11], %s offen lds' % (s(14) if i & 1 else s(so)))
    a('s_cmp_lg_u32 s19, 0'); a('s_cbranch_scc1 fk_no1024')
    for i in range(2):
        a('s_mov_b32 m0, %d' % (LX1024 + 1024 * i)); a('s_mov_b32 s14, %d' % (1024 * 2048 + 1024 * i))
        a('buffer_load_dwordx4 v14, s[8:11], s14 offen lds')
    a.label('fk_no1024')
    a('s_barrier')
    def put(base, n):
        for q in range(n // 4): a('ds_write_b128 v206, %s offset:%d' % (v(base + 4 * q, 4), 1024 * ((base - F1) // 4 + q)))
    a('v_add_u32 v206, %d, v14' % LROW)
    a('s_lshl_b32 s13, s16, 2'); a('s_add_u32 s13, s13, %d' % LSIG); a('v_mov_b32 v201, s13'); a('v_mov_b32 v202, 1')
    a('s_cmp_eq_u32 s16, 1'); a('s_cbranch_scc1 fk_j1')
    a('s_cmp_eq_u32 s16, 2'); a('s_cbranch_scc1 fk_j2')
    a('s_cmp_eq_u32 s16, 3'); a('s_cbranch_scc1 fk_j3')
    a('s_cmp_eq_u32 s16, 4'); a('s_cbranch_scc1 fk_jend')
    a('v_cmp_eq_u32 vcc, 1, v1')
    a('v_cndmask_b32 v10, v8, 16, vcc'); a('v_cndmask_b32 v11, v9, 0, vcc')
    a('v_cvt_f32_u32 v10, v10'); a('v_cvt_f32_u32 v11, v11')
    a('v_mul_f32 v10, %s, v10' % fh(1.0 / 32)); a('v_mul_f32 v11, %s, v11' % fh(0.25))
    a('v_add_f32 v12, v7, v7'); a('v_fma_f32 v11, v10, v12, v11')
    angles(a, 10, 11, list(range(8)) + list(range(16, 24)), T)
    for i in range(16): a('v_cos_f32 %s, %s' % (v(T + 16 + i), v(T + i)))
    for p in range(8): a('v_cvt_pk_f16_f32 %s, %s, %s' % (v(F1 + p), v(T + 16 + 2 * p), v(T + 17 + 2 * p)))
    put(F1, 8)
    a('s_branch fk_jsig')
    a.label('fk_j1')
    a('v_cvt_f32_u32 v10, v8'); a('v_lshlrev_b32 v11, 31, v9')
    a('v_mul_f32 v10, %s, v10' % fh(1.0 / 1024)); a('v_xor_b32 v10, v11, v10'); a('v_mul_f32 v11, v10, v7')
    angles(a, 10, 11, [kr(r) for r in range(16)], T)
    for r in range(16): a('v_cos_f32 %s, %s' % (v(TC + r), v(T + r)))
    put(TC, 16)
    for r in range(16): a('v_sin_f32 %s, %s' % (v(TS + r), v(T + r)))
    put(TS, 16)
    a('s_branch fk_jsig')
    a.label('fk_j2')
    gen_c2s2(a, 200, 7, C2, S2, T)
    put(C2, 16)
    a('s_branch fk_jsig')
    a.label('fk_j3')
    a('v_or_b32 v10, 16, v1'); a('v_cvt_f32_u32 v10, v10'); a('v_mov_b32 v11, %s' % fh(1.0 / 64))
    a('v_fmamk_f32 v10, v10, %s, v11' % fh(1.0 / 32))
    a('v_cmp_gt_u32 vcc, 16, v1'); a('v_mov_b32 v12, %s' % fh(-0.25)); a('v_cndmask_b32 v12, 0, v12, vcc')
    a('v_fma_f32 v11, v10, v7, v12')
    angles(a, 10, 11, [kr(r) for r in range(16)], T)
    for r in range(16): a('v_cos_f32 %s, %s' % (v(T + 16 + r), v(T + r)))
    for p in range(8): a('v_cvt_pk_f16_f32 %s, %s, %s' % (v(B3 + p), v(T + 16 + 2 * p), v(T + 17 + 2 * p)))
    put(B3, 8)
    a.label('fk_jsig')
    a('ds_write_b32 v201, v202 offset:32')
    a.label('fk_jend')
    a('v_lshlrev_b32 v3, 9, v2'); a('v_lshl_add_u32 v3, v1, 1, v3')
    a('v_sub_u32 v4, 576, v3'); a('v_sub_u32 v5, 2048, v3'); a('v_and_b32 v5, 2047, v5')
    a('v_add_u32 v3, s12, v3'); a('v_add_u32 v4, s12, v4'); a('v_add_u32 v5, s12, v5')
    a('s_lshl_b32 s13, s16, 10'); a('s_sub_u32 s14, %d, s13' % (7168 + 64))
    a('s_cmp_ge_u32 s3, 248'); a('s_cselect_b32 s15, 1024, 0'); a('s_add_u32 s14, s14, s15')
    a('s_cmp_eq_u32 s16, 4'); a('s_cselect_b32 s13, %d, s13' % (8192 + 64))
    a('s_add_u32 s13, s13, %d' % LWS); a('s_add_u32 s14, s14, %d' % LWS)
    a('v_cmp_gt_u32 vcc, 16, v1')
    a('v_mov_b32 v8, s13'); a('v_mov_b32 v9, s14')
    a('v_cndmask_b32 v10, v9, v8, vcc'); a('v_cndmask_b32 v11, v8, v9, vcc')
    a('v_lshl_add_u32 v10, v15, 2, v10'); a('v_lshl_add_u32 v11, v15, 2, v11')
    a('v_lshrrev_b32 v6, 1, v15'); a('v_and_b32 v8, 1, v15'); a('v_mul_u32_u24 v9, %d, v8' % (4096 + 64))
    a('v_and_b32 v12, 15, v6'); a('v_lshl_add_u32 v12, v12, 4, v2'); a('v_mul_u32_u24 v12, %d, v12' % OS)
    a('v_mul_u32_u24 v192, %d, v8' % (2 * OS)); a('v_add_u32 v192, v192, v12')
    a('v_lshl_add_u32 v12, v8, 4, v12')
    a('v_lshrrev_b32 v194, 3, v15'); a('v_lshlrev_b32 v193, 4, v194'); a('v_lshl_add_u32 v193, v8, 7, v193')
    a('v_and_b32 v6, 3, v6'); a('v_lshl_add_u32 v9, v6, 2, v9'); a('v_lshl_add_u32 v9, v194, 7, v9')
    a('v_lshlrev_b32 v194, 10, v194'); a('v_and_b32 v6, 7, v15'); a('v_lshl_add_u32 v194, v6, 4, v194')
    a('s_lshl_b32 s13, s16, 5'); a('s_add_u32 s13, s13, %d' % LWS); a('v_add_u32 v6, s13, v9')
    a('s_mul_i32 s36, s3, %d' % OS); a('s_lshl_b32 s13, s16, 8'); a('s_add_u32 s36, s36, s13'); a('s_add_u32 s36, s36, 0x%x' % WOFF)
    a('s_mul_i32 s37, s16, %d' % (4 * OS)); a('s_add_u32 s37, s37, 0x%x' % WOFF)
    chkpos(a, 23)
    a('s_add_u32 s23, s23, s37')
    a('s_lshl_b32 s14, s3, 5'); a('s_add_u32 s37, s37, s14')
    a('s_add_u32 s38, s37, %d' % (2 * OS))
    a('s_lshl_b32 s13, s16, 11'); a('s_add_u32 s13, s13, %d' % LA2); a('v_add_u32 v7, s13, v14')
    a('v_cmp_eq_u32 s[58:59], 1, v8')
    a('s_cmp_eq_u32 s19, s20'); a('s_cselect_b32 s39, 0.5, 1.0')
    a('s_lshl_b32 s13, s16, 2'); a('s_add_u32 s13, s13, %d' % LG5S); a('v_mov_b32 v9, s13')
    a('s_cmp_ge_u32 s3, 248'); a('s_cselect_b32 s57, 63, 47')
    a.label('fk_spinc')
    a('ds_read_b32 v203, v205'); a('s_waitcnt lgkmcnt(0)'); a('v_cmp_eq_u32 vcc, 0, v203')
    a('s_and_b32 s13, vcc_lo, 0xf00'); a('s_cbranch_scc1 fk_spinc')
    for q in range(16):
        a('ds_read_b128 %s, v206 offset:%d' % (v(F1 + 4 * q, 4), 1024 * q))
        if q == 11: a('s_waitcnt lgkmcnt(8)')
    stamp(a, 2)
    a('s_waitcnt vmcnt(0) lgkmcnt(0)')
    stamp(a, 3)
    for j in range(2):
        for i in range(8):
            a('ds_read_u16_d16_hi %s, v3 offset:%d' % (v(XA + 8 * j + i), 1024 * j + 64 * i))
    a('s_waitcnt lgkmcnt(2)')
    for j in range(2):
        for i in range(8):
            if j == 0 and i == 0: a('ds_read_u16_d16_hi %s, v5 offset:2048' % v(XB))
            else: a('ds_read_u16_d16_hi %s, v4 offset:%d' % (v(XB + 8 * j + i), 2048 + 1024 * (1 - j) + 64 * (7 - i)))
            if j == 1 and i == 4: a('s_waitcnt lgkmcnt(8)')
    def sums(R, t):
        for i in range(4): a('v_pk_add_f32 %s, %s, %s' % (v(t + 2 * i, 2), v(R + 4 * i, 2), v(R + 4 * i + 2, 2)))
        a('v_pk_mul_f32 %s, %s, %s' % (v(t + 8, 2), v(R, 2), v(R, 2)))
        a('v_pk_mul_f32 %s, %s, %s' % (v(t + 10, 2), v(R + 2, 2), v(R + 2, 2)))
        for i in range(2, 8):
            acc = t + 8 + 2 * (i & 1)
            a('v_pk_fma_f32 %s, %s, %s, %s' % (v(acc, 2), v(R + 2 * i, 2), v(R + 2 * i, 2), v(acc, 2)))
        a('v_pk_add_f32 %s, %s, %s' % (v(t, 2), v(t, 2), v(t + 2, 2))); a('v_pk_add_f32 %s, %s, %s' % (v(t + 4, 2), v(t + 4, 2), v(t + 6, 2)))
        a('v_pk_add_f32 %s, %s, %s' % (v(t + 8, 2), v(t + 8, 2), v(t + 10, 2)))
        a('v_pk_add_f32 %s, %s, %s' % (v(t, 2), v(t, 2), v(t + 4, 2)))
        a('v_add_f32 %s, %s, %s' % (v(t + 8), v(t + 8), v(t + 9)))
        a('v_add_f32 %s, %s, %s' % (v(t), v(t), v(t + 1)))
    sums(XA, T)
    a('s_waitcnt lgkmcnt(0)')
    sums(XB, T + 12)
    reduce4(a, T, T + 12, T + 8, T + 20)
    ln_chain(a, T, T + 1, T + 2)
    a('v_mul_f32 %s, %s, %s' % (v(T + 2), fh(1.0 / 16), v(T + 2)))
    a('v_mul_f32 %s, %s, %s' % (v(T + 1), v(T + 1), v(T + 2)))
    a('v_readlane_b32 s4, %s, 16' % v(T + 2)); a('v_readlane_b32 s6, %s, 48' % v(T + 2))
    a('v_readlane_b32 s13, %s, 16' % v(T + 1)); a('v_readlane_b32 s14, %s, 48' % v(T + 1))
    a('v_mov_b32 %s, s13' % v(T + 4)); a('v_add_f32 %s, s14, %s' % (v(T + 4), v(T + 4)))
    for i in range(8):
        a('v_pk_fma_f32 %s, %s, s[6:7], %s op_sel_hi:[1,0,0] neg_lo:[0,0,1] neg_hi:[0,0,1]' % (v(XB + 2 * i, 2), v(XB + 2 * i, 2), v(T + 4, 2)))
    for i in range(8):
        a('v_pk_fma_f32 %s, %s, s[4:5], %s op_sel_hi:[1,0,1]' % (v(XA + 2 * i, 2), v(XA + 2 * i, 2), v(XB + 2 * i, 2)))
    for p in range(8): a('v_cvt_pk_f16_f32 %s, %s, %s' % (v(Q16 + p), v(XA + 2 * p), v(XA + 2 * p + 1)))
    a('v_mfma_f32_32x32x16_f16 %s, %s, %s, 0' % (v(X, 16), v(Q16, 4), v(F1, 4)))
    a('v_mfma_f32_32x32x16_f16 %s, %s, %s, %s' % (v(X, 16), v(Q16 + 4, 4), v(F1 + 4, 4), v(X, 16)))
    W = XA
    for r in range(8): a('v_pk_mul_f32 %s, %s, %s' % (v(W + 2 * r, 2), v(X + 2 * r, 2), v(TC + 2 * r, 2)))
    for r in range(8): a('v_fmac_f32_dpp %s, %s, %s quad_perm:[1,0,3,2] %s' % (v(W + r), v(X + r), v(TS + r), DPPF))
    for p in range(4): a('v_cvt_pk_f16_f32 %s, %s, %s' % (v(Q16 + p), v(W + 2 * p), v(W + 2 * p + 1)))
    a('v_fmac_f32_dpp %s, %s, %s quad_perm:[1,0,3,2] %s' % (v(W + 8), v(X + 8), v(TS + 8), DPPF))
    a('v_fmac_f32_dpp %s, %s, %s quad_perm:[1,0,3,2] %s' % (v(W + 9), v(X + 9), v(TS + 9), DPPF))
    mm = [(D1, C2), (D2, S2), (D3, B3)]
    rest = ['v_fmac_f32_dpp %s, %s, %s quad_perm:[1,0,3,2] %s' % (v(W + r), v(X + r), v(TS + r), DPPF) for r in range(10, 16)]
    rest += ['v_cvt_pk_f16_f32 %s, %s, %s' % (v(Q16 + p), v(W + 2 * p), v(W + 2 * p + 1)) for p in range(4, 8)]
    for n, (Dd, B) in enumerate(mm):
        a('v_mfma_f32_32x32x16_f16 %s, %s, %s, 0' % (v(Dd, 16), v(Q16, 4), v(B, 4)))
        for x in rest[4 * n:4 * n + 4]: a(x)
    for (Dd, B) in mm:
        a('v_mfma_f32_32x32x16_f16 %s, %s, %s, %s' % (v(Dd, 16), v(Q16 + 4, 4), v(B + 4, 4), v(Dd, 16)))
    a('v_cmp_gt_u32 vcc, 16, v15')
    a('v_cmp_gt_u32 s[40:41], 32, v15')
    Z = XA
    P = XB
    def zz(u):
        a('v_pk_add_f32 %s, %s, %s op_sel:[0,1] op_sel_hi:[1,0] neg_hi:[0,1]' % (v(Z + 2 * u, 2), v(D1 + 2 * u, 2), v(D2 + 2 * u, 2)))
    def pp(p):
        A_, B_ = v(Z + 4 * p, 2), v(Z + 4 * p + 2, 2)
        a('v_pk_add_f32 %s, %s, %s op_sel:[0,1] op_sel_hi:[1,0] neg_lo:[0,1]' % (v(P + 4 * p, 2), A_, B_))
        a('v_pk_add_f32 %s, %s, %s op_sel:[0,1] op_sel_hi:[1,0] neg_hi:[1,0]' % (v(P + 4 * p + 2, 2), A_, B_))
        a('v_cvt_pk_f16_f32 %s, %s, %s' % (v(Q16 + 2 * p), v(P + 4 * p), v(P + 4 * p + 1)))
        a('v_cvt_pk_f16_f32 %s, %s, %s' % (v(Q16 + 2 * p + 1), v(P + 4 * p + 2), v(P + 4 * p + 3)))
        a('ds_write_b32 v10, %s offset:%d' % (v(Q16 + 2 * p), 256 * p))
        a('ds_write_b32 v11, %s offset:%d' % (v(Q16 + 2 * p + 1), 256 * p))
    ZR, ZI = Z, Z + 1
    for p in (1, 2, 3):
        zz(2 * p); zz(2 * p + 1); pp(p)
    zz(0); zz(1)
    a('v_mul_f32 v8, s39, %s' % v(D1))
    a('v_mov_b32 v3, %s' % v(D3 + 1))
    a('v_permlane16_swap_b32 v4, v3')
    a('v_cndmask_b32 v5, %s, %s, vcc' % (v(D3 + 1), v(D1)))
    a('v_cndmask_b32 v4, v4, %s, vcc' % v(D2))
    a('v_cndmask_b32 %s, %s, v5, s[40:41]' % (v(ZR), v(ZR)))
    a('v_cndmask_b32 %s, %s, -v4, s[40:41]' % (v(ZI), v(ZI)))
    pp(0)
    a('s_mov_b64 exec, 0x10000')
    a('ds_write_b32 v9, v8')
    a('ds_write_b32 v201, v202')
    a('s_mov_b64 exec, -1')
    a('s_cmp_eq_u32 s16, 4'); a('s_cbranch_scc1 fk_w4')
    stamp(a, 4)
    a.label('fk_spin')
    a('ds_read_b32 v3, v205'); a('s_waitcnt lgkmcnt(0)'); a('v_cmp_eq_u32 vcc, 0, v3')
    a('s_and_b32 s13, vcc_lo, s57'); a('s_cbranch_scc1 fk_spin')
    a.label('fk_staged')
    stamp(a, 12, True)
    for q in range(2):
        a('ds_read2st64_b32 %s, %s offset0:0 offset1:4' % (v(GA + 4 * q, 2), 'v8' if q else 'v6'))
        a('ds_read2st64_b32 %s, %s offset0:8 offset1:12' % (v(GA + 4 * q + 2, 2), 'v8' if q else 'v6'))
        if q == 0: a('v_add_u32 v8, 16, v6')
    a('v_readlane_b32 s43, v3, 7')
    for q in range(2):
        a('s_waitcnt lgkmcnt(%d)' % (2 - 2 * q))
        a(('buffer_store_dwordx4 %s, v194, ' + WSRD + ', s36 offen offset:%d sc1') % (v(GA + 4 * q, 4), 128 * q))
    d0 = piece_sum(a, 3, GA, 0); d1 = piece_sum(a, 4, GA + 4, 0)
    a('s_add_u32 s36, s36, 8192')
    a(d0[0]); a(d1[0])
    a('v_cndmask_b32 v3, v3, v4, s[58:59]'); a('v_add_u32 v196, s43, v3')
    quad_gather(a, 196, 2)
    a('s_mov_b32 exec_lo, 0x03030303'); a('s_mov_b32 exec_hi, 0x03030303')
    a('buffer_store_dwordx4 v[196:199], v193, ' + WSRD + ', s36 offen sc1')
    a('s_mov_b64 exec, -1')
    if not G2:
        a('s_cmp_lg_u32 s16, 0'); a('s_cbranch_scc1 fk_nog5')
        a('v_and_b32 v9, 16, v14'); a('v_add_u32 v9, %d, v9' % LG5S)
        a('ds_read_b128 v[16:19], v9')
        a('s_lshl_b32 s13, s3, 4'); a('s_add_u32 s13, s13, 0x%x' % G5)
        a('s_waitcnt lgkmcnt(0)')
        for i in range(4): a('v_min_u32 %s, -2, %s' % (v(16 + i), v(16 + i)))
        a('s_cmp_eq_u32 s3, 255'); a('s_cselect_b64 exec, 3, 1')
        a('buffer_store_dwordx4 v[16:19], v14, s[24:27], s13 offen sc1')
        a('s_mov_b64 exec, -1')
        a.label('fk_nog5')
    unit_setup(a)
    a('s_mov_b32 s42, 0')
    a('s_waitcnt vmcnt(0)')
    stamp(a, 5)
    a.label('fk_pollw')
    a(('buffer_load_dwordx4 %s, v12, ' + WSRD + ', s37 offen sc1') % v(GA, 4))
    a(('buffer_load_dwordx4 %s, v12, ' + WSRD + ', s38 offen sc1') % v(GA + 4, 4))
    a('buffer_load_dword v5, v192, ' + WSRD + ', s23 offen sc1')
    a('s_waitcnt vmcnt(1)')
    d0 = piece_sum(a, 3, GA, 0); d1 = piece_sum(a, 4, GA + 4, 0)
    a('ds_write_b128 v7, %s' % v(GA, 4))
    a(d0[0]); a(d1[0])
    a('ds_write_b128 v7, %s offset:1024' % v(GA + 4, 4))
    a('v_cndmask_b32 v3, v3, v4, s[58:59]'); a('v_add_u32 v3, s43, v3')
    a('s_waitcnt vmcnt(0)')
    a('v_cmp_ne_u32 vcc, v3, v5')
    poll_tail(a, 42, 'fk_pollw', 'fk_gotw')
    stamp(a, 6)
    a('s_waitcnt lgkmcnt(0)')
    a('s_barrier')
    a('s_setprio 0')
    stamp(a, 7)
    a('s_or_b32 s13, s3, s16'); a('s_cbranch_scc1 fk_nobump')
    a('v_mov_b32 v3, s43'); a('s_mov_b64 exec, 1')
    a('buffer_store_dword v3, v14, s[24:27], 0 offen sc1')
    a('s_mov_b64 exec, -1')
    a.label('fk_nobump')
    a('s_lshl_b32 s13, s16, 10'); a('s_add_u32 s14, s13, 0x%x' % G5); a('s_add_u32 s13, s13, %d' % LG5)
    a('v_add_u32 v7, s13, v14'); a('v_mov_b32 v3, 4096'); a('s_mov_b32 s15, 0x%x' % G5); a('v_mov_b32 v8, %d' % LG5E)
    a('buffer_load_dwordx4 %s, v14, s[24:27], s14 offen sc1' % v(GA, 4))
    a('buffer_load_dword %s, v3, s[24:27], s15 offen sc1' % v(GA + 4))
    a('s_mov_b32 s40, s14'); a('s_mov_b32 s41, s15')
    window(a, UB, KB, 16, 0, PB)
    a('s_mov_b32 s42, 0')
    a('s_cmp_gt_u32 s3, 223'); a('s_cbranch_scc1 fk_pollg')
    a('s_waitcnt vmcnt(%d)' % (min(KB, PB + 1) if UB + 4 * KB <= 96 else 0))
    a('s_branch fk_chkg')
    a.label('fk_pollg')
    a('buffer_load_dwordx4 %s, v14, s[24:27], s40 offen sc1' % v(GA, 4))
    a('buffer_load_dword %s, v3, s[24:27], s41 offen sc1' % v(GA + 4))
    a('s_waitcnt vmcnt(0)')
    a.label('fk_chkg')
    poll_check(a, list(range(GA, GA + 5)), 4, 42, 'fk_pollg', 'fk_gotg', wait=False)
    a('ds_write_b128 v7, %s' % v(GA, 4)); a('ds_write_b32 v8, %s' % v(GA + 4))
    stamp(a, 14, True)
    a('s_branch fk_common')
    a.label('fk_w4')
    a('s_setprio 0')
    a('s_branch fk_Hconst')
    a.label('fk_H')
    A, B1, TC, TS, C2, S2, V, D1, D2, T16, AD, CS = 16, 48, 80, 96, 112, 120, 128, 144, 160, 176, 184, 192
    a('s_barrier')
    if BASE: a('s_waitcnt lgkmcnt(0)'); rebase(a)
    if G2: a('s_cmp_eq_u32 s16, 6'); a('s_cbranch_scc1 fk_h6')
    a('s_cmp_lg_u32 s16, 7'); a('s_cbranch_scc1 fk_Hconst')
    for i in range(4): a('v_mov_b32 %s, -1' % v(4 + i))
    a('v_mov_b32 v3, %d' % LKEY); a('v_mov_b32 v8, 0'); a('ds_write_b32 v3, v8')
    a('v_lshlrev_b32 v3, 12, v15'); a('s_lshl_b32 s13, s3, 4'); a('s_add_u32 s14, s13, 0x%x' % KEYS); a('s_add_u32 s15, s13, 0x%x' % G5)
    a('v_mov_b32 v201, %d' % (LSIG + 20)); a('v_mov_b32 v204, 1')
    a('s_waitcnt lgkmcnt(0)')
    stamp(a, 1)
    a('s_load_dword s56, s[24:25], 0')
    if '--wwarm' in OPT:
        a('s_mul_i32 s36, s3, %d' % OS); a('s_add_u32 s36, s36, 0x%x' % WOFF); a('s_add_u32 s37, s36, 4096'); a('s_add_u32 s40, s36, 8192')
        for i in range(9): a('buffer_store_dwordx4 v[4:7], v14, s[24:27], %s offen offset:%d sc1' % (s((36, 37, 40)[i >> 2]), 1024 * (i & 3)))
    def group2():
        if '--ywarm' in OPT:
            a('s_mul_i32 s36, s3, %d' % OS); a('s_add_u32 s36, s36, 0x%x' % YOFF); a('s_add_u32 s37, s36, 4096'); a('s_add_u32 s40, s36, 8192')
            for i in range(9): a('buffer_store_dwordx4 v[4:7], v14, s[24:27], %s offen offset:%d sc1' % (s((36, 37, 40)[i >> 2]), 1024 * (i & 3)))
        if '--ptouch' in OPT:
            a('v_mul_u32_u24 v252, %d, v15' % (8 * OS)); a('s_mov_b32 s12, 0x%x' % (WOFF + 9216))
            a('buffer_load_dword v253, v252, s[24:27], s12 offen')
        if not YCHK:
            a('s_mul_i32 s38, s3, %d' % OS); a('s_add_u32 s38, s38, 0x%x' % YOFF); a('s_add_u32 s39, s38, 4096')
            for i in range(8): a('buffer_store_dwordx4 v[4:7], v14, s[24:27], %s offen offset:%d sc1' % (s(38 + (i >> 2)), 1024 * (i & 3)))
        a('s_lshl_b32 s12, s3, 12'); a('s_add_u32 s12, s12, 0x%x' % CAND)
        for i in range(4): a('buffer_store_dwordx4 v[4:7], v14, s[24:27], s12 offen offset:%d sc1' % (1024 * i))
        a('s_lshl_b32 s12, s3, 10'); a('s_add_u32 s12, s12, 0x%x' % P2)
        a('s_cmp_gt_u32 s3, 223'); a('s_cselect_b32 s12, 0x%x, s12' % WSB)
        a('buffer_store_dwordx4 v[4:7], v14, s[24:27], s12 offen sc1')
        a('s_lshl_b32 s12, s3, 9'); a('s_add_u32 s12, s12, 0x%x' % P1)
        a('s_cmp_gt_u32 s3, 223'); a('s_cselect_b32 s12, 0x%x, s12' % WSB)
        a('s_mov_b32 exec_hi, 0')
        a('buffer_store_dwordx4 v[4:7], v14, s[24:27], s12 offen sc1')
        a('s_mov_b32 exec_lo, 0xff')
        a('buffer_store_dwordx4 v[4:7], v3, s[24:27], s14 offen sc1')
    if not G2: group2()
    a('s_mov_b32 exec_hi, 0')
    a('s_cmp_eq_u32 s3, 255'); a('s_cselect_b32 exec_lo, 3, 1')
    a('buffer_store_dwordx4 v[4:7], v14, s[24:27], s15 offen sc1')
    a('s_mov_b64 exec, -1')
    for i in range(2):
        a('s_mov_b32 m0, %d' % (LWR + 1024 * i)); a('s_mov_b32 s12, %d' % (1024 * i))
        a('buffer_load_dwordx4 v14, s[32:35], s12 offen lds')
    a('s_waitcnt lgkmcnt(0)')
    a('s_add_u32 s56, s56, 1'); a('v_mov_b32 v202, s56')
    a('ds_write_b32 v201, v202 offset:8')
    a('s_waitcnt vmcnt(0)')
    a('ds_write_b32 v201, v204')
    stamp(a, 2)
    if G2:
        a('s_branch fk_Hconst')
        a.label('fk_h6')
        for i in range(4): a('v_mov_b32 %s, -1' % v(4 + i))
        a('v_lshlrev_b32 v3, 12, v15'); a('s_lshl_b32 s14, s3, 4'); a('s_add_u32 s14, s14, 0x%x' % KEYS)
        a('v_mov_b32 v205, %d' % (LSIG + 20))
        a.label('fk_h6s')
        a('s_sleep 1')
        a('ds_read_b32 v8, v205'); a('s_waitcnt lgkmcnt(0)'); a('v_readfirstlane_b32 s13, v8')
        a('s_cmp_eq_u32 s13, 0'); a('s_cbranch_scc1 fk_h6s')
        group2()
        a('s_mov_b64 exec, -1')
    a.label('fk_Hconst')
    a('s_sub_u32 s20, s16, 4')
    unit_setup(a)
    a('s_and_b32 s12, s20, 1'); a('s_lshl_b32 s12, s12, 6'); a('v_xor_b32 v206, s12, v208'); a('v_xor_b32 v207, 64, v206')
    a('s_mov_b32 s6, 0x700000'); a('s_mov_b32 s7, 0x00020000')
    a('s_cmp_gt_u32 s3, 223'); a('s_cselect_b32 s36, 3, s20')
    a('s_waitcnt lgkmcnt(0)')
    TLB = int(optval('tlb', '0'))
    if TLB:
        a('s_cmp_lg_u32 s16, 5'); a('s_cbranch_scc1 fk_notlb')
        a('v_lshlrev_b32 v252, %d, v15' % TLB)
        for sr in [int(x) for x in optval('tlbl', '48,52,28').split(',')]: a('buffer_load_dword v253, v252, %s, 0 offen' % s(sr, 4))
        a.label('fk_notlb')
    PACE = int(optval('pace', '99')); GAP = int(optval('gap', '8')); FIRST = int(optval('first', '4')); DELAY = int(optval('delay', '0'))
    def gu(n):
        g = ['s_cmp_eq_u32 s36, 3', 's_cbranch_scc1 fk_gu%d' % n, 's_add_u32 s37, s20, %d' % (3 * n),
             's_lshl_b32 s12, s37, 10', 's_mov_b32 m0, s12', 's_cmp_lt_u32 s37, 32', 's_cselect_b64 s[4:5], s[44:45], s[48:49]',
             's_and_b32 s37, s37, 31', 's_mul_i32 s37, s37, %d' % (8 * 7168), 's_add_u32 s37, s37, s100']
        if n >= PACE: g.append('s_waitcnt vmcnt(%d)' % PACE)
        g.append('buffer_load_dwordx4 %s, s[4:7], s37 offen lds' % ('v207' if n & 1 else 'v206'))
        g.append('@fk_gu%d' % n)
        return g
    assert NH <= 21
    groups = [sum([gu(n) for n in range(min(FIRST, NH))], [])] + [gu(n) for n in range(FIRST, NH)]
    a.inject(groups, GAP); a.cnt = GAP - DELAY
    a('v_lshrrev_b32 v4, 1, v1')
    a('v_and_b32 v5, 1, v4'); a('v_lshrrev_b32 v6, 2, v4'); a('v_lshl_add_u32 v5, v6, 1, v5')
    a('v_and_b32 v6, 2, v4'); a('v_lshl_add_u32 v5, v6, 2, v5')
    a('s_and_b32 s13, s20, 1'); a('s_mul_i32 s13, s13, 15'); a('v_xor_b32 v5, s13, v5')
    a('s_lshl_b32 s13, s20, 4'); a('v_add_u32 v5, s13, v5')
    a('v_cvt_f32_u32 v5, v5')
    a('v_and_b32 v9, 1, v1')
    a('v_lshlrev_b32 v7, 2, v2'); a('v_cvt_f32_u32 v7, v7')
    a('v_cvt_f32_u32 v10, v9')
    a('v_mul_f32 v8, %s, v5' % fh(1.0 / 64))
    a('v_mul_f32 v10, %s, v10' % fh(0.25))
    a('v_fma_f32 v10, v8, v7, v10')
    T = V
    for half in range(2):
        ks = [8 * kap + u for kap in range(4 * half, 4 * half + 4) for u in range(4)]
        angles(a, 8, 10, ks, T)
        for i in range(16): a('v_cos_f32 %s, %s' % (v(T + 16 + i), v(T + i)))
        for i in range(16): a('v_sin_f32 %s, %s' % (v(T + 32 + i), v(T + i)))
        for i in range(16): a('v_cvt_pk_f16_f32 %s, %s, %s' % (v(B1 + 16 * half + i), v(T + 16 + i), v(T + 32 + i)))
    if G2:
        pend, a.pending = a.pending, None
        a('s_cmp_lg_u32 s16, 6'); a('s_cbranch_scc1 fk_H7')
        a('v_lshlrev_b32 v205, 2, v15'); a('v_and_b32 v205, 63, v205'); a('v_add_u32 v205, %d, v205' % LSIG)
        a('s_cmp_ge_u32 s3, 248'); a('s_cselect_b32 s43, 31, 15')
        a('v_and_b32 v3, 16, v14'); a('v_add_u32 v3, %d, v3' % LG5S)
        a('s_lshl_b32 s13, s3, 4'); a('s_add_u32 s13, s13, 0x%x' % G5)
        a('s_waitcnt vmcnt(0)')
        a.label('fk_h6t')
        a('ds_read_b32 v4, v205'); a('s_waitcnt lgkmcnt(0)'); a('v_cmp_eq_u32 vcc, 0, v4')
        a('s_and_b32 s12, vcc_lo, s43'); a('s_cbranch_scc1 fk_h6t')
        a('ds_read_b128 v[16:19], v3')
        a('s_waitcnt lgkmcnt(0)')
        for i in range(4): a('v_min_u32 %s, -2, %s' % (v(16 + i), v(16 + i)))
        a('s_cmp_eq_u32 s3, 255'); a('s_cselect_b64 exec, 3, 1')
        a('buffer_store_dwordx4 v[16:19], v14, s[24:27], s13 offen sc1')
        a('s_mov_b64 exec, -1')
        stamp(a, 4)
        a.label('fk_H7')
        a.pending = pend
    a('v_lshlrev_b32 v11, 31, v9')
    a('v_mul_f32 v10, %s, v5' % fh(1.0 / 2048)); a('v_xor_b32 v10, v11, v10'); a('v_mul_f32 v11, v10, v7')
    angles(a, 10, 11, [kr(r) for r in range(16)], T)
    for r in range(16): a('v_cos_f32 %s, %s' % (v(TC + r), v(T + r)))
    for r in range(16): a('v_sin_f32 %s, %s' % (v(TS + r), v(T + r)))
    a('v_sub_u32 v4, 31, v1'); a('v_subrev_u32 v5, 1, v1')
    a('v_cmp_lt_u32 vcc, 16, v1')
    a('v_cndmask_b32 v4, v5, v4, vcc'); a('v_and_b32 v4, 15, v4')
    a('v_lshlrev_b32 v4, 5, v4'); a('v_add_u32 v4, %d, v4' % LA2)
    a('v_lshlrev_b32 v5, 9, v2')
    a('v_add_u32 v6, v4, v5')
    a('v_sub_u32 v7, v4, v5'); a('v_add_u32 v7, %d, v7' % (15 * 512 + 16))
    a('v_cmp_eq_u32 s[38:39], 0, v1')
    a('v_mov_b32 v8, 4096')
    a('v_cndmask_b32 v8, 0, v8, s[38:39]')
    a('v_add_u32 v6, v6, v8'); a('v_add_u32 v7, v7, v8')
    a('v_and_b32 v8, 15, v1'); a('v_cmp_eq_u32 s[38:39], 0, v8')
    a('s_or_b64 s[40:41], s[38:39], vcc')
    for k in range(8):
        a('v_add_u32 %s, %d, v6' % (v(AD + k), 1024 * k)); a('v_subrev_u32 v8, %d, v7' % (1024 * k))
        a('v_cndmask_b32 %s, %s, v8, %s' % (v(AD + k), v(AD + k), 'vcc' if k < 4 else 's[40:41]'))
    def posD(d, x, t):
        a('v_and_b32 %s, 3, %s' % (v(t), v(x))); a('v_lshlrev_b32 %s, 2, %s' % (v(t), v(t))); a('v_lshlrev_b32 %s, 3, %s' % (v(d), v(x))); a('v_sub_u32 %s, %s, %s' % (v(d), v(d), v(t)))
    def posM(d, x, t):
        a('v_and_b32 %s, 3, %s' % (v(t), v(x))); a('v_mul_u32_u24 %s, 12, %s' % (v(t), v(t))); a('v_lshlrev_b32 %s, 3, %s' % (v(d), v(x))); a('v_sub_u32 %s, %s, %s' % (v(d), v(d), v(t))); a('v_add_u32 %s, 28, %s' % (v(d), v(d)))
    a('s_lshr_b32 s13, s20, 1'); a('v_lshl_add_u32 v3, v1, 1, s13')
    a('s_and_b32 s13, s20, 1'); a('s_sub_u32 s14, 64, s13')
    posD(4, 3, 8)
    a('v_sub_u32 v5, 63, v3'); posM(6, 5, 8)
    a('v_sub_u32 v5, s14, v3'); posM(7, 5, 8)
    a('v_cmp_gt_u32 vcc, 32, v3'); a('v_cndmask_b32 v7, v7, v4, vcc')
    a('v_cmp_eq_u32 vcc, 32, v5'); a('v_cndmask_b32 v7, v7, 28, vcc')
    a('s_cmp_eq_u32 s13, 0'); a('s_cselect_b32 s14, 256, 0'); a('s_cselect_b32 s15, 576, 0')
    a('s_cselect_b64 s[38:39], -1, 0')
    a('s_add_u32 s14, s14, %d' % (240 * 32)); a('s_sub_u32 s15, %d, s15' % LWS)
    a('v_cmp_gt_u32 vcc, 32, v3'); a('v_cndmask_b32 v7, v7, v4, vcc')
    a('v_add_u32 v7, s14, v7')
    a('v_cndmask_b32 v4, v6, v4, s[38:39]'); a('v_lshl_add_u32 v4, v2, 12, v4')
    for r in (4, 7): a('v_lshrrev_b32 v8, 7, %s' % v(r)); a('v_lshl_add_u32 %s, v8, 4, %s' % (v(r), v(r)))
    a('v_add_u32 v11, s15, v4'); a('v_add_u32 v7, %d, v7' % LWS)
    a('v_add_u32 v12, %d, v11' % (7 * 576))
    a('v_cmp_eq_u32 vcc, s13, v2')
    a('s_and_b64 s[40:41], vcc, s[38:39]'); a('s_andn2_b64 s[38:39], vcc, s[38:39]')
    a('v_cndmask_b32 v10, v11, v7, s[40:41]'); a('v_cndmask_b32 v12, v12, v7, s[38:39]')
    a('s_lshl_b32 s23, s20, 5'); a('s_add_u32 s23, s23, s18')
    def y5cos():
        a('v_and_b32 v3, 15, v15'); a('v_lshrrev_b32 v4, 4, v15'); a('v_lshl_add_u32 v3, v3, 7, v4'); a('v_add_u32 v3, 1, v3')
        a('v_cmp_le_u32 vcc, 56, v15'); a('v_mov_b32 v4, %d' % (2048 - 1040)); a('v_cndmask_b32 v4, 0, v4, vcc'); a('v_add_u32 v4, v3, v4')
        for r in (3, 4):
            a('v_mul_u32_u24 %s, s23, %s' % (v(r), v(r))); a('v_and_b32 %s, 2047, %s' % (v(r), v(r)))
            a('v_cvt_f32_u32 %s, %s' % (v(r), v(r))); a('v_mul_f32 %s, %s, %s' % (v(r), fh(1.0 / 2048), v(r)))
        a('v_cvt_f32_u32 v5, s23'); a('v_mul_f32 v5, %s, v5' % fh(1.0 / 2048))
        angles(a, 5, 3, [32 * w + 4 * q for q in range(3) for w in range(4)], CS)
        angles(a, 5, 4, [32 * w + 12 for w in range(4)], CS + 12)
        for i in range(16): a('v_cos_f32 %s, %s' % (v(CS + i), v(CS + i)))
    a.inject_flush()
    stamp(a, 5)
    y5cos()
    a('v_add_u32 v9, %d, v14' % LROW)
    a('s_setprio 2')
    stamp(a, 6)
    a('s_barrier')
    stamp(a, 7)
    for k in range(8): a('ds_read_b128 %s, %s' % (v(A + 4 * k, 4), v(AD + k)))
    for q in range(4): a('ds_read_b128 %s, v9 offset:%d' % (v(C2 + 4 * q, 4), 1024 * (12 + q)))
    for k in range(8):
        a('s_waitcnt lgkmcnt(%d)' % (11 - k))
        a('v_mfma_f32_32x32x16_f16 %s, %s, %s, %s' % (v(V, 16), v(A + 4 * k, 4), v(B1 + 4 * k, 4), '0' if k == 0 else v(V, 16)))
    W = A
    for r in range(8): a('v_pk_mul_f32 %s, %s, %s' % (v(W + 2 * r, 2), v(V + 2 * r, 2), v(TC + 2 * r, 2)))
    for r in range(8): a('v_fmac_f32_dpp %s, %s, %s quad_perm:[1,0,3,2] %s' % (v(W + r), v(V + r), v(TS + r), DPPF))
    for p in range(4): a('v_cvt_pk_f16_f32 %s, %s, %s' % (v(T16 + p), v(W + 2 * p), v(W + 2 * p + 1)))
    rest = ['v_fmac_f32_dpp %s, %s, %s quad_perm:[1,0,3,2] %s' % (v(W + r), v(V + r), v(TS + r), DPPF) for r in range(8, 16)]
    rest += ['v_cvt_pk_f16_f32 %s, %s, %s' % (v(T16 + p), v(W + 2 * p), v(W + 2 * p + 1)) for p in range(4, 8)]
    for x in rest[0:2]: a(x)
    a('s_waitcnt lgkmcnt(0)')
    a('v_mfma_f32_32x32x16_f16 %s, %s, %s, 0' % (v(D1, 16), v(T16, 4), v(C2, 4)))
    for x in rest[2:7]: a(x)
    a('v_mfma_f32_32x32x16_f16 %s, %s, %s, 0' % (v(D2, 16), v(T16, 4), v(S2, 4)))
    for x in rest[7:]: a(x)
    for (Dd, B) in ((D1, C2), (D2, S2)):
        a('v_mfma_f32_32x32x16_f16 %s, %s, %s, %s' % (v(Dd, 16), v(T16 + 4, 4), v(B + 4, 4), v(Dd, 16)))
    for u in range(8):
        a('v_pk_add_f32 %s, %s, %s op_sel:[0,1] op_sel_hi:[1,0] neg_hi:[0,1]' % (v(A + 2 * u, 2), v(D1 + 2 * u, 2), v(D2 + 2 * u, 2)))
    for u in range(8):
        a('v_cvt_pk_bf16_f32 %s, %s, %s' % (v(B1 + u), v(A + 2 * u), v(A + 2 * u + 1)))
        if u == 0: a('ds_write_b32 v10, %s' % v(B1))
        elif u == 7: a('ds_write_b32 v12, %s' % v(B1 + 7))
        else: a('ds_write_b32 v11, %s offset:%d' % (v(B1 + u), 576 * u))
    stamp(a, 14, True)
    a.label('fk_common')
    a('v_lshrrev_b32 v5, 3, v15'); a('v_lshlrev_b32 v4, 10, v5'); a('v_and_b32 v6, 7, v15'); a('v_lshl_add_u32 v4, v6, 4, v4')
    a('s_mul_i32 s13, s16, 144'); a('s_add_u32 s13, s13, %d' % LWS)
    a('v_lshl_add_u32 v5, v5, 7, v4'); a('v_add_u32 v5, s13, v5')
    a('s_mul_i32 s17, s3, %d' % OS); a('s_lshl_b32 s13, s16, 7'); a('s_add_u32 s17, s17, s13'); a('s_add_u32 s17, s17, 0x%x' % YOFF)
    a('v_mov_b32 v3, %d' % (LSIG + 28)); a('v_lshrrev_b32 v47, 3, v15'); a('v_lshlrev_b32 v47, 4, v47')
    a('ds_read_b32 v3, v3')
    a('s_waitcnt lgkmcnt(0)'); a('s_barrier')
    stamp(a, 8)
    a('s_setprio 0')
    a('ds_read_b128 v[16:19], v5')
    a('v_readfirstlane_b32 s43, v3')
    XR, WP, YR, H, HN, HP, TMP, OUT = 20, 28, 36, 48, 64, 80, 96, 112
    a('s_sub_u32 s13, 7, s16'); a('s_cmp_lt_u32 s16, 4'); a('s_cselect_b32 s13, s16, s13'); a('s_cselect_b32 s14, 0, 2048')
    a('s_lshl_b32 s21, s13, 5'); a('s_add_u32 s21, s21, s18'); a('s_sub_u32 s22, 2048, s21'); a('s_and_b32 s22, s22, 2047')
    a('s_cmp_lt_u32 s16, 4'); a('s_cselect_b32 s21, s21, s22')
    a('s_lshl_b32 s13, s13, 12'); a('s_add_u32 s13, s13, s14'); a('s_add_u32 s13, s13, %d' % LX)
    a('s_lshl_b32 s14, s3, 3'); a('s_add_u32 s19, s14, s16')
    a('s_cmp_eq_u32 s19, %d' % (248 * 8 + 7)); a('s_cselect_b32 s21, 1024, s21'); a('s_cselect_b32 s13, %d, s13' % LX1024)
    a('s_lshl_b32 s22, s21, 11')
    a('v_add_u32 v6, s13, v14'); a('v_add_u32 v7, %d, v14' % LWR)
    a('s_waitcnt lgkmcnt(0)')
    if not YCHK:
        for i in range(4): a('v_min_u32 %s, -2, %s' % (v(16 + i), v(16 + i)))
    a('buffer_store_dwordx4 v[16:19], v4, s[24:27], s17 offen sc1')
    if YCHK:
        d0 = piece_sum(a, 46, 16, 0)
        a('s_add_u32 s17, s17, 8192')
        a(d0[0]); a('v_add_u32 v40, s43, v46')
        quad_gather(a, 40, 2)
        a('s_mov_b32 exec_lo, 0x01010101'); a('s_mov_b32 exec_hi, 0x01010101')
        a('buffer_store_dwordx4 v[40:43], v47, s[24:27], s17 offen sc1')
        a('s_mov_b64 exec, -1')
    a('ds_read_b128 %s, v6' % v(XR, 4)); a('ds_read_b128 %s, v6 offset:1024' % v(XR + 4, 4))
    a('ds_read_b128 %s, v7' % v(WP, 4)); a('ds_read_b128 %s, v7 offset:1024' % v(WP + 4, 4))
    a('s_cmp_lt_u32 s16, 4'); a('s_cbranch_scc1 fk_noy5')
    window(a, UE, KE, 16, 4, PE)
    G5R = 128
    a('v_add_u32 v3, %d, v14' % LG5); a('v_mov_b32 v4, %d' % LG5E)
    for q in range(4): a('ds_read_b128 %s, v3 offset:%d' % (v(G5R + 4 * q, 4), 1024 * q))
    a('ds_read_b32 v9, v4')
    a('s_lshl_b32 s38, s20, 2'); a('s_sub_u32 s39, 28, s38')
    a('s_waitcnt lgkmcnt(0)')
    a.label('fk_y5')
    for kk in range(2): a('v_pk_mul_f32 %s, %s, %s' % (v(144 + 2 * kk, 2), v(G5R + 2 * kk, 2), v(CS + 2 * kk, 2)))
    for kk in range(2, 8): a('v_pk_fma_f32 %s, %s, %s, %s' % (v(144 + 2 * (kk & 1), 2), v(G5R + 2 * kk, 2), v(CS + 2 * kk, 2), v(144 + 2 * (kk & 1), 2)))
    a('v_pk_add_f32 v[144:145], v[144:145], v[146:147]')
    a('v_add_f32 v144, v144, v145')
    a('s_lshl_b32 s13, s23, 31'); a('v_xor_b32 v12, s13, v9')
    wave_reduce(a, [144])
    a('v_add_f32 v144, v144, v12'); a('v_add_f32 v144, v144, v144'); rbf(a, 144)
    a('s_add_u32 s13, s38, %d' % LY5); a('s_add_u32 s14, s39, %d' % LY5)
    a('v_mov_b32 v10, s13'); a('v_mov_b32 v11, s14')
    a('s_mov_b32 exec_lo, 0'); a('s_mov_b32 exec_hi, 0x80000000')
    a('ds_write_b32 v10, v144'); a('ds_write_b32 v11, v144')
    a('s_mov_b64 exec, -1')
    a('s_cmp_lg_u32 s23, 0'); a('s_cbranch_scc1 fk_noy5')
    a('s_mov_b32 s23, 1024'); a('s_mov_b32 s38, 28')
    y5cos()
    a('s_branch fk_y5')
    a.label('fk_noy5')
    a('v_lshrrev_b32 v1, 1, v0'); a('v_and_b32 v45, 1, v0')
    a('v_lshrrev_b32 v2, 4, v1'); a('v_and_b32 v3, 15, v1')
    a('v_cmp_gt_u32 vcc, 8, v3')
    a('v_sub_u32 v6, 16, v3'); a('v_and_b32 v6, 7, v6'); a('v_sub_u32 v5, 31, v2')
    a('v_cndmask_b32 v6, v6, v3, vcc'); a('v_cndmask_b32 v5, v5, v2, vcc')
    a('v_lshl_add_u32 v4, v6, 5, v5'); a('v_mul_u32_u24 v47, %d, v4' % OS); a('v_lshl_add_u32 v4, v45, 4, v47')
    chkpos(a, 23); a('s_add_u32 s23, s23, 0x%x' % YOFF)
    a('s_lshl_b32 s17, s3, 5'); a('s_add_u32 s17, s17, 0x%x' % YOFF)
    a('v_cndmask_b32 v6, -1, 1, vcc')
    a('v_cmp_eq_u32 vcc, 8, v3')
    a('v_mul_u32_u24 v46, %d, v45' % (4 * RS)); a('v_add_u32 v46, %d, v46' % LROW)
    a('v_cndmask_b32 v6, v6, 15, vcc')
    a('v_lshlrev_b32 v9, 2, v1'); a('v_lshl_add_u32 v10, v6, 1, v9')
    a('v_add_u32 v9, v46, v9'); a('v_add_u32 v10, v46, v10')
    a('s_mul_i32 s36, s16, %d' % RS); a('s_add_u32 s36, s36, %d' % LROW); a('v_add_u32 v5, s36, v14')
    a('s_sub_u32 s36, 7, s16'); a('s_cmp_eq_u32 s21, 0'); a('s_cselect_b32 s36, 0, s36'); a('s_cmp_eq_u32 s21, 1024'); a('s_cselect_b32 s36, 7, s36')
    a('s_mul_i32 s36, s36, %d' % RS); a('s_add_u32 s36, s36, %d' % (LROW + 1008)); a('v_sub_u32 v11, s36, v14')
    a('v_mov_b32 v8, 0x10000')
    a('s_lshl_b32 s36, s16, 2'); a('s_add_u32 s36, s36, %d' % LY5); a('v_mov_b32 v6, s36')
    a('s_mov_b32 s36, 0xffff0000'); a('s_mov_b32 s37, 0x3f803f80'); a('s_mov_b32 s38, 8.0')
    a('s_waitcnt lgkmcnt(0)')
    for k in range(8):
        a('v_lshlrev_b32 %s, 16, %s' % (v(H + 2 * k), v(XR + k))); a('v_and_b32 %s, s36, %s' % (v(H + 2 * k + 1), v(XR + k)))
    a('v_mov_b32 v44, 0')
    for k in range(8): a('v_dot2c_f32_bf16 v44, s37, %s' % v(WP + k))
    wave_reduce(a, [44])
    a('v_readlane_b32 s39, v44, 63')
    a('s_mov_b32 s42, 0')
    a('s_waitcnt vmcnt(0)')
    stamp(a, 9)
    def scatter():
        for u in range(4):
            a('ds_write_b16 v9, %s offset:%d' % (v(YR + u), u * RS))
            a('ds_write_b16_d16_hi v10, %s offset:%d' % (v(YR + u), u * RS))
    a.label('fk_polly')
    a('buffer_load_dwordx4 %s, v4, s[24:27], s17 offen sc1' % v(YR, 4))
    if YCHK:
        a('buffer_load_dword v45, v47, s[24:27], s23 offen sc1')
        a('s_waitcnt vmcnt(1)')
        d0 = piece_sum(a, 46, YR, 0)
        scatter()
        a(d0[0]); a('v_add_u32 v46, s43, v46')
        a('s_waitcnt vmcnt(0)')
        a('v_cmp_ne_u32 vcc, v46, v45')
        poll_tail(a, 42, 'fk_polly', 'fk_goty')
    else:
        poll_check(a, list(range(YR, YR + 4)), 46, 42, 'fk_polly', 'fk_goty')
        scatter()
    stamp(a, 10)
    window(a, UC, KC, 16, 0, PC)
    a('v_mov_b32 v2, 0'); a('v_mov_b32 v3, 0'); a('v_mov_b32 v4, 0'); a('v_mov_b32 v7, 0')
    a('v_mov_b32 v12, %d' % LKEY)
    a('s_waitcnt lgkmcnt(0)')
    a('s_barrier')
    stamp(a, 11)
    a('ds_read_b128 %s, v5' % v(YR, 4)); a('ds_read_b128 %s, v11' % v(YR + 4, 4)); a('ds_read_b32 v44, v6')
    a('s_waitcnt lgkmcnt(2)')
    for k in range(4):
        a('v_lshlrev_b32 %s, 16, %s' % (v(HN + 2 * k), v(YR + k))); a('v_and_b32 %s, s36, %s' % (v(HN + 2 * k + 1), v(YR + k)))
    a('s_waitcnt lgkmcnt(0)')
    stamp(a, 15, True)
    a('v_readfirstlane_b32 s13, v44')
    a('v_mul_u32_u24_dpp %s, %s, v8 wave_shr:1 row_mask:0xf bank_mask:0xf' % (v(HN + 8), v(YR + 4)))
    for j in (3, 2, 1, 0):
        a('v_and_b32 %s, s36, %s' % (v(HN + 15 - 2 * j), v(YR + 4 + j)))
        if j: a('v_lshlrev_b32 %s, 16, %s' % (v(HN + 16 - 2 * j), v(YR + 4 + j)))
    a('v_writelane_b32 %s, s13, 0' % v(HN + 8))
    for k in [0, 1, 2, 3, 5, 6, 7, 4]:
        a('v_pk_fma_f32 %s, %s, s[38:39], %s op_sel_hi:[1,0,1]' % (v(H + 2 * k, 2), v(HN + 2 * k, 2), v(H + 2 * k, 2)))
    for k in [0, 1, 2, 3, 5, 6, 7, 4]: a('v_cvt_pk_bf16_f32 %s, %s, %s' % (v(HP + k), v(H + 2 * k), v(H + 2 * k + 1)))
    for k in [0, 1, 2, 3, 5, 6, 7, 4]:
        a('v_dot2c_f32_bf16 v2, s37, %s' % v(HP + k)); a('v_dot2c_f32_bf16 v3, %s, %s' % (v(HP + k), v(HP + k)))
        a('v_dot2c_f32_bf16 v4, %s, %s' % (v(HP + k), v(WP + k)))
    reduce4(a, 2, 4, 3, 7)
    a('v_readlane_b32 s13, v2, 32')
    ln_chain(a, 2, 8, 9)
    a('v_mov_b32 v10, s13'); a('v_fma_f32 v10, -v8, s39, v10'); a('v_mul_f32 v10, v10, v9'); a('v_mul_f32 v8, v8, v9')
    a('v_readlane_b32 s43, v10, 16'); a('v_readlane_b32 s4, v9, 16'); a('v_readlane_b32 s6, v8, 16')
    a('s_ashr_i32 s13, s43, 31'); a('s_or_b32 s13, s13, 0x80000000'); a('s_xor_b32 s43, s43, s13')
    a('s_and_b32 s43, s43, 0xfffff800'); a('s_or_b32 s43, s43, s19'); a('s_min_u32 s43, s43, -2')
    a('v_mov_b32 v2, s43')
    a('s_mov_b64 exec, 1')
    a('ds_max_u32 v12, v2')
    a('s_mov_b64 exec, -1')
    stamp(a, 16, True)
    a('v_mov_b32 v10, s6'); a('v_add_f32 v8, 1.0, v9')
    a('v_lshlrev_b32 v4, 12, v15'); a('s_lshl_b32 s17, s3, 4'); a('s_add_u32 s17, s17, 0x%x' % KEYS)
    a('v_readlane_b32 s14, v8, 16')
    a('s_waitcnt lgkmcnt(0)')
    a('s_barrier')
    a('ds_read_b32 v3, v12')
    for k in range(8):
        a('v_lshlrev_b32 %s, 16, %s' % (v(H + 2 * k), v(HP + k))); a('v_and_b32 %s, s36, %s' % (v(H + 2 * k + 1), v(HP + k)))
    a('s_waitcnt lgkmcnt(0)')
    a('v_readfirstlane_b32 s13, v3')
    stamp(a, 12)
    stamp(a, 17, True)
    def out_regs():
        for k in range(8):
            a('v_pk_fma_f32 %s, %s, s[14:15], v[10:11] op_sel_hi:[1,0,0] neg_lo:[0,0,1] neg_hi:[0,0,1]' % (v(HN + 2 * k, 2), v(H + 2 * k, 2)))
        for k in range(8): a('v_cvt_pk_bf16_f32 %s, %s, %s' % (v(OUT + k), v(HN + 2 * k), v(HN + 2 * k + 1)))
    def out_store():
        a('buffer_store_dwordx4 %s, v14, s[28:31], s22 offen%s' % (v(OUT, 4), OUTF))
        a('buffer_store_dwordx4 %s, v14, s[28:31], s22 offen offset:1024%s' % (v(OUT + 4, 4), OUTF))
    AH, BF, BD, ACC, KEY, PP, D2R = 16, 128, 160, 176, 180, 184, 192
    def frag_preload():
        a('v_lshrrev_b32 v1, 4, v15'); a('v_bfe_u32 v2, v15, 2, 2')
        a('v_lshl_add_u32 v8, v1, 3, v2'); a('v_lshlrev_b32 v8, 7, v8')
        a('v_and_b32 v3, 2, v2'); a('v_xor_b32 v9, s16, v3'); a('v_and_b32 v3, 1, v1'); a('v_lshlrev_b32 v4, 2, v3'); a('v_xor_b32 v9, v4, v9')
        a('v_lshl_add_u32 v8, v9, 4, v8'); a('v_and_b32 v9, 1, v15'); a('v_lshl_add_u32 v8, v9, 3, v8')
        a('v_bfe_u32 v9, v15, 1, 1'); a('v_lshl_add_u32 v8, v9, 15, v8')
        a('v_lshrrev_b32 v7, 1, v1'); a('v_lshl_add_u32 v7, v7, 3, v2'); a('v_lshlrev_b32 v7, 9, v7'); a('v_lshl_add_u32 v7, v3, 5, v7')
        a('v_and_b32 v3, 3, v15'); a('v_lshl_add_u32 v7, v3, 3, v7'); a('s_lshl_b32 s15, s16, 6'); a('s_add_u32 s15, s15, %d' % LD); a('v_add_u32 v7, s15, v7')
        a('v_lshlrev_b32 v9, 4, v1'); a('v_add_u32 v9, %d, v9' % LHN)
    def landed_add():
        if LATE:
            a('v_mov_b32 v1, %d' % (LSIG + 48)); a('v_mov_b32 v2, 1'); a('s_mov_b64 exec, 1'); a('ds_add_u32 v1, v2'); a('s_mov_b64 exec, -1')
    def frag_reads(tag):
        if LATE:
            a.label('fk_land' + tag)
            a('ds_read_b32 v2, v1'); a('s_waitcnt lgkmcnt(0)'); a('v_readfirstlane_b32 s15, v2')
            a('s_cmp_lt_u32 s15, 8'); a('s_cbranch_scc1 fk_land' + tag)
        for k in range(8):
            a('ds_read_b64_tr_b16 %s, v8 offset:%d' % (v(BF + 4 * k, 2), 4096 * k))
            a('ds_read_b64_tr_b16 %s, v8 offset:%d' % (v(BF + 4 * k + 2, 2), 4096 * k + 512))
            if k == 5: a('s_waitcnt lgkmcnt(4)')
    a('s_cmp_lg_u32 s13, s43'); a('s_cbranch_scc1 fk_other')
    a('s_mov_b64 exec, 0xff')
    a('buffer_store_dword v2, v4, s[24:27], s17 offen sc1')
    a('s_mov_b64 exec, -1')
    for k in range(8):
        a('v_pk_fma_f32 %s, %s, s[4:5], v[10:11] op_sel_hi:[1,0,0] neg_lo:[0,0,1] neg_hi:[0,0,1]' % (v(HN + 2 * k, 2), v(H + 2 * k, 2)))
    for k in range(8): a('v_cvt_pk_bf16_f32 %s, %s, %s' % (v(TMP + k), v(HN + 2 * k), v(HN + 2 * k + 1)))
    for k in range(8): a('v_min_u32 %s, -2, %s' % (v(TMP + k), v(TMP + k)))
    a('s_lshl_b32 s13, s3, 12'); a('s_add_u32 s13, s13, 0x%x' % CAND)
    a('buffer_store_dwordx4 %s, v14, s[24:27], s13 offen sc1' % v(TMP, 4))
    a('buffer_store_dwordx4 %s, v14, s[24:27], s13 offen offset:1024 sc1' % v(TMP + 4, 4))
    for k in range(8): a('v_min_u32 %s, -2, %s' % (v(HP + k), v(HP + k)))
    a('buffer_store_dwordx4 %s, v14, s[24:27], s13 offen offset:2048 sc1' % v(HP, 4))
    a('buffer_store_dwordx4 %s, v14, s[24:27], s13 offen offset:3072 sc1' % v(HP + 4, 4))
    out_regs()
    frag_preload()
    if not LATE: frag_reads('a')
    a('s_and_b32 s13, s2, 7'); a('s_lshl_b32 s13, s13, 12'); a('s_add_u32 s13, s13, 0x%x' % KEYS)
    a('s_mov_b32 s42, 0')
    a('s_waitcnt vmcnt(4)')
    landed_add()
    a.label('fk_pollk')
    for i in range(4): a('buffer_load_dword %s, v14, s[24:27], s13 offen offset:%d sc1' % (v(KEY + i), 1024 * i))
    poll_check(a, list(range(KEY, KEY + 4)), 3, 42, 'fk_pollk', 'fk_gotk')
    stamp(a, 13)
    wave_reduce(a, [3], op='v_max_u32')
    a('v_readlane_b32 s40, v3, 63')
    a('v_mov_b32 v4, %d' % LWIN)
    a('s_bfe_u32 s13, s40, 0x80003'); a('s_lshl_b32 s13, s13, 12'); a('s_and_b32 s14, s3, 3'); a('s_lshl_b32 s14, s14, 9')
    a('s_add_u32 s13, s13, s14'); a('s_add_u32 s13, s13, 0x%x' % CAND)
    a('v_lshlrev_b32 v5, 3, v15'); a('v_mov_b32 v3, s40')
    a('s_cmp_gt_u32 s3, 223'); a('s_cbranch_scc1 fk_norow')
    a('s_mov_b32 s42, 0')
    if LATE:
        a('buffer_load_dwordx2 %s, v5, s[24:27], s13 offen sc1' % v(KEY, 2))
        frag_reads('a')
        a('s_branch fk_chkr')
    a.label('fk_pollr')
    a('buffer_load_dwordx2 %s, v5, s[24:27], s13 offen sc1' % v(KEY, 2))
    a.label('fk_chkr')
    poll_check(a, [KEY, KEY + 1], 6, 42, 'fk_pollr', 'fk_gotr')
    a('v_add_u32 v5, %d, v5' % LHN)
    a('ds_write_b64 v5, %s' % v(KEY, 2))
    a.label('fk_norow')
    a('ds_write_b32 v4, v3')
    a('s_waitcnt lgkmcnt(0)')
    a('s_barrier')
    a('s_cmp_eq_u32 s40, s43')
    if OUTAT == 'early':
        a('s_cbranch_scc1 fk_ffn')
        out_store()
    else: a('s_cselect_b32 s22, 0x400000, s22')
    a('s_branch fk_ffn')
    a.label('fk_other')
    out_regs()
    if OUTAT == 'early': out_store()
    a('s_and_b32 s13, s13, 7'); a('s_cmp_gt_u32 s16, s13'); a('s_cselect_b32 s13, 1, 0'); a('s_sub_u32 s17, s16, s13')
    if UD >= 64:
        if LATE: a('s_waitcnt vmcnt(0)')
        frag_preload()
        landed_add()
        window(a, UD, KD, 17, 0, PD)
        frag_reads('b')
        a('s_waitcnt lgkmcnt(0)' if DLATE else 's_waitcnt vmcnt(0) lgkmcnt(0)')
    else:
        window(a, UD, KD, 17, 0, PD)
        frag_preload()
        a('s_waitcnt vmcnt(0)')
        landed_add()
        frag_reads('b')
        a('s_waitcnt lgkmcnt(0)')
    a('s_barrier')
    a.label('fk_ffn')
    stamp(a, 14)
    if OUTAT == 'bf': out_store()
    a('s_cmp_gt_u32 s3, 223'); a('s_cbranch_scc1 %s' % ('fk_lateout' if OUTAT in ('p1', 'end') else 'fk_fin'))
    for k in range(8): a('ds_read_b128 %s, v9 offset:%d' % (v(AH + 4 * k, 4), 64 * k))
    a('v_mov_b32 v3, %d' % LWIN); a('ds_read_b32 v12, v3')
    a('v_lshlrev_b32 v4, 3, v15')
    a('s_lshl_b32 s13, s3, 9'); a('s_lshl_b32 s14, s16, 6'); a('s_add_u32 s13, s13, s14'); a('s_add_u32 s13, s13, 0x%x' % P1)
    for k in range(8):
        a('s_waitcnt lgkmcnt(%d)' % (8 - k))
        a('v_mfma_f32_16x16x32_bf16 %s, %s, %s, %s' % (v(ACC, 4), v(AH + 4 * k, 4), v(BF + 4 * k, 4), '0' if k == 0 else v(ACC, 4)))
    a('v_lshlrev_b32 v5, 3, v15'); a('v_lshlrev_b32 v6, 2, v15')
    a('v_lshrrev_b32 v9, 5, v15'); a('v_lshlrev_b32 v9, 4, v9'); a('v_add_u32 v9, %d, v9' % LACT)
    a('s_lshl_b32 s41, s3, 10'); a('s_lshl_b32 s14, s16, 7'); a('s_add_u32 s41, s41, s14'); a('s_add_u32 s41, s41, 0x%x' % P2)
    a('v_min_u32 %s, -2, %s' % (v(ACC), v(ACC)))
    a('v_mov_b32_dpp %s, %s row_shl:8 %s' % (v(ACC + 1), v(ACC), DPPF))
    a('v_mov_b32_dpp %s, %s row_shl:1 %s' % (v(ACC + 2), v(ACC), DPPF))
    a('v_mov_b32_dpp %s, %s row_shl:9 %s' % (v(ACC + 3), v(ACC), DPPF))
    a('s_mov_b64 exec, 0x55')
    a('buffer_store_dwordx4 %s, v4, s[24:27], s13 offen sc1' % v(ACC, 4))
    a('s_mov_b64 exec, -1')
    if OUTAT == 'p1': out_store()
    def bd_reads(tag, add=True):
        if DLATE:
            if add:
                a('s_waitcnt vmcnt(0)')
                a('s_mov_b64 exec, 1'); a('ds_add_u32 v1, v8'); a('s_mov_b64 exec, -1')
            a.label('fk_dl' + tag)
            a('ds_read_b32 v13, v1'); a('s_waitcnt lgkmcnt(0)'); a('v_readfirstlane_b32 s15, v13')
            a('s_cmp_lt_u32 s15, 8'); a('s_cbranch_scc1 fk_dl' + tag)
        for kk in range(4):
            a('ds_read_b64_tr_b16 %s, v7 offset:%d' % (v(BD + 4 * kk, 2), 8192 * kk))
            a('ds_read_b64_tr_b16 %s, v7 offset:%d' % (v(BD + 4 * kk + 2, 2), 8192 * kk + 2048))
    a('v_mov_b32 v1, %d' % (LSIG + 52)); a('v_mov_b32 v8, 1')
    if not DLATE: bd_reads('')
    a('s_cmp_eq_u32 s16, 7'); a('s_cbranch_scc1 fk_c1')
    a('s_cmp_lg_u32 s16, 0'); a('s_cbranch_scc1 %s' % ('fk_bd' if DLATE else 'fk_wait1'))
    a('s_lshr_b32 s13, s3, 2'); a('s_lshl_b32 s13, s13, 11'); a('s_add_u32 s13, s13, 0x%x' % P1)
    a('s_mov_b32 s42, 0')
    a('v_lshrrev_b32 v10, 2, v5'); a('v_add_u32 v10, %d, v10' % LACT)
    a('s_waitcnt vmcnt(%d)' % (2 if OUTAT == 'p1' else 0))
    if DLATE: a('s_mov_b64 exec, 1'); a('ds_add_u32 v1, v8'); a('s_mov_b64 exec, -1')
    a.label('fk_poll1')
    for i in range(4): a('buffer_load_dwordx2 %s, v5, s[24:27], s13 offen offset:%d sc1' % (v(PP + 2 * i, 2), 512 * i))
    poll_check(a, list(range(PP, PP + 8)), 11, 42, 'fk_poll1', 'fk_got1')
    stamp(a, 15)
    a('v_pk_add_f32 %s, %s, %s' % (v(PP, 2), v(PP, 2), v(PP + 2, 2))); a('v_pk_add_f32 %s, %s, %s' % (v(PP + 4, 2), v(PP + 4, 2), v(PP + 6, 2)))
    a('v_pk_add_f32 %s, %s, %s' % (v(PP, 2), v(PP, 2), v(PP + 4, 2)))
    rbf(a, PP); rbf(a, PP + 1)
    a('v_mul_f32 %s, %s, %s' % (v(PP + 2), fh(-1.4426950408889634), v(PP)))
    a('v_exp_f32 %s, %s' % (v(PP + 2), v(PP + 2)))
    a('v_add_f32 %s, 1.0, %s' % (v(PP + 2), v(PP + 2)))
    a('v_rcp_f32 %s, %s' % (v(PP + 2), v(PP + 2)))
    a('v_mul_f32 %s, %s, %s' % (v(PP), v(PP), v(PP + 2)))
    rbf(a, PP)
    a('v_mul_f32 %s, %s, %s' % (v(PP), v(PP), v(PP + 1)))
    rbf(a, PP)
    a('ds_write_b16_d16_hi v10, %s' % v(PP))
    if DLATE: bd_reads('a', False)
    a('s_branch fk_wait1')
    a.label('fk_c1')
    a('s_cmp_gt_u32 s3, 127'); a('s_cbranch_scc1 %s' % ('fk_bd' if DLATE else 'fk_wait1'))
    a('s_waitcnt lgkmcnt(0)')
    a('v_readfirstlane_b32 s40, v12')
    a('v_lshrrev_b32 v10, 4, v15'); a('v_and_b32 v11, 1, v15'); a('v_lshl_add_u32 v12, v11, 2, v10'); a('v_lshlrev_b32 v12, 1, v12')
    a('v_and_b32 v11, 12, v12'); a('v_and_b32 v10, 1, v10')
    a('s_bfe_u32 s13, s40, 0x80003'); a('s_lshl_b32 s14, s13, 12'); a('s_lshl_b32 s15, s3, 4'); a('s_add_u32 s14, s14, s15'); a('s_add_u32 s14, s14, 0x%x' % CAND)
    a('s_mov_b32 s42, 0')
    a.label('fk_pollh')
    a('buffer_load_dword v2, v11, s[24:27], s14 offen sc1')
    a('buffer_load_dword v3, v11, s[24:27], s14 offen offset:2048 sc1')
    poll_check(a, [2, 3], 4, 42, 'fk_pollh', 'fk_goth')
    a('v_cmp_eq_u32 vcc, 1, v10')
    for r in (2, 3):
        a('v_lshlrev_b32 v4, 16, %s' % v(r)); a('v_and_b32 %s, s36, %s' % (v(r), v(r))); a('v_cndmask_b32 %s, v4, %s, vcc' % (v(r), v(r)))
    a('s_lshr_b32 s14, s13, 4'); a('s_add_u32 s14, s14, 1'); a('s_cmp_ge_u32 s13, 248'); a('s_cselect_b32 s14, 0, s14')
    a('s_cmp_ge_u32 s13, 240'); a('s_cselect_b32 s15, 7, 15'); a('s_and_b32 s15, s15, s13'); a('s_lshl_b32 s15, s15, 7'); a('s_add_u32 s14, s14, s15')
    a('s_and_b32 s13, s40, 7'); a('s_sub_u32 s15, 7, s13'); a('s_min_u32 s15, s15, s13'); a('s_lshl_b32 s15, s15, 5'); a('s_add_u32 s14, s14, s15')
    a('s_sub_u32 s15, 2048, s14'); a('s_and_b32 s15, s15, 2047'); a('s_cmp_lt_u32 s13, 4'); a('s_cselect_b32 s14, s14, s15')
    a('s_and_b32 s13, s40, 0x7ff'); a('s_cmp_eq_u32 s13, %d' % (248 * 8 + 7)); a('s_cselect_b32 s14, 1024, s14')
    a('s_lshl_b32 s21, s14, 11'); a('s_lshl_b32 s15, s3, 4'); a('s_add_u32 s21, s21, s15')
    a('s_ashr_i32 s13, s40, 31'); a('s_not_b32 s13, s13'); a('s_or_b32 s13, s13, 0x80000000'); a('s_xor_b32 s13, s40, s13'); a('s_and_b32 s13, s13, 0xfffff800')
    a('v_mov_b32 v11, s13'); rbf(a, 11)
    a('v_mul_f32 v11, %s, v11' % fh(-1.4426950408889634))
    a('v_exp_f32 v11, v11'); a('v_add_f32 v11, 1.0, v11'); a('v_rcp_f32 v11, v11'); rbf(a, 11)
    a('v_lshrrev_b32 v4, 1, v15'); a('v_lshlrev_b32 v4, 12, v4'); a('v_and_b32 v5, 1, v15'); a('v_lshl_add_u32 v4, v5, 4, v4')
    a('v_add_u32 v5, %d, v4' % (32 * 4096)); a('v_cmp_gt_u32 vcc, 48, v15'); a('v_cndmask_b32 v5, -16, v5, vcc')
    a('s_lshl_b32 s40, s3, 5'); a('s_add_u32 s40, s40, 0x%x' % P2)
    if DLATE:
        a.label('fk_bd')
        bd_reads('b')
    a.label('fk_wait1')
    a('s_waitcnt lgkmcnt(0)'); a('s_barrier')
    stamp(a, 16)
    for kk in range(4): a('ds_read_b128 %s, v9 offset:%d' % (v(AH + 4 * kk, 4), 32 * kk))
    for kk in range(4):
        a('s_waitcnt lgkmcnt(%d)' % (3 - kk))
        a('v_mfma_f32_32x32x16_bf16 %s, %s, %s, %s' % (v(D2R, 16), v(AH + 4 * kk, 4), v(BD + 4 * kk, 4), '0' if kk == 0 else v(D2R, 16)))
    a('v_min_u32 %s, -2, %s' % (v(D2R), v(D2R)))
    quad_gather(a, D2R, 1)
    a('s_mov_b32 exec_lo, 0x11111111'); a('s_mov_b32 exec_hi, 0')
    a('buffer_store_dwordx4 %s, v6, s[24:27], s41 offen sc1' % v(D2R, 4))
    a('s_mov_b64 exec, -1')
    if OUTAT == 'end': out_store()
    stamp(a, 17)
    a('s_cmp_lg_u32 s16, 7'); a('s_cbranch_scc1 fk_fin')
    a('s_cmp_gt_u32 s3, 127'); a('s_cbranch_scc1 fk_fin')
    PQ = 16
    a('s_mov_b32 s42, 0')
    a('s_waitcnt vmcnt(%d)' % (2 if OUTAT == 'end' else 0))
    a.label('fk_poll2')
    a('buffer_load_dwordx4 %s, v4, s[24:27], s40 offen sc1' % v(PQ, 4))
    a('buffer_load_dwordx4 %s, v5, s[24:27], s40 offen sc1' % v(PQ + 4, 4))
    poll_check(a, list(range(PQ, PQ + 8)), 6, 42, 'fk_poll2', 'fk_got2')
    stamp(a, 18)
    for h in range(2): a('v_pk_add_f32 %s, %s, %s' % (v(PQ + 2 * h, 2), v(PQ + 2 * h, 2), v(PQ + 4 + 2 * h, 2)))
    for i in range(2): a('v_permlane32_swap_b32 %s, %s' % (v(PQ + i), v(PQ + 2 + i)))
    for i in range(2): a('v_add_f32 %s, %s, %s' % (v(PQ + i), v(PQ + i), v(PQ + 2 + i)))
    a('v_permlane16_swap_b32 %s, %s' % (v(PQ), v(PQ + 1)))
    a('v_add_f32 %s, %s, %s' % (v(PQ), v(PQ), v(PQ + 1)))
    a('v_add_f32_dpp %s, %s, %s quad_perm:[2,3,0,1] %s' % (v(PQ), v(PQ), v(PQ), DPPF))
    a('v_add_f32_dpp %s, %s, %s row_ror:4 %s' % (v(PQ), v(PQ), v(PQ), DPPF))
    a('v_add_f32_dpp %s, %s, %s row_ror:8 %s' % (v(PQ), v(PQ), v(PQ), DPPF))
    rbf(a, PQ); a('v_mul_f32 %s, %s, v11' % (v(PQ), v(PQ))); rbf(a, PQ)
    a('v_add_f32 %s, %s, v2' % (v(PQ), v(PQ))); rbf(a, PQ)
    a('v_add_f32 %s, %s, v3' % (v(PQ), v(PQ))); rbf(a, PQ)
    a('s_mov_b32 exec_lo, 0x00030003'); a('s_mov_b32 exec_hi, 0x00030003')
    a('buffer_store_short_d16_hi %s, v12, s[28:31], s21 offen' % v(PQ))
    if OUTAT in ('p1', 'end'):
        a('s_branch fk_fin')
        a.label('fk_lateout')
        out_store()
    a.label('fk_fin')
    stamp_dump(a, 'x')
    a.label('fk_end')
    a('s_endpgm')

def main(path):
    a = Asm()
    ref = open('%s/%s.s.ref' % (optval('ref', '/code'), NAME)).read().splitlines()
    for l in ref:
        if l.startswith('; Override'): break
        a.raw(l)
    if LIST: a.raw('; @launch kernel=%s grid=(256,1,1) block=(512,1,1) lds=%d' % (KN, LDSB))
    else: a.raw('; @launch grid=(256,1,1) block=(512,1,1) lds=%d' % LDSB)
    a.raw('.amdgcn_target "amdgcn-amd-amdhsa--gfx950"'); a.raw('.text')
    gen(a)
    a.raw('.section .rodata,"a"')
    a.raw('\n'.join(['.p2align 6', '.amdhsa_kernel %s' % KN, '  .amdhsa_next_free_vgpr 256',
        '  .amdhsa_next_free_sgpr 102', '  .amdhsa_accum_offset 256', '  .amdhsa_group_segment_fixed_size 0',
        '  .amdhsa_kernarg_size 104', '  .amdhsa_user_sgpr_count 2', '  .amdhsa_user_sgpr_kernarg_segment_ptr 1',
        '  .amdhsa_system_sgpr_workgroup_id_x 1', '.end_amdhsa_kernel', '']))
    open(path, 'w').write(a.text())
    print('wrote', path, 'lines', len(a.lines), 'nops', a.nops, 'lds', LDSB)

if __name__ == '__main__':
    ps = [x for x in sys.argv[1:] if x.endswith('.s')]
    main(ps[0] if ps else '/code/%s.s' % NAME)
```

```python
import struct, sys
from asmlib import Asm

NAME = 'sequential_preLN__spectral_fnet__moe_arch_mod__prompt'
def fh(x): return '0x%08x' % struct.unpack('<I', struct.pack('<f', x))[0]
OPT = set(a for a in sys.argv[1:] if a.startswith('--'))
def optval(name, default):
    for o in OPT:
        if o.startswith('--%s=' % name): return o[len(name) + 3:]
    return default
STAMPS = '--stamps' in OPT
LIST = '--list' in OPT or STAMPS
OUTF = {'plain': '', 'nt': ' nt', 'sc1': ' sc1'}[optval('out', 'nt')]
OUTAT = optval('outat', 'bf')
KN = 'fk_kernel' if LIST else NAME + '_kernel'

KEYS = 0x9000; G5 = 0x11000; P1 = 0x13000; P2 = 0x30000; CAND = 0x80000
OS = 9344
WOFF = 0x200000; YOFF = 0x448000; WSB = 0x690000
LG, LD, LX = 0, 65536, 98304
LX1024 = LX + 5 * 4096
LWS = LX1024 + 2048
LA2 = LWS + 9472
RS = 2064
LROW = LA2 + 8192
LWR = LROW + 8 * RS
LG5 = LX + 4 * 4096
LMISC = LWR + 2048
LG5S, LY5, LKEY, LWIN, LG5E, LACT, LHN, LSIG = LMISC, LMISC + 32, LMISC + 64, LMISC + 80, LMISC + 96, LMISC + 128, LMISC + 256, LMISC + 768
LDSB = LMISC + 832
assert LDSB <= 163840

def v(i, n=1): return 'v%d' % i if n == 1 else 'v[%d:%d]' % (i, i + n - 1)
def s(i, n=1): return 's%d' % i if n == 1 else 's[%d:%d]' % (i, i + n - 1)
DPPF = 'row_mask:0xf bank_mask:0xf'
ROWRED = ['quad_perm:[1,0,3,2] ' + DPPF, 'quad_perm:[2,3,0,1] ' + DPPF, 'row_half_mirror ' + DPPF, 'row_mirror ' + DPPF]
def wave_reduce(a, regs, op='v_add_f32'):
    for pat in ROWRED + ['row_bcast:15 row_mask:0xa bank_mask:0xf', 'row_bcast:31 row_mask:0xc bank_mask:0xf']:
        for r in regs: a('%s_dpp %s, %s, %s %s' % (op, v(r), v(r), v(r), pat))
def rbf(a, r): a('v_cvt_pk_bf16_f32 %s, 0, %s' % (v(r), v(r)))
def angles(a, mulreg, basereg, ks, tmp):
    for i, k in enumerate(ks):
        if k == 0: a('v_mov_b32 %s, %s' % (v(tmp + i), v(basereg)))
        else: a('v_fmamk_f32 %s, %s, %s, %s' % (v(tmp + i), v(mulreg), fh(float(k)), v(basereg)))
def kr(r): return (r & 3) + 8 * (r >> 2)
def gen_c2s2(a, vln_f, vlh4_f, C2, S2, tmp):
    c, b = tmp, tmp + 1
    a('v_mul_f32 %s, %s, %s' % (v(c), fh(1.0 / 32), v(vln_f)))
    a('v_mul_f32 %s, %s, %s' % (v(b), v(c), v(vlh4_f)))
    ang = tmp + 2
    angles(a, c, b, [kr(r) for r in range(16)], ang)
    for r in range(16): a('v_cos_f32 %s, %s' % (v(ang + 16 + r), v(ang + r)))
    for p in range(8): a('v_cvt_pk_f16_f32 %s, %s, %s' % (v(C2 + p), v(ang + 16 + 2 * p), v(ang + 17 + 2 * p)))
    for r in range(16): a('v_sin_f32 %s, %s' % (v(ang + 16 + r), v(ang + r)))
    for p in range(8): a('v_cvt_pk_f16_f32 %s, %s, %s' % (v(S2 + p), v(ang + 16 + 2 * p), v(ang + 17 + 2 * p)))
def reduce4(a, A, B, C, D):
    a('v_permlane32_swap_b32 %s, %s' % (v(A), v(B))); a('v_permlane32_swap_b32 %s, %s' % (v(C), v(D)))
    a('v_add_f32 %s, %s, %s' % (v(A), v(A), v(B))); a('v_add_f32 %s, %s, %s' % (v(C), v(C), v(D)))
    a('v_permlane16_swap_b32 %s, %s' % (v(A), v(C)))
    a('v_add_f32 %s, %s, %s' % (v(A), v(A), v(C)))
    for pat in ROWRED: a('v_add_f32_dpp %s, %s, %s %s' % (v(A), v(A), v(A), pat))
def ln_chain(a, tot, m, t):
    a('v_mov_b32_dpp %s, %s row_bcast:15 row_mask:0xa bank_mask:0xf' % (v(m), v(tot)))
    a('v_mul_f32 %s, %s, %s' % (v(t), fh(1.0 / 1024), v(tot)))
    a('v_mul_f32 %s, %s, %s' % (v(m), fh(1.0 / 1024), v(m)))
    a('v_fma_f32 %s, -%s, %s, %s' % (v(t), v(m), v(m), v(t)))
    a('v_max_f32 %s, 0, %s' % (v(t), v(t)))
    rbf(a, t); rbf(a, m)
    a('v_add_f32 %s, %s, %s' % (v(t), fh(1e-5), v(t))); rbf(a, t)
    a('v_sqrt_f32 %s, %s' % (v(t), v(t))); rbf(a, t)
    a('v_rcp_f32 %s, %s' % (v(t), v(t)))

NST = 20
EARLY = '--early' in OPT
def stamp(a, i, early=False):
    if STAMPS and (early == EARLY or i < 12 or i == NST - 1): a('s_memrealtime s[%d:%d]' % (60 + 2 * i, 61 + 2 * i))
def stamp_dump(a, tag):
    if not STAMPS: return
    a('s_waitcnt vmcnt(0) lgkmcnt(0)')
    stamp(a, NST - 1)
    a('s_load_dwordx2 s[4:5], s[0:1], 96'); a('s_waitcnt lgkmcnt(0)')
    a('s_add_u32 s4, s4, 0x8000000'); a('s_addc_u32 s5, s5, 0'); a('s_mov_b32 s6, 0x40000'); a('s_mov_b32 s7, 0x00020000')
    a('s_lshl_b32 s12, s2, 3'); a('s_add_u32 s12, s12, s16'); a('s_lshl_b32 s12, s12, 7')
    a('s_mov_b64 exec, 1'); a('v_mov_b32 v1, 0')
    for i in range(NST):
        a('v_mov_b32 v2, s%d' % (60 + 2 * i)); a('buffer_store_dword v2, v1, s[4:7], s12 offen offset:%d' % (4 * i))

YCHK = '--ychk' in OPT
G2 = '--g2' in OPT
NH = int(optval('nh', '4'))
KA = int(optval('ka', '0')); CPOST = '--cpost' in OPT
KB, KE, KC, KD = (int(x) for x in optval('win', '4,0,5,4').split(','))
PB, PE, PC, PD = (int(x) for x in optval('wpace', '99,99,99,99').split(','))
assert '--now' in OPT or 3 * NH + 4 * KA + 4 * KB + 4 * KE + 8 * KC + 7 * KD >= 96, 'units missing'
def unit_setup(a):
    a('v_lshrrev_b32 v208, 3, v15'); a('v_and_b32 v209, 7, v15'); a('v_and_b32 v210, 2, v208'); a('v_xor_b32 v209, v210, v209')
    a('v_mul_u32_u24 v208, 7168, v208'); a('v_lshl_add_u32 v208, v209, 4, v208')
    a('v_lshrrev_b32 v210, 5, v15'); a('v_lshlrev_b32 v210, 11, v210'); a('v_and_b32 v209, 31, v15'); a('v_lshl_add_u32 v210, v209, 4, v210')
    a('s_and_b32 s12, s3, 3'); a('s_mul_i32 s100, s12, %d' % (256 * 7168)); a('s_lshl_b32 s101, s12, 9')
    a('s_lshr_b32 s12, s3, 2'); a('s_lshl_b32 s12, s12, 7'); a('s_add_u32 s100, s100, s12'); a('s_lshl_b32 s12, s12, 10'); a('s_add_u32 s101, s101, s12')
uid = [0]
def window(a, first, k, wreg, wbase, pace=99, skip=None):
    if k == 0 or first >= 96: return
    uid[0] += 1; lab = skip or 'fk_win%d' % uid[0]
    a('s_cmp_gt_u32 s3, 223'); a('s_cbranch_scc1 %s' % lab)
    a('s_mul_i32 s15, %s, %d' % (s(wreg), k)); a('s_add_u32 s15, s15, %d' % (first - wbase * k))
    a('s_mov_b32 s58, 0x700000'); a('s_mov_b32 s59, 0x00020000')
    for i in range(k):
        a('s_cmp_gt_u32 s15, 95'); a('s_cbranch_scc1 %s' % lab)
        a('s_lshl_b32 s12, s15, 10'); a('s_mov_b32 m0, s12')
        a('s_and_b32 s14, s12, 1024'); a('s_lshr_b32 s14, s14, 4'); a('v_xor_b32 v209, s14, v208')
        a('s_cmp_lt_u32 s15, 32'); a('s_cselect_b64 s[56:57], s[44:45], s[48:49]')
        a('s_and_b32 s14, s15, 31'); a('s_mul_i32 s13, s14, %d' % (8 * 7168)); a('s_add_u32 s13, s13, s100')
        a('s_lshl_b32 s14, s14, 12'); a('s_add_u32 s14, s14, s101')
        a('s_cmp_lt_u32 s15, 64'); a('s_cselect_b64 s[56:57], s[56:57], s[52:53]'); a('s_cselect_b32 s13, s13, s14'); a('s_cselect_b64 vcc, -1, 0')
        a('v_cndmask_b32 v209, v210, v209, vcc')
        a('s_add_u32 s15, s15, 1')
        if i >= pace: a('s_waitcnt vmcnt(%d)' % pace)
        a('buffer_load_dwordx4 v209, s[56:59], s13 offen lds')
    if not skip: a.label(lab)
UA = 3 * NH; UB = UA + 4 * KA; UE = UB + 4 * KB; UC = UE + 4 * KE; UD = UC + 8 * KC
LATE = UC < 64 and '--now' not in OPT
DLATE = UD >= 64 and UD < 96 and KD > 0 and '--nodlate' not in OPT
BASE = int(optval('base', '0'), 0)
WOUT = '--wout' in OPT
WSRD = 's[28:31]' if WOUT else 's[24:27]'
if WOUT: WOFF = 0
def rebase(a):
    if BASE: a('s_add_u32 s24, s24, 0x%x' % BASE); a('s_addc_u32 s25, s25, 0')
def chkpos(a, d):
    a('s_bfe_u32 %s, s3, 0x30002' % s(d)); a('s_lshl_b32 %s, %s, 7' % (s(d), s(d))); a('s_lshr_b32 s12, s3, 5'); a('s_lshl_b32 s12, s12, 4')
    a('s_add_u32 %s, %s, s12' % (s(d), s(d))); a('s_and_b32 s12, s3, 3'); a('s_lshl_b32 s12, s12, 2'); a('s_add_u32 %s, %s, s12' % (s(d), s(d)))
    a('s_add_u32 %s, %s, 8192' % (s(d), s(d)))
def piece_sum(a, d, r, tag):
    a('v_add3_u32 %s, %s, %s, %s' % (v(d), v(r), v(r + 1), v(r + 2)))
    a('v_add_u32 %s, %s, %s' % (v(d), v(d), v(r + 3)))
    return ['v_add_u32_dpp %s, %s, %s quad_perm:[1,0,3,2] %s' % (v(d), v(d), v(d), DPPF)]
def quad_gather(a, r, step):
    for i in range(1, 4): a('v_mov_b32_dpp %s, %s row_shl:%d %s' % (v(r + i), v(r), i * step, DPPF))
def poll_tail(a, cnt, lab, got):
    a('s_add_u32 %s, %s, 1' % (s(cnt), s(cnt)))
    a('s_cmp_gt_u32 %s, 0x40000' % s(cnt)); a('s_cbranch_scc1 %s' % got)
    a('s_cbranch_vccnz %s' % lab)
    a.label(got)
def poll_check(a, regs, tmp, cnt, lab, got, wait=True):
    a('s_add_u32 %s, %s, 1' % (s(cnt), s(cnt)))
    if wait: a('s_waitcnt vmcnt(0)')
    r = list(regs)
    if len(r) == 1: a('v_cmp_eq_u32 vcc, -1, %s' % v(r[0]))
    else:
        if len(r) == 2: a('v_max_u32 %s, %s, %s' % (v(tmp), v(r[0]), v(r[1]))); r = []
        else: a('v_max3_u32 %s, %s, %s, %s' % (v(tmp), v(r[0]), v(r[1]), v(r[2]))); r = r[3:]
        while r:
            if len(r) >= 2: a('v_max3_u32 %s, %s, %s, %s' % (v(tmp), v(tmp), v(r[0]), v(r[1]))); r = r[2:]
            else: a('v_max_u32 %s, %s, %s' % (v(tmp), v(tmp), v(r[0]))); r = []
        a('v_cmp_eq_u32 vcc, -1, %s' % v(tmp))
    a('s_cmp_gt_u32 %s, 0x40000' % s(cnt)); a('s_cbranch_scc1 %s' % got)
    a('s_cbranch_vccnz %s' % lab)
    a.label(got)

def gen(a):
    a.raw('.globl %s' % KN); a.raw('.p2align 8'); a.raw('.type %s,@function' % KN)
    a.lines.append(KN + ':')
    a('s_cmp_gt_u32 s2, 255'); a('s_cbranch_scc1 fk_end')
    if STAMPS:
        for i in range(NST): a('s_mov_b32 s%d, 0' % (60 + 2 * i))
    stamp(a, 0)
    a('s_load_dwordx2 s[8:9], s[0:1], 0'); a('s_load_dwordx2 s[24:25], s[0:1], 96')
    a('s_load_dwordx2 s[32:33], s[0:1], 48'); a('s_load_dwordx2 s[44:45], s[0:1], 56'); a('s_load_dwordx2 s[48:49], s[0:1], 64')
    a('s_load_dwordx2 s[52:53], s[0:1], 72'); a('s_load_dwordx2 s[28:29], s[0:1], 80')
    if '--nocodepf' not in OPT:
        a('s_getpc_b64 s[40:41]'); a.lines.append('fk_pc:')
        a('s_mov_b32 s42, fk_end-fk_pc'); a('s_mov_b32 s43, 0x00020000')
        a('v_lshlrev_b32 v250, 6, v0')
        a('buffer_load_dword v251, v250, s[40:43], 0 offen')
    a('v_lshrrev_b32 v1, 6, v0'); a('v_and_b32 v15, 63, v0')
    a('v_readfirstlane_b32 s16, v1')
    a('s_and_b32 s3, s2, 0xe0'); a('s_and_b32 s17, s2, 7'); a('s_lshl_b32 s17, s17, 2'); a('s_or_b32 s3, s3, s17')
    a('s_bfe_u32 s17, s2, 0x20003'); a('s_or_b32 s3, s3, s17')
    a('s_lshr_b32 s17, s3, 4'); a('s_add_u32 s17, s17, 1'); a('s_cmp_ge_u32 s3, 248'); a('s_cselect_b32 s17, 0, s17')
    a('s_cmp_ge_u32 s3, 240'); a('s_cselect_b32 s18, 7, 15'); a('s_and_b32 s18, s18, s3'); a('s_lshl_b32 s18, s18, 7')
    a('s_add_u32 s18, s18, s17')
    a('v_and_b32 v1, 31, v15'); a('v_lshrrev_b32 v2, 5, v15')
    a('v_lshlrev_b32 v14, 4, v15')
    for r, n in ((8, 2048 * 2048), (24, WSB), (28, 2048 * 2048), (32, 2048), (44, 1024 * 7168), (48, 1024 * 7168), (52, 3584 * 2048)):
        a('s_mov_b32 %s, 0x%x' % (s(r + 2), n)); a('s_mov_b32 %s, 0x00020000' % s(r + 3))
    a('s_cmp_ge_u32 s3, 248'); a('s_cselect_b32 s12, 5, 4')
    a('s_cmp_ge_u32 s16, s12'); a('s_cbranch_scc1 fk_H')
    XA, XB = 16, 32
    F1, TC, TS, B3, C2, S2 = 48, 56, 72, 88, 96, 104
    X, D1, D2, D3, Q16, GA = 112, 128, 144, 160, 176, 184
    T = 128
    a('s_setprio 3')
    a('s_lshl_b32 s19, s16, 5'); a('s_add_u32 s19, s19, s18')
    a('s_sub_u32 s20, 2048, s19'); a('s_and_b32 s20, s20, 2047')
    a('s_lshl_b32 s21, s19, 11'); a('s_lshl_b32 s22, s20, 11')
    a('s_lshl_b32 s12, s16, 12'); a('s_add_u32 s12, s12, %d' % LX)
    a('s_mov_b32 m0, s12')
    for i in range(32): a('v_mov_b32 %s, 0' % v(XA + i))
    a('v_cvt_f32_u32 v200, v1')
    a('v_lshlrev_b32 v7, 2, v2'); a('v_cvt_f32_u32 v7, v7')
    a('v_lshrrev_b32 v8, 1, v1'); a('v_and_b32 v9, 1, v1')
    a('v_lshlrev_b32 v205, 2, v15'); a('v_and_b32 v205, 63, v205'); a('v_add_u32 v205, %d, v205' % LSIG)
    a('ds_write_b32 v205, v16')
    a('s_waitcnt lgkmcnt(0)')
    rebase(a)
    stamp(a, 1)
    for i, so in enumerate((21, 21, 22, 22)):
        if i: a('s_add_u32 s13, s12, %d' % (1024 * i)); a('s_mov_b32 m0, s13')
        if i & 1: a('s_add_u32 s14, %s, 1024' % s(so))
        a('buffer_load_dwordx4 v14, s[8:11], %s offen lds' % (s(14) if i & 1 else s(so)))
    a('s_cmp_lg_u32 s19, 0'); a('s_cbranch_scc1 fk_no1024')
    for i in range(2):
        a('s_mov_b32 m0, %d' % (LX1024 + 1024 * i)); a('s_mov_b32 s14, %d' % (1024 * 2048 + 1024 * i))
        a('buffer_load_dwordx4 v14, s[8:11], s14 offen lds')
    a.label('fk_no1024')
    a('s_barrier')
    def put(base, n):
        for q in range(n // 4): a('ds_write_b128 v206, %s offset:%d' % (v(base + 4 * q, 4), 1024 * ((base - F1) // 4 + q)))
    a('v_add_u32 v206, %d, v14' % LROW)
    a('s_lshl_b32 s13, s16, 2'); a('s_add_u32 s13, s13, %d' % LSIG); a('v_mov_b32 v201, s13'); a('v_mov_b32 v202, 1')
    a('s_cmp_eq_u32 s16, 1'); a('s_cbranch_scc1 fk_j1')
    a('s_cmp_eq_u32 s16, 2'); a('s_cbranch_scc1 fk_j2')
    a('s_cmp_eq_u32 s16, 3'); a('s_cbranch_scc1 fk_j3')
    a('s_cmp_eq_u32 s16, 4'); a('s_cbranch_scc1 fk_jend')
    a('v_cmp_eq_u32 vcc, 1, v1')
    a('v_cndmask_b32 v10, v8, 16, vcc'); a('v_cndmask_b32 v11, v9, 0, vcc')
    a('v_cvt_f32_u32 v10, v10'); a('v_cvt_f32_u32 v11, v11')
    a('v_mul_f32 v10, %s, v10' % fh(1.0 / 32)); a('v_mul_f32 v11, %s, v11' % fh(0.25))
    a('v_add_f32 v12, v7, v7'); a('v_fma_f32 v11, v10, v12, v11')
    angles(a, 10, 11, list(range(8)) + list(range(16, 24)), T)
    for i in range(16): a('v_cos_f32 %s, %s' % (v(T + 16 + i), v(T + i)))
    for p in range(8): a('v_cvt_pk_f16_f32 %s, %s, %s' % (v(F1 + p), v(T + 16 + 2 * p), v(T + 17 + 2 * p)))
    put(F1, 8)
    a('s_branch fk_jsig')
    a.label('fk_j1')
    a('v_cvt_f32_u32 v10, v8'); a('v_lshlrev_b32 v11, 31, v9')
    a('v_mul_f32 v10, %s, v10' % fh(1.0 / 1024)); a('v_xor_b32 v10, v11, v10'); a('v_mul_f32 v11, v10, v7')
    angles(a, 10, 11, [kr(r) for r in range(16)], T)
    for r in range(16): a('v_cos_f32 %s, %s' % (v(TC + r), v(T + r)))
    put(TC, 16)
    for r in range(16): a('v_sin_f32 %s, %s' % (v(TS + r), v(T + r)))
    put(TS, 16)
    a('s_branch fk_jsig')
    a.label('fk_j2')
    gen_c2s2(a, 200, 7, C2, S2, T)
    put(C2, 16)
    a('s_branch fk_jsig')
    a.label('fk_j3')
    a('v_or_b32 v10, 16, v1'); a('v_cvt_f32_u32 v10, v10'); a('v_mov_b32 v11, %s' % fh(1.0 / 64))
    a('v_fmamk_f32 v10, v10, %s, v11' % fh(1.0 / 32))
    a('v_cmp_gt_u32 vcc, 16, v1'); a('v_mov_b32 v12, %s' % fh(-0.25)); a('v_cndmask_b32 v12, 0, v12, vcc')
    a('v_fma_f32 v11, v10, v7, v12')
    angles(a, 10, 11, [kr(r) for r in range(16)], T)
    for r in range(16): a('v_cos_f32 %s, %s' % (v(T + 16 + r), v(T + r)))
    for p in range(8): a('v_cvt_pk_f16_f32 %s, %s, %s' % (v(B3 + p), v(T + 16 + 2 * p), v(T + 17 + 2 * p)))
    put(B3, 8)
    a.label('fk_jsig')
    a('ds_write_b32 v201, v202 offset:32')
    a.label('fk_jend')
    a('v_lshlrev_b32 v3, 9, v2'); a('v_lshl_add_u32 v3, v1, 1, v3')
    a('v_sub_u32 v4, 576, v3'); a('v_sub_u32 v5, 2048, v3'); a('v_and_b32 v5, 2047, v5')
    a('v_add_u32 v3, s12, v3'); a('v_add_u32 v4, s12, v4'); a('v_add_u32 v5, s12, v5')
    a('s_lshl_b32 s13, s16, 10'); a('s_sub_u32 s14, %d, s13' % (7168 + 64))
    a('s_cmp_ge_u32 s3, 248'); a('s_cselect_b32 s15, 1024, 0'); a('s_add_u32 s14, s14, s15')
    a('s_cmp_eq_u32 s16, 4'); a('s_cselect_b32 s13, %d, s13' % (8192 + 64))
    a('s_add_u32 s13, s13, %d' % LWS); a('s_add_u32 s14, s14, %d' % LWS)
    a('v_cmp_gt_u32 vcc, 16, v1')
    a('v_mov_b32 v8, s13'); a('v_mov_b32 v9, s14')
    a('v_cndmask_b32 v10, v9, v8, vcc'); a('v_cndmask_b32 v11, v8, v9, vcc')
    a('v_lshl_add_u32 v10, v15, 2, v10'); a('v_lshl_add_u32 v11, v15, 2, v11')
    a('v_lshrrev_b32 v6, 1, v15'); a('v_and_b32 v8, 1, v15'); a('v_mul_u32_u24 v9, %d, v8' % (4096 + 64))
    a('v_and_b32 v12, 15, v6'); a('v_lshl_add_u32 v12, v12, 4, v2'); a('v_mul_u32_u24 v12, %d, v12' % OS)
    a('v_mul_u32_u24 v192, %d, v8' % (2 * OS)); a('v_add_u32 v192, v192, v12')
    a('v_lshl_add_u32 v12, v8, 4, v12')
    a('v_lshrrev_b32 v194, 3, v15'); a('v_lshlrev_b32 v193, 4, v194'); a('v_lshl_add_u32 v193, v8, 7, v193')
    a('v_and_b32 v6, 3, v6'); a('v_lshl_add_u32 v9, v6, 2, v9'); a('v_lshl_add_u32 v9, v194, 7, v9')
    a('v_lshlrev_b32 v194, 10, v194'); a('v_and_b32 v6, 7, v15'); a('v_lshl_add_u32 v194, v6, 4, v194')
    a('s_lshl_b32 s13, s16, 5'); a('s_add_u32 s13, s13, %d' % LWS); a('v_add_u32 v6, s13, v9')
    a('s_mul_i32 s36, s3, %d' % OS); a('s_lshl_b32 s13, s16, 8'); a('s_add_u32 s36, s36, s13'); a('s_add_u32 s36, s36, 0x%x' % WOFF)
    a('s_mul_i32 s37, s16, %d' % (4 * OS)); a('s_add_u32 s37, s37, 0x%x' % WOFF)
    chkpos(a, 23)
    a('s_add_u32 s23, s23, s37')
    a('s_lshl_b32 s14, s3, 5'); a('s_add_u32 s37, s37, s14')
    a('s_add_u32 s38, s37, %d' % (2 * OS))
    a('s_lshl_b32 s13, s16, 11'); a('s_add_u32 s13, s13, %d' % LA2); a('v_add_u32 v7, s13, v14')
    a('v_cmp_eq_u32 s[58:59], 1, v8')
    a('s_cmp_eq_u32 s19, s20'); a('s_cselect_b32 s39, 0.5, 1.0')
    a('s_lshl_b32 s13, s16, 2'); a('s_add_u32 s13, s13, %d' % LG5S); a('v_mov_b32 v9, s13')
    a('s_cmp_ge_u32 s3, 248'); a('s_cselect_b32 s57, 63, 47')
    a.label('fk_spinc')
    a('ds_read_b32 v203, v205'); a('s_waitcnt lgkmcnt(0)'); a('v_cmp_eq_u32 vcc, 0, v203')
    a('s_and_b32 s13, vcc_lo, 0xf00'); a('s_cbranch_scc1 fk_spinc')
    for q in range(16):
        a('ds_read_b128 %s, v206 offset:%d' % (v(F1 + 4 * q, 4), 1024 * q))
        if q == 11: a('s_waitcnt lgkmcnt(8)')
    stamp(a, 2)
    a('s_waitcnt vmcnt(0) lgkmcnt(0)')
    stamp(a, 3)
    for j in range(2):
        for i in range(8):
            a('ds_read_u16_d16_hi %s, v3 offset:%d' % (v(XA + 8 * j + i), 1024 * j + 64 * i))
    a('s_waitcnt lgkmcnt(2)')
    for j in range(2):
        for i in range(8):
            if j == 0 and i == 0: a('ds_read_u16_d16_hi %s, v5 offset:2048' % v(XB))
            else: a('ds_read_u16_d16_hi %s, v4 offset:%d' % (v(XB + 8 * j + i), 2048 + 1024 * (1 - j) + 64 * (7 - i)))
            if j == 1 and i == 4: a('s_waitcnt lgkmcnt(8)')
    def sums(R, t):
        for i in range(4): a('v_pk_add_f32 %s, %s, %s' % (v(t + 2 * i, 2), v(R + 4 * i, 2), v(R + 4 * i + 2, 2)))
        a('v_pk_mul_f32 %s, %s, %s' % (v(t + 8, 2), v(R, 2), v(R, 2)))
        a('v_pk_mul_f32 %s, %s, %s' % (v(t + 10, 2), v(R + 2, 2), v(R + 2, 2)))
        for i in range(2, 8):
            acc = t + 8 + 2 * (i & 1)
            a('v_pk_fma_f32 %s, %s, %s, %s' % (v(acc, 2), v(R + 2 * i, 2), v(R + 2 * i, 2), v(acc, 2)))
        a('v_pk_add_f32 %s, %s, %s' % (v(t, 2), v(t, 2), v(t + 2, 2))); a('v_pk_add_f32 %s, %s, %s' % (v(t + 4, 2), v(t + 4, 2), v(t + 6, 2)))
        a('v_pk_add_f32 %s, %s, %s' % (v(t + 8, 2), v(t + 8, 2), v(t + 10, 2)))
        a('v_pk_add_f32 %s, %s, %s' % (v(t, 2), v(t, 2), v(t + 4, 2)))
        a('v_add_f32 %s, %s, %s' % (v(t + 8), v(t + 8), v(t + 9)))
        a('v_add_f32 %s, %s, %s' % (v(t), v(t), v(t + 1)))
    sums(XA, T)
    a('s_waitcnt lgkmcnt(0)')
    sums(XB, T + 12)
    reduce4(a, T, T + 12, T + 8, T + 20)
    ln_chain(a, T, T + 1, T + 2)
    a('v_mul_f32 %s, %s, %s' % (v(T + 2), fh(1.0 / 16), v(T + 2)))
    a('v_mul_f32 %s, %s, %s' % (v(T + 1), v(T + 1), v(T + 2)))
    a('v_readlane_b32 s4, %s, 16' % v(T + 2)); a('v_readlane_b32 s6, %s, 48' % v(T + 2))
    a('v_readlane_b32 s13, %s, 16' % v(T + 1)); a('v_readlane_b32 s14, %s, 48' % v(T + 1))
    a('v_mov_b32 %s, s13' % v(T + 4)); a('v_add_f32 %s, s14, %s' % (v(T + 4), v(T + 4)))
    for i in range(8):
        a('v_pk_fma_f32 %s, %s, s[6:7], %s op_sel_hi:[1,0,0] neg_lo:[0,0,1] neg_hi:[0,0,1]' % (v(XB + 2 * i, 2), v(XB + 2 * i, 2), v(T + 4, 2)))
    for i in range(8):
        a('v_pk_fma_f32 %s, %s, s[4:5], %s op_sel_hi:[1,0,1]' % (v(XA + 2 * i, 2), v(XA + 2 * i, 2), v(XB + 2 * i, 2)))
    for p in range(8): a('v_cvt_pk_f16_f32 %s, %s, %s' % (v(Q16 + p), v(XA + 2 * p), v(XA + 2 * p + 1)))
    a('v_mfma_f32_32x32x16_f16 %s, %s, %s, 0' % (v(X, 16), v(Q16, 4), v(F1, 4)))
    a('v_mfma_f32_32x32x16_f16 %s, %s, %s, %s' % (v(X, 16), v(Q16 + 4, 4), v(F1 + 4, 4), v(X, 16)))
    W = XA
    for r in range(8): a('v_pk_mul_f32 %s, %s, %s' % (v(W + 2 * r, 2), v(X + 2 * r, 2), v(TC + 2 * r, 2)))
    for r in range(8): a('v_fmac_f32_dpp %s, %s, %s quad_perm:[1,0,3,2] %s' % (v(W + r), v(X + r), v(TS + r), DPPF))
    for p in range(4): a('v_cvt_pk_f16_f32 %s, %s, %s' % (v(Q16 + p), v(W + 2 * p), v(W + 2 * p + 1)))
    a('v_fmac_f32_dpp %s, %s, %s quad_perm:[1,0,3,2] %s' % (v(W + 8), v(X + 8), v(TS + 8), DPPF))
    a('v_fmac_f32_dpp %s, %s, %s quad_perm:[1,0,3,2] %s' % (v(W + 9), v(X + 9), v(TS + 9), DPPF))
    mm = [(D1, C2), (D2, S2), (D3, B3)]
    rest = ['v_fmac_f32_dpp %s, %s, %s quad_perm:[1,0,3,2] %s' % (v(W + r), v(X + r), v(TS + r), DPPF) for r in range(10, 16)]
    rest += ['v_cvt_pk_f16_f32 %s, %s, %s' % (v(Q16 + p), v(W + 2 * p), v(W + 2 * p + 1)) for p in range(4, 8)]
    for n, (Dd, B) in enumerate(mm):
        a('v_mfma_f32_32x32x16_f16 %s, %s, %s, 0' % (v(Dd, 16), v(Q16, 4), v(B, 4)))
        for x in rest[4 * n:4 * n + 4]: a(x)
    for (Dd, B) in mm:
        a('v_mfma_f32_32x32x16_f16 %s, %s, %s, %s' % (v(Dd, 16), v(Q16 + 4, 4), v(B + 4, 4), v(Dd, 16)))
    a('v_cmp_gt_u32 vcc, 16, v15')
    a('v_cmp_gt_u32 s[40:41], 32, v15')
    Z = XA
    P = XB
    def zz(u):
        a('v_pk_add_f32 %s, %s, %s op_sel:[0,1] op_sel_hi:[1,0] neg_hi:[0,1]' % (v(Z + 2 * u, 2), v(D1 + 2 * u, 2), v(D2 + 2 * u, 2)))
    def pp(p):
        A_, B_ = v(Z + 4 * p, 2), v(Z + 4 * p + 2, 2)
        a('v_pk_add_f32 %s, %s, %s op_sel:[0,1] op_sel_hi:[1,0] neg_lo:[0,1]' % (v(P + 4 * p, 2), A_, B_))
        a('v_pk_add_f32 %s, %s, %s op_sel:[0,1] op_sel_hi:[1,0] neg_hi:[1,0]' % (v(P + 4 * p + 2, 2), A_, B_))
        a('v_cvt_pk_f16_f32 %s, %s, %s' % (v(Q16 + 2 * p), v(P + 4 * p), v(P + 4 * p + 1)))
        a('v_cvt_pk_f16_f32 %s, %s, %s' % (v(Q16 + 2 * p + 1), v(P + 4 * p + 2), v(P + 4 * p + 3)))
        a('ds_write_b32 v10, %s offset:%d' % (v(Q16 + 2 * p), 256 * p))
        a('ds_write_b32 v11, %s offset:%d' % (v(Q16 + 2 * p + 1), 256 * p))
    ZR, ZI = Z, Z + 1
    for p in (1, 2, 3):
        zz(2 * p); zz(2 * p + 1); pp(p)
    zz(0); zz(1)
    a('v_mul_f32 v8, s39, %s' % v(D1))
    a('v_mov_b32 v3, %s' % v(D3 + 1))
    a('v_permlane16_swap_b32 v4, v3')
    a('v_cndmask_b32 v5, %s, %s, vcc' % (v(D3 + 1), v(D1)))
    a('v_cndmask_b32 v4, v4, %s, vcc' % v(D2))
    a('v_cndmask_b32 %s, %s, v5, s[40:41]' % (v(ZR), v(ZR)))
    a('v_cndmask_b32 %s, %s, -v4, s[40:41]' % (v(ZI), v(ZI)))
    pp(0)
    a('s_mov_b64 exec, 0x10000')
    a('ds_write_b32 v9, v8')
    a('ds_write_b32 v201, v202')
    a('s_mov_b64 exec, -1')
    a('s_cmp_eq_u32 s16, 4'); a('s_cbranch_scc1 fk_w4')
    stamp(a, 4)
    a.label('fk_spin')
    a('ds_read_b32 v3, v205'); a('s_waitcnt lgkmcnt(0)'); a('v_cmp_eq_u32 vcc, 0, v3')
    a('s_and_b32 s13, vcc_lo, s57'); a('s_cbranch_scc1 fk_spin')
    a.label('fk_staged')
    stamp(a, 12, True)
    for q in range(2):
        a('ds_read2st64_b32 %s, %s offset0:0 offset1:4' % (v(GA + 4 * q, 2), 'v8' if q else 'v6'))
        a('ds_read2st64_b32 %s, %s offset0:8 offset1:12' % (v(GA + 4 * q + 2, 2), 'v8' if q else 'v6'))
        if q == 0: a('v_add_u32 v8, 16, v6')
    a('v_readlane_b32 s43, v3, 7')
    for q in range(2):
        a('s_waitcnt lgkmcnt(%d)' % (2 - 2 * q))
        a(('buffer_store_dwordx4 %s, v194, ' + WSRD + ', s36 offen offset:%d sc1') % (v(GA + 4 * q, 4), 128 * q))
    d0 = piece_sum(a, 3, GA, 0); d1 = piece_sum(a, 4, GA + 4, 0)
    a('s_add_u32 s36, s36, 8192')
    a(d0[0]); a(d1[0])
    a('v_cndmask_b32 v3, v3, v4, s[58:59]'); a('v_add_u32 v196, s43, v3')
    quad_gather(a, 196, 2)
    a('s_mov_b32 exec_lo, 0x03030303'); a('s_mov_b32 exec_hi, 0x03030303')
    a('buffer_store_dwordx4 v[196:199], v193, ' + WSRD + ', s36 offen sc1')
    a('s_mov_b64 exec, -1')
    if not G2:
        a('s_cmp_lg_u32 s16, 0'); a('s_cbranch_scc1 fk_nog5')
        a('v_and_b32 v9, 16, v14'); a('v_add_u32 v9, %d, v9' % LG5S)
        a('ds_read_b128 v[16:19], v9')
        a('s_lshl_b32 s13, s3, 4'); a('s_add_u32 s13, s13, 0x%x' % G5)
        a('s_waitcnt lgkmcnt(0)')
        for i in range(4): a('v_min_u32 %s, -2, %s' % (v(16 + i), v(16 + i)))
        a('s_cmp_eq_u32 s3, 255'); a('s_cselect_b64 exec, 3, 1')
        a('buffer_store_dwordx4 v[16:19], v14, s[24:27], s13 offen sc1')
        a('s_mov_b64 exec, -1')
        a.label('fk_nog5')
    unit_setup(a)
    a('s_mov_b32 s42, 0')
    a('s_waitcnt vmcnt(0)')
    stamp(a, 5)
    a.label('fk_pollw')
    a(('buffer_load_dwordx4 %s, v12, ' + WSRD + ', s37 offen sc1') % v(GA, 4))
    a(('buffer_load_dwordx4 %s, v12, ' + WSRD + ', s38 offen sc1') % v(GA + 4, 4))
    a('buffer_load_dword v5, v192, ' + WSRD + ', s23 offen sc1')
    a('s_waitcnt vmcnt(1)')
    d0 = piece_sum(a, 3, GA, 0); d1 = piece_sum(a, 4, GA + 4, 0)
    a('ds_write_b128 v7, %s' % v(GA, 4))
    a(d0[0]); a(d1[0])
    a('ds_write_b128 v7, %s offset:1024' % v(GA + 4, 4))
    a('v_cndmask_b32 v3, v3, v4, s[58:59]'); a('v_add_u32 v3, s43, v3')
    a('s_waitcnt vmcnt(0)')
    a('v_cmp_ne_u32 vcc, v3, v5')
    poll_tail(a, 42, 'fk_pollw', 'fk_gotw')
    stamp(a, 6)
    a('s_waitcnt lgkmcnt(0)')
    a('s_barrier')
    a('s_setprio 0')
    stamp(a, 7)
    a('s_or_b32 s13, s3, s16'); a('s_cbranch_scc1 fk_nobump')
    a('v_mov_b32 v3, s43'); a('s_mov_b64 exec, 1')
    a('buffer_store_dword v3, v14, s[24:27], 0 offen sc1')
    a('s_mov_b64 exec, -1')
    a.label('fk_nobump')
    a('s_lshl_b32 s13, s16, 10'); a('s_add_u32 s14, s13, 0x%x' % G5); a('s_add_u32 s13, s13, %d' % LG5)
    a('v_add_u32 v7, s13, v14'); a('v_mov_b32 v3, 4096'); a('s_mov_b32 s15, 0x%x' % G5); a('v_mov_b32 v8, %d' % LG5E)
    a('buffer_load_dwordx4 %s, v14, s[24:27], s14 offen sc1' % v(GA, 4))
    a('buffer_load_dword %s, v3, s[24:27], s15 offen sc1' % v(GA + 4))
    a('s_mov_b32 s40, s14'); a('s_mov_b32 s41, s15')
    window(a, UB, KB, 16, 0, PB)
    a('s_mov_b32 s42, 0')
    a('s_cmp_gt_u32 s3, 223'); a('s_cbranch_scc1 fk_pollg')
    a('s_waitcnt vmcnt(%d)' % (min(KB, PB + 1) if UB + 4 * KB <= 96 else 0))
    a('s_branch fk_chkg')
    a.label('fk_pollg')
    a('buffer_load_dwordx4 %s, v14, s[24:27], s40 offen sc1' % v(GA, 4))
    a('buffer_load_dword %s, v3, s[24:27], s41 offen sc1' % v(GA + 4))
    a('s_waitcnt vmcnt(0)')
    a.label('fk_chkg')
    poll_check(a, list(range(GA, GA + 5)), 4, 42, 'fk_pollg', 'fk_gotg', wait=False)
    a('ds_write_b128 v7, %s' % v(GA, 4)); a('ds_write_b32 v8, %s' % v(GA + 4))
    stamp(a, 14, True)
    a('s_branch fk_common')
    a.label('fk_w4')
    a('s_setprio 0')
    a('s_branch fk_Hconst')
    a.label('fk_H')
    A, B1, TC, TS, C2, S2, V, D1, D2, T16, AD, CS = 16, 48, 80, 96, 112, 120, 128, 144, 160, 176, 184, 192
    a('s_barrier')
    if BASE: a('s_waitcnt lgkmcnt(0)'); rebase(a)
    if G2: a('s_cmp_eq_u32 s16, 6'); a('s_cbranch_scc1 fk_h6')
    a('s_cmp_lg_u32 s16, 7'); a('s_cbranch_scc1 fk_Hconst')
    for i in range(4): a('v_mov_b32 %s, -1' % v(4 + i))
    a('v_mov_b32 v3, %d' % LKEY); a('v_mov_b32 v8, 0'); a('ds_write_b32 v3, v8')
    a('v_lshlrev_b32 v3, 12, v15'); a('s_lshl_b32 s13, s3, 4'); a('s_add_u32 s14, s13, 0x%x' % KEYS); a('s_add_u32 s15, s13, 0x%x' % G5)
    a('v_mov_b32 v201, %d' % (LSIG + 20)); a('v_mov_b32 v204, 1')
    a('s_waitcnt lgkmcnt(0)')
    stamp(a, 1)
    a('s_load_dword s56, s[24:25], 0')
    if '--wwarm' in OPT:
        a('s_mul_i32 s36, s3, %d' % OS); a('s_add_u32 s36, s36, 0x%x' % WOFF); a('s_add_u32 s37, s36, 4096'); a('s_add_u32 s40, s36, 8192')
        for i in range(9): a('buffer_store_dwordx4 v[4:7], v14, s[24:27], %s offen offset:%d sc1' % (s((36, 37, 40)[i >> 2]), 1024 * (i & 3)))
    def group2():
        if '--ywarm' in OPT:
            a('s_mul_i32 s36, s3, %d' % OS); a('s_add_u32 s36, s36, 0x%x' % YOFF); a('s_add_u32 s37, s36, 4096'); a('s_add_u32 s40, s36, 8192')
            for i in range(9): a('buffer_store_dwordx4 v[4:7], v14, s[24:27], %s offen offset:%d sc1' % (s((36, 37, 40)[i >> 2]), 1024 * (i & 3)))
        if '--ptouch' in OPT:
            a('v_mul_u32_u24 v252, %d, v15' % (8 * OS)); a('s_mov_b32 s12, 0x%x' % (WOFF + 9216))
            a('buffer_load_dword v253, v252, s[24:27], s12 offen')
        if not YCHK:
            a('s_mul_i32 s38, s3, %d' % OS); a('s_add_u32 s38, s38, 0x%x' % YOFF); a('s_add_u32 s39, s38, 4096')
            for i in range(8): a('buffer_store_dwordx4 v[4:7], v14, s[24:27], %s offen offset:%d sc1' % (s(38 + (i >> 2)), 1024 * (i & 3)))
        a('s_lshl_b32 s12, s3, 12'); a('s_add_u32 s12, s12, 0x%x' % CAND)
        for i in range(4): a('buffer_store_dwordx4 v[4:7], v14, s[24:27], s12 offen offset:%d sc1' % (1024 * i))
        a('s_lshl_b32 s12, s3, 10'); a('s_add_u32 s12, s12, 0x%x' % P2)
        a('s_cmp_gt_u32 s3, 223'); a('s_cselect_b32 s12, 0x%x, s12' % WSB)
        a('buffer_store_dwordx4 v[4:7], v14, s[24:27], s12 offen sc1')
        a('s_lshl_b32 s12, s3, 9'); a('s_add_u32 s12, s12, 0x%x' % P1)
        a('s_cmp_gt_u32 s3, 223'); a('s_cselect_b32 s12, 0x%x, s12' % WSB)
        a('s_mov_b32 exec_hi, 0')
        a('buffer_store_dwordx4 v[4:7], v14, s[24:27], s12 offen sc1')
        a('s_mov_b32 exec_lo, 0xff')
        a('buffer_store_dwordx4 v[4:7], v3, s[24:27], s14 offen sc1')
    if not G2: group2()
    a('s_mov_b32 exec_hi, 0')
    a('s_cmp_eq_u32 s3, 255'); a('s_cselect_b32 exec_lo, 3, 1')
    a('buffer_store_dwordx4 v[4:7], v14, s[24:27], s15 offen sc1')
    a('s_mov_b64 exec, -1')
    for i in range(2):
        a('s_mov_b32 m0, %d' % (LWR + 1024 * i)); a('s_mov_b32 s12, %d' % (1024 * i))
        a('buffer_load_dwordx4 v14, s[32:35], s12 offen lds')
    a('s_waitcnt lgkmcnt(0)')
    a('s_add_u32 s56, s56, 1'); a('v_mov_b32 v202, s56')
    a('ds_write_b32 v201, v202 offset:8')
    a('s_waitcnt vmcnt(0)')
    a('ds_write_b32 v201, v204')
    stamp(a, 2)
    if G2:
        a('s_branch fk_Hconst')
        a.label('fk_h6')
        for i in range(4): a('v_mov_b32 %s, -1' % v(4 + i))
        a('v_lshlrev_b32 v3, 12, v15'); a('s_lshl_b32 s14, s3, 4'); a('s_add_u32 s14, s14, 0x%x' % KEYS)
        a('v_mov_b32 v205, %d' % (LSIG + 20))
        a.label('fk_h6s')
        a('s_sleep 1')
        a('ds_read_b32 v8, v205'); a('s_waitcnt lgkmcnt(0)'); a('v_readfirstlane_b32 s13, v8')
        a('s_cmp_eq_u32 s13, 0'); a('s_cbranch_scc1 fk_h6s')
        group2()
        a('s_mov_b64 exec, -1')
    a.label('fk_Hconst')
    a('s_sub_u32 s20, s16, 4')
    unit_setup(a)
    a('s_and_b32 s12, s20, 1'); a('s_lshl_b32 s12, s12, 6'); a('v_xor_b32 v206, s12, v208'); a('v_xor_b32 v207, 64, v206')
    a('s_mov_b32 s6, 0x700000'); a('s_mov_b32 s7, 0x00020000')
    a('s_cmp_gt_u32 s3, 223'); a('s_cselect_b32 s36, 3, s20')
    a('s_waitcnt lgkmcnt(0)')
    RW = optval('rwarm', '')
    if RW:
        a('s_cmp_lg_u32 s16, 6'); a('s_cbranch_scc1 fk_norw')
        a('v_lshlrev_b32 v252, 7, v15'); a('s_mul_i32 s12, s3, %d' % OS)
        for k, reg in enumerate(RW.replace('n', '')):
            a('s_add_u32 s13, s12, 0x%x' % (WOFF if reg == 'w' else YOFF)); a('s_add_u32 s14, s13, 8192')
            a('buffer_load_dword v253, v252, s[24:27], s13 offen%s' % (' sc1' if 'n' in RW else ''))
            a('s_mov_b64 exec, 0xff')
            a('buffer_load_dword v253, v252, s[24:27], s14 offen%s' % (' sc1' if 'n' in RW else ''))
            a('s_mov_b64 exec, -1')
        a.label('fk_norw')
    TLB = int(optval('tlb', '0'))
    if TLB:
        a('s_cmp_lg_u32 s16, 5'); a('s_cbranch_scc1 fk_notlb')
        a('v_lshlrev_b32 v252, %d, v15' % TLB)
        for sr in [int(x) for x in optval('tlbl', '48,52,28').split(',')]: a('buffer_load_dword v253, v252, %s, 0 offen' % s(sr, 4))
        a.label('fk_notlb')
    PACE = int(optval('pace', '99')); GAP = int(optval('gap', '8')); FIRST = int(optval('first', '4')); DELAY = int(optval('delay', '0'))
    def gu(n):
        g = ['s_cmp_eq_u32 s36, 3', 's_cbranch_scc1 fk_gu%d' % n, 's_add_u32 s37, s20, %d' % (3 * n),
             's_lshl_b32 s12, s37, 10', 's_mov_b32 m0, s12', 's_cmp_lt_u32 s37, 32', 's_cselect_b64 s[4:5], s[44:45], s[48:49]',
             's_and_b32 s37, s37, 31', 's_mul_i32 s37, s37, %d' % (8 * 7168), 's_add_u32 s37, s37, s100']
        if n >= PACE: g.append('s_waitcnt vmcnt(%d)' % PACE)
        g.append('buffer_load_dwordx4 %s, s[4:7], s37 offen lds' % ('v207' if n & 1 else 'v206'))
        g.append('@fk_gu%d' % n)
        return g
    assert NH <= 21
    groups = [sum([gu(n) for n in range(min(FIRST, NH))], [])] + [gu(n) for n in range(FIRST, NH)]
    a.inject(groups, GAP); a.cnt = GAP - DELAY
    a('v_lshrrev_b32 v4, 1, v1')
    a('v_and_b32 v5, 1, v4'); a('v_lshrrev_b32 v6, 2, v4'); a('v_lshl_add_u32 v5, v6, 1, v5')
    a('v_and_b32 v6, 2, v4'); a('v_lshl_add_u32 v5, v6, 2, v5')
    a('s_and_b32 s13, s20, 1'); a('s_mul_i32 s13, s13, 15'); a('v_xor_b32 v5, s13, v5')
    a('s_lshl_b32 s13, s20, 4'); a('v_add_u32 v5, s13, v5')
    a('v_cvt_f32_u32 v5, v5')
    a('v_and_b32 v9, 1, v1')
    a('v_lshlrev_b32 v7, 2, v2'); a('v_cvt_f32_u32 v7, v7')
    a('v_cvt_f32_u32 v10, v9')
    a('v_mul_f32 v8, %s, v5' % fh(1.0 / 64))
    a('v_mul_f32 v10, %s, v10' % fh(0.25))
    a('v_fma_f32 v10, v8, v7, v10')
    T = V
    for half in range(2):
        ks = [8 * kap + u for kap in range(4 * half, 4 * half + 4) for u in range(4)]
        angles(a, 8, 10, ks, T)
        for i in range(16): a('v_cos_f32 %s, %s' % (v(T + 16 + i), v(T + i)))
        for i in range(16): a('v_sin_f32 %s, %s' % (v(T + 32 + i), v(T + i)))
        for i in range(16): a('v_cvt_pk_f16_f32 %s, %s, %s' % (v(B1 + 16 * half + i), v(T + 16 + i), v(T + 32 + i)))
    if G2:
        pend, a.pending = a.pending, None
        a('s_cmp_lg_u32 s16, 6'); a('s_cbranch_scc1 fk_H7')
        a('v_lshlrev_b32 v205, 2, v15'); a('v_and_b32 v205, 63, v205'); a('v_add_u32 v205, %d, v205' % LSIG)
        a('s_cmp_ge_u32 s3, 248'); a('s_cselect_b32 s43, 31, 15')
        a('v_and_b32 v3, 16, v14'); a('v_add_u32 v3, %d, v3' % LG5S)
        a('s_lshl_b32 s13, s3, 4'); a('s_add_u32 s13, s13, 0x%x' % G5)
        a('s_waitcnt vmcnt(0)')
        a.label('fk_h6t')
        a('ds_read_b32 v4, v205'); a('s_waitcnt lgkmcnt(0)'); a('v_cmp_eq_u32 vcc, 0, v4')
        a('s_and_b32 s12, vcc_lo, s43'); a('s_cbranch_scc1 fk_h6t')
        a('ds_read_b128 v[16:19], v3')
        a('s_waitcnt lgkmcnt(0)')
        for i in range(4): a('v_min_u32 %s, -2, %s' % (v(16 + i), v(16 + i)))
        a('s_cmp_eq_u32 s3, 255'); a('s_cselect_b64 exec, 3, 1')
        a('buffer_store_dwordx4 v[16:19], v14, s[24:27], s13 offen sc1')
        a('s_mov_b64 exec, -1')
        stamp(a, 4)
        a.label('fk_H7')
        a.pending = pend
    a('v_lshlrev_b32 v11, 31, v9')
    a('v_mul_f32 v10, %s, v5' % fh(1.0 / 2048)); a('v_xor_b32 v10, v11, v10'); a('v_mul_f32 v11, v10, v7')
    angles(a, 10, 11, [kr(r) for r in range(16)], T)
    for r in range(16): a('v_cos_f32 %s, %s' % (v(TC + r), v(T + r)))
    for r in range(16): a('v_sin_f32 %s, %s' % (v(TS + r), v(T + r)))
    a('v_sub_u32 v4, 31, v1'); a('v_subrev_u32 v5, 1, v1')
    a('v_cmp_lt_u32 vcc, 16, v1')
    a('v_cndmask_b32 v4, v5, v4, vcc'); a('v_and_b32 v4, 15, v4')
    a('v_lshlrev_b32 v4, 5, v4'); a('v_add_u32 v4, %d, v4' % LA2)
    a('v_lshlrev_b32 v5, 9, v2')
    a('v_add_u32 v6, v4, v5')
    a('v_sub_u32 v7, v4, v5'); a('v_add_u32 v7, %d, v7' % (15 * 512 + 16))
    a('v_cmp_eq_u32 s[38:39], 0, v1')
    a('v_mov_b32 v8, 4096')
    a('v_cndmask_b32 v8, 0, v8, s[38:39]')
    a('v_add_u32 v6, v6, v8'); a('v_add_u32 v7, v7, v8')
    a('v_and_b32 v8, 15, v1'); a('v_cmp_eq_u32 s[38:39], 0, v8')
    a('s_or_b64 s[40:41], s[38:39], vcc')
    for k in range(8):
        a('v_add_u32 %s, %d, v6' % (v(AD + k), 1024 * k)); a('v_subrev_u32 v8, %d, v7' % (1024 * k))
        a('v_cndmask_b32 %s, %s, v8, %s' % (v(AD + k), v(AD + k), 'vcc' if k < 4 else 's[40:41]'))
    def posD(d, x, t):
        a('v_and_b32 %s, 3, %s' % (v(t), v(x))); a('v_lshlrev_b32 %s, 2, %s' % (v(t), v(t))); a('v_lshlrev_b32 %s, 3, %s' % (v(d), v(x))); a('v_sub_u32 %s, %s, %s' % (v(d), v(d), v(t)))
    def posM(d, x, t):
        a('v_and_b32 %s, 3, %s' % (v(t), v(x))); a('v_mul_u32_u24 %s, 12, %s' % (v(t), v(t))); a('v_lshlrev_b32 %s, 3, %s' % (v(d), v(x))); a('v_sub_u32 %s, %s, %s' % (v(d), v(d), v(t))); a('v_add_u32 %s, 28, %s' % (v(d), v(d)))
    a('s_lshr_b32 s13, s20, 1'); a('v_lshl_add_u32 v3, v1, 1, s13')
    a('s_and_b32 s13, s20, 1'); a('s_sub_u32 s14, 64, s13')
    posD(4, 3, 8)
    a('v_sub_u32 v5, 63, v3'); posM(6, 5, 8)
    a('v_sub_u32 v5, s14, v3'); posM(7, 5, 8)
    a('v_cmp_gt_u32 vcc, 32, v3'); a('v_cndmask_b32 v7, v7, v4, vcc')
    a('v_cmp_eq_u32 vcc, 32, v5'); a('v_cndmask_b32 v7, v7, 28, vcc')
    a('s_cmp_eq_u32 s13, 0'); a('s_cselect_b32 s14, 256, 0'); a('s_cselect_b32 s15, 576, 0')
    a('s_cselect_b64 s[38:39], -1, 0')
    a('s_add_u32 s14, s14, %d' % (240 * 32)); a('s_sub_u32 s15, %d, s15' % LWS)
    a('v_cmp_gt_u32 vcc, 32, v3'); a('v_cndmask_b32 v7, v7, v4, vcc')
    a('v_add_u32 v7, s14, v7')
    a('v_cndmask_b32 v4, v6, v4, s[38:39]'); a('v_lshl_add_u32 v4, v2, 12, v4')
    for r in (4, 7): a('v_lshrrev_b32 v8, 7, %s' % v(r)); a('v_lshl_add_u32 %s, v8, 4, %s' % (v(r), v(r)))
    a('v_add_u32 v11, s15, v4'); a('v_add_u32 v7, %d, v7' % LWS)
    a('v_add_u32 v12, %d, v11' % (7 * 576))
    a('v_cmp_eq_u32 vcc, s13, v2')
    a('s_and_b64 s[40:41], vcc, s[38:39]'); a('s_andn2_b64 s[38:39], vcc, s[38:39]')
    a('v_cndmask_b32 v10, v11, v7, s[40:41]'); a('v_cndmask_b32 v12, v12, v7, s[38:39]')
    a('s_lshl_b32 s23, s20, 5'); a('s_add_u32 s23, s23, s18')
    def y5cos():
        a('v_and_b32 v3, 15, v15'); a('v_lshrrev_b32 v4, 4, v15'); a('v_lshl_add_u32 v3, v3, 7, v4'); a('v_add_u32 v3, 1, v3')
        a('v_cmp_le_u32 vcc, 56, v15'); a('v_mov_b32 v4, %d' % (2048 - 1040)); a('v_cndmask_b32 v4, 0, v4, vcc'); a('v_add_u32 v4, v3, v4')
        for r in (3, 4):
            a('v_mul_u32_u24 %s, s23, %s' % (v(r), v(r))); a('v_and_b32 %s, 2047, %s' % (v(r), v(r)))
            a('v_cvt_f32_u32 %s, %s' % (v(r), v(r))); a('v_mul_f32 %s, %s, %s' % (v(r), fh(1.0 / 2048), v(r)))
        a('v_cvt_f32_u32 v5, s23'); a('v_mul_f32 v5, %s, v5' % fh(1.0 / 2048))
        angles(a, 5, 3, [32 * w + 4 * q for q in range(3) for w in range(4)], CS)
        angles(a, 5, 4, [32 * w + 12 for w in range(4)], CS + 12)
        for i in range(16): a('v_cos_f32 %s, %s' % (v(CS + i), v(CS + i)))
    a.inject_flush()
    stamp(a, 5)
    y5cos()
    a('v_add_u32 v9, %d, v14' % LROW)
    a('s_setprio 2')
    stamp(a, 6)
    a('s_barrier')
    stamp(a, 7)
    for k in range(8): a('ds_read_b128 %s, %s' % (v(A + 4 * k, 4), v(AD + k)))
    for q in range(4): a('ds_read_b128 %s, v9 offset:%d' % (v(C2 + 4 * q, 4), 1024 * (12 + q)))
    for k in range(8):
        a('s_waitcnt lgkmcnt(%d)' % (11 - k))
        a('v_mfma_f32_32x32x16_f16 %s, %s, %s, %s' % (v(V, 16), v(A + 4 * k, 4), v(B1 + 4 * k, 4), '0' if k == 0 else v(V, 16)))
    W = A
    for r in range(8): a('v_pk_mul_f32 %s, %s, %s' % (v(W + 2 * r, 2), v(V + 2 * r, 2), v(TC + 2 * r, 2)))
    for r in range(8): a('v_fmac_f32_dpp %s, %s, %s quad_perm:[1,0,3,2] %s' % (v(W + r), v(V + r), v(TS + r), DPPF))
    for p in range(4): a('v_cvt_pk_f16_f32 %s, %s, %s' % (v(T16 + p), v(W + 2 * p), v(W + 2 * p + 1)))
    rest = ['v_fmac_f32_dpp %s, %s, %s quad_perm:[1,0,3,2] %s' % (v(W + r), v(V + r), v(TS + r), DPPF) for r in range(8, 16)]
    rest += ['v_cvt_pk_f16_f32 %s, %s, %s' % (v(T16 + p), v(W + 2 * p), v(W + 2 * p + 1)) for p in range(4, 8)]
    for x in rest[0:2]: a(x)
    a('s_waitcnt lgkmcnt(0)')
    a('v_mfma_f32_32x32x16_f16 %s, %s, %s, 0' % (v(D1, 16), v(T16, 4), v(C2, 4)))
    for x in rest[2:7]: a(x)
    a('v_mfma_f32_32x32x16_f16 %s, %s, %s, 0' % (v(D2, 16), v(T16, 4), v(S2, 4)))
    for x in rest[7:]: a(x)
    for (Dd, B) in ((D1, C2), (D2, S2)):
        a('v_mfma_f32_32x32x16_f16 %s, %s, %s, %s' % (v(Dd, 16), v(T16 + 4, 4), v(B + 4, 4), v(Dd, 16)))
    for u in range(8):
        a('v_pk_add_f32 %s, %s, %s op_sel:[0,1] op_sel_hi:[1,0] neg_hi:[0,1]' % (v(A + 2 * u, 2), v(D1 + 2 * u, 2), v(D2 + 2 * u, 2)))
    for u in range(8):
        a('v_cvt_pk_bf16_f32 %s, %s, %s' % (v(B1 + u), v(A + 2 * u), v(A + 2 * u + 1)))
        if u == 0: a('ds_write_b32 v10, %s' % v(B1))
        elif u == 7: a('ds_write_b32 v12, %s' % v(B1 + 7))
        else: a('ds_write_b32 v11, %s offset:%d' % (v(B1 + u), 576 * u))
    stamp(a, 14, True)
    a.label('fk_common')
    a('v_lshrrev_b32 v5, 3, v15'); a('v_lshlrev_b32 v4, 10, v5'); a('v_and_b32 v6, 7, v15'); a('v_lshl_add_u32 v4, v6, 4, v4')
    a('s_mul_i32 s13, s16, 144'); a('s_add_u32 s13, s13, %d' % LWS)
    a('v_lshl_add_u32 v5, v5, 7, v4'); a('v_add_u32 v5, s13, v5')
    a('s_mul_i32 s17, s3, %d' % OS); a('s_lshl_b32 s13, s16, 7'); a('s_add_u32 s17, s17, s13'); a('s_add_u32 s17, s17, 0x%x' % YOFF)
    a('v_mov_b32 v3, %d' % (LSIG + 28)); a('v_lshrrev_b32 v47, 3, v15'); a('v_lshlrev_b32 v47, 4, v47')
    a('ds_read_b32 v3, v3')
    a('s_waitcnt lgkmcnt(0)'); a('s_barrier')
    stamp(a, 8)
    a('s_setprio 0')
    a('ds_read_b128 v[16:19], v5')
    a('v_readfirstlane_b32 s43, v3')
    XR, WP, YR, H, HN, HP, TMP, OUT = 20, 28, 36, 48, 64, 80, 96, 112
    a('s_sub_u32 s13, 7, s16'); a('s_cmp_lt_u32 s16, 4'); a('s_cselect_b32 s13, s16, s13'); a('s_cselect_b32 s14, 0, 2048')
    a('s_lshl_b32 s21, s13, 5'); a('s_add_u32 s21, s21, s18'); a('s_sub_u32 s22, 2048, s21'); a('s_and_b32 s22, s22, 2047')
    a('s_cmp_lt_u32 s16, 4'); a('s_cselect_b32 s21, s21, s22')
    a('s_lshl_b32 s13, s13, 12'); a('s_add_u32 s13, s13, s14'); a('s_add_u32 s13, s13, %d' % LX)
    a('s_lshl_b32 s14, s3, 3'); a('s_add_u32 s19, s14, s16')
    a('s_cmp_eq_u32 s19, %d' % (248 * 8 + 7)); a('s_cselect_b32 s21, 1024, s21'); a('s_cselect_b32 s13, %d, s13' % LX1024)
    a('s_lshl_b32 s22, s21, 11')
    a('v_add_u32 v6, s13, v14'); a('v_add_u32 v7, %d, v14' % LWR)
    a('s_waitcnt lgkmcnt(0)')
    if not YCHK:
        for i in range(4): a('v_min_u32 %s, -2, %s' % (v(16 + i), v(16 + i)))
    a('buffer_store_dwordx4 v[16:19], v4, s[24:27], s17 offen sc1')
    if YCHK:
        d0 = piece_sum(a, 46, 16, 0)
        a('s_add_u32 s17, s17, 8192')
        a(d0[0]); a('v_add_u32 v40, s43, v46')
        quad_gather(a, 40, 2)
        a('s_mov_b32 exec_lo, 0x01010101'); a('s_mov_b32 exec_hi, 0x01010101')
        a('buffer_store_dwordx4 v[40:43], v47, s[24:27], s17 offen sc1')
        a('s_mov_b64 exec, -1')
    a('ds_read_b128 %s, v6' % v(XR, 4)); a('ds_read_b128 %s, v6 offset:1024' % v(XR + 4, 4))
    a('ds_read_b128 %s, v7' % v(WP, 4)); a('ds_read_b128 %s, v7 offset:1024' % v(WP + 4, 4))
    a('s_cmp_lt_u32 s16, 4'); a('s_cbranch_scc1 fk_noy5')
    window(a, UE, KE, 16, 4, PE)
    G5R = 128
    a('v_add_u32 v3, %d, v14' % LG5); a('v_mov_b32 v4, %d' % LG5E)
    for q in range(4): a('ds_read_b128 %s, v3 offset:%d' % (v(G5R + 4 * q, 4), 1024 * q))
    a('ds_read_b32 v9, v4')
    a('s_lshl_b32 s38, s20, 2'); a('s_sub_u32 s39, 28, s38')
    a('s_waitcnt lgkmcnt(0)')
    a.label('fk_y5')
    for kk in range(2): a('v_pk_mul_f32 %s, %s, %s' % (v(144 + 2 * kk, 2), v(G5R + 2 * kk, 2), v(CS + 2 * kk, 2)))
    for kk in range(2, 8): a('v_pk_fma_f32 %s, %s, %s, %s' % (v(144 + 2 * (kk & 1), 2), v(G5R + 2 * kk, 2), v(CS + 2 * kk, 2), v(144 + 2 * (kk & 1), 2)))
    a('v_pk_add_f32 v[144:145], v[144:145], v[146:147]')
    a('v_add_f32 v144, v144, v145')
    a('s_lshl_b32 s13, s23, 31'); a('v_xor_b32 v12, s13, v9')
    wave_reduce(a, [144])
    a('v_add_f32 v144, v144, v12'); a('v_add_f32 v144, v144, v144'); rbf(a, 144)
    a('s_add_u32 s13, s38, %d' % LY5); a('s_add_u32 s14, s39, %d' % LY5)
    a('v_mov_b32 v10, s13'); a('v_mov_b32 v11, s14')
    a('s_mov_b32 exec_lo, 0'); a('s_mov_b32 exec_hi, 0x80000000')
    a('ds_write_b32 v10, v144'); a('ds_write_b32 v11, v144')
    a('s_mov_b64 exec, -1')
    a('s_cmp_lg_u32 s23, 0'); a('s_cbranch_scc1 fk_noy5')
    a('s_mov_b32 s23, 1024'); a('s_mov_b32 s38, 28')
    y5cos()
    a('s_branch fk_y5')
    a.label('fk_noy5')
    a('v_lshrrev_b32 v1, 1, v0'); a('v_and_b32 v45, 1, v0')
    a('v_lshrrev_b32 v2, 4, v1'); a('v_and_b32 v3, 15, v1')
    a('v_cmp_gt_u32 vcc, 8, v3')
    a('v_sub_u32 v6, 16, v3'); a('v_and_b32 v6, 7, v6'); a('v_sub_u32 v5, 31, v2')
    a('v_cndmask_b32 v6, v6, v3, vcc'); a('v_cndmask_b32 v5, v5, v2, vcc')
    a('v_lshl_add_u32 v4, v6, 5, v5'); a('v_mul_u32_u24 v47, %d, v4' % OS); a('v_lshl_add_u32 v4, v45, 4, v47')
    chkpos(a, 23); a('s_add_u32 s23, s23, 0x%x' % YOFF)
    a('s_lshl_b32 s17, s3, 5'); a('s_add_u32 s17, s17, 0x%x' % YOFF)
    a('v_cndmask_b32 v6, -1, 1, vcc')
    a('v_cmp_eq_u32 vcc, 8, v3')
    a('v_mul_u32_u24 v46, %d, v45' % (4 * RS)); a('v_add_u32 v46, %d, v46' % LROW)
    a('v_cndmask_b32 v6, v6, 15, vcc')
    a('v_lshlrev_b32 v9, 2, v1'); a('v_lshl_add_u32 v10, v6, 1, v9')
    a('v_add_u32 v9, v46, v9'); a('v_add_u32 v10, v46, v10')
    a('s_mul_i32 s36, s16, %d' % RS); a('s_add_u32 s36, s36, %d' % LROW); a('v_add_u32 v5, s36, v14')
    a('s_sub_u32 s36, 7, s16'); a('s_cmp_eq_u32 s21, 0'); a('s_cselect_b32 s36, 0, s36'); a('s_cmp_eq_u32 s21, 1024'); a('s_cselect_b32 s36, 7, s36')
    a('s_mul_i32 s36, s36, %d' % RS); a('s_add_u32 s36, s36, %d' % (LROW + 1008)); a('v_sub_u32 v11, s36, v14')
    a('v_mov_b32 v8, 0x10000')
    a('s_lshl_b32 s36, s16, 2'); a('s_add_u32 s36, s36, %d' % LY5); a('v_mov_b32 v6, s36')
    a('s_mov_b32 s36, 0xffff0000'); a('s_mov_b32 s37, 0x3f803f80'); a('s_mov_b32 s38, 8.0')
    a('s_waitcnt lgkmcnt(0)')
    for k in range(8):
        a('v_lshlrev_b32 %s, 16, %s' % (v(H + 2 * k), v(XR + k))); a('v_and_b32 %s, s36, %s' % (v(H + 2 * k + 1), v(XR + k)))
    a('v_mov_b32 v44, 0')
    for k in range(8): a('v_dot2c_f32_bf16 v44, s37, %s' % v(WP + k))
    wave_reduce(a, [44])
    a('v_readlane_b32 s39, v44, 63')
    a('s_mov_b32 s42, 0')
    a('s_waitcnt vmcnt(0)')
    stamp(a, 9)
    def scatter():
        for u in range(4):
            a('ds_write_b16 v9, %s offset:%d' % (v(YR + u), u * RS))
            a('ds_write_b16_d16_hi v10, %s offset:%d' % (v(YR + u), u * RS))
    a.label('fk_polly')
    a('buffer_load_dwordx4 %s, v4, s[24:27], s17 offen sc1' % v(YR, 4))
    if YCHK:
        a('buffer_load_dword v45, v47, s[24:27], s23 offen sc1')
        a('s_waitcnt vmcnt(1)')
        d0 = piece_sum(a, 46, YR, 0)
        scatter()
        a(d0[0]); a('v_add_u32 v46, s43, v46')
        a('s_waitcnt vmcnt(0)')
        a('v_cmp_ne_u32 vcc, v46, v45')
        poll_tail(a, 42, 'fk_polly', 'fk_goty')
    else:
        poll_check(a, list(range(YR, YR + 4)), 46, 42, 'fk_polly', 'fk_goty')
        scatter()
    stamp(a, 10)
    window(a, UC, KC, 16, 0, PC)
    a('v_mov_b32 v2, 0'); a('v_mov_b32 v3, 0'); a('v_mov_b32 v4, 0'); a('v_mov_b32 v7, 0')
    a('v_mov_b32 v12, %d' % LKEY)
    a('s_waitcnt lgkmcnt(0)')
    a('s_barrier')
    stamp(a, 11)
    a('ds_read_b128 %s, v5' % v(YR, 4)); a('ds_read_b128 %s, v11' % v(YR + 4, 4)); a('ds_read_b32 v44, v6')
    a('s_waitcnt lgkmcnt(2)')
    for k in range(4):
        a('v_lshlrev_b32 %s, 16, %s' % (v(HN + 2 * k), v(YR + k))); a('v_and_b32 %s, s36, %s' % (v(HN + 2 * k + 1), v(YR + k)))
    a('s_waitcnt lgkmcnt(0)')
    stamp(a, 15, True)
    a('v_readfirstlane_b32 s13, v44')
    a('v_mul_u32_u24_dpp %s, %s, v8 wave_shr:1 row_mask:0xf bank_mask:0xf' % (v(HN + 8), v(YR + 4)))
    for j in (3, 2, 1, 0):
        a('v_and_b32 %s, s36, %s' % (v(HN + 15 - 2 * j), v(YR + 4 + j)))
        if j: a('v_lshlrev_b32 %s, 16, %s' % (v(HN + 16 - 2 * j), v(YR + 4 + j)))
    a('v_writelane_b32 %s, s13, 0' % v(HN + 8))
    for k in [0, 1, 2, 3, 5, 6, 7, 4]:
        a('v_pk_fma_f32 %s, %s, s[38:39], %s op_sel_hi:[1,0,1]' % (v(H + 2 * k, 2), v(HN + 2 * k, 2), v(H + 2 * k, 2)))
    for k in [0, 1, 2, 3, 5, 6, 7, 4]: a('v_cvt_pk_bf16_f32 %s, %s, %s' % (v(HP + k), v(H + 2 * k), v(H + 2 * k + 1)))
    for k in [0, 1, 2, 3, 5, 6, 7, 4]:
        a('v_dot2c_f32_bf16 v2, s37, %s' % v(HP + k)); a('v_dot2c_f32_bf16 v3, %s, %s' % (v(HP + k), v(HP + k)))
        a('v_dot2c_f32_bf16 v4, %s, %s' % (v(HP + k), v(WP + k)))
    reduce4(a, 2, 4, 3, 7)
    a('v_readlane_b32 s13, v2, 32')
    ln_chain(a, 2, 8, 9)
    a('v_mov_b32 v10, s13'); a('v_fma_f32 v10, -v8, s39, v10'); a('v_mul_f32 v10, v10, v9'); a('v_mul_f32 v8, v8, v9')
    a('v_readlane_b32 s43, v10, 16'); a('v_readlane_b32 s4, v9, 16'); a('v_readlane_b32 s6, v8, 16')
    a('s_ashr_i32 s13, s43, 31'); a('s_or_b32 s13, s13, 0x80000000'); a('s_xor_b32 s43, s43, s13')
    a('s_and_b32 s43, s43, 0xfffff800'); a('s_or_b32 s43, s43, s19'); a('s_min_u32 s43, s43, -2')
    a('v_mov_b32 v2, s43')
    a('s_mov_b64 exec, 1')
    a('ds_max_u32 v12, v2')
    a('s_mov_b64 exec, -1')
    stamp(a, 16, True)
    a('v_mov_b32 v10, s6'); a('v_add_f32 v8, 1.0, v9')
    a('v_lshlrev_b32 v4, 12, v15'); a('s_lshl_b32 s17, s3, 4'); a('s_add_u32 s17, s17, 0x%x' % KEYS)
    a('v_readlane_b32 s14, v8, 16')
    a('s_waitcnt lgkmcnt(0)')
    a('s_barrier')
    a('ds_read_b32 v3, v12')
    for k in range(8):
        a('v_lshlrev_b32 %s, 16, %s' % (v(H + 2 * k), v(HP + k))); a('v_and_b32 %s, s36, %s' % (v(H + 2 * k + 1), v(HP + k)))
    a('s_waitcnt lgkmcnt(0)')
    a('v_readfirstlane_b32 s13, v3')
    stamp(a, 12)
    stamp(a, 17, True)
    def out_regs():
        for k in range(8):
            a('v_pk_fma_f32 %s, %s, s[14:15], v[10:11] op_sel_hi:[1,0,0] neg_lo:[0,0,1] neg_hi:[0,0,1]' % (v(HN + 2 * k, 2), v(H + 2 * k, 2)))
        for k in range(8): a('v_cvt_pk_bf16_f32 %s, %s, %s' % (v(OUT + k), v(HN + 2 * k), v(HN + 2 * k + 1)))
    def out_store():
        a('buffer_store_dwordx4 %s, v14, s[28:31], s22 offen%s' % (v(OUT, 4), OUTF))
        a('buffer_store_dwordx4 %s, v14, s[28:31], s22 offen offset:1024%s' % (v(OUT + 4, 4), OUTF))
    AH, BF, BD, ACC, KEY, PP, D2R = 16, 128, 160, 176, 180, 184, 192
    def frag_preload():
        a('v_lshrrev_b32 v1, 4, v15'); a('v_bfe_u32 v2, v15, 2, 2')
        a('v_lshl_add_u32 v8, v1, 3, v2'); a('v_lshlrev_b32 v8, 7, v8')
        a('v_and_b32 v3, 2, v2'); a('v_xor_b32 v9, s16, v3'); a('v_and_b32 v3, 1, v1'); a('v_lshlrev_b32 v4, 2, v3'); a('v_xor_b32 v9, v4, v9')
        a('v_lshl_add_u32 v8, v9, 4, v8'); a('v_and_b32 v9, 1, v15'); a('v_lshl_add_u32 v8, v9, 3, v8')
        a('v_bfe_u32 v9, v15, 1, 1'); a('v_lshl_add_u32 v8, v9, 15, v8')
        a('v_lshrrev_b32 v7, 1, v1'); a('v_lshl_add_u32 v7, v7, 3, v2'); a('v_lshlrev_b32 v7, 9, v7'); a('v_lshl_add_u32 v7, v3, 5, v7')
        a('v_and_b32 v3, 3, v15'); a('v_lshl_add_u32 v7, v3, 3, v7'); a('s_lshl_b32 s15, s16, 6'); a('s_add_u32 s15, s15, %d' % LD); a('v_add_u32 v7, s15, v7')
        a('v_lshlrev_b32 v9, 4, v1'); a('v_add_u32 v9, %d, v9' % LHN)
    def landed_add():
        if LATE:
            a('v_mov_b32 v1, %d' % (LSIG + 48)); a('v_mov_b32 v2, 1'); a('s_mov_b64 exec, 1'); a('ds_add_u32 v1, v2'); a('s_mov_b64 exec, -1')
    def frag_reads(tag):
        if LATE:
            a.label('fk_land' + tag)
            a('ds_read_b32 v2, v1'); a('s_waitcnt lgkmcnt(0)'); a('v_readfirstlane_b32 s15, v2')
            a('s_cmp_lt_u32 s15, 8'); a('s_cbranch_scc1 fk_land' + tag)
        for k in range(8):
            a('ds_read_b64_tr_b16 %s, v8 offset:%d' % (v(BF + 4 * k, 2), 4096 * k))
            a('ds_read_b64_tr_b16 %s, v8 offset:%d' % (v(BF + 4 * k + 2, 2), 4096 * k + 512))
            if k == 5: a('s_waitcnt lgkmcnt(4)')
    a('s_cmp_lg_u32 s13, s43'); a('s_cbranch_scc1 fk_other')
    a('s_mov_b64 exec, 0xff')
    a('buffer_store_dword v2, v4, s[24:27], s17 offen sc1')
    a('s_mov_b64 exec, -1')
    for k in range(8):
        a('v_pk_fma_f32 %s, %s, s[4:5], v[10:11] op_sel_hi:[1,0,0] neg_lo:[0,0,1] neg_hi:[0,0,1]' % (v(HN + 2 * k, 2), v(H + 2 * k, 2)))
    for k in range(8): a('v_cvt_pk_bf16_f32 %s, %s, %s' % (v(TMP + k), v(HN + 2 * k), v(HN + 2 * k + 1)))
    for k in range(8): a('v_min_u32 %s, -2, %s' % (v(TMP + k), v(TMP + k)))
    a('s_lshl_b32 s13, s3, 12'); a('s_add_u32 s13, s13, 0x%x' % CAND)
    a('buffer_store_dwordx4 %s, v14, s[24:27], s13 offen sc1' % v(TMP, 4))
    a('buffer_store_dwordx4 %s, v14, s[24:27], s13 offen offset:1024 sc1' % v(TMP + 4, 4))
    for k in range(8): a('v_min_u32 %s, -2, %s' % (v(HP + k), v(HP + k)))
    a('buffer_store_dwordx4 %s, v14, s[24:27], s13 offen offset:2048 sc1' % v(HP, 4))
    a('buffer_store_dwordx4 %s, v14, s[24:27], s13 offen offset:3072 sc1' % v(HP + 4, 4))
    out_regs()
    frag_preload()
    if not LATE: frag_reads('a')
    a('s_and_b32 s13, s2, 7'); a('s_lshl_b32 s13, s13, 12'); a('s_add_u32 s13, s13, 0x%x' % KEYS)
    a('s_mov_b32 s42, 0')
    a('s_waitcnt vmcnt(4)')
    landed_add()
    a.label('fk_pollk')
    for i in range(4): a('buffer_load_dword %s, v14, s[24:27], s13 offen offset:%d sc1' % (v(KEY + i), 1024 * i))
    poll_check(a, list(range(KEY, KEY + 4)), 3, 42, 'fk_pollk', 'fk_gotk')
    stamp(a, 13)
    wave_reduce(a, [3], op='v_max_u32')
    a('v_readlane_b32 s40, v3, 63')
    a('v_mov_b32 v4, %d' % LWIN)
    a('s_bfe_u32 s13, s40, 0x80003'); a('s_lshl_b32 s13, s13, 12'); a('s_and_b32 s14, s3, 3'); a('s_lshl_b32 s14, s14, 9')
    a('s_add_u32 s13, s13, s14'); a('s_add_u32 s13, s13, 0x%x' % CAND)
    a('v_lshlrev_b32 v5, 3, v15'); a('v_mov_b32 v3, s40')
    a('s_cmp_gt_u32 s3, 223'); a('s_cbranch_scc1 fk_norow')
    a('s_mov_b32 s42, 0')
    if LATE:
        a('buffer_load_dwordx2 %s, v5, s[24:27], s13 offen sc1' % v(KEY, 2))
        frag_reads('a')
        a('s_branch fk_chkr')
    a.label('fk_pollr')
    a('buffer_load_dwordx2 %s, v5, s[24:27], s13 offen sc1' % v(KEY, 2))
    a.label('fk_chkr')
    poll_check(a, [KEY, KEY + 1], 6, 42, 'fk_pollr', 'fk_gotr')
    a('v_add_u32 v5, %d, v5' % LHN)
    a('ds_write_b64 v5, %s' % v(KEY, 2))
    a.label('fk_norow')
    a('ds_write_b32 v4, v3')
    a('s_waitcnt lgkmcnt(0)')
    a('s_barrier')
    a('s_cmp_eq_u32 s40, s43')
    if OUTAT == 'early':
        a('s_cbranch_scc1 fk_ffn')
        out_store()
    else: a('s_cselect_b32 s22, 0x400000, s22')
    a('s_branch fk_ffn')
    a.label('fk_other')
    out_regs()
    if OUTAT == 'early': out_store()
    a('s_and_b32 s13, s13, 7'); a('s_cmp_gt_u32 s16, s13'); a('s_cselect_b32 s13, 1, 0'); a('s_sub_u32 s17, s16, s13')
    if UD >= 64:
        if LATE: a('s_waitcnt vmcnt(0)')
        frag_preload()
        landed_add()
        window(a, UD, KD, 17, 0, PD)
        frag_reads('b')
        a('s_waitcnt lgkmcnt(0)' if DLATE else 's_waitcnt vmcnt(0) lgkmcnt(0)')
    else:
        window(a, UD, KD, 17, 0, PD)
        frag_preload()
        a('s_waitcnt vmcnt(0)')
        landed_add()
        frag_reads('b')
        a('s_waitcnt lgkmcnt(0)')
    a('s_barrier')
    a.label('fk_ffn')
    stamp(a, 14)
    if OUTAT == 'bf': out_store()
    a('s_cmp_gt_u32 s3, 223'); a('s_cbranch_scc1 %s' % ('fk_lateout' if OUTAT in ('p1', 'end') else 'fk_fin'))
    for k in range(8): a('ds_read_b128 %s, v9 offset:%d' % (v(AH + 4 * k, 4), 64 * k))
    a('v_mov_b32 v3, %d' % LWIN); a('ds_read_b32 v12, v3')
    a('v_lshlrev_b32 v4, 3, v15')
    a('s_lshl_b32 s13, s3, 9'); a('s_lshl_b32 s14, s16, 6'); a('s_add_u32 s13, s13, s14'); a('s_add_u32 s13, s13, 0x%x' % P1)
    for k in range(8):
        a('s_waitcnt lgkmcnt(%d)' % (8 - k))
        a('v_mfma_f32_16x16x32_bf16 %s, %s, %s, %s' % (v(ACC, 4), v(AH + 4 * k, 4), v(BF + 4 * k, 4), '0' if k == 0 else v(ACC, 4)))
    a('v_lshlrev_b32 v5, 3, v15'); a('v_lshlrev_b32 v6, 2, v15')
    a('v_lshrrev_b32 v9, 5, v15'); a('v_lshlrev_b32 v9, 4, v9'); a('v_add_u32 v9, %d, v9' % LACT)
    a('s_lshl_b32 s41, s3, 10'); a('s_lshl_b32 s14, s16, 7'); a('s_add_u32 s41, s41, s14'); a('s_add_u32 s41, s41, 0x%x' % P2)
    a('v_min_u32 %s, -2, %s' % (v(ACC), v(ACC)))
    a('v_mov_b32_dpp %s, %s row_shl:8 %s' % (v(ACC + 1), v(ACC), DPPF))
    a('v_mov_b32_dpp %s, %s row_shl:1 %s' % (v(ACC + 2), v(ACC), DPPF))
    a('v_mov_b32_dpp %s, %s row_shl:9 %s' % (v(ACC + 3), v(ACC), DPPF))
    a('s_mov_b64 exec, 0x55')
    a('buffer_store_dwordx4 %s, v4, s[24:27], s13 offen sc1' % v(ACC, 4))
    a('s_mov_b64 exec, -1')
    if OUTAT == 'p1': out_store()
    def bd_reads(tag, add=True):
        if DLATE:
            if add:
                a('s_waitcnt vmcnt(0)')
                a('s_mov_b64 exec, 1'); a('ds_add_u32 v1, v8'); a('s_mov_b64 exec, -1')
            a.label('fk_dl' + tag)
            a('ds_read_b32 v13, v1'); a('s_waitcnt lgkmcnt(0)'); a('v_readfirstlane_b32 s15, v13')
            a('s_cmp_lt_u32 s15, 8'); a('s_cbranch_scc1 fk_dl' + tag)
        for kk in range(4):
            a('ds_read_b64_tr_b16 %s, v7 offset:%d' % (v(BD + 4 * kk, 2), 8192 * kk))
            a('ds_read_b64_tr_b16 %s, v7 offset:%d' % (v(BD + 4 * kk + 2, 2), 8192 * kk + 2048))
    a('v_mov_b32 v1, %d' % (LSIG + 52)); a('v_mov_b32 v8, 1')
    if not DLATE: bd_reads('')
    a('s_cmp_eq_u32 s16, 7'); a('s_cbranch_scc1 fk_c1')
    a('s_cmp_lg_u32 s16, 0'); a('s_cbranch_scc1 %s' % ('fk_bd' if DLATE else 'fk_wait1'))
    a('s_lshr_b32 s13, s3, 2'); a('s_lshl_b32 s13, s13, 11'); a('s_add_u32 s13, s13, 0x%x' % P1)
    a('s_mov_b32 s42, 0')
    a('v_lshrrev_b32 v10, 2, v5'); a('v_add_u32 v10, %d, v10' % LACT)
    a('s_waitcnt vmcnt(%d)' % (2 if OUTAT == 'p1' else 0))
    if DLATE: a('s_mov_b64 exec, 1'); a('ds_add_u32 v1, v8'); a('s_mov_b64 exec, -1')
    a.label('fk_poll1')
    for i in range(4): a('buffer_load_dwordx2 %s, v5, s[24:27], s13 offen offset:%d sc1' % (v(PP + 2 * i, 2), 512 * i))
    poll_check(a, list(range(PP, PP + 8)), 11, 42, 'fk_poll1', 'fk_got1')
    stamp(a, 15)
    a('v_pk_add_f32 %s, %s, %s' % (v(PP, 2), v(PP, 2), v(PP + 2, 2))); a('v_pk_add_f32 %s, %s, %s' % (v(PP + 4, 2), v(PP + 4, 2), v(PP + 6, 2)))
    a('v_pk_add_f32 %s, %s, %s' % (v(PP, 2), v(PP, 2), v(PP + 4, 2)))
    rbf(a, PP); rbf(a, PP + 1)
    a('v_mul_f32 %s, %s, %s' % (v(PP + 2), fh(-1.4426950408889634), v(PP)))
    a('v_exp_f32 %s, %s' % (v(PP + 2), v(PP + 2)))
    a('v_add_f32 %s, 1.0, %s' % (v(PP + 2), v(PP + 2)))
    a('v_rcp_f32 %s, %s' % (v(PP + 2), v(PP + 2)))
    a('v_mul_f32 %s, %s, %s' % (v(PP), v(PP), v(PP + 2)))
    rbf(a, PP)
    a('v_mul_f32 %s, %s, %s' % (v(PP), v(PP), v(PP + 1)))
    rbf(a, PP)
    a('ds_write_b16_d16_hi v10, %s' % v(PP))
    if DLATE: bd_reads('a', False)
    a('s_branch fk_wait1')
    a.label('fk_c1')
    a('s_cmp_gt_u32 s3, 127'); a('s_cbranch_scc1 %s' % ('fk_bd' if DLATE else 'fk_wait1'))
    a('s_waitcnt lgkmcnt(0)')
    a('v_readfirstlane_b32 s40, v12')
    a('v_lshrrev_b32 v10, 4, v15'); a('v_and_b32 v11, 1, v15'); a('v_lshl_add_u32 v12, v11, 2, v10'); a('v_lshlrev_b32 v12, 1, v12')
    a('v_and_b32 v11, 12, v12'); a('v_and_b32 v10, 1, v10')
    a('s_bfe_u32 s13, s40, 0x80003'); a('s_lshl_b32 s14, s13, 12'); a('s_lshl_b32 s15, s3, 4'); a('s_add_u32 s14, s14, s15'); a('s_add_u32 s14, s14, 0x%x' % CAND)
    a('s_mov_b32 s42, 0')
    a.label('fk_pollh')
    a('buffer_load_dword v2, v11, s[24:27], s14 offen sc1')
    a('buffer_load_dword v3, v11, s[24:27], s14 offen offset:2048 sc1')
    poll_check(a, [2, 3], 4, 42, 'fk_pollh', 'fk_goth')
    a('v_cmp_eq_u32 vcc, 1, v10')
    for r in (2, 3):
        a('v_lshlrev_b32 v4, 16, %s' % v(r)); a('v_and_b32 %s, s36, %s' % (v(r), v(r))); a('v_cndmask_b32 %s, v4, %s, vcc' % (v(r), v(r)))
    a('s_lshr_b32 s14, s13, 4'); a('s_add_u32 s14, s14, 1'); a('s_cmp_ge_u32 s13, 248'); a('s_cselect_b32 s14, 0, s14')
    a('s_cmp_ge_u32 s13, 240'); a('s_cselect_b32 s15, 7, 15'); a('s_and_b32 s15, s15, s13'); a('s_lshl_b32 s15, s15, 7'); a('s_add_u32 s14, s14, s15')
    a('s_and_b32 s13, s40, 7'); a('s_sub_u32 s15, 7, s13'); a('s_min_u32 s15, s15, s13'); a('s_lshl_b32 s15, s15, 5'); a('s_add_u32 s14, s14, s15')
    a('s_sub_u32 s15, 2048, s14'); a('s_and_b32 s15, s15, 2047'); a('s_cmp_lt_u32 s13, 4'); a('s_cselect_b32 s14, s14, s15')
    a('s_and_b32 s13, s40, 0x7ff'); a('s_cmp_eq_u32 s13, %d' % (248 * 8 + 7)); a('s_cselect_b32 s14, 1024, s14')
    a('s_lshl_b32 s21, s14, 11'); a('s_lshl_b32 s15, s3, 4'); a('s_add_u32 s21, s21, s15')
    a('s_ashr_i32 s13, s40, 31'); a('s_not_b32 s13, s13'); a('s_or_b32 s13, s13, 0x80000000'); a('s_xor_b32 s13, s40, s13'); a('s_and_b32 s13, s13, 0xfffff800')
    a('v_mov_b32 v11, s13'); rbf(a, 11)
    a('v_mul_f32 v11, %s, v11' % fh(-1.4426950408889634))
    a('v_exp_f32 v11, v11'); a('v_add_f32 v11, 1.0, v11'); a('v_rcp_f32 v11, v11'); rbf(a, 11)
    a('v_lshrrev_b32 v4, 1, v15'); a('v_lshlrev_b32 v4, 12, v4'); a('v_and_b32 v5, 1, v15'); a('v_lshl_add_u32 v4, v5, 4, v4')
    a('v_add_u32 v5, %d, v4' % (32 * 4096)); a('v_cmp_gt_u32 vcc, 48, v15'); a('v_cndmask_b32 v5, -16, v5, vcc')
    a('s_lshl_b32 s40, s3, 5'); a('s_add_u32 s40, s40, 0x%x' % P2)
    if DLATE:
        a.label('fk_bd')
        bd_reads('b')
    a.label('fk_wait1')
    a('s_waitcnt lgkmcnt(0)'); a('s_barrier')
    stamp(a, 16)
    for kk in range(4): a('ds_read_b128 %s, v9 offset:%d' % (v(AH + 4 * kk, 4), 32 * kk))
    for kk in range(4):
        a('s_waitcnt lgkmcnt(%d)' % (3 - kk))
        a('v_mfma_f32_32x32x16_bf16 %s, %s, %s, %s' % (v(D2R, 16), v(AH + 4 * kk, 4), v(BD + 4 * kk, 4), '0' if kk == 0 else v(D2R, 16)))
    a('v_min_u32 %s, -2, %s' % (v(D2R), v(D2R)))
    quad_gather(a, D2R, 1)
    a('s_mov_b32 exec_lo, 0x11111111'); a('s_mov_b32 exec_hi, 0')
    a('buffer_store_dwordx4 %s, v6, s[24:27], s41 offen sc1' % v(D2R, 4))
    a('s_mov_b64 exec, -1')
    if OUTAT == 'end': out_store()
    stamp(a, 17)
    a('s_cmp_lg_u32 s16, 7'); a('s_cbranch_scc1 fk_fin')
    a('s_cmp_gt_u32 s3, 127'); a('s_cbranch_scc1 fk_fin')
    PQ = 16
    a('s_mov_b32 s42, 0')
    a('s_waitcnt vmcnt(%d)' % (2 if OUTAT == 'end' else 0))
    a.label('fk_poll2')
    a('buffer_load_dwordx4 %s, v4, s[24:27], s40 offen sc1' % v(PQ, 4))
    a('buffer_load_dwordx4 %s, v5, s[24:27], s40 offen sc1' % v(PQ + 4, 4))
    poll_check(a, list(range(PQ, PQ + 8)), 6, 42, 'fk_poll2', 'fk_got2')
    stamp(a, 18)
    for h in range(2): a('v_pk_add_f32 %s, %s, %s' % (v(PQ + 2 * h, 2), v(PQ + 2 * h, 2), v(PQ + 4 + 2 * h, 2)))
    for i in range(2): a('v_permlane32_swap_b32 %s, %s' % (v(PQ + i), v(PQ + 2 + i)))
    for i in range(2): a('v_add_f32 %s, %s, %s' % (v(PQ + i), v(PQ + i), v(PQ + 2 + i)))
    a('v_permlane16_swap_b32 %s, %s' % (v(PQ), v(PQ + 1)))
    a('v_add_f32 %s, %s, %s' % (v(PQ), v(PQ), v(PQ + 1)))
    a('v_add_f32_dpp %s, %s, %s quad_perm:[2,3,0,1] %s' % (v(PQ), v(PQ), v(PQ), DPPF))
    a('v_add_f32_dpp %s, %s, %s row_ror:4 %s' % (v(PQ), v(PQ), v(PQ), DPPF))
    a('v_add_f32_dpp %s, %s, %s row_ror:8 %s' % (v(PQ), v(PQ), v(PQ), DPPF))
    rbf(a, PQ); a('v_mul_f32 %s, %s, v11' % (v(PQ), v(PQ))); rbf(a, PQ)
    a('v_add_f32 %s, %s, v2' % (v(PQ), v(PQ))); rbf(a, PQ)
    a('v_add_f32 %s, %s, v3' % (v(PQ), v(PQ))); rbf(a, PQ)
    a('s_mov_b32 exec_lo, 0x00030003'); a('s_mov_b32 exec_hi, 0x00030003')
    a('buffer_store_short_d16_hi %s, v12, s[28:31], s21 offen' % v(PQ))
    if OUTAT in ('p1', 'end'):
        a('s_branch fk_fin')
        a.label('fk_lateout')
        out_store()
    a.label('fk_fin')
    stamp_dump(a, 'x')
    a.label('fk_end')
    a('s_endpgm')

def main(path):
    a = Asm()
    ref = open('%s/%s.s.ref' % (optval('ref', '/code'), NAME)).read().splitlines()
    for l in ref:
        if l.startswith('; Override'): break
        a.raw(l)
    if LIST: a.raw('; @launch kernel=%s grid=(256,1,1) block=(512,1,1) lds=%d' % (KN, LDSB))
    else: a.raw('; @launch grid=(256,1,1) block=(512,1,1) lds=%d' % LDSB)
    a.raw('.amdgcn_target "amdgcn-amd-amdhsa--gfx950"'); a.raw('.text')
    gen(a)
    a.raw('.section .rodata,"a"')
    a.raw('\n'.join(['.p2align 6', '.amdhsa_kernel %s' % KN, '  .amdhsa_next_free_vgpr 256',
        '  .amdhsa_next_free_sgpr 102', '  .amdhsa_accum_offset 256', '  .amdhsa_group_segment_fixed_size 0',
        '  .amdhsa_kernarg_size 104', '  .amdhsa_user_sgpr_count 2', '  .amdhsa_user_sgpr_kernarg_segment_ptr 1',
        '  .amdhsa_system_sgpr_workgroup_id_x 1', '.end_amdhsa_kernel', '']))
    open(path, 'w').write(a.text())
    print('wrote', path, 'lines', len(a.lines), 'nops', a.nops, 'lds', LDSB)

if __name__ == '__main__':
    ps = [x for x in sys.argv[1:] if x.endswith('.s')]
    main(ps[0] if ps else '/code/%s.s' % NAME)
```

```python
import struct, sys
from asmlib import Asm

NAME = 'sequential_preLN__spectral_fnet__moe_arch_mod__prompt'
def fh(x): return '0x%08x' % struct.unpack('<I', struct.pack('<f', x))[0]
OPT = set(a for a in sys.argv[1:] if a.startswith('--'))
def optval(name, default):
    for o in OPT:
        if o.startswith('--%s=' % name): return o[len(name) + 3:]
    return default
STAMPS = '--stamps' in OPT
LIST = '--list' in OPT or STAMPS
OUTF = {'plain': '', 'nt': ' nt', 'sc1': ' sc1'}[optval('out', 'nt')]
OUTAT = optval('outat', 'bf')
KN = 'fk_kernel' if LIST else NAME + '_kernel'

KEYS = 0x9000; G5 = 0x11000
OHN, OH, OP1, OP2 = 0, 2048, 4096, 5120
OS = 9344
YS = 8320
WOFF = 0x20000; YOFF = WOFF + 256 * OS; WSB = YOFF + 256 * YS
LG, LD, LX = 0, 65536, 98304
LX1024 = LX + 5 * 4096
LWS = LX1024 + 2048
LA2 = LWS + 9472
RS = 2064
LROW = LA2 + 8192
LWR = LROW + 8 * RS
LG5 = LX + 4 * 4096
LMISC = LWR + 2048
LG5S, LY5, LKEY, LWIN, LG5E, LACT, LHN, LSIG = LMISC, LMISC + 32, LMISC + 64, LMISC + 80, LMISC + 96, LMISC + 128, LMISC + 256, LMISC + 768
LDSB = LMISC + 832
assert LDSB <= 163840

def v(i, n=1): return 'v%d' % i if n == 1 else 'v[%d:%d]' % (i, i + n - 1)
def s(i, n=1): return 's%d' % i if n == 1 else 's[%d:%d]' % (i, i + n - 1)
DPPF = 'row_mask:0xf bank_mask:0xf'
ROWRED = ['quad_perm:[1,0,3,2] ' + DPPF, 'quad_perm:[2,3,0,1] ' + DPPF, 'row_half_mirror ' + DPPF, 'row_mirror ' + DPPF]
def wave_reduce(a, regs, op='v_add_f32'):
    for pat in ROWRED + ['row_bcast:15 row_mask:0xa bank_mask:0xf', 'row_bcast:31 row_mask:0xc bank_mask:0xf']:
        for r in regs: a('%s_dpp %s, %s, %s %s' % (op, v(r), v(r), v(r), pat))
def rbf(a, r): a('v_cvt_pk_bf16_f32 %s, 0, %s' % (v(r), v(r)))
def angles(a, mulreg, basereg, ks, tmp):
    for i, k in enumerate(ks):
        if k == 0: a('v_mov_b32 %s, %s' % (v(tmp + i), v(basereg)))
        else: a('v_fmamk_f32 %s, %s, %s, %s' % (v(tmp + i), v(mulreg), fh(float(k)), v(basereg)))
def kr(r): return (r & 3) + 8 * (r >> 2)
def gen_c2s2(a, vln_f, vlh4_f, C2, S2, tmp):
    c, b = tmp, tmp + 1
    a('v_mul_f32 %s, %s, %s' % (v(c), fh(1.0 / 32), v(vln_f)))
    a('v_mul_f32 %s, %s, %s' % (v(b), v(c), v(vlh4_f)))
    ang = tmp + 2
    angles(a, c, b, [kr(r) for r in range(16)], ang)
    for r in range(16): a('v_cos_f32 %s, %s' % (v(ang + 16 + r), v(ang + r)))
    for p in range(8): a('v_cvt_pk_f16_f32 %s, %s, %s' % (v(C2 + p), v(ang + 16 + 2 * p), v(ang + 17 + 2 * p)))
    for r in range(16): a('v_sin_f32 %s, %s' % (v(ang + 16 + r), v(ang + r)))
    for p in range(8): a('v_cvt_pk_f16_f32 %s, %s, %s' % (v(S2 + p), v(ang + 16 + 2 * p), v(ang + 17 + 2 * p)))
def reduce4(a, A, B, C, D):
    a('v_permlane32_swap_b32 %s, %s' % (v(A), v(B))); a('v_permlane32_swap_b32 %s, %s' % (v(C), v(D)))
    a('v_add_f32 %s, %s, %s' % (v(A), v(A), v(B))); a('v_add_f32 %s, %s, %s' % (v(C), v(C), v(D)))
    a('v_permlane16_swap_b32 %s, %s' % (v(A), v(C)))
    a('v_add_f32 %s, %s, %s' % (v(A), v(A), v(C)))
    for pat in ROWRED: a('v_add_f32_dpp %s, %s, %s %s' % (v(A), v(A), v(A), pat))
def ln_chain(a, tot, m, t):
    a('v_mov_b32_dpp %s, %s row_bcast:15 row_mask:0xa bank_mask:0xf' % (v(m), v(tot)))
    a('v_mul_f32 %s, %s, %s' % (v(t), fh(1.0 / 1024), v(tot)))
    a('v_mul_f32 %s, %s, %s' % (v(m), fh(1.0 / 1024), v(m)))
    a('v_fma_f32 %s, -%s, %s, %s' % (v(t), v(m), v(m), v(t)))
    a('v_max_f32 %s, 0, %s' % (v(t), v(t)))
    rbf(a, t); rbf(a, m)
    a('v_add_f32 %s, %s, %s' % (v(t), fh(1e-5), v(t))); rbf(a, t)
    a('v_sqrt_f32 %s, %s' % (v(t), v(t))); rbf(a, t)
    a('v_rcp_f32 %s, %s' % (v(t), v(t)))

NST = 20
EARLY = '--early' in OPT
def stamp(a, i, early=False):
    if STAMPS and (early == EARLY or i < 12 or i == NST - 1): a('s_memrealtime s[%d:%d]' % (60 + 2 * i, 61 + 2 * i))
def stamp_dump(a, tag):
    if not STAMPS: return
    a('s_waitcnt vmcnt(0) lgkmcnt(0)')
    stamp(a, NST - 1)
    a('s_load_dwordx2 s[4:5], s[0:1], 96'); a('s_waitcnt lgkmcnt(0)')
    a('s_add_u32 s4, s4, 0x8000000'); a('s_addc_u32 s5, s5, 0'); a('s_mov_b32 s6, 0x40000'); a('s_mov_b32 s7, 0x00020000')
    a('s_lshl_b32 s12, s2, 3'); a('s_add_u32 s12, s12, s16'); a('s_lshl_b32 s12, s12, 7')
    a('s_mov_b64 exec, 1'); a('v_mov_b32 v1, 0')
    for i in range(NST):
        a('v_mov_b32 v2, s%d' % (60 + 2 * i)); a('buffer_store_dword v2, v1, s[4:7], s12 offen offset:%d' % (4 * i))

NH = int(optval('nh', '4'))
KA = int(optval('ka', '0')); CPOST = '--cpost' in OPT
KB, KE, KC, KD = (int(x) for x in optval('win', '4,0,5,4').split(','))
PB, PE, PC, PD = (int(x) for x in optval('wpace', '99,99,99,99').split(','))
assert '--now' in OPT or 3 * NH + 4 * KA + 4 * KB + 4 * KE + 8 * KC + 7 * KD >= 96, 'units missing'
def unit_setup(a):
    a('v_lshrrev_b32 v208, 3, v15'); a('v_and_b32 v209, 7, v15'); a('v_and_b32 v210, 2, v208'); a('v_xor_b32 v209, v210, v209')
    a('v_mul_u32_u24 v208, 7168, v208'); a('v_lshl_add_u32 v208, v209, 4, v208')
    a('v_lshrrev_b32 v210, 5, v15'); a('v_lshlrev_b32 v210, 11, v210'); a('v_and_b32 v209, 31, v15'); a('v_lshl_add_u32 v210, v209, 4, v210')
    a('s_and_b32 s12, s3, 3'); a('s_mul_i32 s100, s12, %d' % (256 * 7168)); a('s_lshl_b32 s101, s12, 9')
    a('s_lshr_b32 s12, s3, 2'); a('s_lshl_b32 s12, s12, 7'); a('s_add_u32 s100, s100, s12'); a('s_lshl_b32 s12, s12, 10'); a('s_add_u32 s101, s101, s12')
uid = [0]
def window(a, first, k, wreg, wbase, pace=99, skip=None):
    if k == 0 or first >= 96: return
    uid[0] += 1; lab = skip or 'fk_win%d' % uid[0]
    a('s_cmp_gt_u32 s3, 223'); a('s_cbranch_scc1 %s' % lab)
    a('s_mul_i32 s15, %s, %d' % (s(wreg), k)); a('s_add_u32 s15, s15, %d' % (first - wbase * k))
    a('s_mov_b32 s58, 0x700000'); a('s_mov_b32 s59, 0x00020000')
    for i in range(k):
        a('s_cmp_gt_u32 s15, 95'); a('s_cbranch_scc1 %s' % lab)
        a('s_lshl_b32 s12, s15, 10'); a('s_mov_b32 m0, s12')
        a('s_and_b32 s14, s12, 1024'); a('s_lshr_b32 s14, s14, 4'); a('v_xor_b32 v209, s14, v208')
        a('s_cmp_lt_u32 s15, 32'); a('s_cselect_b64 s[56:57], s[44:45], s[48:49]')
        a('s_and_b32 s14, s15, 31'); a('s_mul_i32 s13, s14, %d' % (8 * 7168)); a('s_add_u32 s13, s13, s100')
        a('s_lshl_b32 s14, s14, 12'); a('s_add_u32 s14, s14, s101')
        a('s_cmp_lt_u32 s15, 64'); a('s_cselect_b64 s[56:57], s[56:57], s[52:53]'); a('s_cselect_b32 s13, s13, s14'); a('s_cselect_b64 vcc, -1, 0')
        a('v_cndmask_b32 v209, v210, v209, vcc')
        a('s_add_u32 s15, s15, 1')
        if i >= pace: a('s_waitcnt vmcnt(%d)' % pace)
        a('buffer_load_dwordx4 v209, s[56:59], s13 offen lds')
    if not skip: a.label(lab)
UA = 3 * NH; UB = UA + 4 * KA; UE = UB + 4 * KB; UC = UE + 4 * KE; UD = UC + 8 * KC
LATE = UC < 64 and '--now' not in OPT
DLATE = UD >= 64 and UD < 96 and KD > 0 and '--nodlate' not in OPT
BASE = int(optval('base', '0'), 0)
WOUT = '--wout' in OPT
WSRD = 's[28:31]' if WOUT else 's[24:27]'
if WOUT: WOFF = 0
def rebase(a):
    if BASE: a('s_add_u32 s24, s24, 0x%x' % BASE); a('s_addc_u32 s25, s25, 0')
def chkpos(a, d):
    a('s_bfe_u32 %s, s3, 0x30002' % s(d)); a('s_lshl_b32 %s, %s, 7' % (s(d), s(d))); a('s_lshr_b32 s12, s3, 5'); a('s_lshl_b32 s12, s12, 4')
    a('s_add_u32 %s, %s, s12' % (s(d), s(d))); a('s_and_b32 s12, s3, 3'); a('s_lshl_b32 s12, s12, 2'); a('s_add_u32 %s, %s, s12' % (s(d), s(d)))
    a('s_add_u32 %s, %s, 8192' % (s(d), s(d)))
def piece_sum(a, d, r, tag):
    a('v_add3_u32 %s, %s, %s, %s' % (v(d), v(r), v(r + 1), v(r + 2)))
    a('v_add_u32 %s, %s, %s' % (v(d), v(d), v(r + 3)))
    return ['v_add_u32_dpp %s, %s, %s quad_perm:[1,0,3,2] %s' % (v(d), v(d), v(d), DPPF)]
def quad_gather(a, r, step):
    for i in range(1, 4): a('v_mov_b32_dpp %s, %s row_shl:%d %s' % (v(r + i), v(r), i * step, DPPF))
def poll_tail(a, cnt, lab, got):
    a('s_add_u32 %s, %s, 1' % (s(cnt), s(cnt)))
    a('s_cmp_gt_u32 %s, 0x40000' % s(cnt)); a('s_cbranch_scc1 %s' % got)
    a('s_cbranch_vccnz %s' % lab)
    a.label(got)
def phase_check(a, regs, tmp, cnt, lab, got):
    a('s_waitcnt vmcnt(0)')
    r = list(regs)
    if len(r) == 2: a('v_or_b32 %s, %s, %s' % (v(tmp), v(r[0]), v(r[1]))); r = []
    else: a('v_or3_b32 %s, %s, %s, %s' % (v(tmp), v(r[0]), v(r[1]), v(r[2]))); r = r[3:]
    while r:
        if len(r) >= 2: a('v_or3_b32 %s, %s, %s, %s' % (v(tmp), v(tmp), v(r[0]), v(r[1]))); r = r[2:]
        else: a('v_or_b32 %s, %s, %s' % (v(tmp), v(tmp), v(r[0]))); r = []
    a('v_and_b32 %s, 1, %s' % (v(tmp), v(tmp)))
    a('v_cmp_eq_u32 vcc, 1, %s' % v(tmp))
    poll_tail(a, cnt, lab, got)
def poll_check(a, regs, tmp, cnt, lab, got, wait=True):
    a('s_add_u32 %s, %s, 1' % (s(cnt), s(cnt)))
    if wait: a('s_waitcnt vmcnt(0)')
    r = list(regs)
    if len(r) == 1: a('v_cmp_eq_u32 vcc, -1, %s' % v(r[0]))
    else:
        if len(r) == 2: a('v_max_u32 %s, %s, %s' % (v(tmp), v(r[0]), v(r[1]))); r = []
        else: a('v_max3_u32 %s, %s, %s, %s' % (v(tmp), v(r[0]), v(r[1]), v(r[2]))); r = r[3:]
        while r:
            if len(r) >= 2: a('v_max3_u32 %s, %s, %s, %s' % (v(tmp), v(tmp), v(r[0]), v(r[1]))); r = r[2:]
            else: a('v_max_u32 %s, %s, %s' % (v(tmp), v(tmp), v(r[0]))); r = []
        a('v_cmp_eq_u32 vcc, -1, %s' % v(tmp))
    a('s_cmp_gt_u32 %s, 0x40000' % s(cnt)); a('s_cbranch_scc1 %s' % got)
    a('s_cbranch_vccnz %s' % lab)
    a.label(got)

def gen(a):
    a.raw('.globl %s' % KN); a.raw('.p2align 8'); a.raw('.type %s,@function' % KN)
    a.lines.append(KN + ':')
    a('s_cmp_gt_u32 s2, 255'); a('s_cbranch_scc1 fk_end')
    if STAMPS:
        for i in range(NST): a('s_mov_b32 s%d, 0' % (60 + 2 * i))
    stamp(a, 0)
    a('s_load_dwordx2 s[8:9], s[0:1], 0'); a('s_load_dwordx2 s[24:25], s[0:1], 96')
    a('s_load_dwordx2 s[32:33], s[0:1], 48'); a('s_load_dwordx2 s[44:45], s[0:1], 56'); a('s_load_dwordx2 s[48:49], s[0:1], 64')
    a('s_load_dwordx2 s[52:53], s[0:1], 72'); a('s_load_dwordx2 s[28:29], s[0:1], 80')
    if '--nocodepf' not in OPT:
        a('s_getpc_b64 s[40:41]'); a.lines.append('fk_pc:')
        a('s_mov_b32 s42, fk_end-fk_pc'); a('s_mov_b32 s43, 0x00020000')
        a('v_lshlrev_b32 v250, 6, v0')
        a('buffer_load_dword v251, v250, s[40:43], 0 offen')
    a('v_lshrrev_b32 v1, 6, v0'); a('v_and_b32 v15, 63, v0')
    a('v_readfirstlane_b32 s16, v1')
    a('s_and_b32 s3, s2, 0xe0'); a('s_and_b32 s17, s2, 7'); a('s_lshl_b32 s17, s17, 2'); a('s_or_b32 s3, s3, s17')
    a('s_bfe_u32 s17, s2, 0x20003'); a('s_or_b32 s3, s3, s17')
    a('s_lshr_b32 s17, s3, 4'); a('s_add_u32 s17, s17, 1'); a('s_cmp_ge_u32 s3, 248'); a('s_cselect_b32 s17, 0, s17')
    a('s_cmp_ge_u32 s3, 240'); a('s_cselect_b32 s18, 7, 15'); a('s_and_b32 s18, s18, s3'); a('s_lshl_b32 s18, s18, 7')
    a('s_add_u32 s18, s18, s17')
    a('v_and_b32 v1, 31, v15'); a('v_lshrrev_b32 v2, 5, v15')
    a('v_lshlrev_b32 v14, 4, v15')
    for r, n in ((8, 2048 * 2048), (24, WSB), (28, 2048 * 2048), (32, 2048), (44, 1024 * 7168), (48, 1024 * 7168), (52, 3584 * 2048)):
        a('s_mov_b32 %s, 0x%x' % (s(r + 2), n)); a('s_mov_b32 %s, 0x00020000' % s(r + 3))
    a('s_cmp_ge_u32 s3, 248'); a('s_cselect_b32 s12, 5, 4')
    a('s_cmp_ge_u32 s16, s12'); a('s_cbranch_scc1 fk_H')
    XA, XB = 16, 32
    F1, TC, TS, B3, C2, S2 = 48, 56, 72, 88, 96, 104
    X, D1, D2, D3, Q16, GA = 112, 128, 144, 160, 176, 184
    T = 128
    a('s_setprio 3')
    a('s_lshl_b32 s19, s16, 5'); a('s_add_u32 s19, s19, s18')
    a('s_sub_u32 s20, 2048, s19'); a('s_and_b32 s20, s20, 2047')
    a('s_lshl_b32 s21, s19, 11'); a('s_lshl_b32 s22, s20, 11')
    a('s_lshl_b32 s12, s16, 12'); a('s_add_u32 s12, s12, %d' % LX)
    a('s_mov_b32 m0, s12')
    for i in range(32): a('v_mov_b32 %s, 0' % v(XA + i))
    a('v_cvt_f32_u32 v200, v1')
    a('v_lshlrev_b32 v7, 2, v2'); a('v_cvt_f32_u32 v7, v7')
    a('v_lshrrev_b32 v8, 1, v1'); a('v_and_b32 v9, 1, v1')
    a('v_lshlrev_b32 v205, 2, v15'); a('v_and_b32 v205, 63, v205'); a('v_add_u32 v205, %d, v205' % LSIG)
    a('ds_write_b32 v205, v16')
    a('s_waitcnt lgkmcnt(0)')
    rebase(a)
    stamp(a, 1)
    for i, so in enumerate((21, 21, 22, 22)):
        if i: a('s_add_u32 s13, s12, %d' % (1024 * i)); a('s_mov_b32 m0, s13')
        if i & 1: a('s_add_u32 s14, %s, 1024' % s(so))
        a('buffer_load_dwordx4 v14, s[8:11], %s offen lds' % (s(14) if i & 1 else s(so)))
    a('s_cmp_lg_u32 s19, 0'); a('s_cbranch_scc1 fk_no1024')
    for i in range(2):
        a('s_mov_b32 m0, %d' % (LX1024 + 1024 * i)); a('s_mov_b32 s14, %d' % (1024 * 2048 + 1024 * i))
        a('buffer_load_dwordx4 v14, s[8:11], s14 offen lds')
    a.label('fk_no1024')
    a('s_barrier')
    def put(base, n):
        for q in range(n // 4): a('ds_write_b128 v206, %s offset:%d' % (v(base + 4 * q, 4), 1024 * ((base - F1) // 4 + q)))
    a('v_add_u32 v206, %d, v14' % LROW)
    a('s_lshl_b32 s13, s16, 2'); a('s_add_u32 s13, s13, %d' % LSIG); a('v_mov_b32 v201, s13'); a('v_mov_b32 v202, 1')
    a('s_cmp_eq_u32 s16, 1'); a('s_cbranch_scc1 fk_j1')
    a('s_cmp_eq_u32 s16, 2'); a('s_cbranch_scc1 fk_j2')
    a('s_cmp_eq_u32 s16, 3'); a('s_cbranch_scc1 fk_j3')
    a('s_cmp_eq_u32 s16, 4'); a('s_cbranch_scc1 fk_jend')
    a('v_cmp_eq_u32 vcc, 1, v1')
    a('v_cndmask_b32 v10, v8, 16, vcc'); a('v_cndmask_b32 v11, v9, 0, vcc')
    a('v_cvt_f32_u32 v10, v10'); a('v_cvt_f32_u32 v11, v11')
    a('v_mul_f32 v10, %s, v10' % fh(1.0 / 32)); a('v_mul_f32 v11, %s, v11' % fh(0.25))
    a('v_add_f32 v12, v7, v7'); a('v_fma_f32 v11, v10, v12, v11')
    angles(a, 10, 11, list(range(8)) + list(range(16, 24)), T)
    for i in range(16): a('v_cos_f32 %s, %s' % (v(T + 16 + i), v(T + i)))
    for p in range(8): a('v_cvt_pk_f16_f32 %s, %s, %s' % (v(F1 + p), v(T + 16 + 2 * p), v(T + 17 + 2 * p)))
    put(F1, 8)
    a('s_branch fk_jsig')
    a.label('fk_j1')
    a('v_cvt_f32_u32 v10, v8'); a('v_lshlrev_b32 v11, 31, v9')
    a('v_mul_f32 v10, %s, v10' % fh(1.0 / 1024)); a('v_xor_b32 v10, v11, v10'); a('v_mul_f32 v11, v10, v7')
    angles(a, 10, 11, [kr(r) for r in range(16)], T)
    for r in range(16): a('v_cos_f32 %s, %s' % (v(TC + r), v(T + r)))
    put(TC, 16)
    for r in range(16): a('v_sin_f32 %s, %s' % (v(TS + r), v(T + r)))
    put(TS, 16)
    a('s_branch fk_jsig')
    a.label('fk_j2')
    gen_c2s2(a, 200, 7, C2, S2, T)
    put(C2, 16)
    a('s_branch fk_jsig')
    a.label('fk_j3')
    a('v_or_b32 v10, 16, v1'); a('v_cvt_f32_u32 v10, v10'); a('v_mov_b32 v11, %s' % fh(1.0 / 64))
    a('v_fmamk_f32 v10, v10, %s, v11' % fh(1.0 / 32))
    a('v_cmp_gt_u32 vcc, 16, v1'); a('v_mov_b32 v12, %s' % fh(-0.25)); a('v_cndmask_b32 v12, 0, v12, vcc')
    a('v_fma_f32 v11, v10, v7, v12')
    angles(a, 10, 11, [kr(r) for r in range(16)], T)
    for r in range(16): a('v_cos_f32 %s, %s' % (v(T + 16 + r), v(T + r)))
    for p in range(8): a('v_cvt_pk_f16_f32 %s, %s, %s' % (v(B3 + p), v(T + 16 + 2 * p), v(T + 17 + 2 * p)))
    put(B3, 8)
    a.label('fk_jsig')
    a('ds_write_b32 v201, v202 offset:32')
    a.label('fk_jend')
    a('v_lshlrev_b32 v3, 9, v2'); a('v_lshl_add_u32 v3, v1, 1, v3')
    a('v_sub_u32 v4, 576, v3'); a('v_sub_u32 v5, 2048, v3'); a('v_and_b32 v5, 2047, v5')
    a('v_add_u32 v3, s12, v3'); a('v_add_u32 v4, s12, v4'); a('v_add_u32 v5, s12, v5')
    a('s_lshl_b32 s13, s16, 10'); a('s_sub_u32 s14, %d, s13' % (7168 + 64))
    a('s_cmp_ge_u32 s3, 248'); a('s_cselect_b32 s15, 1024, 0'); a('s_add_u32 s14, s14, s15')
    a('s_cmp_eq_u32 s16, 4'); a('s_cselect_b32 s13, %d, s13' % (8192 + 64))
    a('s_add_u32 s13, s13, %d' % LWS); a('s_add_u32 s14, s14, %d' % LWS)
    a('v_cmp_gt_u32 vcc, 16, v1')
    a('v_mov_b32 v8, s13'); a('v_mov_b32 v9, s14')
    a('v_cndmask_b32 v10, v9, v8, vcc'); a('v_cndmask_b32 v11, v8, v9, vcc')
    a('v_lshl_add_u32 v10, v15, 2, v10'); a('v_lshl_add_u32 v11, v15, 2, v11')
    a('v_lshrrev_b32 v6, 1, v15'); a('v_and_b32 v8, 1, v15'); a('v_mul_u32_u24 v9, %d, v8' % (4096 + 64))
    a('v_and_b32 v12, 15, v6'); a('v_lshl_add_u32 v12, v12, 4, v2'); a('v_mul_u32_u24 v12, %d, v12' % OS)
    a('v_mul_u32_u24 v192, %d, v8' % (2 * OS)); a('v_add_u32 v192, v192, v12')
    a('v_lshl_add_u32 v12, v8, 4, v12')
    a('v_lshrrev_b32 v194, 3, v15'); a('v_lshlrev_b32 v193, 4, v194'); a('v_lshl_add_u32 v193, v8, 7, v193')
    a('v_and_b32 v6, 3, v6'); a('v_lshl_add_u32 v9, v6, 2, v9'); a('v_lshl_add_u32 v9, v194, 7, v9')
    a('v_lshlrev_b32 v194, 10, v194'); a('v_and_b32 v6, 7, v15'); a('v_lshl_add_u32 v194, v6, 4, v194')
    a('s_lshl_b32 s13, s16, 5'); a('s_add_u32 s13, s13, %d' % LWS); a('v_add_u32 v6, s13, v9')
    a('s_mul_i32 s36, s3, %d' % OS); a('s_lshl_b32 s13, s16, 8'); a('s_add_u32 s36, s36, s13'); a('s_add_u32 s36, s36, 0x%x' % WOFF)
    a('s_mul_i32 s37, s16, %d' % (4 * OS)); a('s_add_u32 s37, s37, 0x%x' % WOFF)
    chkpos(a, 23)
    a('s_add_u32 s23, s23, s37')
    a('s_lshl_b32 s14, s3, 5'); a('s_add_u32 s37, s37, s14')
    a('s_add_u32 s38, s37, %d' % (2 * OS))
    a('s_lshl_b32 s13, s16, 11'); a('s_add_u32 s13, s13, %d' % LA2); a('v_add_u32 v7, s13, v14')
    a('v_cmp_eq_u32 s[58:59], 1, v8')
    a('s_cmp_eq_u32 s19, s20'); a('s_cselect_b32 s39, 0.5, 1.0')
    a('s_lshl_b32 s13, s16, 2'); a('s_add_u32 s13, s13, %d' % LG5S); a('v_mov_b32 v9, s13')
    a('s_cmp_ge_u32 s3, 248'); a('s_cselect_b32 s57, 63, 47')
    a.label('fk_spinc')
    a('ds_read_b32 v203, v205'); a('s_waitcnt lgkmcnt(0)'); a('v_cmp_eq_u32 vcc, 0, v203')
    a('s_and_b32 s13, vcc_lo, 0xf00'); a('s_cbranch_scc1 fk_spinc')
    for q in range(16):
        a('ds_read_b128 %s, v206 offset:%d' % (v(F1 + 4 * q, 4), 1024 * q))
        if q == 11: a('s_waitcnt lgkmcnt(8)')
    stamp(a, 2)
    a('s_waitcnt vmcnt(0) lgkmcnt(0)')
    stamp(a, 3)
    for j in range(2):
        for i in range(8):
            a('ds_read_u16_d16_hi %s, v3 offset:%d' % (v(XA + 8 * j + i), 1024 * j + 64 * i))
    a('s_waitcnt lgkmcnt(2)')
    for j in range(2):
        for i in range(8):
            if j == 0 and i == 0: a('ds_read_u16_d16_hi %s, v5 offset:2048' % v(XB))
            else: a('ds_read_u16_d16_hi %s, v4 offset:%d' % (v(XB + 8 * j + i), 2048 + 1024 * (1 - j) + 64 * (7 - i)))
            if j == 1 and i == 4: a('s_waitcnt lgkmcnt(8)')
    def sums(R, t):
        for i in range(4): a('v_pk_add_f32 %s, %s, %s' % (v(t + 2 * i, 2), v(R + 4 * i, 2), v(R + 4 * i + 2, 2)))
        a('v_pk_mul_f32 %s, %s, %s' % (v(t + 8, 2), v(R, 2), v(R, 2)))
        a('v_pk_mul_f32 %s, %s, %s' % (v(t + 10, 2), v(R + 2, 2), v(R + 2, 2)))
        for i in range(2, 8):
            acc = t + 8 + 2 * (i & 1)
            a('v_pk_fma_f32 %s, %s, %s, %s' % (v(acc, 2), v(R + 2 * i, 2), v(R + 2 * i, 2), v(acc, 2)))
        a('v_pk_add_f32 %s, %s, %s' % (v(t, 2), v(t, 2), v(t + 2, 2))); a('v_pk_add_f32 %s, %s, %s' % (v(t + 4, 2), v(t + 4, 2), v(t + 6, 2)))
        a('v_pk_add_f32 %s, %s, %s' % (v(t + 8, 2), v(t + 8, 2), v(t + 10, 2)))
        a('v_pk_add_f32 %s, %s, %s' % (v(t, 2), v(t, 2), v(t + 4, 2)))
        a('v_add_f32 %s, %s, %s' % (v(t + 8), v(t + 8), v(t + 9)))
        a('v_add_f32 %s, %s, %s' % (v(t), v(t), v(t + 1)))
    sums(XA, T)
    a('s_waitcnt lgkmcnt(0)')
    sums(XB, T + 12)
    reduce4(a, T, T + 12, T + 8, T + 20)
    ln_chain(a, T, T + 1, T + 2)
    a('v_mul_f32 %s, %s, %s' % (v(T + 2), fh(1.0 / 128), v(T + 2)))
    a('v_mul_f32 %s, %s, %s' % (v(T + 1), v(T + 1), v(T + 2)))
    a('v_readlane_b32 s4, %s, 16' % v(T + 2)); a('v_readlane_b32 s6, %s, 48' % v(T + 2))
    a('v_readlane_b32 s13, %s, 16' % v(T + 1)); a('v_readlane_b32 s14, %s, 48' % v(T + 1))
    a('v_mov_b32 %s, s13' % v(T + 4)); a('v_add_f32 %s, s14, %s' % (v(T + 4), v(T + 4)))
    for i in range(8):
        a('v_pk_fma_f32 %s, %s, s[6:7], %s op_sel_hi:[1,0,0] neg_lo:[0,0,1] neg_hi:[0,0,1]' % (v(XB + 2 * i, 2), v(XB + 2 * i, 2), v(T + 4, 2)))
    for i in range(8):
        a('v_pk_fma_f32 %s, %s, s[4:5], %s op_sel_hi:[1,0,1]' % (v(XA + 2 * i, 2), v(XA + 2 * i, 2), v(XB + 2 * i, 2)))
    for p in range(8): a('v_cvt_pk_f16_f32 %s, %s, %s' % (v(Q16 + p), v(XA + 2 * p), v(XA + 2 * p + 1)))
    a('v_mfma_f32_32x32x16_f16 %s, %s, %s, 0' % (v(X, 16), v(Q16, 4), v(F1, 4)))
    a('v_mfma_f32_32x32x16_f16 %s, %s, %s, %s' % (v(X, 16), v(Q16 + 4, 4), v(F1 + 4, 4), v(X, 16)))
    W = XA
    for r in range(8): a('v_pk_mul_f32 %s, %s, %s' % (v(W + 2 * r, 2), v(X + 2 * r, 2), v(TC + 2 * r, 2)))
    for r in range(8): a('v_fmac_f32_dpp %s, %s, %s quad_perm:[1,0,3,2] %s' % (v(W + r), v(X + r), v(TS + r), DPPF))
    for p in range(4): a('v_cvt_pk_f16_f32 %s, %s, %s' % (v(Q16 + p), v(W + 2 * p), v(W + 2 * p + 1)))
    a('v_fmac_f32_dpp %s, %s, %s quad_perm:[1,0,3,2] %s' % (v(W + 8), v(X + 8), v(TS + 8), DPPF))
    a('v_fmac_f32_dpp %s, %s, %s quad_perm:[1,0,3,2] %s' % (v(W + 9), v(X + 9), v(TS + 9), DPPF))
    mm = [(D1, C2), (D2, S2), (D3, B3)]
    rest = ['v_fmac_f32_dpp %s, %s, %s quad_perm:[1,0,3,2] %s' % (v(W + r), v(X + r), v(TS + r), DPPF) for r in range(10, 16)]
    rest += ['v_cvt_pk_f16_f32 %s, %s, %s' % (v(Q16 + p), v(W + 2 * p), v(W + 2 * p + 1)) for p in range(4, 8)]
    for n, (Dd, B) in enumerate(mm):
        a('v_mfma_f32_32x32x16_f16 %s, %s, %s, 0' % (v(Dd, 16), v(Q16, 4), v(B, 4)))
        for x in rest[4 * n:4 * n + 4]: a(x)
    for (Dd, B) in mm:
        a('v_mfma_f32_32x32x16_f16 %s, %s, %s, %s' % (v(Dd, 16), v(Q16 + 4, 4), v(B + 4, 4), v(Dd, 16)))
    a('v_cmp_gt_u32 vcc, 16, v15')
    a('v_cmp_gt_u32 s[40:41], 32, v15')
    Z = XA
    P = XB
    def zz(u):
        a('v_pk_add_f32 %s, %s, %s op_sel:[0,1] op_sel_hi:[1,0] neg_hi:[0,1]' % (v(Z + 2 * u, 2), v(D1 + 2 * u, 2), v(D2 + 2 * u, 2)))
    def pp(p):
        A_, B_ = v(Z + 4 * p, 2), v(Z + 4 * p + 2, 2)
        a('v_pk_add_f32 %s, %s, %s op_sel:[0,1] op_sel_hi:[1,0] neg_lo:[0,1]' % (v(P + 4 * p, 2), A_, B_))
        a('v_pk_add_f32 %s, %s, %s op_sel:[0,1] op_sel_hi:[1,0] neg_hi:[1,0]' % (v(P + 4 * p + 2, 2), A_, B_))
        a('v_cvt_pk_f16_f32 %s, %s, %s' % (v(Q16 + 2 * p), v(P + 4 * p), v(P + 4 * p + 1)))
        a('v_cvt_pk_f16_f32 %s, %s, %s' % (v(Q16 + 2 * p + 1), v(P + 4 * p + 2), v(P + 4 * p + 3)))
        a('ds_write_b32 v10, %s offset:%d' % (v(Q16 + 2 * p), 256 * p))
        a('ds_write_b32 v11, %s offset:%d' % (v(Q16 + 2 * p + 1), 256 * p))
    ZR, ZI = Z, Z + 1
    for p in (1, 2, 3):
        zz(2 * p); zz(2 * p + 1); pp(p)
    zz(0); zz(1)
    a('v_mul_f32 v8, s39, %s' % v(D1))
    a('v_mov_b32 v3, %s' % v(D3 + 1))
    a('v_permlane16_swap_b32 v4, v3')
    a('v_cndmask_b32 v5, %s, %s, vcc' % (v(D3 + 1), v(D1)))
    a('v_cndmask_b32 v4, v4, %s, vcc' % v(D2))
    a('v_cndmask_b32 %s, %s, v5, s[40:41]' % (v(ZR), v(ZR)))
    a('v_cndmask_b32 %s, %s, -v4, s[40:41]' % (v(ZI), v(ZI)))
    pp(0)
    a('s_mov_b64 exec, 0x10000')
    a('ds_write_b32 v9, v8')
    a('ds_write_b32 v201, v202')
    a('s_mov_b64 exec, -1')
    a('s_cmp_eq_u32 s16, 4'); a('s_cbranch_scc1 fk_w4')
    stamp(a, 4)
    a.label('fk_spin')
    a('ds_read_b32 v3, v205'); a('s_waitcnt lgkmcnt(0)'); a('v_cmp_eq_u32 vcc, 0, v3')
    a('s_and_b32 s13, vcc_lo, s57'); a('s_cbranch_scc1 fk_spin')
    a.label('fk_staged')
    stamp(a, 12, True)
    for q in range(2):
        a('ds_read2st64_b32 %s, %s offset0:0 offset1:4' % (v(GA + 4 * q, 2), 'v8' if q else 'v6'))
        a('ds_read2st64_b32 %s, %s offset0:8 offset1:12' % (v(GA + 4 * q + 2, 2), 'v8' if q else 'v6'))
        if q == 0: a('v_add_u32 v8, 16, v6')
    a('v_readlane_b32 s43, v3, 7')
    for q in range(2):
        a('s_waitcnt lgkmcnt(%d)' % (2 - 2 * q))
        for i in range(4): a('v_or_b32 %s, 1, %s' % (v(GA + 4 * q + i), v(GA + 4 * q + i)))
        a(('buffer_store_dwordx4 %s, v194, ' + WSRD + ', s36 offen offset:%d sc1') % (v(GA + 4 * q, 4), 128 * q))
    d0 = piece_sum(a, 3, GA, 0); d1 = piece_sum(a, 4, GA + 4, 0)
    a('s_add_u32 s36, s36, 8192')
    a(d0[0]); a(d1[0])
    a('v_cndmask_b32 v3, v3, v4, s[58:59]'); a('v_add_u32 v196, s43, v3')
    quad_gather(a, 196, 2)
    a('s_mov_b32 exec_lo, 0x03030303'); a('s_mov_b32 exec_hi, 0x03030303')
    a('buffer_store_dwordx4 v[196:199], v193, ' + WSRD + ', s36 offen sc1')
    a('s_mov_b64 exec, -1')
    a('s_cmp_lg_u32 s16, 0'); a('s_cbranch_scc1 fk_nog5')
    a('v_and_b32 v9, 16, v14'); a('v_add_u32 v9, %d, v9' % LG5S)
    a('ds_read_b128 v[16:19], v9')
    a('s_lshl_b32 s13, s3, 4'); a('s_add_u32 s13, s13, 0x%x' % G5)
    a('s_waitcnt lgkmcnt(0)')
    for i in range(4): a('v_min_u32 %s, -2, %s' % (v(16 + i), v(16 + i)))
    a('s_cmp_eq_u32 s3, 255'); a('s_cselect_b64 exec, 3, 1')
    a('buffer_store_dwordx4 v[16:19], v14, s[24:27], s13 offen sc1')
    a('s_mov_b64 exec, -1')
    a.label('fk_nog5')
    unit_setup(a)
    a('s_mov_b32 s42, 0')
    a('s_waitcnt vmcnt(0)')
    stamp(a, 5)
    a.label('fk_pollw')
    a(('buffer_load_dwordx4 %s, v12, ' + WSRD + ', s37 offen sc1') % v(GA, 4))
    a(('buffer_load_dwordx4 %s, v12, ' + WSRD + ', s38 offen sc1') % v(GA + 4, 4))
    a('buffer_load_dword v5, v192, ' + WSRD + ', s23 offen sc1')
    a('s_waitcnt vmcnt(1)')
    d0 = piece_sum(a, 3, GA, 0); d1 = piece_sum(a, 4, GA + 4, 0)
    a('ds_write_b128 v7, %s' % v(GA, 4))
    a(d0[0]); a(d1[0])
    a('ds_write_b128 v7, %s offset:1024' % v(GA + 4, 4))
    a('v_cndmask_b32 v3, v3, v4, s[58:59]'); a('v_add_u32 v3, s43, v3')
    a('s_waitcnt vmcnt(0)')
    a('v_cmp_ne_u32 vcc, v3, v5')
    poll_tail(a, 42, 'fk_pollw', 'fk_gotw')
    stamp(a, 6)
    a('s_waitcnt lgkmcnt(0)')
    a('s_barrier')
    a('s_setprio 0')
    stamp(a, 7)
    a('s_or_b32 s13, s3, s16'); a('s_cbranch_scc1 fk_nobump')
    a('v_mov_b32 v3, s43'); a('s_mov_b64 exec, 1')
    a('buffer_store_dword v3, v14, s[24:27], 0 offen sc1')
    a('s_mov_b64 exec, -1')
    a.label('fk_nobump')
    a('s_lshl_b32 s13, s16, 10'); a('s_add_u32 s14, s13, 0x%x' % G5); a('s_add_u32 s13, s13, %d' % LG5)
    a('v_add_u32 v7, s13, v14'); a('v_mov_b32 v3, 4096'); a('s_mov_b32 s15, 0x%x' % G5); a('v_mov_b32 v8, %d' % LG5E)
    a('buffer_load_dwordx4 %s, v14, s[24:27], s14 offen sc1' % v(GA, 4))
    a('buffer_load_dword %s, v3, s[24:27], s15 offen sc1' % v(GA + 4))
    a('s_mov_b32 s40, s14'); a('s_mov_b32 s41, s15')
    window(a, UB, KB, 16, 0, PB)
    a('s_mov_b32 s42, 0')
    a('s_cmp_gt_u32 s3, 223'); a('s_cbranch_scc1 fk_pollg')
    a('s_waitcnt vmcnt(%d)' % (min(KB, PB + 1) if UB + 4 * KB <= 96 else 0))
    a('s_branch fk_chkg')
    a.label('fk_pollg')
    a('buffer_load_dwordx4 %s, v14, s[24:27], s40 offen sc1' % v(GA, 4))
    a('buffer_load_dword %s, v3, s[24:27], s41 offen sc1' % v(GA + 4))
    a('s_waitcnt vmcnt(0)')
    a.label('fk_chkg')
    poll_check(a, list(range(GA, GA + 5)), 4, 42, 'fk_pollg', 'fk_gotg', wait=False)
    a('ds_write_b128 v7, %s' % v(GA, 4)); a('ds_write_b32 v8, %s' % v(GA + 4))
    stamp(a, 14, True)
    a('s_branch fk_common')
    a.label('fk_w4')
    a('s_setprio 0')
    a('s_branch fk_Hconst')
    a.label('fk_H')
    A, B1, TC, TS, C2, S2, V, D1, D2, T16, AD, CS = 16, 48, 80, 96, 112, 120, 128, 144, 160, 176, 184, 192
    a('s_barrier')
    if BASE: a('s_waitcnt lgkmcnt(0)'); rebase(a)
    a('s_cmp_lg_u32 s16, 7'); a('s_cbranch_scc1 fk_Hconst')
    for i in range(4): a('v_mov_b32 %s, -1' % v(4 + i))
    a('v_mov_b32 v3, %d' % LKEY); a('v_mov_b32 v8, 0'); a('ds_write_b32 v3, v8')
    a('v_lshlrev_b32 v3, 12, v15'); a('s_lshl_b32 s13, s3, 4'); a('s_add_u32 s14, s13, 0x%x' % KEYS); a('s_add_u32 s15, s13, 0x%x' % G5)
    a('v_mov_b32 v201, %d' % (LSIG + 20)); a('v_mov_b32 v204, 1')
    a('s_waitcnt lgkmcnt(0)')
    stamp(a, 1)
    a('s_load_dword s56, s[24:25], 0')
    if '--wwarm' in OPT:
        a('s_mul_i32 s36, s3, %d' % OS); a('s_add_u32 s36, s36, 0x%x' % WOFF); a('s_add_u32 s37, s36, 4096'); a('s_add_u32 s40, s36, 8192')
        for i in range(9): a('buffer_store_dwordx4 v[4:7], v14, s[24:27], %s offen offset:%d sc1' % (s((36, 37, 40)[i >> 2]), 1024 * (i & 3)))
    a('s_mul_i32 s38, s3, %d' % YS); a('s_add_u32 s38, s38, 0x%x' % YOFF); a('s_add_u32 s39, s38, 4096')
    for i in range(8): a('buffer_store_dwordx4 v[4:7], v14, s[24:27], %s offen offset:%d sc1' % (s(38 + (i >> 2)), 1024 * (i & 3)))
    a('s_mov_b64 exec, 0xff')
    a('buffer_store_dwordx4 v[4:7], v3, s[24:27], s14 offen sc1')
    a('s_cmp_eq_u32 s3, 255'); a('s_cselect_b32 exec_lo, 3, 1')
    a('buffer_store_dwordx4 v[4:7], v14, s[24:27], s15 offen sc1')
    a('s_mov_b64 exec, -1')
    for i in range(2):
        a('s_mov_b32 m0, %d' % (LWR + 1024 * i)); a('s_mov_b32 s12, %d' % (1024 * i))
        a('buffer_load_dwordx4 v14, s[32:35], s12 offen lds')
    a('s_waitcnt lgkmcnt(0)')
    a('s_add_u32 s56, s56, 1'); a('v_mov_b32 v202, s56')
    a('ds_write_b32 v201, v202 offset:8')
    a('s_waitcnt vmcnt(0)')
    a('ds_write_b32 v201, v204')
    stamp(a, 2)
    a.label('fk_Hconst')
    a('s_sub_u32 s20, s16, 4')
    unit_setup(a)
    a('s_and_b32 s12, s20, 1'); a('s_lshl_b32 s12, s12, 6'); a('v_xor_b32 v206, s12, v208'); a('v_xor_b32 v207, 64, v206')
    a('s_mov_b32 s6, 0x700000'); a('s_mov_b32 s7, 0x00020000')
    a('s_cmp_gt_u32 s3, 223'); a('s_cselect_b32 s36, 3, s20')
    a('s_waitcnt lgkmcnt(0)')
    PACE = int(optval('pace', '99')); GAP = int(optval('gap', '8')); FIRST = int(optval('first', '4')); DELAY = int(optval('delay', '0'))
    def gu(n):
        g = ['s_cmp_eq_u32 s36, 3', 's_cbranch_scc1 fk_gu%d' % n, 's_add_u32 s37, s20, %d' % (3 * n),
             's_lshl_b32 s12, s37, 10', 's_mov_b32 m0, s12', 's_cmp_lt_u32 s37, 32', 's_cselect_b64 s[4:5], s[44:45], s[48:49]',
             's_and_b32 s37, s37, 31', 's_mul_i32 s37, s37, %d' % (8 * 7168), 's_add_u32 s37, s37, s100']
        if n >= PACE: g.append('s_waitcnt vmcnt(%d)' % PACE)
        g.append('buffer_load_dwordx4 %s, s[4:7], s37 offen lds' % ('v207' if n & 1 else 'v206'))
        g.append('@fk_gu%d' % n)
        return g
    assert NH <= 21
    groups = [sum([gu(n) for n in range(min(FIRST, NH))], [])] + [gu(n) for n in range(FIRST, NH)]
    a.inject(groups, GAP); a.cnt = GAP - DELAY
    a('v_lshrrev_b32 v4, 1, v1')
    a('v_and_b32 v5, 1, v4'); a('v_lshrrev_b32 v6, 2, v4'); a('v_lshl_add_u32 v5, v6, 1, v5')
    a('v_and_b32 v6, 2, v4'); a('v_lshl_add_u32 v5, v6, 2, v5')
    a('s_and_b32 s13, s20, 1'); a('s_mul_i32 s13, s13, 15'); a('v_xor_b32 v5, s13, v5')
    a('s_lshl_b32 s13, s20, 4'); a('v_add_u32 v5, s13, v5')
    a('v_cvt_f32_u32 v5, v5')
    a('v_and_b32 v9, 1, v1')
    a('v_lshlrev_b32 v7, 2, v2'); a('v_cvt_f32_u32 v7, v7')
    a('v_cvt_f32_u32 v10, v9')
    a('v_mul_f32 v8, %s, v5' % fh(1.0 / 64))
    a('v_mul_f32 v10, %s, v10' % fh(0.25))
    a('v_fma_f32 v10, v8, v7, v10')
    T = V
    for half in range(2):
        ks = [8 * kap + u for kap in range(4 * half, 4 * half + 4) for u in range(4)]
        angles(a, 8, 10, ks, T)
        for i in range(16): a('v_cos_f32 %s, %s' % (v(T + 16 + i), v(T + i)))
        for i in range(16): a('v_sin_f32 %s, %s' % (v(T + 32 + i), v(T + i)))
        for i in range(16): a('v_cvt_pk_f16_f32 %s, %s, %s' % (v(B1 + 16 * half + i), v(T + 16 + i), v(T + 32 + i)))
    a('v_lshlrev_b32 v11, 31, v9')
    a('v_mul_f32 v10, %s, v5' % fh(1.0 / 2048)); a('v_xor_b32 v10, v11, v10'); a('v_mul_f32 v11, v10, v7')
    angles(a, 10, 11, [kr(r) for r in range(16)], T)
    for r in range(16): a('v_cos_f32 %s, %s' % (v(TC + r), v(T + r)))
    for r in range(16): a('v_sin_f32 %s, %s' % (v(TS + r), v(T + r)))
    a('v_sub_u32 v4, 31, v1'); a('v_subrev_u32 v5, 1, v1')
    a('v_cmp_lt_u32 vcc, 16, v1')
    a('v_cndmask_b32 v4, v5, v4, vcc'); a('v_and_b32 v4, 15, v4')
    a('v_lshlrev_b32 v4, 5, v4'); a('v_add_u32 v4, %d, v4' % LA2)
    a('v_lshlrev_b32 v5, 9, v2')
    a('v_add_u32 v6, v4, v5')
    a('v_sub_u32 v7, v4, v5'); a('v_add_u32 v7, %d, v7' % (15 * 512 + 16))
    a('v_cmp_eq_u32 s[38:39], 0, v1')
    a('v_mov_b32 v8, 4096')
    a('v_cndmask_b32 v8, 0, v8, s[38:39]')
    a('v_add_u32 v6, v6, v8'); a('v_add_u32 v7, v7, v8')
    a('v_and_b32 v8, 15, v1'); a('v_cmp_eq_u32 s[38:39], 0, v8')
    a('s_or_b64 s[40:41], s[38:39], vcc')
    for k in range(8):
        a('v_add_u32 %s, %d, v6' % (v(AD + k), 1024 * k)); a('v_subrev_u32 v8, %d, v7' % (1024 * k))
        a('v_cndmask_b32 %s, %s, v8, %s' % (v(AD + k), v(AD + k), 'vcc' if k < 4 else 's[40:41]'))
    def posD(d, x, t):
        a('v_and_b32 %s, 3, %s' % (v(t), v(x))); a('v_lshlrev_b32 %s, 2, %s' % (v(t), v(t))); a('v_lshlrev_b32 %s, 3, %s' % (v(d), v(x))); a('v_sub_u32 %s, %s, %s' % (v(d), v(d), v(t)))
    def posM(d, x, t):
        a('v_and_b32 %s, 3, %s' % (v(t), v(x))); a('v_mul_u32_u24 %s, 12, %s' % (v(t), v(t))); a('v_lshlrev_b32 %s, 3, %s' % (v(d), v(x))); a('v_sub_u32 %s, %s, %s' % (v(d), v(d), v(t))); a('v_add_u32 %s, 28, %s' % (v(d), v(d)))
    a('s_lshr_b32 s13, s20, 1'); a('v_lshl_add_u32 v3, v1, 1, s13')
    a('s_and_b32 s13, s20, 1'); a('s_sub_u32 s14, 64, s13')
    posD(4, 3, 8)
    a('v_sub_u32 v5, 63, v3'); posM(6, 5, 8)
    a('v_sub_u32 v5, s14, v3'); posM(7, 5, 8)
    a('v_cmp_gt_u32 vcc, 32, v3'); a('v_cndmask_b32 v7, v7, v4, vcc')
    a('v_cmp_eq_u32 vcc, 32, v5'); a('v_cndmask_b32 v7, v7, 28, vcc')
    a('s_cmp_eq_u32 s13, 0'); a('s_cselect_b32 s14, 256, 0'); a('s_cselect_b32 s15, 576, 0')
    a('s_cselect_b64 s[38:39], -1, 0')
    a('s_add_u32 s14, s14, %d' % (240 * 32)); a('s_sub_u32 s15, %d, s15' % LWS)
    a('v_cmp_gt_u32 vcc, 32, v3'); a('v_cndmask_b32 v7, v7, v4, vcc')
    a('v_add_u32 v7, s14, v7')
    a('v_cndmask_b32 v4, v6, v4, s[38:39]'); a('v_lshl_add_u32 v4, v2, 12, v4')
    for r in (4, 7): a('v_lshrrev_b32 v8, 7, %s' % v(r)); a('v_lshl_add_u32 %s, v8, 4, %s' % (v(r), v(r)))
    a('v_add_u32 v11, s15, v4'); a('v_add_u32 v7, %d, v7' % LWS)
    a('v_add_u32 v12, %d, v11' % (7 * 576))
    a('v_cmp_eq_u32 vcc, s13, v2')
    a('s_and_b64 s[40:41], vcc, s[38:39]'); a('s_andn2_b64 s[38:39], vcc, s[38:39]')
    a('v_cndmask_b32 v10, v11, v7, s[40:41]'); a('v_cndmask_b32 v12, v12, v7, s[38:39]')
    a('s_lshl_b32 s23, s20, 5'); a('s_add_u32 s23, s23, s18')
    def y5cos():
        a('v_and_b32 v3, 15, v15'); a('v_lshrrev_b32 v4, 4, v15'); a('v_lshl_add_u32 v3, v3, 7, v4'); a('v_add_u32 v3, 1, v3')
        a('v_cmp_le_u32 vcc, 56, v15'); a('v_mov_b32 v4, %d' % (2048 - 1040)); a('v_cndmask_b32 v4, 0, v4, vcc'); a('v_add_u32 v4, v3, v4')
        for r in (3, 4):
            a('v_mul_u32_u24 %s, s23, %s' % (v(r), v(r))); a('v_and_b32 %s, 2047, %s' % (v(r), v(r)))
            a('v_cvt_f32_u32 %s, %s' % (v(r), v(r))); a('v_mul_f32 %s, %s, %s' % (v(r), fh(1.0 / 2048), v(r)))
        a('v_cvt_f32_u32 v5, s23'); a('v_mul_f32 v5, %s, v5' % fh(1.0 / 2048))
        angles(a, 5, 3, [32 * w + 4 * q for q in range(3) for w in range(4)], CS)
        angles(a, 5, 4, [32 * w + 12 for w in range(4)], CS + 12)
        for i in range(16): a('v_cos_f32 %s, %s' % (v(CS + i), v(CS + i)))
    a.inject_flush()
    stamp(a, 5)
    y5cos()
    a('v_add_u32 v9, %d, v14' % LROW)
    a('s_setprio 2')
    stamp(a, 6)
    a('s_barrier')
    stamp(a, 7)
    for k in range(8): a('ds_read_b128 %s, %s' % (v(A + 4 * k, 4), v(AD + k)))
    for q in range(4): a('ds_read_b128 %s, v9 offset:%d' % (v(C2 + 4 * q, 4), 1024 * (12 + q)))
    for k in range(8):
        a('s_waitcnt lgkmcnt(%d)' % (11 - k))
        a('v_mfma_f32_32x32x16_f16 %s, %s, %s, %s' % (v(V, 16), v(A + 4 * k, 4), v(B1 + 4 * k, 4), '0' if k == 0 else v(V, 16)))
    W = A
    for r in range(8): a('v_pk_mul_f32 %s, %s, %s' % (v(W + 2 * r, 2), v(V + 2 * r, 2), v(TC + 2 * r, 2)))
    for r in range(8): a('v_fmac_f32_dpp %s, %s, %s quad_perm:[1,0,3,2] %s' % (v(W + r), v(V + r), v(TS + r), DPPF))
    for p in range(4): a('v_cvt_pk_f16_f32 %s, %s, %s' % (v(T16 + p), v(W + 2 * p), v(W + 2 * p + 1)))
    rest = ['v_fmac_f32_dpp %s, %s, %s quad_perm:[1,0,3,2] %s' % (v(W + r), v(V + r), v(TS + r), DPPF) for r in range(8, 16)]
    rest += ['v_cvt_pk_f16_f32 %s, %s, %s' % (v(T16 + p), v(W + 2 * p), v(W + 2 * p + 1)) for p in range(4, 8)]
    for x in rest[0:2]: a(x)
    a('s_waitcnt lgkmcnt(0)')
    a('v_mfma_f32_32x32x16_f16 %s, %s, %s, 0' % (v(D1, 16), v(T16, 4), v(C2, 4)))
    for x in rest[2:7]: a(x)
    a('v_mfma_f32_32x32x16_f16 %s, %s, %s, 0' % (v(D2, 16), v(T16, 4), v(S2, 4)))
    for x in rest[7:]: a(x)
    for (Dd, B) in ((D1, C2), (D2, S2)):
        a('v_mfma_f32_32x32x16_f16 %s, %s, %s, %s' % (v(Dd, 16), v(T16 + 4, 4), v(B + 4, 4), v(Dd, 16)))
    for u in range(8):
        a('v_pk_add_f32 %s, %s, %s op_sel:[0,1] op_sel_hi:[1,0] neg_hi:[0,1]' % (v(A + 2 * u, 2), v(D1 + 2 * u, 2), v(D2 + 2 * u, 2)))
    for u in range(8):
        a('v_cvt_pk_f16_f32 %s, %s, %s' % (v(B1 + u), v(A + 2 * u), v(A + 2 * u + 1)))
        if u == 0: a('ds_write_b32 v10, %s' % v(B1))
        elif u == 7: a('ds_write_b32 v12, %s' % v(B1 + 7))
        else: a('ds_write_b32 v11, %s offset:%d' % (v(B1 + u), 576 * u))
    stamp(a, 14, True)
    a.label('fk_common')
    a('v_lshlrev_b32 v4, 4, v0'); a('v_lshrrev_b32 v5, 3, v0'); a('v_lshl_add_u32 v5, v5, 4, v4'); a('v_add_u32 v5, %d, v5' % LWS)
    a('s_mul_i32 s17, s3, %d' % YS); a('s_add_u32 s17, s17, 0x%x' % YOFF)
    a('s_waitcnt lgkmcnt(0)'); a('s_barrier')
    stamp(a, 8)
    a('s_setprio 0')
    a('ds_read_b128 v[16:19], v5')
    XR, WP, YR, H, HN, HP, TMP, OUT = 20, 28, 36, 48, 64, 80, 96, 112
    a('s_sub_u32 s13, 7, s16'); a('s_cmp_lt_u32 s16, 4'); a('s_cselect_b32 s13, s16, s13'); a('s_cselect_b32 s14, 0, 2048')
    a('s_lshl_b32 s21, s13, 5'); a('s_add_u32 s21, s21, s18'); a('s_sub_u32 s22, 2048, s21'); a('s_and_b32 s22, s22, 2047')
    a('s_cmp_lt_u32 s16, 4'); a('s_cselect_b32 s21, s21, s22')
    a('s_lshl_b32 s13, s13, 12'); a('s_add_u32 s13, s13, s14'); a('s_add_u32 s13, s13, %d' % LX)
    a('s_lshl_b32 s14, s3, 3'); a('s_add_u32 s19, s14, s16')
    a('s_cmp_eq_u32 s19, %d' % (248 * 8 + 7)); a('s_cselect_b32 s21, 1024, s21'); a('s_cselect_b32 s13, %d, s13' % LX1024)
    a('s_lshl_b32 s22, s21, 11')
    a('v_add_u32 v6, s13, v14'); a('v_add_u32 v7, %d, v14' % LWR)
    a('s_waitcnt lgkmcnt(0)')
    for i in range(4): a('v_min_u32 %s, -2, %s' % (v(16 + i), v(16 + i)))
    a('buffer_store_dwordx4 v[16:19], v4, s[24:27], s17 offen sc1')
    a('ds_read_b128 %s, v6' % v(XR, 4)); a('ds_read_b128 %s, v6 offset:1024' % v(XR + 4, 4))
    a('ds_read_b128 %s, v7' % v(WP, 4)); a('ds_read_b128 %s, v7 offset:1024' % v(WP + 4, 4))
    a('s_cmp_lt_u32 s16, 4'); a('s_cbranch_scc1 fk_noy5')
    window(a, UE, KE, 16, 4, PE)
    G5R = 128
    a('v_add_u32 v3, %d, v14' % LG5); a('v_mov_b32 v4, %d' % LG5E)
    for q in range(4): a('ds_read_b128 %s, v3 offset:%d' % (v(G5R + 4 * q, 4), 1024 * q))
    a('ds_read_b32 v9, v4')
    a('s_lshl_b32 s38, s20, 2'); a('s_sub_u32 s39, 28, s38')
    a('s_waitcnt lgkmcnt(0)')
    a.label('fk_y5')
    for kk in range(2): a('v_pk_mul_f32 %s, %s, %s' % (v(144 + 2 * kk, 2), v(G5R + 2 * kk, 2), v(CS + 2 * kk, 2)))
    for kk in range(2, 8): a('v_pk_fma_f32 %s, %s, %s, %s' % (v(144 + 2 * (kk & 1), 2), v(G5R + 2 * kk, 2), v(CS + 2 * kk, 2), v(144 + 2 * (kk & 1), 2)))
    a('v_pk_add_f32 v[144:145], v[144:145], v[146:147]')
    a('v_add_f32 v144, v144, v145')
    a('s_lshl_b32 s13, s23, 31'); a('v_xor_b32 v12, s13, v9')
    wave_reduce(a, [144])
    a('v_add_f32 v144, v144, v12'); a('v_add_f32 v144, v144, v144'); a('v_cvt_f16_f32 v144, v144')
    a('s_add_u32 s13, s38, %d' % LY5); a('s_add_u32 s14, s39, %d' % LY5)
    a('v_mov_b32 v10, s13'); a('v_mov_b32 v11, s14')
    a('s_mov_b32 exec_lo, 0'); a('s_mov_b32 exec_hi, 0x80000000')
    a('ds_write_b32 v10, v144'); a('ds_write_b32 v11, v144')
    a('s_mov_b64 exec, -1')
    a('s_cmp_lg_u32 s23, 0'); a('s_cbranch_scc1 fk_noy5')
    a('s_mov_b32 s23, 1024'); a('s_mov_b32 s38, 28')
    y5cos()
    a('s_branch fk_y5')
    a.label('fk_noy5')
    a('v_lshrrev_b32 v1, 1, v0'); a('v_and_b32 v45, 1, v0')
    a('v_lshrrev_b32 v2, 4, v1'); a('v_and_b32 v3, 15, v1')
    a('v_cmp_gt_u32 vcc, 8, v3')
    a('v_sub_u32 v6, 16, v3'); a('v_and_b32 v6, 7, v6'); a('v_sub_u32 v5, 31, v2')
    a('v_cndmask_b32 v6, v6, v3, vcc'); a('v_cndmask_b32 v5, v5, v2, vcc')
    a('v_lshl_add_u32 v4, v6, 5, v5'); a('v_mul_u32_u24 v4, %d, v4' % YS); a('v_lshl_add_u32 v4, v45, 4, v4')
    a('s_lshl_b32 s17, s3, 5'); a('s_add_u32 s17, s17, 0x%x' % YOFF)
    a('v_cndmask_b32 v6, -1, 1, vcc')
    a('v_cmp_eq_u32 vcc, 8, v3')
    a('v_mul_u32_u24 v46, %d, v45' % (4 * RS)); a('v_add_u32 v46, %d, v46' % LROW)
    a('v_cndmask_b32 v6, v6, 15, vcc')
    a('v_lshlrev_b32 v9, 2, v1'); a('v_lshl_add_u32 v10, v6, 1, v9')
    a('v_add_u32 v9, v46, v9'); a('v_add_u32 v10, v46, v10')
    a('s_mul_i32 s36, s16, %d' % RS); a('s_add_u32 s36, s36, %d' % LROW); a('v_add_u32 v5, s36, v14')
    a('s_sub_u32 s36, 7, s16'); a('s_cmp_eq_u32 s21, 0'); a('s_cselect_b32 s36, 0, s36'); a('s_cmp_eq_u32 s21, 1024'); a('s_cselect_b32 s36, 7, s36')
    a('s_mul_i32 s36, s36, %d' % RS); a('s_add_u32 s36, s36, %d' % (LROW + 1008)); a('v_sub_u32 v11, s36, v14')
    a('s_lshl_b32 s36, s16, 2'); a('s_add_u32 s36, s36, %d' % LY5); a('v_mov_b32 v6, s36')
    a('s_mov_b32 s36, 0xffff0000'); a('s_mov_b32 s37, 0x3f803f80'); a('s_mov_b32 s38, %s' % fh(64.0))
    a('s_waitcnt lgkmcnt(0)')
    for k in range(8):
        a('v_lshlrev_b32 %s, 16, %s' % (v(H + 2 * k), v(XR + k))); a('v_and_b32 %s, s36, %s' % (v(H + 2 * k + 1), v(XR + k)))
    a('v_mov_b32 v44, 0')
    for k in range(8): a('v_dot2c_f32_bf16 v44, s37, %s' % v(WP + k))
    wave_reduce(a, [44])
    a('v_readlane_b32 s39, v44, 63')
    a('s_mov_b32 s42, 0')
    a('s_waitcnt vmcnt(0)')
    stamp(a, 9)
    def scatter():
        for u in range(4):
            a('ds_write_b16 v9, %s offset:%d' % (v(YR + u), u * RS))
            a('ds_write_b16_d16_hi v10, %s offset:%d' % (v(YR + u), u * RS))
    a.label('fk_polly')
    a('buffer_load_dwordx4 %s, v4, s[24:27], s17 offen sc1' % v(YR, 4))
    poll_check(a, list(range(YR, YR + 4)), 46, 42, 'fk_polly', 'fk_goty')
    scatter()
    stamp(a, 10)
    window(a, UC, KC, 16, 0, PC)
    a('v_mov_b32 v2, 0'); a('v_mov_b32 v3, 0'); a('v_mov_b32 v4, 0'); a('v_mov_b32 v7, 0')
    a('v_mov_b32 v12, %d' % LKEY)
    a('s_waitcnt lgkmcnt(0)')
    a('s_barrier')
    stamp(a, 11)
    a('ds_read_b128 %s, v5' % v(YR, 4)); a('ds_read_b128 %s, v11' % v(YR + 4, 4)); a('ds_read_b32 v44, v6')
    def mix(e, r, hi):
        a('v_fma_mix_f32 %s, %s, s38, %s op_sel:[%d,0,0] op_sel_hi:[1,0,0]' % (v(H + e), v(r), v(H + e), hi))
    a('s_waitcnt lgkmcnt(2)')
    for k in range(4): mix(2 * k, YR + k, 0); mix(2 * k + 1, YR + k, 1)
    a('s_waitcnt lgkmcnt(0)')
    stamp(a, 15, True)
    a('v_readfirstlane_b32 s13, v44')
    a('v_mov_b32_dpp v8, %s wave_shr:1 row_mask:0xf bank_mask:0xf' % v(YR + 4))
    for j in (3, 2, 1, 0):
        mix(15 - 2 * j, YR + 4 + j, 1)
        if j: mix(16 - 2 * j, YR + 4 + j, 0)
        if j == 2: a('v_writelane_b32 v8, s13, 0')
    mix(8, 8, 0)
    for k in [0, 1, 2, 3, 5, 6, 7, 4]: a('v_cvt_pk_bf16_f32 %s, %s, %s' % (v(HP + k), v(H + 2 * k), v(H + 2 * k + 1)))
    for k in [0, 1, 2, 3, 5, 6, 7, 4]:
        a('v_dot2c_f32_bf16 v2, s37, %s' % v(HP + k)); a('v_dot2c_f32_bf16 v3, %s, %s' % (v(HP + k), v(HP + k)))
        a('v_dot2c_f32_bf16 v4, %s, %s' % (v(HP + k), v(WP + k)))
    reduce4(a, 2, 4, 3, 7)
    a('v_readlane_b32 s13, v2, 32')
    ln_chain(a, 2, 8, 9)
    a('v_mov_b32 v10, s13'); a('v_fma_f32 v10, -v8, s39, v10'); a('v_mul_f32 v10, v10, v9'); a('v_mul_f32 v8, v8, v9')
    a('v_readlane_b32 s43, v10, 16'); a('v_readlane_b32 s4, v9, 16'); a('v_readlane_b32 s6, v8, 16')
    a('s_ashr_i32 s13, s43, 31'); a('s_or_b32 s13, s13, 0x80000000'); a('s_xor_b32 s43, s43, s13')
    a('s_and_b32 s43, s43, 0xfffff800'); a('s_or_b32 s43, s43, s19'); a('s_min_u32 s43, s43, -2')
    a('v_mov_b32 v2, s43')
    a('s_mov_b64 exec, 1')
    a('ds_max_u32 v12, v2')
    a('s_mov_b64 exec, -1')
    stamp(a, 16, True)
    a('v_mov_b32 v10, s6'); a('v_add_f32 v8, 1.0, v9')
    a('v_lshlrev_b32 v4, 12, v15'); a('s_lshl_b32 s17, s3, 4'); a('s_add_u32 s17, s17, 0x%x' % KEYS)
    a('v_readlane_b32 s14, v8, 16')
    a('s_waitcnt lgkmcnt(0)')
    a('s_barrier')
    a('ds_read_b32 v3, v12')
    for k in range(8):
        a('v_lshlrev_b32 %s, 16, %s' % (v(H + 2 * k), v(HP + k))); a('v_and_b32 %s, s36, %s' % (v(H + 2 * k + 1), v(HP + k)))
    a('s_waitcnt lgkmcnt(0)')
    a('v_readfirstlane_b32 s13, v3')
    stamp(a, 12)
    stamp(a, 17, True)
    def out_regs():
        for k in range(8):
            a('v_pk_fma_f32 %s, %s, s[14:15], v[10:11] op_sel_hi:[1,0,0] neg_lo:[0,0,1] neg_hi:[0,0,1]' % (v(HN + 2 * k, 2), v(H + 2 * k, 2)))
        for k in range(8): a('v_cvt_pk_bf16_f32 %s, %s, %s' % (v(OUT + k), v(HN + 2 * k), v(HN + 2 * k + 1)))
    def out_store():
        a('buffer_store_dwordx4 %s, v14, s[28:31], s22 offen%s' % (v(OUT, 4), OUTF))
        a('buffer_store_dwordx4 %s, v14, s[28:31], s22 offen offset:1024%s' % (v(OUT + 4, 4), OUTF))
    AH, BF, BD, ACC, KEY, PP, D2R = 16, 128, 160, 176, 180, 184, 192
    def frag_preload():
        a('v_lshrrev_b32 v1, 4, v15'); a('v_bfe_u32 v2, v15, 2, 2')
        a('v_lshl_add_u32 v8, v1, 3, v2'); a('v_lshlrev_b32 v8, 7, v8')
        a('v_and_b32 v3, 2, v2'); a('v_xor_b32 v9, s16, v3'); a('v_and_b32 v3, 1, v1'); a('v_lshlrev_b32 v4, 2, v3'); a('v_xor_b32 v9, v4, v9')
        a('v_lshl_add_u32 v8, v9, 4, v8'); a('v_and_b32 v9, 1, v15'); a('v_lshl_add_u32 v8, v9, 3, v8')
        a('v_bfe_u32 v9, v15, 1, 1'); a('v_lshl_add_u32 v8, v9, 15, v8')
        a('v_lshrrev_b32 v7, 1, v1'); a('v_lshl_add_u32 v7, v7, 3, v2'); a('v_lshlrev_b32 v7, 9, v7'); a('v_lshl_add_u32 v7, v3, 5, v7')
        a('v_and_b32 v3, 3, v15'); a('v_lshl_add_u32 v7, v3, 3, v7'); a('s_lshl_b32 s15, s16, 6'); a('s_add_u32 s15, s15, %d' % LD); a('v_add_u32 v7, s15, v7')
        a('v_lshlrev_b32 v9, 4, v1'); a('v_add_u32 v9, %d, v9' % LHN)
    def landed_add():
        if LATE:
            a('v_mov_b32 v1, %d' % (LSIG + 48)); a('v_mov_b32 v2, 1'); a('s_mov_b64 exec, 1'); a('ds_add_u32 v1, v2'); a('s_mov_b64 exec, -1')
    def frag_reads(tag):
        if LATE:
            a.label('fk_land' + tag)
            a('ds_read_b32 v2, v1'); a('s_waitcnt lgkmcnt(0)'); a('v_readfirstlane_b32 s15, v2')
            a('s_cmp_lt_u32 s15, 8'); a('s_cbranch_scc1 fk_land' + tag)
        for k in range(8):
            a('ds_read_b64_tr_b16 %s, v8 offset:%d' % (v(BF + 4 * k, 2), 4096 * k))
            a('ds_read_b64_tr_b16 %s, v8 offset:%d' % (v(BF + 4 * k + 2, 2), 4096 * k + 512))
            if k == 5: a('s_waitcnt lgkmcnt(4)')
    a('s_cmp_lg_u32 s13, s43'); a('s_cbranch_scc1 fk_other')
    a('s_mov_b64 exec, 0xff')
    a('buffer_store_dword v2, v4, s[24:27], s17 offen sc1')
    a('s_mov_b64 exec, -1')
    for k in range(8):
        a('v_pk_fma_f32 %s, %s, s[4:5], v[10:11] op_sel_hi:[1,0,0] neg_lo:[0,0,1] neg_hi:[0,0,1]' % (v(HN + 2 * k, 2), v(H + 2 * k, 2)))
    for k in range(8): a('v_cvt_pk_bf16_f32 %s, %s, %s' % (v(TMP + k), v(HN + 2 * k), v(HN + 2 * k + 1)))
    for k in range(8): a('v_and_b32 %s, -2, %s' % (v(TMP + k), v(TMP + k)))
    a('s_mul_i32 s13, s3, %d' % OS); a('s_add_u32 s13, s13, 0x%x' % WOFF)
    a('buffer_store_dwordx4 %s, v14, s[24:27], s13 offen sc1' % v(TMP, 4))
    a('buffer_store_dwordx4 %s, v14, s[24:27], s13 offen offset:1024 sc1' % v(TMP + 4, 4))
    for k in range(8): a('v_and_b32 %s, -2, %s' % (v(HP + k), v(HP + k)))
    a('buffer_store_dwordx4 %s, v14, s[24:27], s13 offen offset:2048 sc1' % v(HP, 4))
    a('buffer_store_dwordx4 %s, v14, s[24:27], s13 offen offset:3072 sc1' % v(HP + 4, 4))
    out_regs()
    frag_preload()
    if not LATE: frag_reads('a')
    a('s_and_b32 s13, s2, 7'); a('s_lshl_b32 s13, s13, 12'); a('s_add_u32 s13, s13, 0x%x' % KEYS)
    a('s_mov_b32 s42, 0')
    a('s_waitcnt vmcnt(4)')
    landed_add()
    a.label('fk_pollk')
    for i in range(4): a('buffer_load_dword %s, v14, s[24:27], s13 offen offset:%d sc1' % (v(KEY + i), 1024 * i))
    poll_check(a, list(range(KEY, KEY + 4)), 3, 42, 'fk_pollk', 'fk_gotk')
    stamp(a, 13)
    wave_reduce(a, [3], op='v_max_u32')
    a('v_readlane_b32 s40, v3, 63')
    a('v_mov_b32 v4, %d' % LWIN)
    a('s_bfe_u32 s13, s40, 0x80003'); a('s_mul_i32 s13, s13, %d' % OS); a('s_and_b32 s14, s3, 3'); a('s_lshl_b32 s14, s14, 9')
    a('s_add_u32 s13, s13, s14'); a('s_add_u32 s13, s13, 0x%x' % WOFF)
    a('v_lshlrev_b32 v5, 3, v15'); a('v_mov_b32 v3, s40')
    a('s_cmp_gt_u32 s3, 223'); a('s_cbranch_scc1 fk_norow')
    a('s_mov_b32 s42, 0')
    if LATE:
        a('buffer_load_dwordx2 %s, v5, s[24:27], s13 offen sc1' % v(KEY, 2))
        frag_reads('a')
        a('s_branch fk_chkr')
    a.label('fk_pollr')
    a('buffer_load_dwordx2 %s, v5, s[24:27], s13 offen sc1' % v(KEY, 2))
    a.label('fk_chkr')
    phase_check(a, [KEY, KEY + 1], 6, 42, 'fk_pollr', 'fk_gotr')
    a('v_add_u32 v5, %d, v5' % LHN)
    a('ds_write_b64 v5, %s' % v(KEY, 2))
    a.label('fk_norow')
    a('ds_write_b32 v4, v3')
    a('s_waitcnt lgkmcnt(0)')
    a('s_barrier')
    a('s_cmp_eq_u32 s40, s43')
    if OUTAT == 'early':
        a('s_cbranch_scc1 fk_ffn')
        out_store()
    else: a('s_cselect_b32 s22, 0x400000, s22')
    a('s_branch fk_ffn')
    a.label('fk_other')
    out_regs()
    if OUTAT == 'early': out_store()
    a('s_and_b32 s13, s13, 7'); a('s_cmp_gt_u32 s16, s13'); a('s_cselect_b32 s13, 1, 0'); a('s_sub_u32 s17, s16, s13')
    if UD >= 64:
        if LATE: a('s_waitcnt vmcnt(0)')
        frag_preload()
        landed_add()
        window(a, UD, KD, 17, 0, PD)
        frag_reads('b')
        a('s_waitcnt lgkmcnt(0)' if DLATE else 's_waitcnt vmcnt(0) lgkmcnt(0)')
    else:
        window(a, UD, KD, 17, 0, PD)
        frag_preload()
        a('s_waitcnt vmcnt(0)')
        landed_add()
        frag_reads('b')
        a('s_waitcnt lgkmcnt(0)')
    a('s_barrier')
    a.label('fk_ffn')
    stamp(a, 14)
    if OUTAT == 'bf': out_store()
    a('s_cmp_gt_u32 s3, 223'); a('s_cbranch_scc1 %s' % ('fk_lateout' if OUTAT in ('p1', 'end') else 'fk_fin'))
    for k in range(8): a('ds_read_b128 %s, v9 offset:%d' % (v(AH + 4 * k, 4), 64 * k))
    a('v_mov_b32 v3, %d' % LWIN); a('ds_read_b32 v12, v3')
    a('v_lshlrev_b32 v4, 3, v15')
    a('s_mul_i32 s41, s3, %d' % OS); a('s_lshl_b32 s14, s16, 6'); a('s_add_u32 s13, s41, s14'); a('s_add_u32 s13, s13, 0x%x' % (WOFF + OP1))
    for k in range(8):
        a('s_waitcnt lgkmcnt(%d)' % (8 - k))
        a('v_mfma_f32_16x16x32_bf16 %s, %s, %s, %s' % (v(ACC, 4), v(AH + 4 * k, 4), v(BF + 4 * k, 4), '0' if k == 0 else v(ACC, 4)))
    a('v_lshlrev_b32 v5, 3, v15'); a('v_lshlrev_b32 v6, 2, v15')
    a('v_lshrrev_b32 v9, 5, v15'); a('v_lshlrev_b32 v9, 4, v9'); a('v_add_u32 v9, %d, v9' % LACT)
    a('s_lshl_b32 s14, s16, 7'); a('s_add_u32 s41, s41, s14'); a('s_add_u32 s41, s41, 0x%x' % (WOFF + OP2))
    a('v_and_b32 %s, -2, %s' % (v(ACC), v(ACC)))
    a('v_mov_b32_dpp %s, %s row_shl:8 %s' % (v(ACC + 1), v(ACC), DPPF))
    a('v_mov_b32_dpp %s, %s row_shl:1 %s' % (v(ACC + 2), v(ACC), DPPF))
    a('v_mov_b32_dpp %s, %s row_shl:9 %s' % (v(ACC + 3), v(ACC), DPPF))
    a('s_mov_b64 exec, 0x55')
    a('buffer_store_dwordx4 %s, v4, s[24:27], s13 offen sc1' % v(ACC, 4))
    a('s_mov_b64 exec, -1')
    if OUTAT == 'p1': out_store()
    def bd_reads(tag, add=True):
        if DLATE:
            if add:
                a('s_waitcnt vmcnt(0)')
                a('s_mov_b64 exec, 1'); a('ds_add_u32 v1, v8'); a('s_mov_b64 exec, -1')
            a.label('fk_dl' + tag)
            a('ds_read_b32 v13, v1'); a('s_waitcnt lgkmcnt(0)'); a('v_readfirstlane_b32 s15, v13')
            a('s_cmp_lt_u32 s15, 8'); a('s_cbranch_scc1 fk_dl' + tag)
        for kk in range(4):
            a('ds_read_b64_tr_b16 %s, v7 offset:%d' % (v(BD + 4 * kk, 2), 8192 * kk))
            a('ds_read_b64_tr_b16 %s, v7 offset:%d' % (v(BD + 4 * kk + 2, 2), 8192 * kk + 2048))
    a('v_mov_b32 v1, %d' % (LSIG + 52)); a('v_mov_b32 v8, 1')
    if not DLATE: bd_reads('')
    a('s_cmp_eq_u32 s16, 7'); a('s_cbranch_scc1 fk_c1')
    a('s_cmp_lg_u32 s16, 0'); a('s_cbranch_scc1 %s' % ('fk_bd' if DLATE else 'fk_wait1'))
    a('s_and_b32 s13, s3, -4'); a('s_mul_i32 s13, s13, %d' % OS); a('s_add_u32 s36, s13, 0x%x' % (WOFF + OP1))
    for i in range(1, 4): a('s_add_u32 %s, s36, %d' % (s(36 + i), i * OS))
    a('s_mov_b32 s42, 0')
    a('v_lshrrev_b32 v10, 2, v5'); a('v_add_u32 v10, %d, v10' % LACT)
    a('s_waitcnt vmcnt(%d)' % (2 if OUTAT == 'p1' else 0))
    if DLATE: a('s_mov_b64 exec, 1'); a('ds_add_u32 v1, v8'); a('s_mov_b64 exec, -1')
    a.label('fk_poll1')
    for i in range(4): a('buffer_load_dwordx2 %s, v5, s[24:27], %s offen sc1' % (v(PP + 2 * i, 2), s(36 + i)))
    phase_check(a, list(range(PP, PP + 8)), 11, 42, 'fk_poll1', 'fk_got1')
    stamp(a, 15)
    a('v_pk_add_f32 %s, %s, %s' % (v(PP, 2), v(PP, 2), v(PP + 2, 2))); a('v_pk_add_f32 %s, %s, %s' % (v(PP + 4, 2), v(PP + 4, 2), v(PP + 6, 2)))
    a('v_pk_add_f32 %s, %s, %s' % (v(PP, 2), v(PP, 2), v(PP + 4, 2)))
    rbf(a, PP); rbf(a, PP + 1)
    a('v_mul_f32 %s, %s, %s' % (v(PP + 2), fh(-1.4426950408889634), v(PP)))
    a('v_exp_f32 %s, %s' % (v(PP + 2), v(PP + 2)))
    a('v_add_f32 %s, 1.0, %s' % (v(PP + 2), v(PP + 2)))
    a('v_rcp_f32 %s, %s' % (v(PP + 2), v(PP + 2)))
    a('v_mul_f32 %s, %s, %s' % (v(PP), v(PP), v(PP + 2)))
    rbf(a, PP)
    a('v_mul_f32 %s, %s, %s' % (v(PP), v(PP), v(PP + 1)))
    rbf(a, PP)
    a('ds_write_b16_d16_hi v10, %s' % v(PP))
    if DLATE: bd_reads('a', False)
    a('s_branch fk_wait1')
    a.label('fk_c1')
    a('s_cmp_gt_u32 s3, 127'); a('s_cbranch_scc1 %s' % ('fk_bd' if DLATE else 'fk_wait1'))
    a('s_waitcnt lgkmcnt(0)')
    a('v_readfirstlane_b32 s40, v12')
    a('v_lshrrev_b32 v10, 4, v15'); a('v_and_b32 v11, 1, v15'); a('v_lshl_add_u32 v12, v11, 2, v10'); a('v_lshlrev_b32 v12, 1, v12')
    a('v_and_b32 v11, 12, v12'); a('v_and_b32 v10, 1, v10')
    a('s_bfe_u32 s13, s40, 0x80003'); a('s_mul_i32 s14, s13, %d' % OS); a('s_lshl_b32 s15, s3, 4'); a('s_add_u32 s14, s14, s15'); a('s_add_u32 s14, s14, 0x%x' % WOFF)
    a('s_mov_b32 s42, 0')
    a.label('fk_pollh')
    a('buffer_load_dword v2, v11, s[24:27], s14 offen sc1')
    a('buffer_load_dword v3, v11, s[24:27], s14 offen offset:2048 sc1')
    phase_check(a, [2, 3], 4, 42, 'fk_pollh', 'fk_goth')
    a('v_cmp_eq_u32 vcc, 1, v10')
    for r in (2, 3):
        a('v_lshlrev_b32 v4, 16, %s' % v(r)); a('v_and_b32 %s, s36, %s' % (v(r), v(r))); a('v_cndmask_b32 %s, v4, %s, vcc' % (v(r), v(r)))
    a('s_lshr_b32 s14, s13, 4'); a('s_add_u32 s14, s14, 1'); a('s_cmp_ge_u32 s13, 248'); a('s_cselect_b32 s14, 0, s14')
    a('s_cmp_ge_u32 s13, 240'); a('s_cselect_b32 s15, 7, 15'); a('s_and_b32 s15, s15, s13'); a('s_lshl_b32 s15, s15, 7'); a('s_add_u32 s14, s14, s15')
    a('s_and_b32 s13, s40, 7'); a('s_sub_u32 s15, 7, s13'); a('s_min_u32 s15, s15, s13'); a('s_lshl_b32 s15, s15, 5'); a('s_add_u32 s14, s14, s15')
    a('s_sub_u32 s15, 2048, s14'); a('s_and_b32 s15, s15, 2047'); a('s_cmp_lt_u32 s13, 4'); a('s_cselect_b32 s14, s14, s15')
    a('s_and_b32 s13, s40, 0x7ff'); a('s_cmp_eq_u32 s13, %d' % (248 * 8 + 7)); a('s_cselect_b32 s14, 1024, s14')
    a('s_lshl_b32 s21, s14, 11'); a('s_lshl_b32 s15, s3, 4'); a('s_add_u32 s21, s21, s15')
    a('s_ashr_i32 s13, s40, 31'); a('s_not_b32 s13, s13'); a('s_or_b32 s13, s13, 0x80000000'); a('s_xor_b32 s13, s40, s13'); a('s_and_b32 s13, s13, 0xfffff800')
    a('v_mov_b32 v11, s13'); rbf(a, 11)
    a('v_mul_f32 v11, %s, v11' % fh(-1.4426950408889634))
    a('v_exp_f32 v11, v11'); a('v_add_f32 v11, 1.0, v11'); a('v_rcp_f32 v11, v11'); rbf(a, 11)
    a('v_lshrrev_b32 v4, 1, v15'); a('v_mul_u32_u24 v4, %d, v4' % (4 * OS)); a('v_and_b32 v5, 1, v15'); a('v_lshl_add_u32 v4, v5, 4, v4')
    a('v_add_u32 v5, %d, v4' % (128 * OS)); a('v_cmp_gt_u32 vcc, 48, v15'); a('v_cndmask_b32 v5, -16, v5, vcc')
    a('s_lshr_b32 s40, s3, 5'); a('s_mul_i32 s40, s40, %d' % OS); a('s_and_b32 s15, s3, 31'); a('s_lshl_b32 s15, s15, 5'); a('s_add_u32 s40, s40, s15')
    a('s_add_u32 s40, s40, 0x%x' % (WOFF + OP2))
    if DLATE:
        a.label('fk_bd')
        bd_reads('b')
    a.label('fk_wait1')
    a('s_waitcnt lgkmcnt(0)'); a('s_barrier')
    stamp(a, 16)
    for kk in range(4): a('ds_read_b128 %s, v9 offset:%d' % (v(AH + 4 * kk, 4), 32 * kk))
    for kk in range(4):
        a('s_waitcnt lgkmcnt(%d)' % (3 - kk))
        a('v_mfma_f32_32x32x16_bf16 %s, %s, %s, %s' % (v(D2R, 16), v(AH + 4 * kk, 4), v(BD + 4 * kk, 4), '0' if kk == 0 else v(D2R, 16)))
    a('v_and_b32 %s, -2, %s' % (v(D2R), v(D2R)))
    quad_gather(a, D2R, 1)
    a('s_mov_b32 exec_lo, 0x11111111'); a('s_mov_b32 exec_hi, 0')
    a('buffer_store_dwordx4 %s, v6, s[24:27], s41 offen sc1' % v(D2R, 4))
    a('s_mov_b64 exec, -1')
    if OUTAT == 'end': out_store()
    stamp(a, 17)
    a('s_cmp_lg_u32 s16, 7'); a('s_cbranch_scc1 fk_fin')
    a('s_cmp_gt_u32 s3, 127'); a('s_cbranch_scc1 fk_fin')
    PQ = 16
    a('s_mov_b32 s42, 0')
    a('s_waitcnt vmcnt(%d)' % (2 if OUTAT == 'end' else 0))
    a.label('fk_poll2')
    a('buffer_load_dwordx4 %s, v4, s[24:27], s40 offen sc1' % v(PQ, 4))
    a('buffer_load_dwordx4 %s, v5, s[24:27], s40 offen sc1' % v(PQ + 4, 4))
    phase_check(a, list(range(PQ, PQ + 8)), 6, 42, 'fk_poll2', 'fk_got2')
    stamp(a, 18)
    for h in range(2): a('v_pk_add_f32 %s, %s, %s' % (v(PQ + 2 * h, 2), v(PQ + 2 * h, 2), v(PQ + 4 + 2 * h, 2)))
    for i in range(2): a('v_permlane32_swap_b32 %s, %s' % (v(PQ + i), v(PQ + 2 + i)))
    for i in range(2): a('v_add_f32 %s, %s, %s' % (v(PQ + i), v(PQ + i), v(PQ + 2 + i)))
    a('v_permlane16_swap_b32 %s, %s' % (v(PQ), v(PQ + 1)))
    a('v_add_f32 %s, %s, %s' % (v(PQ), v(PQ), v(PQ + 1)))
    a('v_add_f32_dpp %s, %s, %s quad_perm:[2,3,0,1] %s' % (v(PQ), v(PQ), v(PQ), DPPF))
    a('v_add_f32_dpp %s, %s, %s row_ror:4 %s' % (v(PQ), v(PQ), v(PQ), DPPF))
    a('v_add_f32_dpp %s, %s, %s row_ror:8 %s' % (v(PQ), v(PQ), v(PQ), DPPF))
    rbf(a, PQ); a('v_mul_f32 %s, %s, v11' % (v(PQ), v(PQ))); rbf(a, PQ)
    a('v_add_f32 %s, %s, v2' % (v(PQ), v(PQ))); rbf(a, PQ)
    a('v_add_f32 %s, %s, v3' % (v(PQ), v(PQ))); rbf(a, PQ)
    a('s_mov_b32 exec_lo, 0x00030003'); a('s_mov_b32 exec_hi, 0x00030003')
    a('buffer_store_short_d16_hi %s, v12, s[28:31], s21 offen' % v(PQ))
    if OUTAT in ('p1', 'end'):
        a('s_branch fk_fin')
        a.label('fk_lateout')
        out_store()
    a.label('fk_fin')
    stamp_dump(a, 'x')
    a.label('fk_end')
    a('s_endpgm')

def main(path):
    a = Asm()
    ref = open('%s/%s.s.ref' % (optval('ref', '/code'), NAME)).read().splitlines()
    for l in ref:
        if l.startswith('; Override'): break
        a.raw(l)
    if LIST: a.raw('; @launch kernel=%s grid=(256,1,1) block=(512,1,1) lds=%d' % (KN, LDSB))
    else: a.raw('; @launch grid=(256,1,1) block=(512,1,1) lds=%d' % LDSB)
    a.raw('.amdgcn_target "amdgcn-amd-amdhsa--gfx950"'); a.raw('.text')
    gen(a)
    a.raw('.section .rodata,"a"')
    a.raw('\n'.join(['.p2align 6', '.amdhsa_kernel %s' % KN, '  .amdhsa_next_free_vgpr 256',
        '  .amdhsa_next_free_sgpr 102', '  .amdhsa_accum_offset 256', '  .amdhsa_group_segment_fixed_size 0',
        '  .amdhsa_kernarg_size 104', '  .amdhsa_user_sgpr_count 2', '  .amdhsa_user_sgpr_kernarg_segment_ptr 1',
        '  .amdhsa_system_sgpr_workgroup_id_x 1', '.end_amdhsa_kernel', '']))
    open(path, 'w').write(a.text())
    print('wrote', path, 'lines', len(a.lines), 'nops', a.nops, 'lds', LDSB)

if __name__ == '__main__':
    ps = [x for x in sys.argv[1:] if x.endswith('.s')]
    main(ps[0] if ps else '/code/%s.s' % NAME)
```

```python
import struct, sys
from asmlib import Asm

NAME = 'sequential_preLN__spectral_fnet__moe_arch_mod__prompt'
def fh(x): return '0x%08x' % struct.unpack('<I', struct.pack('<f', x))[0]
OPT = set(a for a in sys.argv[1:] if a.startswith('--'))
def optval(name, default):
    for o in OPT:
        if o.startswith('--%s=' % name): return o[len(name) + 3:]
    return default
STAMPS = '--stamps' in OPT
LIST = '--list' in OPT or STAMPS
OUTF = {'plain': '', 'nt': ' nt', 'sc1': ' sc1'}[optval('out', 'nt')]
OUTAT = optval('outat', 'bf')
KN = 'fk_kernel' if LIST else NAME + '_kernel'

KEYS = 0x9000; G5 = 0x11000; RB = 0x13000
OHN, OH, OP1, OP2 = 0, 2048, 4096, 5120
OS = 9344
YS = 8320
WOFF = 0x20000; YOFF = WOFF + 256 * OS; WSB = YOFF + 256 * YS
LG, LD, LX = 0, 65536, 98304
LX1024 = LX + 5 * 4096
LWS = LX1024 + 2048
LA2 = LWS + 9472
RS = 2064
LROW = LA2 + 8192
LWR = LROW + 8 * RS
LG5 = LX + 4 * 4096
LMISC = LWR + 2048
LG5S, LY5, LKEY, LWIN, LG5E, LACT, LHN, LSIG = LMISC, LMISC + 32, LMISC + 64, LMISC + 80, LMISC + 96, LMISC + 128, LMISC + 256, LMISC + 768
LDSB = LMISC + 896
assert LDSB <= 163840

def v(i, n=1): return 'v%d' % i if n == 1 else 'v[%d:%d]' % (i, i + n - 1)
def s(i, n=1): return 's%d' % i if n == 1 else 's[%d:%d]' % (i, i + n - 1)
DPPF = 'row_mask:0xf bank_mask:0xf'
ROWRED = ['quad_perm:[1,0,3,2] ' + DPPF, 'quad_perm:[2,3,0,1] ' + DPPF, 'row_half_mirror ' + DPPF, 'row_mirror ' + DPPF]
def wave_reduce(a, regs, op='v_add_f32'):
    for pat in ROWRED + ['row_bcast:15 row_mask:0xa bank_mask:0xf', 'row_bcast:31 row_mask:0xc bank_mask:0xf']:
        for r in regs: a('%s_dpp %s, %s, %s %s' % (op, v(r), v(r), v(r), pat))
def rbf(a, r): a('v_cvt_pk_bf16_f32 %s, 0, %s' % (v(r), v(r)))
def angles(a, mulreg, basereg, ks, tmp):
    for i, k in enumerate(ks):
        if k == 0: a('v_mov_b32 %s, %s' % (v(tmp + i), v(basereg)))
        else: a('v_fmamk_f32 %s, %s, %s, %s' % (v(tmp + i), v(mulreg), fh(float(k)), v(basereg)))
def kr(r): return (r & 3) + 8 * (r >> 2)
def gen_c2s2(a, vln_f, vlh4_f, C2, S2, tmp):
    c, b = tmp, tmp + 1
    a('v_mul_f32 %s, %s, %s' % (v(c), fh(1.0 / 32), v(vln_f)))
    a('v_mul_f32 %s, %s, %s' % (v(b), v(c), v(vlh4_f)))
    ang = tmp + 2
    angles(a, c, b, [kr(r) for r in range(16)], ang)
    for r in range(16): a('v_cos_f32 %s, %s' % (v(ang + 16 + r), v(ang + r)))
    for p in range(8): a('v_cvt_pk_f16_f32 %s, %s, %s' % (v(C2 + p), v(ang + 16 + 2 * p), v(ang + 17 + 2 * p)))
    for r in range(16): a('v_sin_f32 %s, %s' % (v(ang + 16 + r), v(ang + r)))
    for p in range(8): a('v_cvt_pk_f16_f32 %s, %s, %s' % (v(S2 + p), v(ang + 16 + 2 * p), v(ang + 17 + 2 * p)))
def reduce4(a, A, B, C, D):
    a('v_permlane32_swap_b32 %s, %s' % (v(A), v(B))); a('v_permlane32_swap_b32 %s, %s' % (v(C), v(D)))
    a('v_add_f32 %s, %s, %s' % (v(A), v(A), v(B))); a('v_add_f32 %s, %s, %s' % (v(C), v(C), v(D)))
    a('v_permlane16_swap_b32 %s, %s' % (v(A), v(C)))
    a('v_add_f32 %s, %s, %s' % (v(A), v(A), v(C)))
    for pat in ROWRED: a('v_add_f32_dpp %s, %s, %s %s' % (v(A), v(A), v(A), pat))
def ln_chain(a, tot, m, t):
    a('v_mov_b32_dpp %s, %s row_bcast:15 row_mask:0xa bank_mask:0xf' % (v(m), v(tot)))
    a('v_mul_f32 %s, %s, %s' % (v(t), fh(1.0 / 1024), v(tot)))
    a('v_mul_f32 %s, %s, %s' % (v(m), fh(1.0 / 1024), v(m)))
    a('v_fma_f32 %s, -%s, %s, %s' % (v(t), v(m), v(m), v(t)))
    a('v_max_f32 %s, 0, %s' % (v(t), v(t)))
    rbf(a, t); rbf(a, m)
    a('v_add_f32 %s, %s, %s' % (v(t), fh(1e-5), v(t))); rbf(a, t)
    a('v_sqrt_f32 %s, %s' % (v(t), v(t))); rbf(a, t)
    a('v_rcp_f32 %s, %s' % (v(t), v(t)))

NST = 20
EARLY = '--early' in OPT
def stamp(a, i, early=False):
    if STAMPS and (early == EARLY or i < 12 or i == NST - 1): a('s_memrealtime s[%d:%d]' % (60 + 2 * i, 61 + 2 * i))
def stamp_dump(a, tag):
    if not STAMPS: return
    a('s_waitcnt vmcnt(0) lgkmcnt(0)')
    stamp(a, NST - 1)
    a('s_load_dwordx2 s[4:5], s[0:1], 96'); a('s_waitcnt lgkmcnt(0)')
    a('s_add_u32 s4, s4, 0x8000000'); a('s_addc_u32 s5, s5, 0'); a('s_mov_b32 s6, 0x40000'); a('s_mov_b32 s7, 0x00020000')
    a('s_lshl_b32 s12, s2, 3'); a('s_add_u32 s12, s12, s16'); a('s_lshl_b32 s12, s12, 7')
    a('s_mov_b64 exec, 1'); a('v_mov_b32 v1, 0')
    for i in range(NST):
        a('v_mov_b32 v2, s%d' % (60 + 2 * i)); a('buffer_store_dword v2, v1, s[4:7], s12 offen offset:%d' % (4 * i))

NH = int(optval('nh', '4'))
KA = int(optval('ka', '0')); CPOST = '--cpost' in OPT
KB, KE, KC, KD = (int(x) for x in optval('win', '4,0,5,4').split(','))
PB, PE, PC, PD = (int(x) for x in optval('wpace', '99,99,99,99').split(','))
assert '--now' in OPT or 3 * NH + 4 * KA + 4 * KB + 4 * KE + 8 * KC + 7 * KD >= 96, 'units missing'
def unit_setup(a):
    a('v_lshrrev_b32 v208, 3, v15'); a('v_and_b32 v209, 7, v15'); a('v_and_b32 v210, 2, v208'); a('v_xor_b32 v209, v210, v209')
    a('v_mul_u32_u24 v208, 7168, v208'); a('v_lshl_add_u32 v208, v209, 4, v208')
    a('v_lshrrev_b32 v210, 5, v15'); a('v_lshlrev_b32 v210, 11, v210'); a('v_and_b32 v209, 31, v15'); a('v_lshl_add_u32 v210, v209, 4, v210')
    a('s_and_b32 s12, s3, 3'); a('s_mul_i32 s100, s12, %d' % (256 * 7168)); a('s_lshl_b32 s101, s12, 9')
    a('s_lshr_b32 s12, s3, 2'); a('s_lshl_b32 s12, s12, 7'); a('s_add_u32 s100, s100, s12'); a('s_lshl_b32 s12, s12, 10'); a('s_add_u32 s101, s101, s12')
uid = [0]
def window(a, first, k, wreg, wbase, pace=99, skip=None):
    if k == 0 or first >= 96: return
    uid[0] += 1; lab = skip or 'fk_win%d' % uid[0]
    a('s_cmp_gt_u32 s3, 223'); a('s_cbranch_scc1 %s' % lab)
    a('s_mul_i32 s15, %s, %d' % (s(wreg), k)); a('s_add_u32 s15, s15, %d' % (first - wbase * k))
    a('s_mov_b32 s58, 0x700000'); a('s_mov_b32 s59, 0x00020000')
    for i in range(k):
        a('s_cmp_gt_u32 s15, 95'); a('s_cbranch_scc1 %s' % lab)
        a('s_lshl_b32 s12, s15, 10'); a('s_mov_b32 m0, s12')
        a('s_and_b32 s14, s12, 1024'); a('s_lshr_b32 s14, s14, 4'); a('v_xor_b32 v209, s14, v208')
        a('s_cmp_lt_u32 s15, 32'); a('s_cselect_b64 s[56:57], s[44:45], s[48:49]')
        a('s_and_b32 s14, s15, 31'); a('s_mul_i32 s13, s14, %d' % (8 * 7168)); a('s_add_u32 s13, s13, s100')
        a('s_lshl_b32 s14, s14, 12'); a('s_add_u32 s14, s14, s101')
        a('s_cmp_lt_u32 s15, 64'); a('s_cselect_b64 s[56:57], s[56:57], s[52:53]'); a('s_cselect_b32 s13, s13, s14'); a('s_cselect_b64 vcc, -1, 0')
        a('v_cndmask_b32 v209, v210, v209, vcc')
        a('s_add_u32 s15, s15, 1')
        if i >= pace: a('s_waitcnt vmcnt(%d)' % pace)
        a('buffer_load_dwordx4 v209, s[56:59], s13 offen lds')
    if not skip: a.label(lab)
UA = 3 * NH; UB = UA + 4 * KA; UE = UB + 4 * KB; UC = UE + 4 * KE; UD = UC + 8 * KC
LATE = UC < 64 and '--now' not in OPT
DLATE = UD >= 64 and UD < 96 and KD > 0 and '--dlate' in OPT
BASE = int(optval('base', '0'), 0)
SLW, SLY, SLK, SL2 = (int(x) for x in optval('sl', '6,0,0,0').split(','))
WNT = ' nt' if '--wnt' in OPT else ''
CNT = ' nt' if '--cnt' in OPT else ''
WOUT = '--wout' in OPT
WSRD = 's[28:31]' if WOUT else 's[24:27]'
if WOUT: WOFF = 0
def rebase(a):
    if BASE: a('s_add_u32 s24, s24, 0x%x' % BASE); a('s_addc_u32 s25, s25, 0')
def chkpos(a, d):
    a('s_bfe_u32 %s, s3, 0x30002' % s(d)); a('s_lshl_b32 %s, %s, 7' % (s(d), s(d))); a('s_lshr_b32 s12, s3, 5'); a('s_lshl_b32 s12, s12, 4')
    a('s_add_u32 %s, %s, s12' % (s(d), s(d))); a('s_and_b32 s12, s3, 3'); a('s_lshl_b32 s12, s12, 2'); a('s_add_u32 %s, %s, s12' % (s(d), s(d)))
    a('s_add_u32 %s, %s, 8192' % (s(d), s(d)))
def piece_sum(a, d, r, tag):
    a('v_add3_u32 %s, %s, %s, %s' % (v(d), v(r), v(r + 1), v(r + 2)))
    a('v_add_u32 %s, %s, %s' % (v(d), v(d), v(r + 3)))
    return ['v_add_u32_dpp %s, %s, %s quad_perm:[1,0,3,2] %s' % (v(d), v(d), v(d), DPPF)]
def quad_gather(a, r, step):
    for i in range(1, 4): a('v_mov_b32_dpp %s, %s row_shl:%d %s' % (v(r + i), v(r), i * step, DPPF))
def poll_tail(a, cnt, lab, got):
    a('s_add_u32 %s, %s, 1' % (s(cnt), s(cnt)))
    a('s_cmp_gt_u32 %s, 0x40000' % s(cnt)); a('s_cbranch_scc1 %s' % got)
    a('s_cbranch_vccnz %s' % lab)
    a.label(got)
def phase_check(a, regs, tmp, cnt, lab, got):
    a('s_waitcnt vmcnt(0)')
    r = list(regs)
    if len(r) == 2: a('v_or_b32 %s, %s, %s' % (v(tmp), v(r[0]), v(r[1]))); r = []
    else: a('v_or3_b32 %s, %s, %s, %s' % (v(tmp), v(r[0]), v(r[1]), v(r[2]))); r = r[3:]
    while r:
        if len(r) >= 2: a('v_or3_b32 %s, %s, %s, %s' % (v(tmp), v(tmp), v(r[0]), v(r[1]))); r = r[2:]
        else: a('v_or_b32 %s, %s, %s' % (v(tmp), v(tmp), v(r[0]))); r = []
    a('v_and_b32 %s, 1, %s' % (v(tmp), v(tmp)))
    a('v_cmp_eq_u32 vcc, 1, %s' % v(tmp))
    poll_tail(a, cnt, lab, got)
def poll_check(a, regs, tmp, cnt, lab, got, wait=True):
    a('s_add_u32 %s, %s, 1' % (s(cnt), s(cnt)))
    if wait: a('s_waitcnt vmcnt(0)')
    r = list(regs)
    if len(r) == 1: a('v_cmp_eq_u32 vcc, -1, %s' % v(r[0]))
    else:
        if len(r) == 2: a('v_max_u32 %s, %s, %s' % (v(tmp), v(r[0]), v(r[1]))); r = []
        else: a('v_max3_u32 %s, %s, %s, %s' % (v(tmp), v(r[0]), v(r[1]), v(r[2]))); r = r[3:]
        while r:
            if len(r) >= 2: a('v_max3_u32 %s, %s, %s, %s' % (v(tmp), v(tmp), v(r[0]), v(r[1]))); r = r[2:]
            else: a('v_max_u32 %s, %s, %s' % (v(tmp), v(tmp), v(r[0]))); r = []
        a('v_cmp_eq_u32 vcc, -1, %s' % v(tmp))
    a('s_cmp_gt_u32 %s, 0x40000' % s(cnt)); a('s_cbranch_scc1 %s' % got)
    a('s_cbranch_vccnz %s' % lab)
    a.label(got)

def gen(a):
    a.raw('.globl %s' % KN); a.raw('.p2align 8'); a.raw('.type %s,@function' % KN)
    a.lines.append(KN + ':')
    a('s_cmp_gt_u32 s2, 255'); a('s_cbranch_scc1 fk_end')
    if STAMPS:
        for i in range(NST): a('s_mov_b32 s%d, 0' % (60 + 2 * i))
    stamp(a, 0)
    a('s_load_dwordx2 s[8:9], s[0:1], 0'); a('s_load_dwordx2 s[24:25], s[0:1], 96')
    a('s_load_dwordx2 s[32:33], s[0:1], 48'); a('s_load_dwordx2 s[44:45], s[0:1], 56'); a('s_load_dwordx2 s[48:49], s[0:1], 64')
    a('s_load_dwordx2 s[52:53], s[0:1], 72'); a('s_load_dwordx2 s[28:29], s[0:1], 80')
    if '--nocodepf' not in OPT:
        a('s_getpc_b64 s[40:41]'); a.lines.append('fk_pc:')
        a('s_mov_b32 s42, fk_end-fk_pc'); a('s_mov_b32 s43, 0x00020000')
        a('v_lshlrev_b32 v250, 6, v0')
        a('buffer_load_dword v251, v250, s[40:43], 0 offen')
    a('v_lshrrev_b32 v1, 6, v0'); a('v_and_b32 v15, 63, v0')
    a('v_readfirstlane_b32 s16, v1')
    a('s_and_b32 s3, s2, 0xe0'); a('s_and_b32 s17, s2, 7'); a('s_lshl_b32 s17, s17, 2'); a('s_or_b32 s3, s3, s17')
    a('s_bfe_u32 s17, s2, 0x20003'); a('s_or_b32 s3, s3, s17')
    a('s_lshr_b32 s17, s3, 4'); a('s_add_u32 s17, s17, 1'); a('s_cmp_ge_u32 s3, 248'); a('s_cselect_b32 s17, 0, s17')
    a('s_cmp_ge_u32 s3, 240'); a('s_cselect_b32 s18, 7, 15'); a('s_and_b32 s18, s18, s3'); a('s_lshl_b32 s18, s18, 7')
    a('s_add_u32 s18, s18, s17')
    a('v_and_b32 v1, 31, v15'); a('v_lshrrev_b32 v2, 5, v15')
    a('v_lshlrev_b32 v14, 4, v15')
    for r, n in ((8, 2048 * 2048), (24, WSB), (28, 2048 * 2048), (32, 2048), (44, 1024 * 7168), (48, 1024 * 7168), (52, 3584 * 2048)):
        a('s_mov_b32 %s, 0x%x' % (s(r + 2), n)); a('s_mov_b32 %s, 0x00020000' % s(r + 3))
    a('s_cmp_eq_u32 s3, 255'); a('s_cselect_b32 s12, 5, 4')
    a('s_cmp_ge_u32 s16, s12'); a('s_cbranch_scc1 fk_H')
    XA, XB = 16, 32
    F1, TC, TS, B3, C2, S2 = 48, 56, 72, 88, 96, 104
    X, D1, D2, D3, Q16, GA = 112, 128, 144, 160, 176, 184
    T = 128
    a('s_cmp_eq_u32 s16, 4'); a('s_cbranch_scc1 fk_lowp')
    a('s_setprio 3')
    a('@fk_lowp')
    a('s_lshl_b32 s19, s16, 5'); a('s_add_u32 s19, s19, s18')
    a('s_sub_u32 s20, 2048, s19'); a('s_and_b32 s20, s20, 2047')
    a('s_lshl_b32 s21, s19, 11'); a('s_lshl_b32 s22, s20, 11')
    a('s_lshl_b32 s12, s16, 12'); a('s_add_u32 s12, s12, %d' % LX)
    a('s_mov_b32 m0, s12')
    for i in range(32): a('v_mov_b32 %s, 0' % v(XA + i))
    a('v_cvt_f32_u32 v200, v1')
    a('v_lshlrev_b32 v7, 2, v2'); a('v_cvt_f32_u32 v7, v7')
    a('v_lshrrev_b32 v8, 1, v1'); a('v_and_b32 v9, 1, v1')
    a('v_lshlrev_b32 v205, 2, v15'); a('v_and_b32 v205, 63, v205'); a('v_add_u32 v205, %d, v205' % LSIG)
    a('ds_write_b32 v205, v16')
    a('s_waitcnt lgkmcnt(0)')
    rebase(a)
    stamp(a, 1)
    for i, so in enumerate((21, 21, 22, 22)):
        if i: a('s_add_u32 s13, s12, %d' % (1024 * i)); a('s_mov_b32 m0, s13')
        if i & 1: a('s_add_u32 s14, %s, 1024' % s(so))
        a('buffer_load_dwordx4 v14, s[8:11], %s offen lds' % (s(14) if i & 1 else s(so)))
    a('s_barrier')
    def put(base, n):
        for q in range(n // 4): a('ds_write_b128 v206, %s offset:%d' % (v(base + 4 * q, 4), 1024 * ((base - F1) // 4 + q)))
    a('v_add_u32 v206, %d, v14' % LROW)
    a('s_lshl_b32 s13, s16, 2'); a('s_add_u32 s13, s13, %d' % LSIG); a('v_mov_b32 v201, s13'); a('v_mov_b32 v202, 1')
    a('s_cmp_eq_u32 s16, 1'); a('s_cbranch_scc1 fk_j1')
    a('s_cmp_eq_u32 s16, 2'); a('s_cbranch_scc1 fk_j2')
    a('s_cmp_eq_u32 s16, 3'); a('s_cbranch_scc1 fk_j3')
    a('s_cmp_eq_u32 s16, 4'); a('s_cbranch_scc1 fk_jend')
    a('v_cmp_eq_u32 vcc, 1, v1')
    a('v_cndmask_b32 v10, v8, 16, vcc'); a('v_cndmask_b32 v11, v9, 0, vcc')
    a('v_cvt_f32_u32 v10, v10'); a('v_cvt_f32_u32 v11, v11')
    a('v_mul_f32 v10, %s, v10' % fh(1.0 / 32)); a('v_mul_f32 v11, %s, v11' % fh(0.25))
    a('v_add_f32 v12, v7, v7'); a('v_fma_f32 v11, v10, v12, v11')
    angles(a, 10, 11, list(range(8)) + list(range(16, 24)), T)
    for i in range(16): a('v_cos_f32 %s, %s' % (v(T + 16 + i), v(T + i)))
    for p in range(8): a('v_cvt_pk_f16_f32 %s, %s, %s' % (v(F1 + p), v(T + 16 + 2 * p), v(T + 17 + 2 * p)))
    put(F1, 8)
    a('s_branch fk_jsig')
    a.label('fk_j1')
    a('v_cvt_f32_u32 v10, v8'); a('v_lshlrev_b32 v11, 31, v9')
    a('v_mul_f32 v10, %s, v10' % fh(1.0 / 1024)); a('v_xor_b32 v10, v11, v10'); a('v_mul_f32 v11, v10, v7')
    angles(a, 10, 11, [kr(r) for r in range(16)], T)
    for r in range(16): a('v_cos_f32 %s, %s' % (v(TC + r), v(T + r)))
    put(TC, 16)
    for r in range(16): a('v_sin_f32 %s, %s' % (v(TS + r), v(T + r)))
    put(TS, 16)
    a('s_branch fk_jsig')
    a.label('fk_j2')
    gen_c2s2(a, 200, 7, C2, S2, T)
    put(C2, 16)
    a('s_branch fk_jsig')
    a.label('fk_j3')
    a('v_or_b32 v10, 16, v1'); a('v_cvt_f32_u32 v10, v10'); a('v_mov_b32 v11, %s' % fh(1.0 / 64))
    a('v_fmamk_f32 v10, v10, %s, v11' % fh(1.0 / 32))
    a('v_cmp_gt_u32 vcc, 16, v1'); a('v_mov_b32 v12, %s' % fh(-0.25)); a('v_cndmask_b32 v12, 0, v12, vcc')
    a('v_fma_f32 v11, v10, v7, v12')
    angles(a, 10, 11, [kr(r) for r in range(16)], T)
    for r in range(16): a('v_cos_f32 %s, %s' % (v(T + 16 + r), v(T + r)))
    for p in range(8): a('v_cvt_pk_f16_f32 %s, %s, %s' % (v(B3 + p), v(T + 16 + 2 * p), v(T + 17 + 2 * p)))
    put(B3, 8)
    a.label('fk_jsig')
    a('ds_write_b32 v201, v202 offset:32')
    a.label('fk_jend')
    a('v_lshlrev_b32 v3, 9, v2'); a('v_lshl_add_u32 v3, v1, 1, v3')
    a('v_sub_u32 v4, 576, v3'); a('v_sub_u32 v5, 2048, v3'); a('v_and_b32 v5, 2047, v5')
    a('v_add_u32 v3, s12, v3'); a('v_add_u32 v4, s12, v4'); a('v_add_u32 v5, s12, v5')
    a('s_lshl_b32 s13, s16, 10'); a('s_sub_u32 s14, %d, s13' % (7168 + 64))
    a('s_cmp_ge_u32 s3, 248'); a('s_cselect_b32 s15, 1024, 0'); a('s_add_u32 s14, s14, s15')
    a('s_cmp_eq_u32 s14, %d' % (8192 + 64)); a('s_cselect_b32 s14, %d, s14' % (4096 + 64))
    a('s_cmp_eq_u32 s19, s20'); a('s_cselect_b32 s14, %d, s14' % (8192 + 64))
    a('s_cmp_eq_u32 s16, 4'); a('s_cselect_b32 s13, %d, s13' % (8192 + 64))
    a('s_cmp_lg_u32 s19, 0'); a('s_cbranch_scc1 fk_noz')
    a('v_add_u32 v8, %d, v14' % (LWS + 4096 + 64)); a('ds_write_b128 v8, v[16:19]')
    a('@fk_noz')
    a('s_add_u32 s13, s13, %d' % LWS); a('s_add_u32 s14, s14, %d' % LWS)
    a('v_cmp_gt_u32 vcc, 16, v1')
    a('v_mov_b32 v8, s13'); a('v_mov_b32 v9, s14')
    a('v_cndmask_b32 v10, v9, v8, vcc'); a('v_cndmask_b32 v11, v8, v9, vcc')
    a('v_lshl_add_u32 v10, v15, 2, v10'); a('v_lshl_add_u32 v11, v15, 2, v11')
    a('v_lshrrev_b32 v6, 1, v15'); a('v_and_b32 v8, 1, v15'); a('v_mul_u32_u24 v9, %d, v8' % (4096 + 64))
    a('v_and_b32 v12, 15, v6'); a('v_lshl_add_u32 v12, v12, 4, v2'); a('v_mul_u32_u24 v12, %d, v12' % OS)
    a('v_mul_u32_u24 v192, %d, v8' % (2 * OS)); a('v_add_u32 v192, v192, v12')
    a('v_lshl_add_u32 v12, v8, 4, v12')
    a('v_lshrrev_b32 v194, 3, v15'); a('v_lshlrev_b32 v193, 4, v194'); a('v_lshl_add_u32 v193, v8, 7, v193')
    a('v_and_b32 v6, 3, v6'); a('v_lshl_add_u32 v9, v6, 2, v9'); a('v_lshl_add_u32 v9, v194, 7, v9')
    a('v_lshlrev_b32 v194, 10, v194'); a('v_and_b32 v6, 7, v15'); a('v_lshl_add_u32 v194, v6, 4, v194')
    a('s_lshl_b32 s13, s16, 5'); a('s_add_u32 s13, s13, %d' % LWS); a('v_add_u32 v6, s13, v9')
    a('s_mul_i32 s36, s3, %d' % OS); a('s_lshl_b32 s13, s16, 8'); a('s_add_u32 s36, s36, s13'); a('s_add_u32 s36, s36, 0x%x' % WOFF)
    a('s_mul_i32 s37, s16, %d' % (4 * OS)); a('s_add_u32 s37, s37, 0x%x' % WOFF)
    chkpos(a, 23)
    a('s_add_u32 s23, s23, s37')
    a('s_lshl_b32 s14, s3, 5'); a('s_add_u32 s37, s37, s14')
    a('s_add_u32 s38, s37, %d' % (2 * OS))
    a('s_lshl_b32 s13, s16, 11'); a('s_add_u32 s13, s13, %d' % LA2); a('v_add_u32 v7, s13, v14')
    a('v_cmp_eq_u32 s[58:59], 1, v8')
    a('s_cmp_eq_u32 s19, s20'); a('s_cselect_b32 s39, 0.5, 1.0')
    a('s_lshl_b32 s13, s16, 2'); a('s_add_u32 s13, s13, %d' % LG5S); a('v_mov_b32 v9, s13')
    a('s_mov_b32 s57, 47')
    a.label('fk_spinc')
    a('ds_read_b32 v203, v205'); a('s_waitcnt lgkmcnt(0)'); a('v_cmp_eq_u32 vcc, 0, v203')
    a('s_and_b32 s13, vcc_lo, 0xf00'); a('s_cbranch_scc1 fk_spinc')
    for q in range(16):
        a('ds_read_b128 %s, v206 offset:%d' % (v(F1 + 4 * q, 4), 1024 * q))
        if q == 11: a('s_waitcnt lgkmcnt(8)')
    stamp(a, 2)
    a('s_waitcnt vmcnt(0) lgkmcnt(0)')
    stamp(a, 3)
    for j in range(2):
        for i in range(8):
            a('ds_read_u16_d16_hi %s, v3 offset:%d' % (v(XA + 8 * j + i), 1024 * j + 64 * i))
    a('s_waitcnt lgkmcnt(2)')
    for j in range(2):
        for i in range(8):
            if j == 0 and i == 0: a('ds_read_u16_d16_hi %s, v5 offset:2048' % v(XB))
            else: a('ds_read_u16_d16_hi %s, v4 offset:%d' % (v(XB + 8 * j + i), 2048 + 1024 * (1 - j) + 64 * (7 - i)))
            if j == 1 and i == 4: a('s_waitcnt lgkmcnt(8)')
    def sums(R, t):
        for i in range(4): a('v_pk_add_f32 %s, %s, %s' % (v(t + 2 * i, 2), v(R + 4 * i, 2), v(R + 4 * i + 2, 2)))
        a('v_pk_mul_f32 %s, %s, %s' % (v(t + 8, 2), v(R, 2), v(R, 2)))
        a('v_pk_mul_f32 %s, %s, %s' % (v(t + 10, 2), v(R + 2, 2), v(R + 2, 2)))
        for i in range(2, 8):
            acc = t + 8 + 2 * (i & 1)
            a('v_pk_fma_f32 %s, %s, %s, %s' % (v(acc, 2), v(R + 2 * i, 2), v(R + 2 * i, 2), v(acc, 2)))
        a('v_pk_add_f32 %s, %s, %s' % (v(t, 2), v(t, 2), v(t + 2, 2))); a('v_pk_add_f32 %s, %s, %s' % (v(t + 4, 2), v(t + 4, 2), v(t + 6, 2)))
        a('v_pk_add_f32 %s, %s, %s' % (v(t + 8, 2), v(t + 8, 2), v(t + 10, 2)))
        a('v_pk_add_f32 %s, %s, %s' % (v(t, 2), v(t, 2), v(t + 4, 2)))
        a('v_add_f32 %s, %s, %s' % (v(t + 8), v(t + 8), v(t + 9)))
        a('v_add_f32 %s, %s, %s' % (v(t), v(t), v(t + 1)))
    sums(XA, T)
    a('s_waitcnt lgkmcnt(0)')
    sums(XB, T + 12)
    reduce4(a, T, T + 12, T + 8, T + 20)
    ln_chain(a, T, T + 1, T + 2)
    a('v_mul_f32 %s, %s, %s' % (v(T + 2), fh(1.0 / 128), v(T + 2)))
    a('v_mul_f32 %s, %s, %s' % (v(T + 1), v(T + 1), v(T + 2)))
    a('v_readlane_b32 s4, %s, 16' % v(T + 2)); a('v_readlane_b32 s6, %s, 48' % v(T + 2))
    a('v_readlane_b32 s13, %s, 16' % v(T + 1)); a('v_readlane_b32 s14, %s, 48' % v(T + 1))
    a('v_mov_b32 %s, s13' % v(T + 4)); a('v_add_f32 %s, s14, %s' % (v(T + 4), v(T + 4)))
    for i in range(8):
        a('v_pk_fma_f32 %s, %s, s[6:7], %s op_sel_hi:[1,0,0] neg_lo:[0,0,1] neg_hi:[0,0,1]' % (v(XB + 2 * i, 2), v(XB + 2 * i, 2), v(T + 4, 2)))
    for i in range(8):
        a('v_pk_fma_f32 %s, %s, s[4:5], %s op_sel_hi:[1,0,1]' % (v(XA + 2 * i, 2), v(XA + 2 * i, 2), v(XB + 2 * i, 2)))
    for p in range(8): a('v_cvt_pk_f16_f32 %s, %s, %s' % (v(Q16 + p), v(XA + 2 * p), v(XA + 2 * p + 1)))
    a('v_mfma_f32_32x32x16_f16 %s, %s, %s, 0' % (v(X, 16), v(Q16, 4), v(F1, 4)))
    a('v_mfma_f32_32x32x16_f16 %s, %s, %s, %s' % (v(X, 16), v(Q16 + 4, 4), v(F1 + 4, 4), v(X, 16)))
    W = XA
    for r in range(8): a('v_pk_mul_f32 %s, %s, %s' % (v(W + 2 * r, 2), v(X + 2 * r, 2), v(TC + 2 * r, 2)))
    for r in range(8): a('v_fmac_f32_dpp %s, %s, %s quad_perm:[1,0,3,2] %s' % (v(W + r), v(X + r), v(TS + r), DPPF))
    for p in range(4): a('v_cvt_pk_f16_f32 %s, %s, %s' % (v(Q16 + p), v(W + 2 * p), v(W + 2 * p + 1)))
    a('v_fmac_f32_dpp %s, %s, %s quad_perm:[1,0,3,2] %s' % (v(W + 8), v(X + 8), v(TS + 8), DPPF))
    a('v_fmac_f32_dpp %s, %s, %s quad_perm:[1,0,3,2] %s' % (v(W + 9), v(X + 9), v(TS + 9), DPPF))
    mm = [(D1, C2), (D2, S2), (D3, B3)]
    rest = ['v_fmac_f32_dpp %s, %s, %s quad_perm:[1,0,3,2] %s' % (v(W + r), v(X + r), v(TS + r), DPPF) for r in range(10, 16)]
    rest += ['v_cvt_pk_f16_f32 %s, %s, %s' % (v(Q16 + p), v(W + 2 * p), v(W + 2 * p + 1)) for p in range(4, 8)]
    for n, (Dd, B) in enumerate(mm):
        a('v_mfma_f32_32x32x16_f16 %s, %s, %s, 0' % (v(Dd, 16), v(Q16, 4), v(B, 4)))
        for x in rest[4 * n:4 * n + 4]: a(x)
    for (Dd, B) in mm:
        a('v_mfma_f32_32x32x16_f16 %s, %s, %s, %s' % (v(Dd, 16), v(Q16 + 4, 4), v(B + 4, 4), v(Dd, 16)))
    a('v_cmp_gt_u32 vcc, 16, v15')
    a('v_cmp_gt_u32 s[40:41], 32, v15')
    Z = XA
    P = XB
    def zz(u):
        a('v_pk_add_f32 %s, %s, %s op_sel:[0,1] op_sel_hi:[1,0] neg_hi:[0,1]' % (v(Z + 2 * u, 2), v(D1 + 2 * u, 2), v(D2 + 2 * u, 2)))
    def pp(p):
        A_, B_ = v(Z + 4 * p, 2), v(Z + 4 * p + 2, 2)
        a('v_pk_add_f32 %s, %s, %s op_sel:[0,1] op_sel_hi:[1,0] neg_lo:[0,1]' % (v(P + 4 * p, 2), A_, B_))
        a('v_pk_add_f32 %s, %s, %s op_sel:[0,1] op_sel_hi:[1,0] neg_hi:[1,0]' % (v(P + 4 * p + 2, 2), A_, B_))
        a('v_cvt_pk_f16_f32 %s, %s, %s' % (v(Q16 + 2 * p), v(P + 4 * p), v(P + 4 * p + 1)))
        a('v_cvt_pk_f16_f32 %s, %s, %s' % (v(Q16 + 2 * p + 1), v(P + 4 * p + 2), v(P + 4 * p + 3)))
        a('ds_write_b32 v10, %s offset:%d' % (v(Q16 + 2 * p), 256 * p))
        a('ds_write_b32 v11, %s offset:%d' % (v(Q16 + 2 * p + 1), 256 * p))
    ZR, ZI = Z, Z + 1
    for p in (1, 2, 3):
        zz(2 * p); zz(2 * p + 1); pp(p)
    zz(0); zz(1)
    a('v_mul_f32 v8, s39, %s' % v(D1))
    a('v_mov_b32 v3, %s' % v(D3 + 1))
    a('v_permlane16_swap_b32 v4, v3')
    a('v_cndmask_b32 v5, %s, %s, vcc' % (v(D3 + 1), v(D1)))
    a('v_cndmask_b32 v4, v4, %s, vcc' % v(D2))
    a('v_cndmask_b32 %s, %s, v5, s[40:41]' % (v(ZR), v(ZR)))
    a('v_cndmask_b32 %s, %s, -v4, s[40:41]' % (v(ZI), v(ZI)))
    pp(0)
    a('s_mov_b64 exec, 0x10000')
    a('ds_write_b32 v9, v8')
    a('ds_write_b32 v201, v202')
    a('s_mov_b64 exec, -1')
    a('s_cmp_eq_u32 s16, 4'); a('s_cbranch_scc1 fk_w4')
    stamp(a, 4)
    a.label('fk_spin')
    a('ds_read_b32 v3, v205'); a('s_waitcnt lgkmcnt(0)'); a('v_cmp_eq_u32 vcc, 0, v3')
    a('s_and_b32 s13, vcc_lo, s57'); a('s_cbranch_scc1 fk_spin')
    a.label('fk_staged')
    stamp(a, 12, True)
    for q in range(2):
        a('ds_read2st64_b32 %s, %s offset0:0 offset1:4' % (v(GA + 4 * q, 2), 'v8' if q else 'v6'))
        a('ds_read2st64_b32 %s, %s offset0:8 offset1:12' % (v(GA + 4 * q + 2, 2), 'v8' if q else 'v6'))
        if q == 0: a('v_add_u32 v8, 16, v6')
    a('v_readlane_b32 s43, v3, 7')
    for q in range(2):
        a('s_waitcnt lgkmcnt(%d)' % (2 - 2 * q))
        for i in range(4): a('v_or_b32 %s, 1, %s' % (v(GA + 4 * q + i), v(GA + 4 * q + i)))
        a(('buffer_store_dwordx4 %s, v194, ' + WSRD + ', s36 offen offset:%d sc1' + WNT) % (v(GA + 4 * q, 4), 128 * q))
    d0 = piece_sum(a, 3, GA, 0); d1 = piece_sum(a, 4, GA + 4, 0)
    a('s_add_u32 s36, s36, 8192')
    a(d0[0]); a(d1[0])
    a('v_cndmask_b32 v3, v3, v4, s[58:59]'); a('v_add_u32 v196, s43, v3')
    quad_gather(a, 196, 2)
    a('s_mov_b32 exec_lo, 0x03030303'); a('s_mov_b32 exec_hi, 0x03030303')
    a('buffer_store_dwordx4 v[196:199], v193, ' + WSRD + ', s36 offen sc1' + WNT)
    a('s_mov_b64 exec, -1')
    a('s_cmp_lg_u32 s16, 0'); a('s_cbranch_scc1 fk_nog5')
    a('v_and_b32 v9, 16, v14'); a('v_add_u32 v9, %d, v9' % LG5S)
    a('ds_read_b128 v[16:19], v9')
    a('s_lshl_b32 s13, s3, 4'); a('s_add_u32 s13, s13, 0x%x' % G5)
    a('s_waitcnt lgkmcnt(0)')
    for i in range(4): a('v_min_u32 %s, -2, %s' % (v(16 + i), v(16 + i)))
    a('s_mov_b64 exec, 1')
    a('buffer_store_dwordx4 v[16:19], v14, s[24:27], s13 offen sc1')
    a('s_mov_b64 exec, -1')
    a.label('fk_nog5')
    unit_setup(a)
    a('s_mov_b64 s[4:5], s[58:59]')
    window(a, UA, KA, 16, 0)
    a('s_mov_b32 s42, 0')
    a('s_waitcnt vmcnt(0)')
    stamp(a, 5)
    if SLW: a('s_sleep %d' % SLW)
    a.label('fk_pollw')
    a(('buffer_load_dwordx4 %s, v12, ' + WSRD + ', s37 offen sc1') % v(GA, 4))
    a(('buffer_load_dwordx4 %s, v12, ' + WSRD + ', s38 offen sc1') % v(GA + 4, 4))
    a('buffer_load_dword v5, v192, ' + WSRD + ', s23 offen sc1')
    a('s_waitcnt vmcnt(1)')
    d0 = piece_sum(a, 3, GA, 0); d1 = piece_sum(a, 4, GA + 4, 0)
    a('ds_write_b128 v7, %s' % v(GA, 4))
    a(d0[0]); a(d1[0])
    a('ds_write_b128 v7, %s offset:1024' % v(GA + 4, 4))
    a('v_cndmask_b32 v3, v3, v4, s[4:5]'); a('v_add_u32 v3, s43, v3')
    a('s_waitcnt vmcnt(0)')
    a('v_cmp_ne_u32 vcc, v3, v5')
    poll_tail(a, 42, 'fk_pollw', 'fk_gotw')
    stamp(a, 6)
    a('s_waitcnt lgkmcnt(0)')
    a('s_barrier')
    a('s_setprio 0')
    stamp(a, 7)
    a('s_or_b32 s13, s3, s16'); a('s_cbranch_scc1 fk_nobump')
    a('v_mov_b32 v3, s43'); a('s_mov_b64 exec, 1')
    a('buffer_store_dword v3, v14, s[24:27], 0 offen sc1')
    a('s_mov_b64 exec, -1')
    a.label('fk_nobump')
    a('s_lshl_b32 s13, s16, 10'); a('s_add_u32 s14, s13, 0x%x' % G5); a('s_add_u32 s13, s13, %d' % LG5)
    a('v_add_u32 v7, s13, v14'); a('v_mov_b32 v3, 4096'); a('s_mov_b32 s15, 0x%x' % G5); a('v_mov_b32 v8, %d' % LG5E)
    a('buffer_load_dwordx4 %s, v14, s[24:27], s14 offen sc1' % v(GA, 4))
    a('buffer_load_dword %s, v3, s[24:27], s15 offen sc1' % v(GA + 4))
    a('s_mov_b32 s40, s14'); a('s_mov_b32 s41, s15')
    window(a, UB, KB, 16, 0, PB)
    a('s_mov_b32 s42, 0')
    a('s_cmp_gt_u32 s3, 223'); a('s_cbranch_scc1 fk_pollg')
    a('s_waitcnt vmcnt(%d)' % (min(KB, PB + 1) if UB + 4 * KB <= 96 else 0))
    a('s_branch fk_chkg')
    a.label('fk_pollg')
    a('buffer_load_dwordx4 %s, v14, s[24:27], s40 offen sc1' % v(GA, 4))
    a('buffer_load_dword %s, v3, s[24:27], s41 offen sc1' % v(GA + 4))
    a('s_waitcnt vmcnt(0)')
    a.label('fk_chkg')
    poll_check(a, list(range(GA, GA + 5)), 4, 42, 'fk_pollg', 'fk_gotg', wait=False)
    a('ds_write_b128 v7, %s' % v(GA, 4)); a('ds_write_b32 v8, %s' % v(GA + 4))
    stamp(a, 14, True)
    a('s_branch fk_common')
    a.label('fk_w4')
    for p in range(4): a('v_min_u32 %s, -2, %s' % (v(GA + p), v(Q16 + 2 * p)))
    a('v_min_u32 v8, -2, v8'); a('v_mov_b32 v4, 4096'); a('s_mov_b32 s14, 0x%x' % RB); a('s_mov_b32 s15, 0x%x' % G5)
    a.label('fk_w4s')
    a('ds_read_b32 v3, v205'); a('s_waitcnt lgkmcnt(0)'); a('v_cmp_eq_u32 vcc, 0, v3')
    a('s_and_b32 s13, vcc_lo, 32'); a('s_cbranch_scc1 fk_w4s')
    a('buffer_store_dwordx4 %s, v14, s[24:27], s14 offen sc1' % v(GA, 4))
    a('s_mov_b64 exec, 0x10000')
    a('buffer_store_dword v8, v4, s[24:27], s15 offen sc1')
    a('s_mov_b64 exec, -1')
    a('s_branch fk_Hconst')
    a.label('fk_H')
    A, B1, TC, TS, C2, S2, V, D1, D2, T16, AD, CS = 16, 48, 80, 96, 112, 120, 128, 144, 160, 176, 184, 192
    a('s_barrier')
    if BASE: a('s_waitcnt lgkmcnt(0)'); rebase(a)
    a('s_cmp_lg_u32 s16, 7'); a('s_cbranch_scc1 fk_Hconst')
    for i in range(4): a('v_mov_b32 %s, -1' % v(4 + i))
    a('v_mov_b32 v3, %d' % LKEY); a('v_mov_b32 v8, 0'); a('ds_write_b32 v3, v8')
    a('v_lshlrev_b32 v3, 12, v15'); a('s_lshl_b32 s13, s3, 4'); a('s_add_u32 s14, s13, 0x%x' % KEYS); a('s_add_u32 s15, s13, 0x%x' % G5)
    a('v_mov_b32 v201, %d' % (LSIG + 20)); a('v_mov_b32 v204, 1')
    a('s_waitcnt lgkmcnt(0)')
    stamp(a, 1)
    a('s_load_dword s56, s[24:25], 0')
    if '--wwarm' in OPT:
        a('s_mul_i32 s36, s3, %d' % OS); a('s_add_u32 s36, s36, 0x%x' % WOFF); a('s_add_u32 s37, s36, 4096'); a('s_add_u32 s40, s36, 8192')
        for i in range(9): a('buffer_store_dwordx4 v[4:7], v14, s[24:27], %s offen offset:%d sc1' % (s((36, 37, 40)[i >> 2]), 1024 * (i & 3)))
    a('s_mul_i32 s38, s3, %d' % YS); a('s_add_u32 s38, s38, 0x%x' % YOFF); a('s_add_u32 s39, s38, 4096')
    for i in range(8): a('buffer_store_dwordx4 v[4:7], v14, s[24:27], %s offen offset:%d sc1%s' % (s(38 + (i >> 2)), 1024 * (i & 3), CNT))
    a('s_mov_b64 exec, 0xff')
    a('buffer_store_dwordx4 v[4:7], v3, s[24:27], s14 offen sc1')
    a('s_cmp_eq_u32 s3, 255'); a('s_cselect_b32 exec_lo, 3, 1')
    a('buffer_store_dwordx4 v[4:7], v14, s[24:27], s15 offen sc1')
    a('s_mov_b64 exec, -1')
    for i in range(2):
        a('s_mov_b32 m0, %d' % (LWR + 1024 * i)); a('s_mov_b32 s12, %d' % (1024 * i))
        a('buffer_load_dwordx4 v14, s[32:35], s12 offen lds')
    a('s_cmp_eq_u32 s3, 255'); a('s_cselect_b32 s12, 0x%x, s26' % RB)
    a('buffer_store_dwordx4 v[4:7], v14, s[24:27], s12 offen sc1')
    a('s_cmp_lg_u32 s3, 248'); a('s_cbranch_scc1 fk_no1024')
    for i in range(2):
        a('s_mov_b32 m0, %d' % (LX1024 + 1024 * i)); a('s_mov_b32 s14, %d' % (1024 * 2048 + 1024 * i))
        a('buffer_load_dwordx4 v14, s[8:11], s14 offen lds')
    a.label('fk_no1024')
    a('s_waitcnt lgkmcnt(0)')
    a('s_add_u32 s56, s56, 1'); a('v_mov_b32 v202, s56')
    a('ds_write_b32 v201, v202 offset:8')
    a('s_waitcnt vmcnt(0)')
    a('ds_write_b32 v201, v204')
    stamp(a, 2)
    a.label('fk_Hconst')
    a('s_sub_u32 s20, s16, 4')
    unit_setup(a)
    a('s_and_b32 s12, s20, 1'); a('s_lshl_b32 s12, s12, 6'); a('v_xor_b32 v206, s12, v208'); a('v_xor_b32 v207, 64, v206')
    a('s_mov_b32 s6, 0x700000'); a('s_mov_b32 s7, 0x00020000')
    a('s_cmp_gt_u32 s3, 223'); a('s_cselect_b32 s36, 3, s20')
    a('s_waitcnt lgkmcnt(0)')
    PACE = int(optval('pace', '99')); GAP = int(optval('gap', '8')); FIRST = int(optval('first', '4')); DELAY = int(optval('delay', '0'))
    def gu(n):
        g = ['s_cmp_eq_u32 s36, 3', 's_cbranch_scc1 fk_gu%d' % n, 's_add_u32 s37, s20, %d' % (3 * n),
             's_lshl_b32 s12, s37, 10', 's_mov_b32 m0, s12', 's_cmp_lt_u32 s37, 32', 's_cselect_b64 s[4:5], s[44:45], s[48:49]',
             's_and_b32 s37, s37, 31', 's_mul_i32 s37, s37, %d' % (8 * 7168), 's_add_u32 s37, s37, s100']
        if n >= PACE: g.append('s_waitcnt vmcnt(%d)' % PACE)
        g.append('buffer_load_dwordx4 %s, s[4:7], s37 offen lds' % ('v207' if n & 1 else 'v206'))
        g.append('@fk_gu%d' % n)
        return g
    assert NH <= 21
    groups = [sum([gu(n) for n in range(min(FIRST, NH))], [])] + [gu(n) for n in range(FIRST, NH)]
    a.inject(groups, GAP); a.cnt = GAP - DELAY
    a('v_lshrrev_b32 v4, 1, v1')
    a('v_and_b32 v5, 1, v4'); a('v_lshrrev_b32 v6, 2, v4'); a('v_lshl_add_u32 v5, v6, 1, v5')
    a('v_and_b32 v6, 2, v4'); a('v_lshl_add_u32 v5, v6, 2, v5')
    a('s_and_b32 s13, s20, 1'); a('s_mul_i32 s13, s13, 15'); a('v_xor_b32 v5, s13, v5')
    a('s_lshl_b32 s13, s20, 4'); a('v_add_u32 v5, s13, v5')
    a('v_cvt_f32_u32 v5, v5')
    a('v_and_b32 v9, 1, v1')
    a('v_lshlrev_b32 v7, 2, v2'); a('v_cvt_f32_u32 v7, v7')
    a('v_cvt_f32_u32 v10, v9')
    a('v_mul_f32 v8, %s, v5' % fh(1.0 / 64))
    a('v_mul_f32 v10, %s, v10' % fh(0.25))
    a('v_fma_f32 v10, v8, v7, v10')
    T = V
    for half in range(2):
        ks = [8 * kap + u for kap in range(4 * half, 4 * half + 4) for u in range(4)]
        angles(a, 8, 10, ks, T)
        for i in range(16): a('v_cos_f32 %s, %s' % (v(T + 16 + i), v(T + i)))
        for i in range(16): a('v_sin_f32 %s, %s' % (v(T + 32 + i), v(T + i)))
        for i in range(16): a('v_cvt_pk_f16_f32 %s, %s, %s' % (v(B1 + 16 * half + i), v(T + 16 + i), v(T + 32 + i)))
    a('v_lshlrev_b32 v11, 31, v9')
    a('v_mul_f32 v10, %s, v5' % fh(1.0 / 2048)); a('v_xor_b32 v10, v11, v10'); a('v_mul_f32 v11, v10, v7')
    angles(a, 10, 11, [kr(r) for r in range(16)], T)
    for r in range(16): a('v_cos_f32 %s, %s' % (v(TC + r), v(T + r)))
    for r in range(16): a('v_sin_f32 %s, %s' % (v(TS + r), v(T + r)))
    a('v_sub_u32 v4, 31, v1'); a('v_subrev_u32 v5, 1, v1')
    a('v_cmp_lt_u32 vcc, 16, v1')
    a('v_cndmask_b32 v4, v5, v4, vcc'); a('v_and_b32 v4, 15, v4')
    a('v_lshlrev_b32 v4, 5, v4'); a('v_add_u32 v4, %d, v4' % LA2)
    a('v_lshlrev_b32 v5, 9, v2')
    a('v_add_u32 v6, v4, v5')
    a('v_sub_u32 v7, v4, v5'); a('v_add_u32 v7, %d, v7' % (15 * 512 + 16))
    a('v_cmp_eq_u32 s[38:39], 0, v1')
    a('v_mov_b32 v8, 4096')
    a('v_cndmask_b32 v8, 0, v8, s[38:39]')
    a('v_add_u32 v6, v6, v8'); a('v_add_u32 v7, v7, v8')
    a('v_and_b32 v8, 15, v1'); a('v_cmp_eq_u32 s[38:39], 0, v8')
    a('s_or_b64 s[40:41], s[38:39], vcc')
    for k in range(8):
        a('v_add_u32 %s, %d, v6' % (v(AD + k), 1024 * k)); a('v_subrev_u32 v8, %d, v7' % (1024 * k))
        a('v_cndmask_b32 %s, %s, v8, %s' % (v(AD + k), v(AD + k), 'vcc' if k < 4 else 's[40:41]'))
    for k in range(4, 8): a('v_add_u32 %s, 512, %s' % (v(212 + k - 4), v(AD + k)))
    a('v_subrev_u32 v8, 4096, v212'); a('v_cmp_eq_u32 vcc, 0, v2'); a('v_cndmask_b32 v212, v212, v8, vcc')
    def posD(d, x, t):
        a('v_and_b32 %s, 3, %s' % (v(t), v(x))); a('v_lshlrev_b32 %s, 2, %s' % (v(t), v(t))); a('v_lshlrev_b32 %s, 3, %s' % (v(d), v(x))); a('v_sub_u32 %s, %s, %s' % (v(d), v(d), v(t)))
    def posM(d, x, t):
        a('v_and_b32 %s, 3, %s' % (v(t), v(x))); a('v_mul_u32_u24 %s, 12, %s' % (v(t), v(t))); a('v_lshlrev_b32 %s, 3, %s' % (v(d), v(x))); a('v_sub_u32 %s, %s, %s' % (v(d), v(d), v(t))); a('v_add_u32 %s, 28, %s' % (v(d), v(d)))
    a('s_lshr_b32 s13, s20, 1'); a('v_lshl_add_u32 v3, v1, 1, s13')
    a('s_and_b32 s13, s20, 1'); a('s_sub_u32 s14, 64, s13')
    posD(4, 3, 8)
    a('v_sub_u32 v5, 63, v3'); posM(6, 5, 8)
    a('v_sub_u32 v5, s14, v3'); posM(7, 5, 8)
    a('v_cmp_gt_u32 vcc, 32, v3'); a('v_cndmask_b32 v7, v7, v4, vcc')
    a('v_cmp_eq_u32 vcc, 32, v5'); a('v_cndmask_b32 v7, v7, 28, vcc')
    a('s_cmp_eq_u32 s13, 0'); a('s_cselect_b32 s14, 256, 0'); a('s_cselect_b32 s15, 576, 0')
    a('s_cselect_b64 s[38:39], -1, 0')
    a('s_add_u32 s14, s14, %d' % (240 * 32)); a('s_sub_u32 s15, %d, s15' % LWS)
    a('v_cmp_gt_u32 vcc, 32, v3'); a('v_cndmask_b32 v7, v7, v4, vcc')
    a('v_add_u32 v7, s14, v7')
    a('v_cndmask_b32 v4, v6, v4, s[38:39]'); a('v_lshl_add_u32 v4, v2, 12, v4')
    for r in (4, 7): a('v_lshrrev_b32 v8, 7, %s' % v(r)); a('v_lshl_add_u32 %s, v8, 4, %s' % (v(r), v(r)))
    a('v_add_u32 v11, s15, v4'); a('v_add_u32 v7, %d, v7' % LWS)
    a('v_add_u32 v12, %d, v11' % (7 * 576))
    a('v_cmp_eq_u32 vcc, s13, v2')
    a('s_and_b64 s[40:41], vcc, s[38:39]'); a('s_andn2_b64 s[38:39], vcc, s[38:39]')
    a('v_cndmask_b32 v10, v11, v7, s[40:41]'); a('v_cndmask_b32 v12, v12, v7, s[38:39]')
    a('s_lshl_b32 s23, s20, 5'); a('s_add_u32 s23, s23, s18')
    def y5cos():
        a('v_and_b32 v3, 15, v15'); a('v_lshrrev_b32 v4, 4, v15'); a('v_lshl_add_u32 v3, v3, 7, v4'); a('v_add_u32 v3, 1, v3')
        a('v_cmp_le_u32 vcc, 56, v15'); a('v_mov_b32 v4, %d' % (2048 - 1040)); a('v_cndmask_b32 v4, 0, v4, vcc'); a('v_add_u32 v4, v3, v4')
        for r in (3, 4):
            a('v_mul_u32_u24 %s, s23, %s' % (v(r), v(r))); a('v_and_b32 %s, 2047, %s' % (v(r), v(r)))
            a('v_cvt_f32_u32 %s, %s' % (v(r), v(r))); a('v_mul_f32 %s, %s, %s' % (v(r), fh(1.0 / 2048), v(r)))
        a('v_cvt_f32_u32 v5, s23'); a('v_mul_f32 v5, %s, v5' % fh(1.0 / 2048))
        angles(a, 5, 3, [32 * w + 4 * q for q in range(3) for w in range(4)], CS)
        angles(a, 5, 4, [32 * w + 12 for w in range(4)], CS + 12)
        for i in range(16): a('v_cos_f32 %s, %s' % (v(CS + i), v(CS + i)))
    a.inject_flush()
    stamp(a, 5)
    y5cos()
    a('v_add_u32 v9, %d, v14' % LROW); a('v_mov_b32 v3, %d' % (LSIG + 40))
    a.label('fk_c2s')
    a('ds_read_b32 v4, v3'); a('s_waitcnt lgkmcnt(0)'); a('v_readfirstlane_b32 s13, v4')
    a('s_cmp_eq_u32 s13, 0'); a('s_cbranch_scc1 fk_c2s')
    for q in range(4): a('ds_read_b128 %s, v9 offset:%d' % (v(C2 + 4 * q, 4), 1024 * (12 + q)))
    a('s_setprio 2')
    a('s_waitcnt lgkmcnt(0)')
    stamp(a, 6)
    a('s_barrier')
    stamp(a, 7)
    for k in range(8): a('ds_read_b128 %s, %s' % (v(A + 4 * k, 4), v(AD + k)))
    a('s_mov_b32 exec_lo, 1'); a('s_mov_b32 exec_hi, 1')
    for k in range(4, 8): a('ds_read_b32 %s, %s' % (v(A + 4 * k), v(212 + k - 4)))
    a('s_mov_b64 exec, -1')
    for k in range(8):
        a('s_waitcnt lgkmcnt(%d)' % (11 - k if k < 4 else 7 - k))
        a('v_mfma_f32_32x32x16_f16 %s, %s, %s, %s' % (v(V, 16), v(A + 4 * k, 4), v(B1 + 4 * k, 4), '0' if k == 0 else v(V, 16)))
    W = A
    for r in range(8): a('v_pk_mul_f32 %s, %s, %s' % (v(W + 2 * r, 2), v(V + 2 * r, 2), v(TC + 2 * r, 2)))
    for r in range(8): a('v_fmac_f32_dpp %s, %s, %s quad_perm:[1,0,3,2] %s' % (v(W + r), v(V + r), v(TS + r), DPPF))
    for p in range(4): a('v_cvt_pk_f16_f32 %s, %s, %s' % (v(T16 + p), v(W + 2 * p), v(W + 2 * p + 1)))
    rest = ['v_fmac_f32_dpp %s, %s, %s quad_perm:[1,0,3,2] %s' % (v(W + r), v(V + r), v(TS + r), DPPF) for r in range(8, 16)]
    rest += ['v_cvt_pk_f16_f32 %s, %s, %s' % (v(T16 + p), v(W + 2 * p), v(W + 2 * p + 1)) for p in range(4, 8)]
    for x in rest[0:2]: a(x)
    a('v_mfma_f32_32x32x16_f16 %s, %s, %s, 0' % (v(D1, 16), v(T16, 4), v(C2, 4)))
    for x in rest[2:7]: a(x)
    a('v_mfma_f32_32x32x16_f16 %s, %s, %s, 0' % (v(D2, 16), v(T16, 4), v(S2, 4)))
    for x in rest[7:]: a(x)
    for (Dd, B) in ((D1, C2), (D2, S2)):
        a('v_mfma_f32_32x32x16_f16 %s, %s, %s, %s' % (v(Dd, 16), v(T16 + 4, 4), v(B + 4, 4), v(Dd, 16)))
    for u in range(8):
        a('v_pk_add_f32 %s, %s, %s op_sel:[0,1] op_sel_hi:[1,0] neg_hi:[0,1]' % (v(A + 2 * u, 2), v(D1 + 2 * u, 2), v(D2 + 2 * u, 2)))
    for u in range(8):
        a('v_cvt_pk_f16_f32 %s, %s, %s' % (v(B1 + u), v(A + 2 * u), v(A + 2 * u + 1)))
        if u == 0: a('ds_write_b32 v10, %s' % v(B1))
        elif u == 7: a('ds_write_b32 v12, %s' % v(B1 + 7))
        else: a('ds_write_b32 v11, %s offset:%d' % (v(B1 + u), 576 * u))
    stamp(a, 14, True)
    a.label('fk_common')
    a('v_lshlrev_b32 v4, 4, v0'); a('v_lshrrev_b32 v5, 3, v0'); a('v_lshl_add_u32 v5, v5, 4, v4'); a('v_add_u32 v5, %d, v5' % LWS)
    a('s_mul_i32 s17, s3, %d' % YS); a('s_add_u32 s17, s17, 0x%x' % YOFF)
    a('s_waitcnt lgkmcnt(0)'); a('s_barrier')
    stamp(a, 8)
    a('s_setprio 0')
    a('ds_read_b128 v[16:19], v5')
    XR, WP, YR, H, HN, HP, TMP, OUT = 20, 28, 36, 48, 64, 80, 96, 112
    a('s_sub_u32 s13, 7, s16'); a('s_cmp_lt_u32 s16, 4'); a('s_cselect_b32 s13, s16, s13'); a('s_cselect_b32 s14, 0, 2048')
    a('s_lshl_b32 s21, s13, 5'); a('s_add_u32 s21, s21, s18'); a('s_sub_u32 s22, 2048, s21'); a('s_and_b32 s22, s22, 2047')
    a('s_cmp_lt_u32 s16, 4'); a('s_cselect_b32 s21, s21, s22')
    a('s_lshl_b32 s13, s13, 12'); a('s_add_u32 s13, s13, s14'); a('s_add_u32 s13, s13, %d' % LX)
    a('s_lshl_b32 s14, s3, 3'); a('s_add_u32 s19, s14, s16')
    a('s_cmp_eq_u32 s19, %d' % (248 * 8 + 7)); a('s_cselect_b32 s21, 1024, s21'); a('s_cselect_b32 s13, %d, s13' % LX1024)
    a('s_lshl_b32 s22, s21, 11')
    a('v_add_u32 v6, s13, v14'); a('v_add_u32 v7, %d, v14' % LWR)
    a('s_waitcnt lgkmcnt(0)')
    for i in range(4): a('v_min_u32 %s, -2, %s' % (v(16 + i), v(16 + i)))
    a('buffer_store_dwordx4 v[16:19], v4, s[24:27], s17 offen sc1')
    a('ds_read_b128 %s, v6' % v(XR, 4)); a('ds_read_b128 %s, v6 offset:1024' % v(XR + 4, 4))
    a('ds_read_b128 %s, v7' % v(WP, 4)); a('ds_read_b128 %s, v7 offset:1024' % v(WP + 4, 4))
    a('s_cmp_lt_u32 s16, 4'); a('s_cbranch_scc1 fk_noy5')
    window(a, UE, KE, 16, 4, PE)
    G5R = 128
    a('v_add_u32 v3, %d, v14' % LG5); a('v_mov_b32 v4, %d' % LG5E)
    for q in range(4): a('ds_read_b128 %s, v3 offset:%d' % (v(G5R + 4 * q, 4), 1024 * q))
    a('ds_read_b32 v9, v4')
    a('s_lshl_b32 s38, s20, 2'); a('s_sub_u32 s39, 28, s38')
    a('s_waitcnt lgkmcnt(0)')
    a.label('fk_y5')
    for kk in range(2): a('v_pk_mul_f32 %s, %s, %s' % (v(144 + 2 * kk, 2), v(G5R + 2 * kk, 2), v(CS + 2 * kk, 2)))
    for kk in range(2, 8): a('v_pk_fma_f32 %s, %s, %s, %s' % (v(144 + 2 * (kk & 1), 2), v(G5R + 2 * kk, 2), v(CS + 2 * kk, 2), v(144 + 2 * (kk & 1), 2)))
    a('v_pk_add_f32 v[144:145], v[144:145], v[146:147]')
    a('v_add_f32 v144, v144, v145')
    a('s_lshl_b32 s13, s23, 31'); a('v_xor_b32 v12, s13, v9')
    wave_reduce(a, [144])
    a('v_add_f32 v144, v144, v12'); a('v_add_f32 v144, v144, v144'); a('v_cvt_f16_f32 v144, v144')
    a('s_add_u32 s13, s38, %d' % LY5); a('s_add_u32 s14, s39, %d' % LY5)
    a('v_mov_b32 v10, s13'); a('v_mov_b32 v11, s14')
    a('s_mov_b32 exec_lo, 0'); a('s_mov_b32 exec_hi, 0x80000000')
    a('ds_write_b32 v10, v144'); a('ds_write_b32 v11, v144')
    a('s_mov_b64 exec, -1')
    a('s_cmp_lg_u32 s23, 0'); a('s_cbranch_scc1 fk_noy5')
    a('s_mov_b32 s23, 1024'); a('s_mov_b32 s38, 28')
    y5cos()
    a('s_branch fk_y5')
    a.label('fk_noy5')
    a('v_lshrrev_b32 v1, 1, v0'); a('v_and_b32 v45, 1, v0')
    a('v_lshrrev_b32 v2, 4, v1'); a('v_and_b32 v3, 15, v1')
    a('v_cmp_gt_u32 vcc, 8, v3')
    a('v_sub_u32 v6, 16, v3'); a('v_and_b32 v6, 7, v6'); a('v_sub_u32 v5, 31, v2')
    a('v_cndmask_b32 v6, v6, v3, vcc'); a('v_cndmask_b32 v5, v5, v2, vcc')
    a('v_lshl_add_u32 v4, v6, 5, v5'); a('v_and_b32 v12, 63, v4'); a('v_lshrrev_b32 v13, 6, v4'); a('v_lshlrev_b32 v13, 2, v13'); a('v_lshl_add_u32 v12, v12, 4, v13')
    a('s_mov_b32 s23, 0x%x' % RB); a('s_mov_b32 s42, 0')
    a('buffer_load_dword v47, v12, s[24:27], s23 offen sc1')
    a('v_mul_u32_u24 v4, %d, v4' % YS); a('v_lshl_add_u32 v4, v45, 4, v4')
    a('s_lshl_b32 s17, s3, 5'); a('s_add_u32 s17, s17, 0x%x' % YOFF)
    a('v_cndmask_b32 v6, -1, 1, vcc')
    a('v_cmp_eq_u32 vcc, 8, v3')
    a('v_mul_u32_u24 v46, %d, v45' % (4 * RS)); a('v_add_u32 v46, %d, v46' % LROW)
    a('v_cndmask_b32 v6, v6, 15, vcc')
    a('v_lshlrev_b32 v9, 2, v1'); a('v_lshl_add_u32 v10, v6, 1, v9')
    a('v_add_u32 v9, v46, v9'); a('v_add_u32 v10, v46, v10')
    a('s_mul_i32 s36, s16, %d' % RS); a('s_add_u32 s36, s36, %d' % LROW); a('v_add_u32 v5, s36, v14')
    a('s_sub_u32 s36, 7, s16'); a('s_cmp_eq_u32 s21, 0'); a('s_cselect_b32 s36, 0, s36'); a('s_cmp_eq_u32 s21, 1024'); a('s_cselect_b32 s36, 7, s36')
    a('s_mul_i32 s36, s36, %d' % RS); a('s_add_u32 s36, s36, %d' % (LROW + 1008)); a('v_sub_u32 v11, s36, v14')
    a('s_lshl_b32 s36, s16, 2'); a('s_add_u32 s36, s36, %d' % LY5); a('v_mov_b32 v6, s36')
    a('s_mov_b32 s36, 0xffff0000'); a('s_mov_b32 s37, 0x3f803f80'); a('s_mov_b32 s38, %s' % fh(64.0))
    a('s_waitcnt lgkmcnt(0)')
    for k in range(8):
        a('v_lshlrev_b32 %s, 16, %s' % (v(H + 2 * k), v(XR + k))); a('v_and_b32 %s, s36, %s' % (v(H + 2 * k + 1), v(XR + k)))
    a('v_mov_b32 v44, 0')
    for k in range(8): a('v_dot2c_f32_bf16 v44, s37, %s' % v(WP + k))
    wave_reduce(a, [44])
    a('v_readlane_b32 s39, v44, 63')
    a('s_and_b32 s13, s18, 1'); a('s_mul_i32 s40, s13, 0x80008000')
    a('s_branch fk_chkr1')
    a.label('fk_pollr1')
    a('buffer_load_dword v47, v12, s[24:27], s23 offen sc1')
    a.label('fk_chkr1')
    poll_check(a, [47], 46, 42, 'fk_pollr1', 'fk_gotr1')
    a('v_xor_b32 v47, s40, v47')
    a('s_mov_b32 s42, 0')
    stamp(a, 9)
    if SLY: a('s_sleep %d' % SLY)
    def scatter():
        for u in range(4):
            a('ds_write_b16 v9, %s offset:%d' % (v(YR + u), u * RS))
            a('ds_write_b16_d16_hi v10, %s offset:%d' % (v(YR + u), u * RS))
    a.label('fk_polly')
    a('buffer_load_dwordx4 %s, v4, s[24:27], s17 offen sc1' % v(YR, 4))
    poll_check(a, list(range(YR, YR + 4)), 46, 42, 'fk_polly', 'fk_goty')
    for u in range(4): a('v_pk_add_f16 %s, %s, v47' % (v(YR + u), v(YR + u)))
    scatter()
    stamp(a, 10)
    window(a, UC, KC, 16, 0, PC)
    a('v_mov_b32 v2, 0'); a('v_mov_b32 v3, 0'); a('v_mov_b32 v4, 0'); a('v_mov_b32 v7, 0')
    a('v_mov_b32 v12, %d' % LKEY)
    a('s_waitcnt lgkmcnt(0)')
    a('s_barrier')
    stamp(a, 11)
    a('ds_read_b128 %s, v5' % v(YR, 4)); a('ds_read_b128 %s, v11' % v(YR + 4, 4)); a('ds_read_b32 v44, v6')
    def mix(e, r, hi):
        a('v_fma_mix_f32 %s, %s, s38, %s op_sel:[%d,0,0] op_sel_hi:[1,0,0]' % (v(H + e), v(r), v(H + e), hi))
    a('s_waitcnt lgkmcnt(2)')
    for k in range(4): mix(2 * k, YR + k, 0); mix(2 * k + 1, YR + k, 1)
    a('s_waitcnt lgkmcnt(0)')
    stamp(a, 15, True)
    a('v_readfirstlane_b32 s13, v44')
    a('v_mov_b32_dpp v8, %s wave_shr:1 row_mask:0xf bank_mask:0xf' % v(YR + 4))
    for j in (3, 2, 1, 0):
        mix(15 - 2 * j, YR + 4 + j, 1)
        if j: mix(16 - 2 * j, YR + 4 + j, 0)
        if j == 2: a('v_writelane_b32 v8, s13, 0')
    mix(8, 8, 0)
    for k in [0, 1, 2, 3, 5, 6, 7, 4]: a('v_cvt_pk_bf16_f32 %s, %s, %s' % (v(HP + k), v(H + 2 * k), v(H + 2 * k + 1)))
    for k in [0, 1, 2, 3, 5, 6, 7, 4]:
        a('v_dot2c_f32_bf16 v2, s37, %s' % v(HP + k)); a('v_dot2c_f32_bf16 v3, %s, %s' % (v(HP + k), v(HP + k)))
        a('v_dot2c_f32_bf16 v4, %s, %s' % (v(HP + k), v(WP + k)))
    reduce4(a, 2, 4, 3, 7)
    a('v_readlane_b32 s13, v2, 32')
    ln_chain(a, 2, 8, 9)
    a('v_mov_b32 v10, s13'); a('v_fma_f32 v10, -v8, s39, v10'); a('v_mul_f32 v10, v10, v9'); a('v_mul_f32 v8, v8, v9')
    a('v_readlane_b32 s43, v10, 16'); a('v_readlane_b32 s4, v9, 16'); a('v_readlane_b32 s6, v8, 16')
    a('s_ashr_i32 s13, s43, 31'); a('s_or_b32 s13, s13, 0x80000000'); a('s_xor_b32 s43, s43, s13')
    a('s_and_b32 s43, s43, 0xfffff800'); a('s_or_b32 s43, s43, s19'); a('s_min_u32 s43, s43, -2')
    a('v_mov_b32 v2, s43')
    a('s_mov_b64 exec, 1')
    a('ds_max_u32 v12, v2')
    a('s_mov_b64 exec, -1')
    stamp(a, 16, True)
    a('v_mov_b32 v10, s6'); a('v_add_f32 v8, 1.0, v9')
    a('v_lshlrev_b32 v4, 12, v15'); a('s_lshl_b32 s17, s3, 4'); a('s_add_u32 s17, s17, 0x%x' % KEYS)
    a('v_readlane_b32 s14, v8, 16')
    a('s_waitcnt lgkmcnt(0)')
    a('s_barrier')
    a('ds_read_b32 v3, v12')
    for k in range(8):
        a('v_lshlrev_b32 %s, 16, %s' % (v(H + 2 * k), v(HP + k))); a('v_and_b32 %s, s36, %s' % (v(H + 2 * k + 1), v(HP + k)))
    a('s_waitcnt lgkmcnt(0)')
    a('v_readfirstlane_b32 s13, v3')
    stamp(a, 12)
    stamp(a, 17, True)
    def out_regs():
        for k in range(8):
            a('v_pk_fma_f32 %s, %s, s[14:15], v[10:11] op_sel_hi:[1,0,0] neg_lo:[0,0,1] neg_hi:[0,0,1]' % (v(HN + 2 * k, 2), v(H + 2 * k, 2)))
        for k in range(8): a('v_cvt_pk_bf16_f32 %s, %s, %s' % (v(OUT + k), v(HN + 2 * k), v(HN + 2 * k + 1)))
    def out_store():
        a('buffer_store_dwordx4 %s, v14, s[28:31], s22 offen%s' % (v(OUT, 4), OUTF))
        a('buffer_store_dwordx4 %s, v14, s[28:31], s22 offen offset:1024%s' % (v(OUT + 4, 4), OUTF))
    AH, BF, BD, ACC, KEY, PP, D2R = 16, 128, 160, 176, 180, 184, 192
    def frag_preload():
        a('v_lshrrev_b32 v1, 4, v15'); a('v_bfe_u32 v2, v15, 2, 2')
        a('v_lshl_add_u32 v8, v1, 3, v2'); a('v_lshlrev_b32 v8, 7, v8')
        a('v_and_b32 v3, 2, v2'); a('v_xor_b32 v9, s16, v3'); a('v_and_b32 v3, 1, v1'); a('v_lshlrev_b32 v4, 2, v3'); a('v_xor_b32 v9, v4, v9')
        a('v_lshl_add_u32 v8, v9, 4, v8'); a('v_and_b32 v9, 1, v15'); a('v_lshl_add_u32 v8, v9, 3, v8')
        a('v_bfe_u32 v9, v15, 1, 1'); a('v_lshl_add_u32 v8, v9, 15, v8')
        a('v_lshrrev_b32 v7, 1, v1'); a('v_lshl_add_u32 v7, v7, 3, v2'); a('v_lshlrev_b32 v7, 9, v7'); a('v_lshl_add_u32 v7, v3, 5, v7')
        a('v_and_b32 v3, 3, v15'); a('v_lshl_add_u32 v7, v3, 3, v7'); a('s_lshl_b32 s15, s16, 6'); a('s_add_u32 s15, s15, %d' % LD); a('v_add_u32 v7, s15, v7')
        a('v_lshlrev_b32 v9, 4, v1'); a('v_add_u32 v9, %d, v9' % LHN)
    def landed_add():
        if LATE:
            a('v_mov_b32 v1, %d' % (LSIG + 48)); a('v_mov_b32 v2, 1'); a('s_mov_b64 exec, 1'); a('ds_add_u32 v1, v2'); a('s_mov_b64 exec, -1')
    def frag_reads(tag):
        if LATE:
            a.label('fk_land' + tag)
            a('ds_read_b32 v2, v1'); a('s_waitcnt lgkmcnt(0)'); a('v_readfirstlane_b32 s15, v2')
            a('s_cmp_lt_u32 s15, 8'); a('s_cbranch_scc1 fk_land' + tag)
        for k in range(8):
            a('ds_read_b64_tr_b16 %s, v8 offset:%d' % (v(BF + 4 * k, 2), 4096 * k))
            a('ds_read_b64_tr_b16 %s, v8 offset:%d' % (v(BF + 4 * k + 2, 2), 4096 * k + 512))
            if k == 5: a('s_waitcnt lgkmcnt(4)')
    a('s_cmp_lg_u32 s13, s43'); a('s_cbranch_scc1 fk_other')
    a('s_mov_b64 exec, 0xff')
    a('buffer_store_dword v2, v4, s[24:27], s17 offen sc1')
    a('s_mov_b64 exec, -1')
    for k in range(8):
        a('v_pk_fma_f32 %s, %s, s[4:5], v[10:11] op_sel_hi:[1,0,0] neg_lo:[0,0,1] neg_hi:[0,0,1]' % (v(HN + 2 * k, 2), v(H + 2 * k, 2)))
    for k in range(8): a('v_cvt_pk_bf16_f32 %s, %s, %s' % (v(TMP + k), v(HN + 2 * k), v(HN + 2 * k + 1)))
    for k in range(8): a('v_and_b32 %s, -2, %s' % (v(TMP + k), v(TMP + k)))
    a('s_mul_i32 s13, s3, %d' % OS); a('s_add_u32 s13, s13, 0x%x' % WOFF)
    a('buffer_store_dwordx4 %s, v14, s[24:27], s13 offen sc1' % v(TMP, 4))
    a('buffer_store_dwordx4 %s, v14, s[24:27], s13 offen offset:1024 sc1' % v(TMP + 4, 4))
    for k in range(8): a('v_and_b32 %s, -2, %s' % (v(HP + k), v(HP + k)))
    a('buffer_store_dwordx4 %s, v14, s[24:27], s13 offen offset:2048 sc1' % v(HP, 4))
    a('buffer_store_dwordx4 %s, v14, s[24:27], s13 offen offset:3072 sc1' % v(HP + 4, 4))
    out_regs()
    frag_preload()
    if not LATE: frag_reads('a')
    a('s_and_b32 s13, s2, 7'); a('s_lshl_b32 s13, s13, 12'); a('s_add_u32 s13, s13, 0x%x' % KEYS)
    a('s_mov_b32 s42, 0')
    a('s_waitcnt vmcnt(4)')
    landed_add()
    if SLK: a('s_sleep %d' % SLK)
    a.label('fk_pollk')
    for i in range(4): a('buffer_load_dword %s, v14, s[24:27], s13 offen offset:%d sc1' % (v(KEY + i), 1024 * i))
    poll_check(a, list(range(KEY, KEY + 4)), 3, 42, 'fk_pollk', 'fk_gotk')
    stamp(a, 13)
    wave_reduce(a, [3], op='v_max_u32')
    a('v_readlane_b32 s40, v3, 63')
    a('v_mov_b32 v4, %d' % LWIN)
    a('s_bfe_u32 s13, s40, 0x80003'); a('s_mul_i32 s13, s13, %d' % OS); a('s_and_b32 s14, s3, 3'); a('s_lshl_b32 s14, s14, 9')
    a('s_add_u32 s13, s13, s14'); a('s_add_u32 s13, s13, 0x%x' % WOFF)
    a('v_lshlrev_b32 v5, 3, v15'); a('v_mov_b32 v3, s40')
    a('s_cmp_gt_u32 s3, 223'); a('s_cbranch_scc1 fk_norow')
    a('s_mov_b32 s42, 0')
    if LATE:
        a('buffer_load_dwordx2 %s, v5, s[24:27], s13 offen sc1' % v(KEY, 2))
        frag_reads('a')
        a('s_branch fk_chkr')
    a.label('fk_pollr')
    a('buffer_load_dwordx2 %s, v5, s[24:27], s13 offen sc1' % v(KEY, 2))
    a.label('fk_chkr')
    phase_check(a, [KEY, KEY + 1], 6, 42, 'fk_pollr', 'fk_gotr')
    a('v_add_u32 v5, %d, v5' % LHN)
    a('ds_write_b64 v5, %s' % v(KEY, 2))
    a.label('fk_norow')
    a('ds_write_b32 v4, v3')
    a('s_waitcnt lgkmcnt(0)')
    a('s_barrier')
    a('s_cmp_eq_u32 s40, s43')
    if OUTAT == 'early':
        a('s_cbranch_scc1 fk_ffn')
        out_store()
    else: a('s_cselect_b32 s22, 0x400000, s22')
    a('s_branch fk_ffn')
    a.label('fk_other')
    out_regs()
    if OUTAT == 'early': out_store()
    a('s_and_b32 s13, s13, 7'); a('s_cmp_gt_u32 s16, s13'); a('s_cselect_b32 s13, 1, 0'); a('s_sub_u32 s17, s16, s13')
    if UD >= 64:
        if LATE: a('s_waitcnt vmcnt(0)')
        frag_preload()
        landed_add()
        window(a, UD, KD, 17, 0, PD)
        frag_reads('b')
        a('s_waitcnt lgkmcnt(0)' if DLATE else 's_waitcnt vmcnt(0) lgkmcnt(0)')
    else:
        window(a, UD, KD, 17, 0, PD)
        frag_preload()
        a('s_waitcnt vmcnt(0)')
        landed_add()
        frag_reads('b')
        a('s_waitcnt lgkmcnt(0)')
    a('s_barrier')
    a.label('fk_ffn')
    stamp(a, 14)
    if OUTAT == 'bf': out_store()
    a('s_cmp_gt_u32 s3, 223'); a('s_cbranch_scc1 %s' % ('fk_lateout' if OUTAT in ('p1', 'end') else 'fk_fin'))
    for k in range(8): a('ds_read_b128 %s, v9 offset:%d' % (v(AH + 4 * k, 4), 64 * k))
    a('v_mov_b32 v3, %d' % LWIN); a('ds_read_b32 v12, v3')
    a('v_lshlrev_b32 v4, 3, v15')
    a('s_mul_i32 s41, s3, %d' % OS); a('s_lshl_b32 s14, s16, 6'); a('s_add_u32 s13, s41, s14'); a('s_add_u32 s13, s13, 0x%x' % (WOFF + OP1))
    for k in range(8):
        a('s_waitcnt lgkmcnt(%d)' % (8 - k))
        a('v_mfma_f32_16x16x32_bf16 %s, %s, %s, %s' % (v(ACC, 4), v(AH + 4 * k, 4), v(BF + 4 * k, 4), '0' if k == 0 else v(ACC, 4)))
    a('v_lshlrev_b32 v5, 3, v15'); a('v_lshlrev_b32 v6, 2, v15')
    a('v_lshrrev_b32 v9, 5, v15'); a('v_lshlrev_b32 v9, 4, v9'); a('v_add_u32 v9, %d, v9' % LACT)
    a('s_lshl_b32 s14, s16, 7'); a('s_add_u32 s41, s41, s14'); a('s_add_u32 s41, s41, 0x%x' % (WOFF + OP2))
    a('v_and_b32 %s, -2, %s' % (v(ACC), v(ACC)))
    a('v_mov_b32_dpp %s, %s row_shl:8 %s' % (v(ACC + 1), v(ACC), DPPF))
    a('v_mov_b32_dpp %s, %s row_shl:1 %s' % (v(ACC + 2), v(ACC), DPPF))
    a('v_mov_b32_dpp %s, %s row_shl:9 %s' % (v(ACC + 3), v(ACC), DPPF))
    a('s_mov_b64 exec, 0x55')
    a('buffer_store_dwordx4 %s, v4, s[24:27], s13 offen sc1' % v(ACC, 4))
    a('s_mov_b64 exec, -1')
    if OUTAT == 'p1': out_store()
    def bd_reads(tag, add=True):
        if DLATE:
            if add:
                a('s_waitcnt vmcnt(0)')
                a('s_mov_b64 exec, 1'); a('ds_add_u32 v1, v8'); a('s_mov_b64 exec, -1')
            a.label('fk_dl' + tag)
            a('ds_read_b32 v13, v1'); a('s_waitcnt lgkmcnt(0)'); a('v_readfirstlane_b32 s15, v13')
            a('s_cmp_lt_u32 s15, 8'); a('s_cbranch_scc1 fk_dl' + tag)
        for kk in range(4):
            a('ds_read_b64_tr_b16 %s, v7 offset:%d' % (v(BD + 4 * kk, 2), 8192 * kk))
            a('ds_read_b64_tr_b16 %s, v7 offset:%d' % (v(BD + 4 * kk + 2, 2), 8192 * kk + 2048))
    a('v_mov_b32 v1, %d' % (LSIG + 52)); a('v_mov_b32 v8, 1')
    if not DLATE: bd_reads('')
    a('s_cmp_eq_u32 s16, 7'); a('s_cbranch_scc1 fk_c1')
    a('s_cmp_lg_u32 s16, 0'); a('s_cbranch_scc1 %s' % ('fk_bd' if DLATE else 'fk_wait1'))
    a('s_and_b32 s13, s3, -4'); a('s_mul_i32 s13, s13, %d' % OS); a('s_add_u32 s36, s13, 0x%x' % (WOFF + OP1))
    for i in range(1, 4): a('s_add_u32 %s, s36, %d' % (s(36 + i), i * OS))
    a('s_mov_b32 s42, 0')
    a('v_lshrrev_b32 v10, 2, v5'); a('v_add_u32 v10, %d, v10' % LACT)
    a('s_waitcnt vmcnt(%d)' % (2 if OUTAT == 'p1' else 0))
    if DLATE: a('s_mov_b64 exec, 1'); a('ds_add_u32 v1, v8'); a('s_mov_b64 exec, -1')
    a.label('fk_poll1')
    for i in range(4): a('buffer_load_dwordx2 %s, v5, s[24:27], %s offen sc1' % (v(PP + 2 * i, 2), s(36 + i)))
    phase_check(a, list(range(PP, PP + 8)), 11, 42, 'fk_poll1', 'fk_got1')
    stamp(a, 15)
    a('v_pk_add_f32 %s, %s, %s' % (v(PP, 2), v(PP, 2), v(PP + 2, 2))); a('v_pk_add_f32 %s, %s, %s' % (v(PP + 4, 2), v(PP + 4, 2), v(PP + 6, 2)))
    a('v_pk_add_f32 %s, %s, %s' % (v(PP, 2), v(PP, 2), v(PP + 4, 2)))
    rbf(a, PP); rbf(a, PP + 1)
    a('v_mul_f32 %s, %s, %s' % (v(PP + 2), fh(-1.4426950408889634), v(PP)))
    a('v_exp_f32 %s, %s' % (v(PP + 2), v(PP + 2)))
    a('v_add_f32 %s, 1.0, %s' % (v(PP + 2), v(PP + 2)))
    a('v_rcp_f32 %s, %s' % (v(PP + 2), v(PP + 2)))
    a('v_mul_f32 %s, %s, %s' % (v(PP), v(PP), v(PP + 2)))
    rbf(a, PP)
    a('v_mul_f32 %s, %s, %s' % (v(PP), v(PP), v(PP + 1)))
    rbf(a, PP)
    a('ds_write_b16_d16_hi v10, %s' % v(PP))
    if DLATE: bd_reads('a', False)
    a('s_branch fk_wait1')
    a.label('fk_c1')
    a('s_cmp_gt_u32 s3, 127'); a('s_cbranch_scc1 %s' % ('fk_bd' if DLATE else 'fk_wait1'))
    a('s_waitcnt lgkmcnt(0)')
    a('v_readfirstlane_b32 s40, v12')
    a('v_lshrrev_b32 v10, 4, v15'); a('v_and_b32 v11, 1, v15'); a('v_lshl_add_u32 v12, v11, 2, v10'); a('v_lshlrev_b32 v12, 1, v12')
    a('v_and_b32 v11, 12, v12'); a('v_and_b32 v10, 1, v10')
    a('s_bfe_u32 s13, s40, 0x80003'); a('s_mul_i32 s14, s13, %d' % OS); a('s_lshl_b32 s15, s3, 4'); a('s_add_u32 s14, s14, s15'); a('s_add_u32 s14, s14, 0x%x' % WOFF)
    a('s_mov_b32 s42, 0')
    a.label('fk_pollh')
    a('buffer_load_dword v2, v11, s[24:27], s14 offen sc1')
    a('buffer_load_dword v3, v11, s[24:27], s14 offen offset:2048 sc1')
    phase_check(a, [2, 3], 4, 42, 'fk_pollh', 'fk_goth')
    a('v_cmp_eq_u32 vcc, 1, v10')
    for r in (2, 3):
        a('v_lshlrev_b32 v4, 16, %s' % v(r)); a('v_and_b32 %s, s36, %s' % (v(r), v(r))); a('v_cndmask_b32 %s, v4, %s, vcc' % (v(r), v(r)))
    a('s_lshr_b32 s14, s13, 4'); a('s_add_u32 s14, s14, 1'); a('s_cmp_ge_u32 s13, 248'); a('s_cselect_b32 s14, 0, s14')
    a('s_cmp_ge_u32 s13, 240'); a('s_cselect_b32 s15, 7, 15'); a('s_and_b32 s15, s15, s13'); a('s_lshl_b32 s15, s15, 7'); a('s_add_u32 s14, s14, s15')
    a('s_and_b32 s13, s40, 7'); a('s_sub_u32 s15, 7, s13'); a('s_min_u32 s15, s15, s13'); a('s_lshl_b32 s15, s15, 5'); a('s_add_u32 s14, s14, s15')
    a('s_sub_u32 s15, 2048, s14'); a('s_and_b32 s15, s15, 2047'); a('s_cmp_lt_u32 s13, 4'); a('s_cselect_b32 s14, s14, s15')
    a('s_and_b32 s13, s40, 0x7ff'); a('s_cmp_eq_u32 s13, %d' % (248 * 8 + 7)); a('s_cselect_b32 s14, 1024, s14')
    a('s_lshl_b32 s21, s14, 11'); a('s_lshl_b32 s15, s3, 4'); a('s_add_u32 s21, s21, s15')
    a('s_ashr_i32 s13, s40, 31'); a('s_not_b32 s13, s13'); a('s_or_b32 s13, s13, 0x80000000'); a('s_xor_b32 s13, s40, s13'); a('s_and_b32 s13, s13, 0xfffff800')
    a('v_mov_b32 v11, s13'); rbf(a, 11)
    a('v_mul_f32 v11, %s, v11' % fh(-1.4426950408889634))
    a('v_exp_f32 v11, v11'); a('v_add_f32 v11, 1.0, v11'); a('v_rcp_f32 v11, v11'); rbf(a, 11)
    a('v_lshrrev_b32 v4, 1, v15'); a('v_mul_u32_u24 v4, %d, v4' % (4 * OS)); a('v_and_b32 v5, 1, v15'); a('v_lshl_add_u32 v4, v5, 4, v4')
    a('v_add_u32 v5, %d, v4' % (128 * OS)); a('v_cmp_gt_u32 vcc, 48, v15'); a('v_cndmask_b32 v5, -16, v5, vcc')
    a('s_lshr_b32 s40, s3, 5'); a('s_mul_i32 s40, s40, %d' % OS); a('s_and_b32 s15, s3, 31'); a('s_lshl_b32 s15, s15, 5'); a('s_add_u32 s40, s40, s15')
    a('s_add_u32 s40, s40, 0x%x' % (WOFF + OP2))
    if DLATE:
        a.label('fk_bd')
        bd_reads('b')
    a.label('fk_wait1')
    a('s_waitcnt lgkmcnt(0)'); a('s_barrier')
    stamp(a, 16)
    for kk in range(4): a('ds_read_b128 %s, v9 offset:%d' % (v(AH + 4 * kk, 4), 32 * kk))
    for kk in range(4):
        a('s_waitcnt lgkmcnt(%d)' % (3 - kk))
        a('v_mfma_f32_32x32x16_bf16 %s, %s, %s, %s' % (v(D2R, 16), v(AH + 4 * kk, 4), v(BD + 4 * kk, 4), '0' if kk == 0 else v(D2R, 16)))
    a('v_and_b32 %s, -2, %s' % (v(D2R), v(D2R)))
    quad_gather(a, D2R, 1)
    a('s_mov_b32 exec_lo, 0x11111111'); a('s_mov_b32 exec_hi, 0')
    a('buffer_store_dwordx4 %s, v6, s[24:27], s41 offen sc1' % v(D2R, 4))
    a('s_mov_b64 exec, -1')
    if OUTAT == 'end': out_store()
    stamp(a, 17)
    a('s_cmp_lg_u32 s16, 7'); a('s_cbranch_scc1 fk_fin')
    a('s_cmp_gt_u32 s3, 127'); a('s_cbranch_scc1 fk_fin')
    PQ = 16
    a('s_mov_b32 s42, 0')
    a('s_waitcnt vmcnt(%d)' % (2 if OUTAT == 'end' else 0))
    if SL2: a('s_sleep %d' % SL2)
    a.label('fk_poll2')
    a('buffer_load_dwordx4 %s, v4, s[24:27], s40 offen sc1' % v(PQ, 4))
    a('buffer_load_dwordx4 %s, v5, s[24:27], s40 offen sc1' % v(PQ + 4, 4))
    phase_check(a, list(range(PQ, PQ + 8)), 6, 42, 'fk_poll2', 'fk_got2')
    stamp(a, 18)
    for h in range(2): a('v_pk_add_f32 %s, %s, %s' % (v(PQ + 2 * h, 2), v(PQ + 2 * h, 2), v(PQ + 4 + 2 * h, 2)))
    for i in range(2): a('v_permlane32_swap_b32 %s, %s' % (v(PQ + i), v(PQ + 2 + i)))
    for i in range(2): a('v_add_f32 %s, %s, %s' % (v(PQ + i), v(PQ + i), v(PQ + 2 + i)))
    a('v_permlane16_swap_b32 %s, %s' % (v(PQ), v(PQ + 1)))
    a('v_add_f32 %s, %s, %s' % (v(PQ), v(PQ), v(PQ + 1)))
    a('v_add_f32_dpp %s, %s, %s quad_perm:[2,3,0,1] %s' % (v(PQ), v(PQ), v(PQ), DPPF))
    a('v_add_f32_dpp %s, %s, %s row_ror:4 %s' % (v(PQ), v(PQ), v(PQ), DPPF))
    a('v_add_f32_dpp %s, %s, %s row_ror:8 %s' % (v(PQ), v(PQ), v(PQ), DPPF))
    rbf(a, PQ); a('v_mul_f32 %s, %s, v11' % (v(PQ), v(PQ))); rbf(a, PQ)
    a('v_add_f32 %s, %s, v2' % (v(PQ), v(PQ))); rbf(a, PQ)
    a('v_add_f32 %s, %s, v3' % (v(PQ), v(PQ))); rbf(a, PQ)
    a('s_mov_b32 exec_lo, 0x00030003'); a('s_mov_b32 exec_hi, 0x00030003')
    a('buffer_store_short_d16_hi %s, v12, s[28:31], s21 offen' % v(PQ))
    if OUTAT in ('p1', 'end'):
        a('s_branch fk_fin')
        a.label('fk_lateout')
        out_store()
    a.label('fk_fin')
    stamp_dump(a, 'x')
    a.label('fk_end')
    a('s_endpgm')

def main(path):
    a = Asm()
    ref = open('%s/%s.s.ref' % (optval('ref', '/code'), NAME)).read().splitlines()
    for l in ref:
        if l.startswith('; Override'): break
        a.raw(l)
    if LIST: a.raw('; @launch kernel=%s grid=(256,1,1) block=(512,1,1) lds=%d' % (KN, LDSB))
    else: a.raw('; @launch grid=(256,1,1) block=(512,1,1) lds=%d' % LDSB)
    a.raw('.amdgcn_target "amdgcn-amd-amdhsa--gfx950"'); a.raw('.text')
    gen(a)
    a.raw('.section .rodata,"a"')
    a.raw('\n'.join(['.p2align 6', '.amdhsa_kernel %s' % KN, '  .amdhsa_next_free_vgpr 256',
        '  .amdhsa_next_free_sgpr 102', '  .amdhsa_accum_offset 256', '  .amdhsa_group_segment_fixed_size 0',
        '  .amdhsa_kernarg_size 104', '  .amdhsa_user_sgpr_count 2', '  .amdhsa_user_sgpr_kernarg_segment_ptr 1',
        '  .amdhsa_system_sgpr_workgroup_id_x 1', '.end_amdhsa_kernel', '']))
    open(path, 'w').write(a.text())
    print('wrote', path, 'lines', len(a.lines), 'nops', a.nops, 'lds', LDSB)

if __name__ == '__main__':
    ps = [x for x in sys.argv[1:] if x.endswith('.s')]
    main(ps[0] if ps else '/code/%s.s' % NAME)
```

```python
import struct, sys
from asmlib import Asm

NAME = 'sequential_preLN__spectral_fnet__moe_arch_mod__prompt'
def fh(x): return '0x%08x' % struct.unpack('<I', struct.pack('<f', x))[0]
OPT = set(a for a in sys.argv[1:] if a.startswith('--'))
def optval(name, default):
    for o in OPT:
        if o.startswith('--%s=' % name): return o[len(name) + 3:]
    return default
STAMPS = '--stamps' in OPT
LIST = '--list' in OPT or STAMPS
OUTF = {'plain': '', 'nt': ' nt', 'sc1': ' sc1'}[optval('out', 'nt')]
OUTAT = optval('outat', 'bf')
KN = 'fk_kernel' if LIST else NAME + '_kernel'

KEYS = 0x9000; G5 = 0x11000; RB = 0x13000
OHN, OH, OP1, OP2 = 0, 2048, 4096, 5120
OS = 9344
YS = 8320
WOFF = 0x20000; YOFF = WOFF + 256 * OS; COFF = YOFF + 256 * YS; WSB = COFF + 256 * OS
SEP = optval('sep', '')
TC_ = COFF if SEP == 'all' else WOFF; TP_ = COFF if SEP else WOFF
LG, LD, LX = 0, 65536, 98304
LX1024 = LX + 5 * 4096
LWS = LX1024 + 2048
LA2 = LWS + 9472
RS = 2064
LROW = LA2 + 8192
LWR = LROW + 8 * RS
LG5 = LX + 4 * 4096
LMISC = LWR + 2048
LG5S, LY5, LKEY, LWIN, LG5E, LACT, LHN, LSIG = LMISC, LMISC + 32, LMISC + 64, LMISC + 80, LMISC + 96, LMISC + 128, LMISC + 256, LMISC + 768
LDSB = LMISC + 896
assert LDSB <= 163840

def v(i, n=1): return 'v%d' % i if n == 1 else 'v[%d:%d]' % (i, i + n - 1)
def s(i, n=1): return 's%d' % i if n == 1 else 's[%d:%d]' % (i, i + n - 1)
DPPF = 'row_mask:0xf bank_mask:0xf'
ROWRED = ['quad_perm:[1,0,3,2] ' + DPPF, 'quad_perm:[2,3,0,1] ' + DPPF, 'row_half_mirror ' + DPPF, 'row_mirror ' + DPPF]
def wave_reduce(a, regs, op='v_add_f32'):
    for pat in ROWRED + ['row_bcast:15 row_mask:0xa bank_mask:0xf', 'row_bcast:31 row_mask:0xc bank_mask:0xf']:
        for r in regs: a('%s_dpp %s, %s, %s %s' % (op, v(r), v(r), v(r), pat))
def rbf(a, r): a('v_cvt_pk_bf16_f32 %s, 0, %s' % (v(r), v(r)))
def angles(a, mulreg, basereg, ks, tmp):
    for i, k in enumerate(ks):
        if k == 0: a('v_mov_b32 %s, %s' % (v(tmp + i), v(basereg)))
        else: a('v_fmamk_f32 %s, %s, %s, %s' % (v(tmp + i), v(mulreg), fh(float(k)), v(basereg)))
def kr(r): return (r & 3) + 8 * (r >> 2)
def gen_c2s2(a, vln_f, vlh4_f, C2, S2, tmp):
    c, b = tmp, tmp + 1
    a('v_mul_f32 %s, %s, %s' % (v(c), fh(1.0 / 32), v(vln_f)))
    a('v_mul_f32 %s, %s, %s' % (v(b), v(c), v(vlh4_f)))
    ang = tmp + 2
    angles(a, c, b, [kr(r) for r in range(16)], ang)
    for r in range(16): a('v_cos_f32 %s, %s' % (v(ang + 16 + r), v(ang + r)))
    for p in range(8): a('v_cvt_pk_f16_f32 %s, %s, %s' % (v(C2 + p), v(ang + 16 + 2 * p), v(ang + 17 + 2 * p)))
    for r in range(16): a('v_sin_f32 %s, %s' % (v(ang + 16 + r), v(ang + r)))
    for p in range(8): a('v_cvt_pk_f16_f32 %s, %s, %s' % (v(S2 + p), v(ang + 16 + 2 * p), v(ang + 17 + 2 * p)))
def reduce4(a, A, B, C, D):
    a('v_permlane32_swap_b32 %s, %s' % (v(A), v(B))); a('v_permlane32_swap_b32 %s, %s' % (v(C), v(D)))
    a('v_add_f32 %s, %s, %s' % (v(A), v(A), v(B))); a('v_add_f32 %s, %s, %s' % (v(C), v(C), v(D)))
    a('v_permlane16_swap_b32 %s, %s' % (v(A), v(C)))
    a('v_add_f32 %s, %s, %s' % (v(A), v(A), v(C)))
    for pat in ROWRED: a('v_add_f32_dpp %s, %s, %s %s' % (v(A), v(A), v(A), pat))
def ln_chain(a, tot, m, t):
    a('v_mov_b32_dpp %s, %s row_bcast:15 row_mask:0xa bank_mask:0xf' % (v(m), v(tot)))
    a('v_mul_f32 %s, %s, %s' % (v(t), fh(1.0 / 1024), v(tot)))
    a('v_mul_f32 %s, %s, %s' % (v(m), fh(1.0 / 1024), v(m)))
    a('v_fma_f32 %s, -%s, %s, %s' % (v(t), v(m), v(m), v(t)))
    a('v_max_f32 %s, 0, %s' % (v(t), v(t)))
    rbf(a, t); rbf(a, m)
    a('v_add_f32 %s, %s, %s' % (v(t), fh(1e-5), v(t))); rbf(a, t)
    a('v_sqrt_f32 %s, %s' % (v(t), v(t))); rbf(a, t)
    a('v_rcp_f32 %s, %s' % (v(t), v(t)))

NST = 20
EARLY = '--early' in OPT
def stamp(a, i, early=False):
    if '--endonly' in OPT and 0 < i < NST - 1: return
    if STAMPS and (early == EARLY or i < 12 or i == NST - 1): a('s_memrealtime s[%d:%d]' % (60 + 2 * i, 61 + 2 * i))
def stamp_dump(a, tag):
    if not STAMPS: return
    a('s_waitcnt vmcnt(0) lgkmcnt(0)')
    stamp(a, NST - 1)
    a('s_load_dwordx2 s[4:5], s[0:1], 96'); a('s_waitcnt lgkmcnt(0)')
    a('s_add_u32 s4, s4, 0x8000000'); a('s_addc_u32 s5, s5, 0'); a('s_mov_b32 s6, 0x40000'); a('s_mov_b32 s7, 0x00020000')
    a('s_lshl_b32 s12, s2, 3'); a('s_add_u32 s12, s12, s16'); a('s_lshl_b32 s12, s12, 7')
    a('s_mov_b64 exec, 1'); a('v_mov_b32 v1, 0')
    for i in range(NST):
        a('v_mov_b32 v2, s%d' % (60 + 2 * i)); a('buffer_store_dword v2, v1, s[4:7], s12 offen offset:%d' % (4 * i))

DMAF = {'': '', 'nt': ' nt', 'sc1': ' sc1', 'sc0': ' sc0', 'scnt': ' sc1 nt'}[optval('dmaf', '')]
NH = int(optval('nh', '4'))
KA = int(optval('ka', '3')); CPOST = '--cpost' in OPT
KB, KE, KC, KD = (int(x) for x in optval('win', '4,0,4,4').split(','))
PB, PE, PC, PD = (int(x) for x in optval('wpace', '99,99,99,99').split(','))
assert '--now' in OPT or 3 * NH + 4 * KA + 4 * KB + 4 * KE + 8 * KC + 7 * KD >= 96, 'units missing'
MIX = '--mix' in OPT or '--mix0' in OPT
UX = 128 if '--mix' in OPT else 0
def unit_setup(a):
    a('v_lshrrev_b32 v208, 3, v15'); a('v_and_b32 v209, 7, v15'); a('v_and_b32 v210, 2, v208'); a('v_xor_b32 v209, v210, v209')
    a('v_mul_u32_u24 v208, 7168, v208'); a('v_lshl_add_u32 v208, v209, 4, v208')
    a('v_lshrrev_b32 v210, 5, v15'); a('v_lshlrev_b32 v210, 11, v210'); a('v_and_b32 v209, 31, v15'); a('v_lshl_add_u32 v210, v209, 4, v210')
    a('s_and_b32 s12, s3, 3'); a('s_mul_i32 s100, s12, %d' % (256 * 7168)); a('s_lshl_b32 s101, s12, 9')
    if '--cbnew' not in OPT: a('s_lshr_b32 s12, s3, 2')
    else: a('s_bfe_u32 s12, s3, 0x30002'); a('s_mul_i32 s12, s12, 7'); a('s_lshr_b32 s13, s3, 5'); a('s_add_u32 s12, s12, s13')
    a('s_lshl_b32 s12, s12, 7'); a('s_add_u32 s100, s100, s12'); a('s_lshl_b32 s12, s12, 10'); a('s_add_u32 s101, s101, s12')
    a('s_xor_b32 s99, s100, %d' % UX)
uid = [0]
def window(a, first, k, wreg, wbase, pace=99, skip=None, remap=False):
    if k == 0 or first >= 96: return
    uid[0] += 1; lab = skip or 'fk_win%d' % uid[0]
    a('s_cmp_gt_u32 s3, 223'); a('s_cbranch_scc1 %s' % lab)
    a('s_mul_i32 s15, %s, %d' % (s(wreg), k)); a('s_add_u32 s15, s15, %d' % (first - wbase * k))
    if remap and not MIX: a('s_cmp_ge_u32 s15, 32'); a('s_cselect_b32 s12, 32, 0'); a('s_add_u32 s15, s15, s12')
    a('s_mov_b32 s58, 0x700000'); a('s_mov_b32 s59, 0x00020000')
    if MIX: a('s_mov_b32 s9, s15')
    for i in range(k):
        if MIX:
            a('s_cmp_ge_u32 s9, 16'); a('s_cselect_b32 s15, 16, 0'); a('s_cmp_ge_u32 s9, 32'); a('s_cselect_b32 s15, 32, s15'); a('s_add_u32 s15, s15, s9'); a('s_add_u32 s9, s9, 1')
        a('s_cmp_gt_u32 s15, 95'); a('s_cbranch_scc1 %s' % lab)
        a('s_lshl_b32 s12, s15, 10'); a('s_mov_b32 m0, s12')
        a('s_and_b32 s14, s12, 1024'); a('s_lshr_b32 s14, s14, 4'); a('v_xor_b32 v209, s14, v208')
        a('s_cmp_lt_u32 s15, 32'); a('s_cselect_b64 s[56:57], s[44:45], s[48:49]'); a('s_cselect_b32 s12, s100, s99')
        a('s_and_b32 s14, s15, 31'); a('s_mul_i32 s13, s14, %d' % (8 * 7168)); a('s_add_u32 s13, s13, s12')
        a('s_lshl_b32 s14, s14, 12'); a('s_add_u32 s14, s14, s101')
        a('s_cmp_lt_u32 s15, 64'); a('s_cselect_b64 s[56:57], s[56:57], s[52:53]'); a('s_cselect_b32 s13, s13, s14'); a('s_cselect_b64 vcc, -1, 0')
        a('v_cndmask_b32 v209, v210, v209, vcc')
        a('s_add_u32 s15, s15, 1')
        if i >= pace: a('s_waitcnt vmcnt(%d)' % pace)
        a('buffer_load_dwordx4 v209, s[56:59], s13 offen%s lds' % DMAF)
    if not skip: a.label(lab)
def window_static(a, kind, p0, k, wreg, tag):
    step = 8 * 7168 if kind == 1 else 4096
    if kind == 1 and MIX:
        a('s_and_b32 s15, s16, 3'); a('s_lshl_b32 s15, s15, 2'); a('s_add_u32 s15, s15, 16')
        a('s_lshr_b32 s12, s16, 2'); a('s_lshl_b32 s12, s12, 5'); a('s_add_u32 s12, s12, s15'); a('s_lshl_b32 s12, s12, 10')
        a('s_mul_i32 s15, s15, %d' % step)
        a('s_cmp_lt_u32 s16, 4'); a('s_cselect_b64 s[48:49], s[44:45], s[48:49]'); a('s_cselect_b32 s13, s100, s99'); a('s_add_u32 s13, s13, s15')
    else:
        a('s_mul_i32 s15, %s, %d' % (s(wreg), k)); a('s_add_u32 s15, s15, %d' % p0)
        a('s_lshl_b32 s12, s15, 10'); a('s_add_u32 s12, s12, %d' % (32768 * kind))
        a('s_mul_i32 s13, s15, %d' % step); a('s_add_u32 s13, s13, %s' % ('s99' if kind == 1 else 's101'))
    if kind == 1: a('v_xor_b32 v209, 64, v208')
    def issue():
        a('s_cmp_gt_u32 s3, 223'); a('s_cbranch_scc1 fk_ws%s' % tag)
        for i in range(k):
            a('s_mov_b32 m0, s12')
            if kind == 2 and p0 + 8 * k > 32: a('s_cmp_gt_u32 s12, %d' % (95 * 1024)); a('s_cbranch_scc1 fk_ws%s' % tag)
            else: a('s_nop 0')
            a('buffer_load_dwordx4 %s, %s, s13 offen%s lds' % ((('v209' if i & 1 else 'v208') if kind == 1 else 'v210'), s(48 if kind == 1 else 52, 4), DMAF))
            if i < k - 1: a('s_add_u32 s12, s12, 1024'); a('s_add_u32 s13, s13, %d' % step)
        a('@fk_ws%s' % tag)
    return issue
STATIC = '--nostatic' not in OPT and 3 * NH + 4 * KA + 4 * KB == 40 and KB and (32 - 3 * NH - 4 * KA) % KB == 0 and KE == 0 and KC == 4
UA = 3 * NH; UB = UA + 4 * KA; UE = UB + 4 * KB; UC = UE + 4 * KE; UD = UC + 8 * KC
LATE = UC < 64 and '--now' not in OPT
DLATE = UD >= 64 and UD < 96 and KD > 0 and '--dlate' in OPT
BASE = int(optval('base', '0'), 0)
N1, NB, NF, NE = (int(x) for x in optval('spf', '0,0,0,0').split(','))
L1 = 3 * N1; L2 = L1 + 3 * 14 * NB; L3 = L2 + 4 * NF
def spf_base(a, d, first, per, wreg, woff=0):
    assert per % 2 == 0 and first % 2 == 0
    a('s_mul_i32 %s, %s, %d' % (s(d), s(wreg), per // 2 * 7168)); a('s_add_u32 %s, %s, %d' % (s(d), s(d), (first - per * woff) // 2 * 7168)); a('s_add_u32 %s, %s, s100' % (s(d), s(d)))
    a('s_cmp_gt_u32 s3, 223'); a('s_cselect_b32 %s, 0x700000, %s' % (s(d), s(d)))
def spf(d, i): return 's_buffer_load_dword %s, s[48:51], %s offset:%d' % (s(d + 1), s(d), (i >> 1) * 7168 + 64 * (i & 1))
CAFTER = '--cbefore' not in OPT
XT = '--xtrig' in OPT
XF = ' nt' if '--xnt' in OPT else ''
YD = int(optval('yd', '1'))
SPLIT = '--nosplit' not in OPT
DAFTER = '--dafter' in OPT
SLR = int(optval('slr', '0'))
SLW, SLY, SLK, SL2 = (int(x) for x in optval('sl', '0,0,0,0').split(','))
WNT = ' nt' if '--wnt' in OPT else ''
CNT = ' nt' if '--cnt' in OPT else ''
WOUT = '--wout' in OPT
WSRD = 's[28:31]' if WOUT else 's[24:27]'
if WOUT: WOFF = 0
def rebase(a):
    if BASE: a('s_add_u32 s24, s24, 0x%x' % BASE); a('s_addc_u32 s25, s25, 0')
def chkpos(a, d):
    a('s_bfe_u32 %s, s3, 0x30002' % s(d)); a('s_lshl_b32 %s, %s, 7' % (s(d), s(d))); a('s_lshr_b32 s12, s3, 5'); a('s_lshl_b32 s12, s12, 4')
    a('s_add_u32 %s, %s, s12' % (s(d), s(d))); a('s_and_b32 s12, s3, 3'); a('s_lshl_b32 s12, s12, 2'); a('s_add_u32 %s, %s, s12' % (s(d), s(d)))
    a('s_add_u32 %s, %s, 8192' % (s(d), s(d)))
def piece_sum(a, d, r, tag):
    a('v_add3_u32 %s, %s, %s, %s' % (v(d), v(r), v(r + 1), v(r + 2)))
    a('v_add_u32 %s, %s, %s' % (v(d), v(d), v(r + 3)))
    return ['v_add_u32_dpp %s, %s, %s quad_perm:[1,0,3,2] %s' % (v(d), v(d), v(d), DPPF)]
def quad_gather(a, r, step):
    for i in range(1, 4): a('v_mov_b32_dpp %s, %s row_shl:%d %s' % (v(r + i), v(r), i * step, DPPF))
def poll_tail(a, cnt, lab, got):
    a('s_add_u32 %s, %s, 1' % (s(cnt), s(cnt)))
    a('s_cbranch_vccz %s' % got)
    if SLR: a('s_sleep %d' % SLR)
    a('s_cmp_le_u32 %s, 0x40000' % s(cnt)); a('s_cbranch_scc1 %s' % lab)
    a.label(got)
def phase_check(a, regs, tmp, cnt, lab, got):
    a('s_waitcnt vmcnt(0)')
    r = list(regs)
    if len(r) == 2: a('v_or_b32 %s, %s, %s' % (v(tmp), v(r[0]), v(r[1]))); r = []
    else: a('v_or3_b32 %s, %s, %s, %s' % (v(tmp), v(r[0]), v(r[1]), v(r[2]))); r = r[3:]
    while r:
        if len(r) >= 2: a('v_or3_b32 %s, %s, %s, %s' % (v(tmp), v(tmp), v(r[0]), v(r[1]))); r = r[2:]
        else: a('v_or_b32 %s, %s, %s' % (v(tmp), v(tmp), v(r[0]))); r = []
    a('v_and_b32 %s, 1, %s' % (v(tmp), v(tmp)))
    a('v_cmp_eq_u32 vcc, 1, %s' % v(tmp))
    poll_tail(a, cnt, lab, got)
def poll_check(a, regs, tmp, cnt, lab, got, wait=True):
    a('s_add_u32 %s, %s, 1' % (s(cnt), s(cnt)))
    if wait: a('s_waitcnt vmcnt(0)')
    r = list(regs)
    if len(r) == 1: a('v_cmp_eq_u32 vcc, -1, %s' % v(r[0]))
    else:
        if len(r) == 2: a('v_max_u32 %s, %s, %s' % (v(tmp), v(r[0]), v(r[1]))); r = []
        else: a('v_max3_u32 %s, %s, %s, %s' % (v(tmp), v(r[0]), v(r[1]), v(r[2]))); r = r[3:]
        while r:
            if len(r) >= 2: a('v_max3_u32 %s, %s, %s, %s' % (v(tmp), v(tmp), v(r[0]), v(r[1]))); r = r[2:]
            else: a('v_max_u32 %s, %s, %s' % (v(tmp), v(tmp), v(r[0]))); r = []
        a('v_cmp_eq_u32 vcc, -1, %s' % v(tmp))
    a('s_cbranch_vccz %s' % got)
    if SLR: a('s_sleep %d' % SLR)
    a('s_cmp_le_u32 %s, 0x40000' % s(cnt)); a('s_cbranch_scc1 %s' % lab)
    a.label(got)

def gen(a):
    a.raw('.globl %s' % KN); a.raw('.p2align 8'); a.raw('.type %s,@function' % KN)
    a.lines.append(KN + ':')
    a('s_cmp_gt_u32 s2, 255'); a('s_cbranch_scc1 fk_end')
    if STAMPS:
        for i in range(NST): a('s_mov_b32 s%d, 0' % (60 + 2 * i))
    stamp(a, 0)
    a('s_load_dwordx2 s[8:9], s[0:1], 0'); a('s_load_dwordx2 s[24:25], s[0:1], 96')
    a('s_load_dwordx2 s[32:33], s[0:1], 48'); a('s_load_dwordx2 s[44:45], s[0:1], 56'); a('s_load_dwordx2 s[48:49], s[0:1], 64')
    a('s_load_dwordx2 s[52:53], s[0:1], 72'); a('s_load_dwordx2 s[28:29], s[0:1], 80')
    if '--nocodepf' not in OPT:
        a('s_getpc_b64 s[40:41]'); a.lines.append('fk_pc:')
        a('s_mov_b32 s42, fk_end-fk_pc'); a('s_mov_b32 s43, 0x00020000')
        a('v_lshlrev_b32 v250, 6, v0')
        a('buffer_load_dword v251, v250, s[40:43], 0 offen')
    a('v_lshrrev_b32 v1, 6, v0'); a('v_and_b32 v15, 63, v0')
    a('v_readfirstlane_b32 s16, v1')
    a('s_and_b32 s3, s2, 0xe0'); a('s_and_b32 s17, s2, 7'); a('s_lshl_b32 s17, s17, 2'); a('s_or_b32 s3, s3, s17')
    a('s_bfe_u32 s17, s2, 0x20003'); a('s_or_b32 s3, s3, s17')
    a('s_lshr_b32 s17, s3, 4'); a('s_add_u32 s17, s17, 1'); a('s_cmp_ge_u32 s3, 248'); a('s_cselect_b32 s17, 0, s17')
    a('s_cmp_ge_u32 s3, 240'); a('s_cselect_b32 s18, 7, 15'); a('s_and_b32 s18, s18, s3'); a('s_lshl_b32 s18, s18, 7')
    a('s_add_u32 s18, s18, s17')
    a('v_and_b32 v1, 31, v15'); a('v_lshrrev_b32 v2, 5, v15')
    a('v_lshlrev_b32 v14, 4, v15')
    for r, n in ((8, 2048 * 2048), (24, WSB), (28, 2048 * 2048), (32, 2048), (44, 1024 * 7168), (48, 1024 * 7168), (52, 3584 * 2048)):
        a('s_mov_b32 %s, 0x%x' % (s(r + 2), n)); a('s_mov_b32 %s, 0x00020000' % s(r + 3))
    a('s_cmp_eq_u32 s3, 255'); a('s_cselect_b32 s12, 5, 4')
    a('s_cmp_ge_u32 s16, s12'); a('s_cbranch_scc1 fk_H')
    XA, XB = 16, 32
    F1, TC, TS, B3, C2, S2 = 48, 56, 72, 88, 96, 104
    X, D1, D2, D3, Q16, GA = 112, 128, 144, 160, 176, 184
    T = 128
    a('s_cmp_eq_u32 s16, 4'); a('s_cbranch_scc1 fk_lowp')
    a('s_setprio 3')
    a('@fk_lowp')
    a('s_lshl_b32 s19, s16, 5'); a('s_add_u32 s19, s19, s18')
    a('s_sub_u32 s20, 2048, s19'); a('s_and_b32 s20, s20, 2047')
    a('s_lshl_b32 s21, s19, 11'); a('s_lshl_b32 s22, s20, 11')
    a('s_lshl_b32 s12, s16, 12'); a('s_add_u32 s12, s12, %d' % LX)
    a('s_mov_b32 m0, s12')
    for i in range(32): a('v_mov_b32 %s, 0' % v(XA + i))
    a('v_cvt_f32_u32 v200, v1')
    a('v_lshlrev_b32 v7, 2, v2'); a('v_cvt_f32_u32 v7, v7')
    a('v_lshrrev_b32 v8, 1, v1'); a('v_and_b32 v9, 1, v1')
    a('v_lshlrev_b32 v205, 2, v15'); a('v_and_b32 v205, 63, v205'); a('v_add_u32 v205, %d, v205' % LSIG)
    a('ds_write_b32 v205, v16'); a('ds_write_b32 v205, v16 offset:64')
    a('s_waitcnt lgkmcnt(0)')
    rebase(a)
    stamp(a, 1)
    for i, so in enumerate((21, 21, 22, 22)):
        if i: a('s_add_u32 s13, s12, %d' % (1024 * i)); a('s_mov_b32 m0, s13')
        if i & 1: a('s_add_u32 s14, %s, 1024' % s(so))
        a('buffer_load_dwordx4 v14, s[8:11], %s offen%s lds' % (s(14) if i & 1 else s(so), XF))
    a('s_barrier')
    def put(base, n):
        for q in range(n // 4): a('ds_write_b128 v206, %s offset:%d' % (v(base + 4 * q, 4), 1024 * ((base - F1) // 4 + q)))
    a('v_add_u32 v206, %d, v14' % LROW)
    a('s_lshl_b32 s13, s16, 2'); a('s_add_u32 s13, s13, %d' % LSIG); a('v_mov_b32 v201, s13'); a('v_mov_b32 v202, 1')
    a('s_cmp_eq_u32 s16, 1'); a('s_cbranch_scc1 fk_j1')
    a('s_cmp_eq_u32 s16, 2'); a('s_cbranch_scc1 fk_j2')
    a('s_cmp_eq_u32 s16, 3'); a('s_cbranch_scc1 fk_j3')
    a('s_cmp_eq_u32 s16, 4'); a('s_cbranch_scc1 fk_jend')
    a('v_cmp_eq_u32 vcc, 1, v1')
    a('v_cndmask_b32 v10, v8, 16, vcc'); a('v_cndmask_b32 v11, v9, 0, vcc')
    a('v_cvt_f32_u32 v10, v10'); a('v_cvt_f32_u32 v11, v11')
    a('v_mul_f32 v10, %s, v10' % fh(1.0 / 32)); a('v_mul_f32 v11, %s, v11' % fh(0.25))
    a('v_add_f32 v12, v7, v7'); a('v_fma_f32 v11, v10, v12, v11')
    angles(a, 10, 11, list(range(8)) + list(range(16, 24)), T)
    for i in range(16): a('v_cos_f32 %s, %s' % (v(T + 16 + i), v(T + i)))
    for p in range(8): a('v_cvt_pk_f16_f32 %s, %s, %s' % (v(F1 + p), v(T + 16 + 2 * p), v(T + 17 + 2 * p)))
    put(F1, 8)
    a('s_branch fk_jsig')
    a.label('fk_j1')
    a('v_cvt_f32_u32 v10, v8'); a('v_lshlrev_b32 v11, 31, v9')
    a('v_mul_f32 v10, %s, v10' % fh(1.0 / 1024)); a('v_xor_b32 v10, v11, v10'); a('v_mul_f32 v11, v10, v7')
    angles(a, 10, 11, [kr(r) for r in range(16)], T)
    for r in range(16): a('v_cos_f32 %s, %s' % (v(TC + r), v(T + r)))
    put(TC, 16)
    for r in range(16): a('v_sin_f32 %s, %s' % (v(TS + r), v(T + r)))
    put(TS, 16)
    a('s_branch fk_jsig')
    a.label('fk_j2')
    gen_c2s2(a, 200, 7, C2, S2, T)
    put(C2, 16)
    a('s_branch fk_jsig')
    a.label('fk_j3')
    a('v_or_b32 v10, 16, v1'); a('v_cvt_f32_u32 v10, v10'); a('v_mov_b32 v11, %s' % fh(1.0 / 64))
    a('v_fmamk_f32 v10, v10, %s, v11' % fh(1.0 / 32))
    a('v_cmp_gt_u32 vcc, 16, v1'); a('v_mov_b32 v12, %s' % fh(-0.25)); a('v_cndmask_b32 v12, 0, v12, vcc')
    a('v_fma_f32 v11, v10, v7, v12')
    angles(a, 10, 11, [kr(r) for r in range(16)], T)
    for r in range(16): a('v_cos_f32 %s, %s' % (v(T + 16 + r), v(T + r)))
    for p in range(8): a('v_cvt_pk_f16_f32 %s, %s, %s' % (v(B3 + p), v(T + 16 + 2 * p), v(T + 17 + 2 * p)))
    put(B3, 8)
    a.label('fk_jsig')
    a('ds_write_b32 v201, v202 offset:32')
    a.label('fk_jend')
    a('v_lshlrev_b32 v3, 9, v2'); a('v_lshl_add_u32 v3, v1, 1, v3')
    a('v_sub_u32 v4, 576, v3'); a('v_sub_u32 v5, 2048, v3'); a('v_and_b32 v5, 2047, v5')
    a('v_add_u32 v3, s12, v3'); a('v_add_u32 v4, s12, v4'); a('v_add_u32 v5, s12, v5')
    a('s_lshl_b32 s13, s16, 10'); a('s_sub_u32 s14, %d, s13' % (7168 + 64))
    a('s_cmp_ge_u32 s3, 248'); a('s_cselect_b32 s15, 1024, 0'); a('s_add_u32 s14, s14, s15')
    a('s_cmp_eq_u32 s14, %d' % (8192 + 64)); a('s_cselect_b32 s14, %d, s14' % (4096 + 64))
    a('s_cmp_eq_u32 s19, s20'); a('s_cselect_b32 s14, %d, s14' % (8192 + 64))
    a('s_cmp_eq_u32 s16, 4'); a('s_cselect_b32 s13, %d, s13' % (8192 + 64))
    a('s_cmp_lg_u32 s19, 0'); a('s_cbranch_scc1 fk_noz')
    a('v_add_u32 v8, %d, v14' % (LWS + 4096 + 64)); a('ds_write_b128 v8, v[16:19]')
    a('@fk_noz')
    a('s_add_u32 s13, s13, %d' % LWS); a('s_add_u32 s14, s14, %d' % LWS)
    a('v_cmp_gt_u32 vcc, 16, v1')
    a('v_mov_b32 v8, s13'); a('v_mov_b32 v9, s14')
    a('v_cndmask_b32 v10, v9, v8, vcc'); a('v_cndmask_b32 v11, v8, v9, vcc')
    a('v_lshl_add_u32 v10, v15, 2, v10'); a('v_lshl_add_u32 v11, v15, 2, v11')
    a('v_lshrrev_b32 v6, 1, v15'); a('v_and_b32 v8, 1, v15'); a('v_mul_u32_u24 v9, %d, v8' % (4096 + 64))
    a('v_and_b32 v12, 15, v6'); a('v_lshl_add_u32 v12, v12, 4, v2'); a('v_mul_u32_u24 v12, %d, v12' % OS)
    a('v_mul_u32_u24 v192, %d, v8' % (2 * OS)); a('v_add_u32 v192, v192, v12')
    a('v_lshl_add_u32 v12, v8, 4, v12')
    a('v_lshrrev_b32 v194, 3, v15'); a('v_lshlrev_b32 v193, 4, v194'); a('v_lshl_add_u32 v193, v8, 7, v193')
    a('v_and_b32 v6, 3, v6'); a('v_lshl_add_u32 v9, v6, 2, v9'); a('v_lshl_add_u32 v9, v194, 7, v9')
    a('v_lshlrev_b32 v194, 10, v194'); a('v_and_b32 v6, 7, v15'); a('v_lshl_add_u32 v194, v6, 4, v194')
    a('s_lshl_b32 s13, s16, 5'); a('s_add_u32 s13, s13, %d' % LWS); a('v_add_u32 v6, s13, v9')
    a('s_mul_i32 s36, s3, %d' % OS); a('s_lshl_b32 s13, s16, 8'); a('s_add_u32 s36, s36, s13'); a('s_add_u32 s36, s36, 0x%x' % WOFF)
    a('s_mul_i32 s37, s16, %d' % (4 * OS)); a('s_add_u32 s37, s37, 0x%x' % WOFF)
    chkpos(a, 23)
    a('s_add_u32 s23, s23, s37')
    a('s_lshl_b32 s14, s3, 5'); a('s_add_u32 s37, s37, s14')
    a('s_add_u32 s38, s37, %d' % (2 * OS))
    a('s_lshl_b32 s13, s16, 11'); a('s_add_u32 s13, s13, %d' % LA2); a('v_add_u32 v7, s13, v14')
    a('v_cmp_eq_u32 s[58:59], 1, v8')
    a('s_cmp_eq_u32 s19, s20'); a('s_cselect_b32 s39, 0.5, 1.0')
    a('s_lshl_b32 s13, s16, 2'); a('s_add_u32 s13, s13, %d' % LG5S); a('v_mov_b32 v9, s13')
    a('s_mov_b32 s57, 47')
    a.label('fk_spinc')
    a('ds_read_b32 v203, v205'); a('s_waitcnt lgkmcnt(0)'); a('v_cmp_eq_u32 vcc, 0, v203')
    a('s_and_b32 s13, vcc_lo, 0xf00'); a('s_cbranch_scc1 fk_spinc')
    for q in range(16):
        a('ds_read_b128 %s, v206 offset:%d' % (v(F1 + 4 * q, 4), 1024 * q))
        if q == 11: a('s_waitcnt lgkmcnt(8)')
    stamp(a, 2)
    a('s_waitcnt vmcnt(0) lgkmcnt(0)')
    if XT: a('ds_write_b32 v205, v202 offset:64')
    stamp(a, 3)
    for j in range(2):
        for i in range(8):
            a('ds_read_u16_d16_hi %s, v3 offset:%d' % (v(XA + 8 * j + i), 1024 * j + 64 * i))
    a('s_waitcnt lgkmcnt(2)')
    for j in range(2):
        for i in range(8):
            if j == 0 and i == 0: a('ds_read_u16_d16_hi %s, v5 offset:2048' % v(XB))
            else: a('ds_read_u16_d16_hi %s, v4 offset:%d' % (v(XB + 8 * j + i), 2048 + 1024 * (1 - j) + 64 * (7 - i)))
            if j == 1 and i == 4: a('s_waitcnt lgkmcnt(8)')
    def sums(R, t):
        for i in range(4): a('v_pk_add_f32 %s, %s, %s' % (v(t + 2 * i, 2), v(R + 4 * i, 2), v(R + 4 * i + 2, 2)))
        a('v_pk_mul_f32 %s, %s, %s' % (v(t + 8, 2), v(R, 2), v(R, 2)))
        a('v_pk_mul_f32 %s, %s, %s' % (v(t + 10, 2), v(R + 2, 2), v(R + 2, 2)))
        for i in range(2, 8):
            acc = t + 8 + 2 * (i & 1)
            a('v_pk_fma_f32 %s, %s, %s, %s' % (v(acc, 2), v(R + 2 * i, 2), v(R + 2 * i, 2), v(acc, 2)))
        a('v_pk_add_f32 %s, %s, %s' % (v(t, 2), v(t, 2), v(t + 2, 2))); a('v_pk_add_f32 %s, %s, %s' % (v(t + 4, 2), v(t + 4, 2), v(t + 6, 2)))
        a('v_pk_add_f32 %s, %s, %s' % (v(t + 8, 2), v(t + 8, 2), v(t + 10, 2)))
        a('v_pk_add_f32 %s, %s, %s' % (v(t, 2), v(t, 2), v(t + 4, 2)))
        a('v_add_f32 %s, %s, %s' % (v(t + 8), v(t + 8), v(t + 9)))
        a('v_add_f32 %s, %s, %s' % (v(t), v(t), v(t + 1)))
    sums(XA, T)
    a('s_waitcnt lgkmcnt(0)')
    sums(XB, T + 12)
    reduce4(a, T, T + 12, T + 8, T + 20)
    ln_chain(a, T, T + 1, T + 2)
    a('v_mul_f32 %s, %s, %s' % (v(T + 2), fh(1.0 / 128), v(T + 2)))
    a('v_mul_f32 %s, %s, %s' % (v(T + 1), v(T + 1), v(T + 2)))
    a('v_readlane_b32 s4, %s, 16' % v(T + 2)); a('v_readlane_b32 s6, %s, 48' % v(T + 2))
    a('v_readlane_b32 s13, %s, 16' % v(T + 1)); a('v_readlane_b32 s14, %s, 48' % v(T + 1))
    a('v_mov_b32 %s, s13' % v(T + 4)); a('v_add_f32 %s, s14, %s' % (v(T + 4), v(T + 4)))
    for i in range(8):
        a('v_pk_fma_f32 %s, %s, s[6:7], %s op_sel_hi:[1,0,0] neg_lo:[0,0,1] neg_hi:[0,0,1]' % (v(XB + 2 * i, 2), v(XB + 2 * i, 2), v(T + 4, 2)))
    for i in range(8):
        a('v_pk_fma_f32 %s, %s, s[4:5], %s op_sel_hi:[1,0,1]' % (v(XA + 2 * i, 2), v(XA + 2 * i, 2), v(XB + 2 * i, 2)))
    for p in range(8): a('v_cvt_pk_f16_f32 %s, %s, %s' % (v(Q16 + p), v(XA + 2 * p), v(XA + 2 * p + 1)))
    a('v_mfma_f32_32x32x16_f16 %s, %s, %s, 0' % (v(X, 16), v(Q16, 4), v(F1, 4)))
    a('v_mfma_f32_32x32x16_f16 %s, %s, %s, %s' % (v(X, 16), v(Q16 + 4, 4), v(F1 + 4, 4), v(X, 16)))
    W = XA
    for r in range(8): a('v_pk_mul_f32 %s, %s, %s' % (v(W + 2 * r, 2), v(X + 2 * r, 2), v(TC + 2 * r, 2)))
    for r in range(8): a('v_fmac_f32_dpp %s, %s, %s quad_perm:[1,0,3,2] %s' % (v(W + r), v(X + r), v(TS + r), DPPF))
    for p in range(4): a('v_cvt_pk_f16_f32 %s, %s, %s' % (v(Q16 + p), v(W + 2 * p), v(W + 2 * p + 1)))
    a('v_fmac_f32_dpp %s, %s, %s quad_perm:[1,0,3,2] %s' % (v(W + 8), v(X + 8), v(TS + 8), DPPF))
    a('v_fmac_f32_dpp %s, %s, %s quad_perm:[1,0,3,2] %s' % (v(W + 9), v(X + 9), v(TS + 9), DPPF))
    mm = [(D1, C2), (D2, S2), (D3, B3)]
    rest = ['v_fmac_f32_dpp %s, %s, %s quad_perm:[1,0,3,2] %s' % (v(W + r), v(X + r), v(TS + r), DPPF) for r in range(10, 16)]
    rest += ['v_cvt_pk_f16_f32 %s, %s, %s' % (v(Q16 + p), v(W + 2 * p), v(W + 2 * p + 1)) for p in range(4, 8)]
    for n, (Dd, B) in enumerate(mm):
        a('v_mfma_f32_32x32x16_f16 %s, %s, %s, 0' % (v(Dd, 16), v(Q16, 4), v(B, 4)))
        for x in rest[4 * n:4 * n + 4]: a(x)
    for (Dd, B) in mm:
        a('v_mfma_f32_32x32x16_f16 %s, %s, %s, %s' % (v(Dd, 16), v(Q16 + 4, 4), v(B + 4, 4), v(Dd, 16)))
    a('v_cmp_gt_u32 vcc, 16, v15')
    a('v_cmp_gt_u32 s[40:41], 32, v15')
    Z = XA
    P = XB
    def zz(u):
        a('v_pk_add_f32 %s, %s, %s op_sel:[0,1] op_sel_hi:[1,0] neg_hi:[0,1]' % (v(Z + 2 * u, 2), v(D1 + 2 * u, 2), v(D2 + 2 * u, 2)))
    def pp(p):
        A_, B_ = v(Z + 4 * p, 2), v(Z + 4 * p + 2, 2)
        a('v_pk_add_f32 %s, %s, %s op_sel:[0,1] op_sel_hi:[1,0] neg_lo:[0,1]' % (v(P + 4 * p, 2), A_, B_))
        a('v_pk_add_f32 %s, %s, %s op_sel:[0,1] op_sel_hi:[1,0] neg_hi:[1,0]' % (v(P + 4 * p + 2, 2), A_, B_))
        a('v_cvt_pk_f16_f32 %s, %s, %s' % (v(Q16 + 2 * p), v(P + 4 * p), v(P + 4 * p + 1)))
        a('v_cvt_pk_f16_f32 %s, %s, %s' % (v(Q16 + 2 * p + 1), v(P + 4 * p + 2), v(P + 4 * p + 3)))
        a('ds_write_b32 v10, %s offset:%d' % (v(Q16 + 2 * p), 256 * p))
        a('ds_write_b32 v11, %s offset:%d' % (v(Q16 + 2 * p + 1), 256 * p))
    ZR, ZI = Z, Z + 1
    for p in (1, 2, 3):
        zz(2 * p); zz(2 * p + 1); pp(p)
    zz(0); zz(1)
    a('v_mul_f32 v8, s39, %s' % v(D1))
    a('v_mov_b32 v3, %s' % v(D3 + 1))
    a('v_permlane16_swap_b32 v4, v3')
    a('v_cndmask_b32 v5, %s, %s, vcc' % (v(D3 + 1), v(D1)))
    a('v_cndmask_b32 v4, v4, %s, vcc' % v(D2))
    a('v_cndmask_b32 %s, %s, v5, s[40:41]' % (v(ZR), v(ZR)))
    a('v_cndmask_b32 %s, %s, -v4, s[40:41]' % (v(ZI), v(ZI)))
    pp(0)
    a('s_mov_b64 exec, 0x10000')
    a('ds_write_b32 v9, v8')
    a('ds_write_b32 v201, v202')
    a('s_mov_b64 exec, -1')
    a('s_cmp_eq_u32 s16, 4'); a('s_cbranch_scc1 fk_w4')
    stamp(a, 4)
    a.label('fk_spin')
    a('ds_read_b32 v3, v205'); a('s_waitcnt lgkmcnt(0)'); a('v_cmp_eq_u32 vcc, 0, v3')
    a('s_and_b32 s13, vcc_lo, s57'); a('s_cbranch_scc1 fk_spin')
    a.label('fk_staged')
    stamp(a, 12, True)
    for q in range(2):
        a('ds_read2st64_b32 %s, %s offset0:0 offset1:4' % (v(GA + 4 * q, 2), 'v8' if q else 'v6'))
        a('ds_read2st64_b32 %s, %s offset0:8 offset1:12' % (v(GA + 4 * q + 2, 2), 'v8' if q else 'v6'))
        if q == 0: a('v_add_u32 v8, 16, v6')
    a('v_readlane_b32 s43, v3, 7')
    for q in range(2):
        a('s_waitcnt lgkmcnt(%d)' % (2 - 2 * q))
        if SEP != 'all':
            for i in range(4): a('v_or_b32 %s, 1, %s' % (v(GA + 4 * q + i), v(GA + 4 * q + i)))
        a(('buffer_store_dwordx4 %s, v194, ' + WSRD + ', s36 offen offset:%d sc1' + WNT) % (v(GA + 4 * q, 4), 128 * q))
    d0 = piece_sum(a, 3, GA, 0); d1 = piece_sum(a, 4, GA + 4, 0)
    a('s_add_u32 s36, s36, 8192')
    a(d0[0]); a(d1[0])
    a('v_cndmask_b32 v3, v3, v4, s[58:59]'); a('v_add_u32 v196, s43, v3')
    quad_gather(a, 196, 2)
    a('s_mov_b32 exec_lo, 0x03030303'); a('s_mov_b32 exec_hi, 0x03030303')
    a('buffer_store_dwordx4 v[196:199], v193, ' + WSRD + ', s36 offen sc1' + WNT)
    a('s_mov_b64 exec, -1')
    a('s_cmp_lg_u32 s16, 0'); a('s_cbranch_scc1 fk_nog5')
    a('v_and_b32 v9, 16, v14'); a('v_add_u32 v9, %d, v9' % LG5S)
    a('ds_read_b128 v[16:19], v9')
    a('s_lshl_b32 s13, s3, 4'); a('s_add_u32 s13, s13, 0x%x' % G5)
    a.label('fk_g5s')
    a('ds_read_b32 v3, v205'); a('s_waitcnt lgkmcnt(0)'); a('v_cmp_eq_u32 vcc, 0, v3')
    a('s_and_b32 s14, vcc_lo, 64'); a('s_cbranch_scc1 fk_g5s')
    for i in range(4): a('v_min_u32 %s, -2, %s' % (v(16 + i), v(16 + i)))
    a('s_mov_b64 exec, 1')
    a('buffer_store_dwordx4 v[16:19], v14, s[24:27], s13 offen sc1')
    a('s_mov_b64 exec, -1')
    a.label('fk_nog5')
    unit_setup(a)
    a('s_mov_b64 s[4:5], s[58:59]')
    window(a, UA, KA, 16, 0)
    if NF:
        spf_base(a, 21, L2, NF, 16)
        for i in range(NF): a(spf(21, i))
    a('s_mov_b32 s42, 0')
    a('s_waitcnt vmcnt(0)')
    if NB: a('v_mov_b32 v3, %d' % (LSIG + 60)); a('ds_write_b32 v3, v202')
    stamp(a, 5)
    if SLW: a('s_sleep %d' % SLW)
    a.label('fk_pollw')
    a(('buffer_load_dwordx4 %s, v12, ' + WSRD + ', s37 offen sc1') % v(GA, 4))
    a(('buffer_load_dwordx4 %s, v12, ' + WSRD + ', s38 offen sc1') % v(GA + 4, 4))
    a('buffer_load_dword v5, v192, ' + WSRD + ', s23 offen sc1')
    a('s_waitcnt vmcnt(1)')
    d0 = piece_sum(a, 3, GA, 0); d1 = piece_sum(a, 4, GA + 4, 0)
    a('ds_write_b128 v7, %s' % v(GA, 4))
    a(d0[0]); a(d1[0])
    a('ds_write_b128 v7, %s offset:1024' % v(GA + 4, 4))
    a('v_cndmask_b32 v3, v3, v4, s[4:5]'); a('v_add_u32 v3, s43, v3')
    a('s_waitcnt vmcnt(0)')
    a('v_cmp_ne_u32 vcc, v3, v5')
    poll_tail(a, 42, 'fk_pollw', 'fk_gotw')
    stamp(a, 6)
    a('s_waitcnt lgkmcnt(0)')
    a('s_barrier')
    a('s_setprio 0')
    stamp(a, 7)
    a('s_or_b32 s13, s3, s16'); a('s_cbranch_scc1 fk_nobump')
    a('v_mov_b32 v3, s43'); a('s_mov_b64 exec, 1')
    a('buffer_store_dword v3, v14, s[24:27], 0 offen sc1')
    a('s_mov_b64 exec, -1')
    a.label('fk_nobump')
    a('s_lshl_b32 s13, s16, 10'); a('s_add_u32 s14, s13, 0x%x' % G5); a('s_add_u32 s13, s13, %d' % LG5)
    a('v_add_u32 v7, s13, v14'); a('v_mov_b32 v3, 4096'); a('s_mov_b32 s15, 0x%x' % G5); a('v_mov_b32 v8, %d' % LG5E)
    a('buffer_load_dwordx4 %s, v14, s[24:27], s14 offen sc1' % v(GA, 4))
    a('buffer_load_dword %s, v3, s[24:27], s15 offen sc1' % v(GA + 4))
    a('s_mov_b32 s40, s14'); a('s_mov_b32 s41, s15')
    window(a, UB, KB, 16, 0, PB, remap=STATIC)
    a('s_mov_b32 s42, 0')
    a('s_cmp_gt_u32 s3, 223'); a('s_cbranch_scc1 fk_pollg')
    a('s_waitcnt vmcnt(%d)' % (min(KB, PB + 1) if UB + 4 * KB <= 96 else 0))
    a('s_branch fk_chkg')
    a.label('fk_pollg')
    a('buffer_load_dwordx4 %s, v14, s[24:27], s40 offen sc1' % v(GA, 4))
    a('buffer_load_dword %s, v3, s[24:27], s41 offen sc1' % v(GA + 4))
    a('s_waitcnt vmcnt(0)')
    a.label('fk_chkg')
    poll_check(a, list(range(GA, GA + 5)), 4, 42, 'fk_pollg', 'fk_gotg', wait=False)
    a('ds_write_b128 v7, %s' % v(GA, 4)); a('ds_write_b32 v8, %s' % v(GA + 4))
    stamp(a, 14, True)
    a('s_branch fk_common')
    a.label('fk_w4')
    for p in range(4): a('v_min_u32 %s, -2, %s' % (v(GA + p), v(Q16 + 2 * p)))
    a('v_min_u32 v8, -2, v8'); a('v_mov_b32 v4, 4096'); a('s_mov_b32 s14, 0x%x' % RB); a('s_mov_b32 s15, 0x%x' % G5)
    a.label('fk_w4s')
    a('ds_read_b32 v3, v205'); a('s_waitcnt lgkmcnt(0)'); a('v_cmp_eq_u32 vcc, 0, v3')
    a('s_and_b32 s13, vcc_lo, 32'); a('s_cbranch_scc1 fk_w4s')
    a('buffer_store_dwordx4 %s, v14, s[24:27], s14 offen sc1' % v(GA, 4))
    a('s_mov_b64 exec, 0x10000')
    a('buffer_store_dword v8, v4, s[24:27], s15 offen sc1')
    a('s_mov_b64 exec, -1')
    a('s_branch fk_Hconst')
    a.label('fk_H')
    A, B1, TC, TS, C2, S2, V, D1, D2, T16, AD, CS = 16, 48, 80, 96, 112, 120, 128, 144, 160, 176, 184, 192
    a('s_barrier')
    if BASE: a('s_waitcnt lgkmcnt(0)'); rebase(a)
    a('s_cmp_lg_u32 s16, 7'); a('s_cbranch_scc1 fk_Hconst')
    for i in range(4): a('v_mov_b32 %s, -1' % v(4 + i))
    a('v_mov_b32 v3, %d' % LKEY); a('v_mov_b32 v8, 0'); a('ds_write_b32 v3, v8')
    a('v_lshlrev_b32 v3, 12, v15'); a('s_lshl_b32 s13, s3, 4'); a('s_add_u32 s14, s13, 0x%x' % KEYS); a('s_add_u32 s15, s13, 0x%x' % G5)
    a('v_mov_b32 v201, %d' % (LSIG + 20)); a('v_mov_b32 v204, 1')
    a('s_waitcnt lgkmcnt(0)')
    stamp(a, 1)
    a('s_load_dword s56, s[24:25], 0')
    if '--wwarm' in OPT:
        a('s_mul_i32 s36, s3, %d' % OS); a('s_add_u32 s36, s36, 0x%x' % WOFF); a('s_add_u32 s37, s36, 4096'); a('s_add_u32 s40, s36, 8192')
        for i in range(9): a('buffer_store_dwordx4 v[4:7], v14, s[24:27], %s offen offset:%d sc1' % (s((36, 37, 40)[i >> 2]), 1024 * (i & 3)))
    a('s_mov_b64 exec, 0xff')
    a('buffer_store_dwordx4 v[4:7], v3, s[24:27], s14 offen sc1')
    a('s_cmp_eq_u32 s3, 255'); a('s_cselect_b32 exec_lo, 3, 1')
    a('buffer_store_dwordx4 v[4:7], v14, s[24:27], s15 offen sc1')
    a('s_mov_b64 exec, -1')
    for i in range(2):
        a('s_mov_b32 m0, %d' % (LWR + 1024 * i)); a('s_mov_b32 s12, %d' % (1024 * i))
        a('buffer_load_dwordx4 v14, s[32:35], s12 offen lds')
    a('s_cmp_eq_u32 s3, 255'); a('s_cselect_b32 s12, 0x%x, s26' % RB)
    a('buffer_store_dwordx4 v[4:7], v14, s[24:27], s12 offen sc1')
    a('s_cmp_lg_u32 s3, 248'); a('s_cbranch_scc1 fk_no1024')
    for i in range(2):
        a('s_mov_b32 m0, %d' % (LX1024 + 1024 * i)); a('s_mov_b32 s14, %d' % (1024 * 2048 + 1024 * i))
        a('buffer_load_dwordx4 v14, s[8:11], s14 offen lds')
    a.label('fk_no1024')
    a('s_mul_i32 s38, s3, %d' % YS); a('s_add_u32 s38, s38, 0x%x' % YOFF); a('s_add_u32 s39, s38, 4096')
    if YD:
        a('s_waitcnt vmcnt(0) lgkmcnt(0)')
        a('s_add_u32 s57, s56, 1'); a('v_mov_b32 v202, s57'); a('ds_write_b32 v201, v202 offset:8'); a('ds_write_b32 v201, v204')
        if YD > 1: a('s_sleep %d' % YD)
    for i in range(8): a('buffer_store_dwordx4 v[4:7], v14, s[24:27], %s offen offset:%d sc1%s' % (s(38 + (i >> 2)), 1024 * (i & 3), CNT))
    if SEP:
        a('s_mul_i32 s38, s3, %d' % OS); a('s_add_u32 s38, s38, 0x%x' % COFF); a('s_add_u32 s39, s38, 4096')
        for i in (range(6) if SEP == 'all' else (4, 5)): a('buffer_store_dwordx4 v[4:7], v14, s[24:27], %s offen offset:%d sc1' % (s(38 + (i >> 2)), 1024 * (i & 3)))
    a('s_waitcnt lgkmcnt(0)')
    a('s_add_u32 s56, s56, 1'); a('v_mov_b32 v202, s56')
    a('ds_write_b32 v201, v202 offset:8')
    if SPLIT:
        a('s_waitcnt vmcnt(%d)' % (8 + {'': 0, 'p': 2, 'all': 6}[SEP]))
        a('ds_write_b32 v201, v204')
        a('s_waitcnt vmcnt(0)')
        a('ds_write_b32 v201, v204 offset:4')
    else:
        a('s_waitcnt vmcnt(0)')
        a('ds_write_b32 v201, v204'); a('ds_write_b32 v201, v204 offset:4')
    stamp(a, 2)
    a.label('fk_Hconst')
    a('s_sub_u32 s20, s16, 4')
    unit_setup(a)
    a('s_and_b32 s12, s20, 1'); a('s_lshl_b32 s12, s12, 6'); a('v_xor_b32 v206, s12, v208'); a('v_xor_b32 v207, 64, v206')
    a('s_mov_b32 s6, 0x700000'); a('s_mov_b32 s7, 0x00020000')
    a('s_cmp_gt_u32 s3, 223'); a('s_cselect_b32 s36, 3, s20')
    a('s_waitcnt lgkmcnt(0)')
    PACE = int(optval('pace', '99')); GAP = int(optval('gap', '8')); FIRST = int(optval('first', '4')); DELAY = int(optval('delay', '80'))
    def gu(n):
        g = ['s_cmp_eq_u32 s36, 3', 's_cbranch_scc1 fk_gu%d' % n, 's_add_u32 s37, s20, %d' % (3 * n),
             's_lshl_b32 s12, s37, 10', 's_mov_b32 m0, s12']
        va = 'v207' if n & 1 else 'v206'
        if n < 21:
            g += ['s_cmp_lt_u32 s37, 32', 's_cselect_b64 s[4:5], s[44:45], s[48:49]',
                  's_and_b32 s37, s37, 31', 's_mul_i32 s37, s37, %d' % (8 * 7168), 's_add_u32 s37, s37, s100']
            assert not MIX or 3 * n + 2 < 16
        elif n == 21:
            g += ['s_cmp_eq_u32 s20, 0', 's_cselect_b64 s[4:5], s[48:49], s[52:53]', 's_cselect_b64 s[8:9], -1, 0',
                  's_lshl_b32 s12, s20, 12', 's_add_u32 s12, s12, s101', 's_sub_u32 s12, s12, 4096', 's_add_u32 s37, s100, %d' % (31 * 8 * 7168),
                  's_cmp_eq_u32 s20, 0', 's_cselect_b32 s37, s37, s12', 'v_cndmask_b32 v209, v210, v207, s[8:9]']
            va = 'v209'
        else:
            g += ['s_mov_b64 s[4:5], s[52:53]', 's_sub_u32 s37, s37, 64', 's_lshl_b32 s37, s37, 12', 's_add_u32 s37, s37, s101']
            va = 'v210'
        if n >= PACE: g.append('s_waitcnt vmcnt(%d)' % PACE)
        g.append('buffer_load_dwordx4 %s, s[4:7], s37 offen%s lds' % (va, DMAF))
        g.append('@fk_gu%d' % n)
        return g
    assert NH <= 32
    trig = []
    if XT: trig = ['v_mov_b32 v211, %d' % (LSIG + 64), '@fk_xt', 's_sleep 1', 'ds_read_b32 v212, v211', 's_waitcnt lgkmcnt(0)', 'v_readfirstlane_b32 s12, v212', 's_nop 1', 's_cmp_eq_u32 s12, 0', 's_cbranch_scc1 fk_xt']
    groups = [trig + sum([gu(n) for n in range(min(FIRST, NH))], [])] + [gu(n) for n in range(FIRST, NH)]
    if N1:
        spf_base(a, 21, 0, N1, 20)
        a('s_cmp_eq_u32 s16, 7'); a('s_cselect_b32 s21, 0x700000, s21')
        groups += [[spf(21, i)] for i in range(N1)]
    a.inject(groups, GAP); a.cnt = GAP - DELAY
    a('v_lshrrev_b32 v4, 1, v1')
    a('v_and_b32 v5, 1, v4'); a('v_lshrrev_b32 v6, 2, v4'); a('v_lshl_add_u32 v5, v6, 1, v5')
    a('v_and_b32 v6, 2, v4'); a('v_lshl_add_u32 v5, v6, 2, v5')
    a('s_and_b32 s13, s20, 1'); a('s_mul_i32 s13, s13, 15'); a('v_xor_b32 v5, s13, v5')
    a('s_lshl_b32 s13, s20, 4'); a('v_add_u32 v5, s13, v5')
    a('v_cvt_f32_u32 v5, v5')
    a('v_and_b32 v9, 1, v1')
    a('v_lshlrev_b32 v7, 2, v2'); a('v_cvt_f32_u32 v7, v7')
    a('v_cvt_f32_u32 v10, v9')
    a('v_mul_f32 v8, %s, v5' % fh(1.0 / 64))
    a('v_mul_f32 v10, %s, v10' % fh(0.25))
    a('v_fma_f32 v10, v8, v7, v10')
    T = V
    for half in range(2):
        ks = [8 * kap + u for kap in range(4 * half, 4 * half + 4) for u in range(4)]
        angles(a, 8, 10, ks, T)
        for i in range(16): a('v_cos_f32 %s, %s' % (v(T + 16 + i), v(T + i)))
        for i in range(16): a('v_sin_f32 %s, %s' % (v(T + 32 + i), v(T + i)))
        for i in range(16): a('v_cvt_pk_f16_f32 %s, %s, %s' % (v(B1 + 16 * half + i), v(T + 16 + i), v(T + 32 + i)))
    a('v_lshlrev_b32 v11, 31, v9')
    a('v_mul_f32 v10, %s, v5' % fh(1.0 / 2048)); a('v_xor_b32 v10, v11, v10'); a('v_mul_f32 v11, v10, v7')
    angles(a, 10, 11, [kr(r) for r in range(16)], T)
    for r in range(16): a('v_cos_f32 %s, %s' % (v(TC + r), v(T + r)))
    for r in range(16): a('v_sin_f32 %s, %s' % (v(TS + r), v(T + r)))
    a('v_sub_u32 v4, 31, v1'); a('v_subrev_u32 v5, 1, v1')
    a('v_cmp_lt_u32 vcc, 16, v1')
    a('v_cndmask_b32 v4, v5, v4, vcc'); a('v_and_b32 v4, 15, v4')
    a('v_lshlrev_b32 v4, 5, v4'); a('v_add_u32 v4, %d, v4' % LA2)
    a('v_lshlrev_b32 v5, 9, v2')
    a('v_add_u32 v6, v4, v5')
    a('v_sub_u32 v7, v4, v5'); a('v_add_u32 v7, %d, v7' % (15 * 512 + 16))
    a('v_cmp_eq_u32 s[38:39], 0, v1')
    a('v_mov_b32 v8, 4096')
    a('v_cndmask_b32 v8, 0, v8, s[38:39]')
    a('v_add_u32 v6, v6, v8'); a('v_add_u32 v7, v7, v8')
    a('v_and_b32 v8, 15, v1'); a('v_cmp_eq_u32 s[38:39], 0, v8')
    a('s_or_b64 s[40:41], s[38:39], vcc')
    for k in range(8):
        a('v_add_u32 %s, %d, v6' % (v(AD + k), 1024 * k)); a('v_subrev_u32 v8, %d, v7' % (1024 * k))
        a('v_cndmask_b32 %s, %s, v8, %s' % (v(AD + k), v(AD + k), 'vcc' if k < 4 else 's[40:41]'))
    for k in range(4, 8): a('v_add_u32 %s, 512, %s' % (v(212 + k - 4), v(AD + k)))
    a('v_subrev_u32 v8, 4096, v212'); a('v_cmp_eq_u32 vcc, 0, v2'); a('v_cndmask_b32 v212, v212, v8, vcc')
    def posD(d, x, t):
        a('v_and_b32 %s, 3, %s' % (v(t), v(x))); a('v_lshlrev_b32 %s, 2, %s' % (v(t), v(t))); a('v_lshlrev_b32 %s, 3, %s' % (v(d), v(x))); a('v_sub_u32 %s, %s, %s' % (v(d), v(d), v(t)))
    def posM(d, x, t):
        a('v_and_b32 %s, 3, %s' % (v(t), v(x))); a('v_mul_u32_u24 %s, 12, %s' % (v(t), v(t))); a('v_lshlrev_b32 %s, 3, %s' % (v(d), v(x))); a('v_sub_u32 %s, %s, %s' % (v(d), v(d), v(t))); a('v_add_u32 %s, 28, %s' % (v(d), v(d)))
    a('s_lshr_b32 s13, s20, 1'); a('v_lshl_add_u32 v3, v1, 1, s13')
    a('s_and_b32 s13, s20, 1'); a('s_sub_u32 s14, 64, s13')
    posD(4, 3, 8)
    a('v_sub_u32 v5, 63, v3'); posM(6, 5, 8)
    a('v_sub_u32 v5, s14, v3'); posM(7, 5, 8)
    a('v_cmp_gt_u32 vcc, 32, v3'); a('v_cndmask_b32 v7, v7, v4, vcc')
    a('v_cmp_eq_u32 vcc, 32, v5'); a('v_cndmask_b32 v7, v7, 28, vcc')
    a('s_cmp_eq_u32 s13, 0'); a('s_cselect_b32 s14, 256, 0'); a('s_cselect_b32 s15, 576, 0')
    a('s_cselect_b64 s[38:39], -1, 0')
    a('s_add_u32 s14, s14, %d' % (240 * 32)); a('s_sub_u32 s15, %d, s15' % LWS)
    a('v_cmp_gt_u32 vcc, 32, v3'); a('v_cndmask_b32 v7, v7, v4, vcc')
    a('v_add_u32 v7, s14, v7')
    a('v_cndmask_b32 v4, v6, v4, s[38:39]'); a('v_lshl_add_u32 v4, v2, 12, v4')
    for r in (4, 7): a('v_lshrrev_b32 v8, 7, %s' % v(r)); a('v_lshl_add_u32 %s, v8, 4, %s' % (v(r), v(r)))
    a('v_add_u32 v11, s15, v4'); a('v_add_u32 v7, %d, v7' % LWS)
    a('v_add_u32 v12, %d, v11' % (7 * 576))
    a('v_cmp_eq_u32 vcc, s13, v2')
    a('s_and_b64 s[40:41], vcc, s[38:39]'); a('s_andn2_b64 s[38:39], vcc, s[38:39]')
    a('v_cndmask_b32 v10, v11, v7, s[40:41]'); a('v_cndmask_b32 v12, v12, v7, s[38:39]')
    a('s_lshl_b32 s23, s20, 5'); a('s_add_u32 s23, s23, s18')
    def y5cos():
        a('v_and_b32 v3, 15, v15'); a('v_lshrrev_b32 v4, 4, v15'); a('v_lshl_add_u32 v3, v3, 7, v4'); a('v_add_u32 v3, 1, v3')
        a('v_cmp_le_u32 vcc, 56, v15'); a('v_mov_b32 v4, %d' % (2048 - 1040)); a('v_cndmask_b32 v4, 0, v4, vcc'); a('v_add_u32 v4, v3, v4')
        for r in (3, 4):
            a('v_mul_u32_u24 %s, s23, %s' % (v(r), v(r))); a('v_and_b32 %s, 2047, %s' % (v(r), v(r)))
            a('v_cvt_f32_u32 %s, %s' % (v(r), v(r))); a('v_mul_f32 %s, %s, %s' % (v(r), fh(1.0 / 2048), v(r)))
        a('v_cvt_f32_u32 v5, s23'); a('v_mul_f32 v5, %s, v5' % fh(1.0 / 2048))
        angles(a, 5, 3, [32 * w + 4 * q for q in range(3) for w in range(4)], CS)
        angles(a, 5, 4, [32 * w + 12 for w in range(4)], CS + 12)
        for i in range(16): a('v_cos_f32 %s, %s' % (v(CS + i), v(CS + i)))
    a.inject_flush()
    stamp(a, 5)
    y5cos()
    a('v_add_u32 v9, %d, v14' % LROW); a('v_mov_b32 v3, %d' % (LSIG + 40))
    if NB:
        a('s_cmp_eq_u32 s36, 3'); a('s_cbranch_scc1 fk_spx')
        spf_base(a, 21, L1, 14 * NB, 20)
        for b in range(NB):
            a('ds_read_b32 v4, v3 offset:20'); a('s_waitcnt lgkmcnt(0)'); a('v_readfirstlane_b32 s13, v4')
            a('s_cmp_lg_u32 s13, 0'); a('s_cbranch_scc1 fk_spx')
            for i in range(14): a(spf(21, 14 * b + i))
        a.label('fk_spx')
    a.label('fk_c2s')
    a('ds_read_b32 v4, v3'); a('s_waitcnt lgkmcnt(0)'); a('v_readfirstlane_b32 s13, v4')
    a('s_cmp_eq_u32 s13, 0'); a('s_cbranch_scc1 fk_c2s')
    for q in range(4): a('ds_read_b128 %s, v9 offset:%d' % (v(C2 + 4 * q, 4), 1024 * (12 + q)))
    a('s_setprio 2')
    a('s_waitcnt lgkmcnt(0)')
    stamp(a, 6)
    a('s_barrier')
    stamp(a, 7)
    for k in range(8): a('ds_read_b128 %s, %s' % (v(A + 4 * k, 4), v(AD + k)))
    a('s_mov_b32 exec_lo, 1'); a('s_mov_b32 exec_hi, 1')
    for k in range(4, 8): a('ds_read_b32 %s, %s' % (v(A + 4 * k), v(212 + k - 4)))
    a('s_mov_b64 exec, -1')
    for k in range(8):
        a('s_waitcnt lgkmcnt(%d)' % (11 - k if k < 4 else 7 - k))
        a('v_mfma_f32_32x32x16_f16 %s, %s, %s, %s' % (v(V, 16), v(A + 4 * k, 4), v(B1 + 4 * k, 4), '0' if k == 0 else v(V, 16)))
    W = A
    for r in range(8): a('v_pk_mul_f32 %s, %s, %s' % (v(W + 2 * r, 2), v(V + 2 * r, 2), v(TC + 2 * r, 2)))
    for r in range(8): a('v_fmac_f32_dpp %s, %s, %s quad_perm:[1,0,3,2] %s' % (v(W + r), v(V + r), v(TS + r), DPPF))
    for p in range(4): a('v_cvt_pk_f16_f32 %s, %s, %s' % (v(T16 + p), v(W + 2 * p), v(W + 2 * p + 1)))
    rest = ['v_fmac_f32_dpp %s, %s, %s quad_perm:[1,0,3,2] %s' % (v(W + r), v(V + r), v(TS + r), DPPF) for r in range(8, 16)]
    rest += ['v_cvt_pk_f16_f32 %s, %s, %s' % (v(T16 + p), v(W + 2 * p), v(W + 2 * p + 1)) for p in range(4, 8)]
    for x in rest[0:2]: a(x)
    a('v_mfma_f32_32x32x16_f16 %s, %s, %s, 0' % (v(D1, 16), v(T16, 4), v(C2, 4)))
    for x in rest[2:7]: a(x)
    a('v_mfma_f32_32x32x16_f16 %s, %s, %s, 0' % (v(D2, 16), v(T16, 4), v(S2, 4)))
    for x in rest[7:]: a(x)
    for (Dd, B) in ((D1, C2), (D2, S2)):
        a('v_mfma_f32_32x32x16_f16 %s, %s, %s, %s' % (v(Dd, 16), v(T16 + 4, 4), v(B + 4, 4), v(Dd, 16)))
    for u in range(8):
        a('v_pk_add_f32 %s, %s, %s op_sel:[0,1] op_sel_hi:[1,0] neg_hi:[0,1]' % (v(A + 2 * u, 2), v(D1 + 2 * u, 2), v(D2 + 2 * u, 2)))
    for u in range(8):
        a('v_cvt_pk_f16_f32 %s, %s, %s' % (v(B1 + u), v(A + 2 * u), v(A + 2 * u + 1)))
        if u == 0: a('ds_write_b32 v10, %s' % v(B1))
        elif u == 7: a('ds_write_b32 v12, %s' % v(B1 + 7))
        else: a('ds_write_b32 v11, %s offset:%d' % (v(B1 + u), 576 * u))
    stamp(a, 14, True)
    a.label('fk_common')
    a('v_lshlrev_b32 v4, 4, v0'); a('v_lshrrev_b32 v5, 3, v0'); a('v_lshl_add_u32 v5, v5, 4, v4'); a('v_add_u32 v5, %d, v5' % LWS)
    a('s_mul_i32 s17, s3, %d' % YS); a('s_add_u32 s17, s17, 0x%x' % YOFF)
    a('s_waitcnt lgkmcnt(0)'); a('s_barrier')
    stamp(a, 8)
    a('s_setprio 0')
    a('ds_read_b128 v[16:19], v5')
    XR, WP, YR, H, HN, HP, TMP, OUT = 20, 28, 36, 48, 64, 80, 96, 112
    a('s_sub_u32 s13, 7, s16'); a('s_cmp_lt_u32 s16, 4'); a('s_cselect_b32 s13, s16, s13'); a('s_cselect_b32 s14, 0, 2048')
    a('s_lshl_b32 s21, s13, 5'); a('s_add_u32 s21, s21, s18'); a('s_sub_u32 s22, 2048, s21'); a('s_and_b32 s22, s22, 2047')
    a('s_cmp_lt_u32 s16, 4'); a('s_cselect_b32 s21, s21, s22')
    a('s_lshl_b32 s13, s13, 12'); a('s_add_u32 s13, s13, s14'); a('s_add_u32 s13, s13, %d' % LX)
    a('s_lshl_b32 s14, s3, 3'); a('s_add_u32 s19, s14, s16')
    a('s_cmp_eq_u32 s19, %d' % (248 * 8 + 7)); a('s_cselect_b32 s21, 1024, s21'); a('s_cselect_b32 s13, %d, s13' % LX1024)
    a('s_lshl_b32 s22, s21, 11')
    a('v_add_u32 v6, s13, v14'); a('v_add_u32 v7, %d, v14' % LWR)
    a('s_waitcnt lgkmcnt(0)')
    for i in range(4): a('v_min_u32 %s, -2, %s' % (v(16 + i), v(16 + i)))
    a('buffer_store_dwordx4 v[16:19], v4, s[24:27], s17 offen sc1')
    a('ds_read_b128 %s, v6' % v(XR, 4)); a('ds_read_b128 %s, v6 offset:1024' % v(XR + 4, 4))
    a('ds_read_b128 %s, v7' % v(WP, 4)); a('ds_read_b128 %s, v7 offset:1024' % v(WP + 4, 4))
    a('s_cmp_lt_u32 s16, 4'); a('s_cbranch_scc1 fk_noy5')
    window(a, UE, KE, 16, 4, PE)
    G5R = 128
    a('v_add_u32 v3, %d, v14' % LG5); a('v_mov_b32 v4, %d' % LG5E)
    for q in range(4): a('ds_read_b128 %s, v3 offset:%d' % (v(G5R + 4 * q, 4), 1024 * q))
    a('ds_read_b32 v9, v4')
    a('s_lshl_b32 s38, s20, 2'); a('s_sub_u32 s39, 28, s38')
    a('s_waitcnt lgkmcnt(0)')
    a.label('fk_y5')
    for kk in range(2): a('v_pk_mul_f32 %s, %s, %s' % (v(144 + 2 * kk, 2), v(G5R + 2 * kk, 2), v(CS + 2 * kk, 2)))
    for kk in range(2, 8): a('v_pk_fma_f32 %s, %s, %s, %s' % (v(144 + 2 * (kk & 1), 2), v(G5R + 2 * kk, 2), v(CS + 2 * kk, 2), v(144 + 2 * (kk & 1), 2)))
    a('v_pk_add_f32 v[144:145], v[144:145], v[146:147]')
    a('v_add_f32 v144, v144, v145')
    a('s_lshl_b32 s13, s23, 31'); a('v_xor_b32 v12, s13, v9')
    wave_reduce(a, [144])
    a('v_add_f32 v144, v144, v12'); a('v_add_f32 v144, v144, v144'); a('v_cvt_f16_f32 v144, v144')
    a('s_add_u32 s13, s38, %d' % LY5); a('s_add_u32 s14, s39, %d' % LY5)
    a('v_mov_b32 v10, s13'); a('v_mov_b32 v11, s14')
    a('s_mov_b32 exec_lo, 0'); a('s_mov_b32 exec_hi, 0x80000000')
    a('ds_write_b32 v10, v144'); a('ds_write_b32 v11, v144')
    a('s_mov_b64 exec, -1')
    a('s_cmp_lg_u32 s23, 0'); a('s_cbranch_scc1 fk_noy5')
    a('s_mov_b32 s23, 1024'); a('s_mov_b32 s38, 28')
    y5cos()
    a('s_branch fk_y5')
    a.label('fk_noy5')
    a('v_lshrrev_b32 v1, 1, v0'); a('v_and_b32 v45, 1, v0')
    a('v_lshrrev_b32 v2, 4, v1'); a('v_and_b32 v3, 15, v1')
    a('v_cmp_gt_u32 vcc, 8, v3')
    a('v_sub_u32 v6, 16, v3'); a('v_and_b32 v6, 7, v6'); a('v_sub_u32 v5, 31, v2')
    a('v_cndmask_b32 v6, v6, v3, vcc'); a('v_cndmask_b32 v5, v5, v2, vcc')
    a('v_lshl_add_u32 v4, v6, 5, v5'); a('v_and_b32 v12, 63, v4'); a('v_lshrrev_b32 v13, 6, v4'); a('v_lshlrev_b32 v13, 2, v13'); a('v_lshl_add_u32 v12, v12, 4, v13')
    a('s_mov_b32 s23, 0x%x' % RB); a('s_mov_b32 s42, 0')
    a('buffer_load_dword v47, v12, s[24:27], s23 offen sc1')
    a('v_mul_u32_u24 v4, %d, v4' % YS); a('v_lshl_add_u32 v4, v45, 4, v4')
    a('s_lshl_b32 s17, s3, 5'); a('s_add_u32 s17, s17, 0x%x' % YOFF)
    a('v_cndmask_b32 v6, -1, 1, vcc')
    a('v_cmp_eq_u32 vcc, 8, v3')
    a('v_mul_u32_u24 v46, %d, v45' % (4 * RS)); a('v_add_u32 v46, %d, v46' % LROW)
    a('v_cndmask_b32 v6, v6, 15, vcc')
    a('v_lshlrev_b32 v9, 2, v1'); a('v_lshl_add_u32 v10, v6, 1, v9')
    a('v_add_u32 v9, v46, v9'); a('v_add_u32 v10, v46, v10')
    a('s_mul_i32 s36, s16, %d' % RS); a('s_add_u32 s36, s36, %d' % LROW); a('v_add_u32 v5, s36, v14')
    a('s_sub_u32 s36, 7, s16'); a('s_cmp_eq_u32 s21, 0'); a('s_cselect_b32 s36, 0, s36'); a('s_cmp_eq_u32 s21, 1024'); a('s_cselect_b32 s36, 7, s36')
    a('s_mul_i32 s36, s36, %d' % RS); a('s_add_u32 s36, s36, %d' % (LROW + 1008)); a('v_sub_u32 v11, s36, v14')
    a('s_lshl_b32 s36, s16, 2'); a('s_add_u32 s36, s36, %d' % LY5); a('v_mov_b32 v6, s36')
    a('s_mov_b32 s36, 0xffff0000'); a('s_mov_b32 s37, 0x3f803f80'); a('s_mov_b32 s38, %s' % fh(64.0))
    a('s_waitcnt lgkmcnt(0)')
    for k in range(8):
        a('v_lshlrev_b32 %s, 16, %s' % (v(H + 2 * k), v(XR + k))); a('v_and_b32 %s, s36, %s' % (v(H + 2 * k + 1), v(XR + k)))
    a('v_mov_b32 v44, 0')
    for k in range(8): a('v_dot2c_f32_bf16 v44, s37, %s' % v(WP + k))
    wave_reduce(a, [44])
    a('v_readlane_b32 s39, v44, 63')
    if NE:
        spf_base(a, 57, L3, NE, 16)
        for i in range(NE): a(spf(57, i))
    a('s_and_b32 s13, s18, 1'); a('s_mul_i32 s40, s13, 0x80008000')
    a('s_branch fk_chkr1')
    a.label('fk_pollr1')
    a('buffer_load_dword v47, v12, s[24:27], s23 offen sc1')
    a.label('fk_chkr1')
    poll_check(a, [47], 46, 42, 'fk_pollr1', 'fk_gotr1')
    a('v_xor_b32 v47, s40, v47')
    a('s_mov_b32 s42, 0')
    stamp(a, 9)
    if SLY: a('s_sleep %d' % SLY)
    def scatter():
        for u in range(4):
            a('ds_write_b16 v9, %s offset:%d' % (v(YR + u), u * RS))
            a('ds_write_b16_d16_hi v10, %s offset:%d' % (v(YR + u), u * RS))
    a.label('fk_polly')
    a('buffer_load_dwordx4 %s, v4, s[24:27], s17 offen sc1' % v(YR, 4))
    poll_check(a, list(range(YR, YR + 4)), 46, 42, 'fk_polly', 'fk_goty')
    for u in range(4): a('v_pk_add_f16 %s, %s, v47' % (v(YR + u), v(YR + u)))
    scatter()
    stamp(a, 10)
    if CAFTER and STATIC: cissue = window_static(a, 1, 0, 4, 16, 'c')
    if not CAFTER:
        if STATIC: window_static(a, 1, 0, 4, 16, 'c')()
        else: window(a, UC, KC, 16, 0, PC)
    a('v_mov_b32 v2, 0'); a('v_mov_b32 v3, 0'); a('v_mov_b32 v4, 0'); a('v_mov_b32 v7, 0')
    a('v_mov_b32 v12, %d' % LKEY)
    a('s_waitcnt lgkmcnt(0)')
    a('s_barrier')
    stamp(a, 11)
    a('ds_read_b128 %s, v5' % v(YR, 4)); a('ds_read_b128 %s, v11' % v(YR + 4, 4)); a('ds_read_b32 v44, v6')
    if CAFTER:
        if STATIC: cissue()
        else: window(a, UC, KC, 16, 0, PC)
    def mix(e, r, hi):
        a('v_fma_mix_f32 %s, %s, s38, %s op_sel:[%d,0,0] op_sel_hi:[1,0,0]' % (v(H + e), v(r), v(H + e), hi))
    a('s_waitcnt lgkmcnt(2)')
    for k in range(4): mix(2 * k, YR + k, 0); mix(2 * k + 1, YR + k, 1)
    a('s_waitcnt lgkmcnt(0)')
    stamp(a, 15, True)
    a('v_readfirstlane_b32 s13, v44')
    a('v_mov_b32_dpp v8, %s wave_shr:1 row_mask:0xf bank_mask:0xf' % v(YR + 4))
    for j in (3, 2, 1, 0):
        mix(15 - 2 * j, YR + 4 + j, 1)
        if j: mix(16 - 2 * j, YR + 4 + j, 0)
        if j == 2: a('v_writelane_b32 v8, s13, 0')
    mix(8, 8, 0)
    for k in [0, 1, 2, 3, 5, 6, 7, 4]: a('v_cvt_pk_bf16_f32 %s, %s, %s' % (v(HP + k), v(H + 2 * k), v(H + 2 * k + 1)))
    for k in [0, 1, 2, 3, 5, 6, 7, 4]:
        a('v_dot2c_f32_bf16 v2, s37, %s' % v(HP + k)); a('v_dot2c_f32_bf16 v3, %s, %s' % (v(HP + k), v(HP + k)))
        a('v_dot2c_f32_bf16 v4, %s, %s' % (v(HP + k), v(WP + k)))
    reduce4(a, 2, 4, 3, 7)
    a('v_readlane_b32 s13, v2, 32')
    ln_chain(a, 2, 8, 9)
    a('v_mov_b32 v10, s13'); a('v_fma_f32 v10, -v8, s39, v10'); a('v_mul_f32 v10, v10, v9'); a('v_mul_f32 v8, v8, v9')
    a('v_readlane_b32 s43, v10, 16'); a('v_readlane_b32 s4, v9, 16'); a('v_readlane_b32 s6, v8, 16')
    a('s_ashr_i32 s13, s43, 31'); a('s_or_b32 s13, s13, 0x80000000'); a('s_xor_b32 s43, s43, s13')
    a('s_and_b32 s43, s43, 0xfffff800'); a('s_or_b32 s43, s43, s19'); a('s_min_u32 s43, s43, -2')
    a('v_mov_b32 v2, s43')
    a('s_mov_b64 exec, 1')
    a('ds_max_u32 v12, v2')
    a('s_mov_b64 exec, -1')
    stamp(a, 16, True)
    a('v_mov_b32 v10, s6'); a('v_add_f32 v8, 1.0, v9')
    a('v_lshlrev_b32 v4, 12, v15'); a('s_lshl_b32 s17, s3, 4'); a('s_add_u32 s17, s17, 0x%x' % KEYS)
    a('v_readlane_b32 s14, v8, 16')
    a('s_waitcnt lgkmcnt(0)')
    a('s_barrier')
    a('ds_read_b32 v3, v12')
    for k in range(8):
        a('v_lshlrev_b32 %s, 16, %s' % (v(H + 2 * k), v(HP + k))); a('v_and_b32 %s, s36, %s' % (v(H + 2 * k + 1), v(HP + k)))
    a('s_waitcnt lgkmcnt(0)')
    a('v_readfirstlane_b32 s13, v3')
    stamp(a, 12)
    stamp(a, 17, True)
    def out_regs():
        for k in range(8):
            a('v_pk_fma_f32 %s, %s, s[14:15], v[10:11] op_sel_hi:[1,0,0] neg_lo:[0,0,1] neg_hi:[0,0,1]' % (v(HN + 2 * k, 2), v(H + 2 * k, 2)))
        for k in range(8): a('v_cvt_pk_bf16_f32 %s, %s, %s' % (v(OUT + k), v(HN + 2 * k), v(HN + 2 * k + 1)))
    def out_store():
        a('buffer_store_dwordx4 %s, v14, s[28:31], s22 offen%s' % (v(OUT, 4), OUTF))
        a('buffer_store_dwordx4 %s, v14, s[28:31], s22 offen offset:1024%s' % (v(OUT + 4, 4), OUTF))
    AH, BF, BD, ACC, KEY, PP, D2R = 16, 128, 160, 176, 180, 184, 192
    def frag_preload():
        a('v_lshrrev_b32 v1, 4, v15'); a('v_bfe_u32 v2, v15, 2, 2')
        a('v_lshl_add_u32 v8, v1, 3, v2'); a('v_lshlrev_b32 v8, 7, v8')
        a('v_and_b32 v3, 2, v2'); a('v_xor_b32 v9, s16, v3'); a('v_and_b32 v3, 1, v1'); a('v_lshlrev_b32 v4, 2, v3'); a('v_xor_b32 v9, v4, v9')
        a('v_lshl_add_u32 v8, v9, 4, v8'); a('v_and_b32 v9, 1, v15'); a('v_lshl_add_u32 v8, v9, 3, v8')
        a('v_bfe_u32 v9, v15, 1, 1'); a('v_lshl_add_u32 v8, v9, 15, v8')
        a('v_lshrrev_b32 v7, 1, v1'); a('v_lshl_add_u32 v7, v7, 3, v2'); a('v_lshlrev_b32 v7, 9, v7'); a('v_lshl_add_u32 v7, v3, 5, v7')
        a('v_and_b32 v3, 3, v15'); a('v_lshl_add_u32 v7, v3, 3, v7'); a('s_lshl_b32 s15, s16, 6'); a('s_add_u32 s15, s15, %d' % LD); a('v_add_u32 v7, s15, v7')
        a('v_lshlrev_b32 v9, 4, v1'); a('v_add_u32 v9, %d, v9' % LHN)
    def landed_add():
        if LATE:
            a('v_mov_b32 v1, %d' % (LSIG + 48)); a('v_mov_b32 v2, 1'); a('s_mov_b64 exec, 1'); a('ds_add_u32 v1, v2'); a('s_mov_b64 exec, -1')
    def frag_reads(tag):
        if LATE:
            a.label('fk_land' + tag)
            a('ds_read_b32 v2, v1'); a('s_waitcnt lgkmcnt(0)'); a('v_readfirstlane_b32 s15, v2')
            a('s_cmp_lt_u32 s15, 8'); a('s_cbranch_scc1 fk_land' + tag)
        for k in range(8):
            a('ds_read_b64_tr_b16 %s, v8 offset:%d' % (v(BF + 4 * k, 2), 4096 * k))
            a('ds_read_b64_tr_b16 %s, v8 offset:%d' % (v(BF + 4 * k + 2, 2), 4096 * k + 512))
            if k == 5: a('s_waitcnt lgkmcnt(4)')
    a('s_cmp_lg_u32 s13, s43'); a('s_cbranch_scc1 fk_other')
    a('s_mov_b64 exec, 0xff')
    a('buffer_store_dword v2, v4, s[24:27], s17 offen sc1')
    a('s_mov_b64 exec, -1')
    for k in range(8):
        a('v_pk_fma_f32 %s, %s, s[4:5], v[10:11] op_sel_hi:[1,0,0] neg_lo:[0,0,1] neg_hi:[0,0,1]' % (v(HN + 2 * k, 2), v(H + 2 * k, 2)))
    for k in range(8): a('v_cvt_pk_bf16_f32 %s, %s, %s' % (v(TMP + k), v(HN + 2 * k), v(HN + 2 * k + 1)))
    for k in range(8): a('v_and_b32 %s, -2, %s' % (v(TMP + k), v(TMP + k)))
    a('s_mul_i32 s13, s3, %d' % OS); a('s_add_u32 s13, s13, 0x%x' % TC_)
    a('buffer_store_dwordx4 %s, v14, s[24:27], s13 offen sc1' % v(TMP, 4))
    a('buffer_store_dwordx4 %s, v14, s[24:27], s13 offen offset:1024 sc1' % v(TMP + 4, 4))
    for k in range(8): a('v_and_b32 %s, -2, %s' % (v(HP + k), v(HP + k)))
    a('buffer_store_dwordx4 %s, v14, s[24:27], s13 offen offset:2048 sc1' % v(HP, 4))
    a('buffer_store_dwordx4 %s, v14, s[24:27], s13 offen offset:3072 sc1' % v(HP + 4, 4))
    out_regs()
    frag_preload()
    if not LATE: frag_reads('a')
    a('s_and_b32 s13, s2, 7'); a('s_lshl_b32 s13, s13, 12'); a('s_add_u32 s13, s13, 0x%x' % KEYS)
    a('s_mov_b32 s42, 0')
    a('s_waitcnt vmcnt(4)')
    landed_add()
    if SLK: a('s_sleep %d' % SLK)
    a.label('fk_pollk')
    for i in range(4): a('buffer_load_dword %s, v14, s[24:27], s13 offen offset:%d sc1' % (v(KEY + i), 1024 * i))
    poll_check(a, list(range(KEY, KEY + 4)), 3, 42, 'fk_pollk', 'fk_gotk')
    stamp(a, 13)
    wave_reduce(a, [3], op='v_max_u32')
    a('v_readlane_b32 s40, v3, 63')
    a('v_mov_b32 v4, %d' % LWIN)
    a('s_bfe_u32 s13, s40, 0x80003'); a('s_mul_i32 s13, s13, %d' % OS); a('s_and_b32 s14, s3, 3'); a('s_lshl_b32 s14, s14, 9')
    a('s_add_u32 s13, s13, s14'); a('s_add_u32 s13, s13, 0x%x' % TC_)
    a('v_lshlrev_b32 v5, 3, v15'); a('v_mov_b32 v3, s40')
    a('s_cmp_gt_u32 s3, 223'); a('s_cbranch_scc1 fk_norow')
    a('s_mov_b32 s42, 0')
    if LATE:
        a('buffer_load_dwordx2 %s, v5, s[24:27], s13 offen sc1' % v(KEY, 2))
        if DAFTER: a('ds_write_b32 v1, v3 offset:8')
        frag_reads('a')
        a('s_branch fk_chkr')
    a.label('fk_pollr')
    a('buffer_load_dwordx2 %s, v5, s[24:27], s13 offen sc1' % v(KEY, 2))
    a.label('fk_chkr')
    phase_check(a, [KEY, KEY + 1], 6, 42, 'fk_pollr', 'fk_gotr')
    a('v_add_u32 v5, %d, v5' % LHN)
    a('ds_write_b64 v5, %s' % v(KEY, 2))
    a.label('fk_norow')
    if DAFTER: a('ds_write_b32 v1, v3 offset:8')
    a('ds_write_b32 v4, v3')
    a('s_waitcnt lgkmcnt(0)')
    a('s_barrier')
    a('s_cmp_eq_u32 s40, s43')
    if OUTAT == 'early':
        a('s_cbranch_scc1 fk_ffn')
        out_store()
    else: a('s_cselect_b32 s22, 0x400000, s22')
    a('s_branch fk_ffn')
    a.label('fk_other')
    out_regs()
    if OUTAT == 'early': out_store()
    a('s_and_b32 s13, s13, 7'); a('s_cmp_gt_u32 s16, s13'); a('s_cselect_b32 s13, 1, 0'); a('s_sub_u32 s17, s16, s13')
    if '--dfirst' in OPT:
        window_static(a, 2, 8, KD, 17, 'd')()
        frag_preload()
        a('s_cmp_gt_u32 s17, 5'); a('s_cbranch_scc0 fk_df4')
        a('s_waitcnt vmcnt(0)')
        a('@fk_df4')
        a('s_waitcnt vmcnt(4)')
        landed_add()
        frag_reads('b')
        a('s_waitcnt lgkmcnt(0)' if DLATE else 's_waitcnt vmcnt(0) lgkmcnt(0)')
    elif UD >= 64:
        if LATE: a('s_waitcnt vmcnt(0)')
        frag_preload()
        landed_add()
        if DAFTER:
            frag_reads('b')
            a.label('fk_daf')
            a('s_sleep 1')
            a('ds_read_b32 v2, v1 offset:8'); a('s_waitcnt lgkmcnt(0)'); a('v_readfirstlane_b32 s15, v2')
            a('s_cmp_eq_u32 s15, 0'); a('s_cbranch_scc1 fk_daf')
        if STATIC: window_static(a, 2, 8, KD, 17, 'd')()
        else: window(a, UD, KD, 17, 0, PD)
        if not DAFTER: frag_reads('b')
        a('s_waitcnt lgkmcnt(0)' if DLATE else 's_waitcnt vmcnt(0) lgkmcnt(0)')
    else:
        window(a, UD, KD, 17, 0, PD)
        frag_preload()
        a('s_waitcnt vmcnt(0)')
        landed_add()
        frag_reads('b')
        a('s_waitcnt lgkmcnt(0)')
    a('s_barrier')
    a.label('fk_ffn')
    stamp(a, 14)
    if OUTAT == 'bf': out_store()
    a('s_cmp_gt_u32 s3, 223'); a('s_cbranch_scc1 %s' % ('fk_lateout' if OUTAT in ('p1', 'end') else 'fk_fin'))
    for k in range(8): a('ds_read_b128 %s, v9 offset:%d' % (v(AH + 4 * k, 4), 64 * k))
    a('v_mov_b32 v3, %d' % LWIN); a('ds_read_b32 v12, v3')
    a('v_lshlrev_b32 v4, 3, v15')
    a('s_mul_i32 s41, s3, %d' % OS); a('s_lshl_b32 s14, s16, 6'); a('s_add_u32 s13, s41, s14'); a('s_add_u32 s13, s13, 0x%x' % (TP_ + OP1))
    for k in range(8):
        a('s_waitcnt lgkmcnt(%d)' % (8 - k))
        a('v_mfma_f32_16x16x32_bf16 %s, %s, %s, %s' % (v(ACC, 4), v(AH + 4 * k, 4), v(BF + 4 * k, 4), '0' if k == 0 else v(ACC, 4)))
    a('v_lshlrev_b32 v5, 3, v15'); a('v_lshlrev_b32 v6, 2, v15')
    a('v_lshrrev_b32 v9, 5, v15'); a('v_lshlrev_b32 v9, 4, v9'); a('v_add_u32 v9, %d, v9' % LACT)
    a('s_lshl_b32 s14, s16, 7'); a('s_add_u32 s41, s41, s14'); a('s_add_u32 s41, s41, 0x%x' % (TP_ + OP2))
    a('v_and_b32 %s, -2, %s' % (v(ACC), v(ACC)))
    a('v_mov_b32_dpp %s, %s row_shl:8 %s' % (v(ACC + 1), v(ACC), DPPF))
    a('v_mov_b32_dpp %s, %s row_shl:1 %s' % (v(ACC + 2), v(ACC), DPPF))
    a('v_mov_b32_dpp %s, %s row_shl:9 %s' % (v(ACC + 3), v(ACC), DPPF))
    a('s_mov_b64 exec, 0x55')
    a('buffer_store_dwordx4 %s, v4, s[24:27], s13 offen sc1' % v(ACC, 4))
    a('s_mov_b64 exec, -1')
    if OUTAT == 'p1': out_store()
    def bd_reads(tag, add=True):
        if DLATE:
            if add:
                a('s_waitcnt vmcnt(0)')
                a('s_mov_b64 exec, 1'); a('ds_add_u32 v1, v8'); a('s_mov_b64 exec, -1')
            a.label('fk_dl' + tag)
            a('ds_read_b32 v13, v1'); a('s_waitcnt lgkmcnt(0)'); a('v_readfirstlane_b32 s15, v13')
            a('s_cmp_lt_u32 s15, 8'); a('s_cbranch_scc1 fk_dl' + tag)
        for kk in range(4):
            a('ds_read_b64_tr_b16 %s, v7 offset:%d' % (v(BD + 4 * kk, 2), 8192 * kk))
            a('ds_read_b64_tr_b16 %s, v7 offset:%d' % (v(BD + 4 * kk + 2, 2), 8192 * kk + 2048))
    a('v_mov_b32 v1, %d' % (LSIG + 52)); a('v_mov_b32 v8, 1')
    if not DLATE: bd_reads('')
    a('s_cmp_eq_u32 s16, 7'); a('s_cbranch_scc1 fk_c1')
    a('s_cmp_lg_u32 s16, 0'); a('s_cbranch_scc1 %s' % ('fk_bd' if DLATE else 'fk_wait1'))
    a('s_and_b32 s13, s3, -4'); a('s_mul_i32 s13, s13, %d' % OS); a('s_add_u32 s36, s13, 0x%x' % (TP_ + OP1))
    for i in range(1, 4): a('s_add_u32 %s, s36, %d' % (s(36 + i), i * OS))
    if UX:
        a('s_and_b32 s13, s3, -4'); a('s_xor_b32 s13, s13, 4'); a('s_mul_i32 s13, s13, %d' % OS); a('s_add_u32 s56, s13, 0x%x' % (TP_ + OP1 + 4))
        for i in range(1, 4): a('s_add_u32 %s, s56, %d' % (s(56 + i), i * OS))
    a('s_mov_b32 s42, 0')
    a('v_lshrrev_b32 v10, 2, v5'); a('v_add_u32 v10, %d, v10' % LACT)
    a('s_waitcnt vmcnt(%d)' % (2 if OUTAT == 'p1' else 0))
    if DLATE: a('s_mov_b64 exec, 1'); a('ds_add_u32 v1, v8'); a('s_mov_b64 exec, -1')
    a.label('fk_poll1')
    if UX:
        for i in range(4):
            a('buffer_load_dword %s, v5, s[24:27], %s offen sc1' % (v(PP + 2 * i), s(36 + i)))
            a('buffer_load_dword %s, v5, s[24:27], %s offen sc1' % (v(PP + 2 * i + 1), s(56 + i)))
    else:
        for i in range(4): a('buffer_load_dwordx2 %s, v5, s[24:27], %s offen sc1' % (v(PP + 2 * i, 2), s(36 + i)))
    phase_check(a, list(range(PP, PP + 8)), 11, 42, 'fk_poll1', 'fk_got1')
    stamp(a, 15)
    a('v_pk_add_f32 %s, %s, %s' % (v(PP, 2), v(PP, 2), v(PP + 2, 2))); a('v_pk_add_f32 %s, %s, %s' % (v(PP + 4, 2), v(PP + 4, 2), v(PP + 6, 2)))
    a('v_pk_add_f32 %s, %s, %s' % (v(PP, 2), v(PP, 2), v(PP + 4, 2)))
    rbf(a, PP); rbf(a, PP + 1)
    a('v_mul_f32 %s, %s, %s' % (v(PP + 2), fh(-1.4426950408889634), v(PP)))
    a('v_exp_f32 %s, %s' % (v(PP + 2), v(PP + 2)))
    a('v_add_f32 %s, 1.0, %s' % (v(PP + 2), v(PP + 2)))
    a('v_rcp_f32 %s, %s' % (v(PP + 2), v(PP + 2)))
    a('v_mul_f32 %s, %s, %s' % (v(PP), v(PP), v(PP + 2)))
    rbf(a, PP)
    a('v_mul_f32 %s, %s, %s' % (v(PP), v(PP), v(PP + 1)))
    rbf(a, PP)
    a('ds_write_b16_d16_hi v10, %s' % v(PP))
    if DLATE: bd_reads('a', False)
    a('s_branch fk_wait1')
    a.label('fk_c1')
    a('s_cmp_gt_u32 s3, 127'); a('s_cbranch_scc1 %s' % ('fk_bd' if DLATE else 'fk_wait1'))
    a('s_waitcnt lgkmcnt(0)')
    a('v_readfirstlane_b32 s40, v12')
    a('v_lshrrev_b32 v10, 4, v15'); a('v_and_b32 v11, 1, v15'); a('v_lshl_add_u32 v12, v11, 2, v10'); a('v_lshlrev_b32 v12, 1, v12')
    a('v_and_b32 v11, 12, v12'); a('v_and_b32 v10, 1, v10')
    a('s_bfe_u32 s13, s40, 0x80003'); a('s_mul_i32 s14, s13, %d' % OS); a('s_lshl_b32 s15, s3, 4'); a('s_add_u32 s14, s14, s15'); a('s_add_u32 s14, s14, 0x%x' % TC_)
    a('s_mov_b32 s42, 0')
    a.label('fk_pollh')
    a('buffer_load_dword v2, v11, s[24:27], s14 offen sc1')
    a('buffer_load_dword v3, v11, s[24:27], s14 offen offset:2048 sc1')
    phase_check(a, [2, 3], 4, 42, 'fk_pollh', 'fk_goth')
    a('v_cmp_eq_u32 vcc, 1, v10')
    for r in (2, 3):
        a('v_lshlrev_b32 v4, 16, %s' % v(r)); a('v_and_b32 %s, s36, %s' % (v(r), v(r))); a('v_cndmask_b32 %s, v4, %s, vcc' % (v(r), v(r)))
    a('s_lshr_b32 s14, s13, 4'); a('s_add_u32 s14, s14, 1'); a('s_cmp_ge_u32 s13, 248'); a('s_cselect_b32 s14, 0, s14')
    a('s_cmp_ge_u32 s13, 240'); a('s_cselect_b32 s15, 7, 15'); a('s_and_b32 s15, s15, s13'); a('s_lshl_b32 s15, s15, 7'); a('s_add_u32 s14, s14, s15')
    a('s_and_b32 s13, s40, 7'); a('s_sub_u32 s15, 7, s13'); a('s_min_u32 s15, s15, s13'); a('s_lshl_b32 s15, s15, 5'); a('s_add_u32 s14, s14, s15')
    a('s_sub_u32 s15, 2048, s14'); a('s_and_b32 s15, s15, 2047'); a('s_cmp_lt_u32 s13, 4'); a('s_cselect_b32 s14, s14, s15')
    a('s_and_b32 s13, s40, 0x7ff'); a('s_cmp_eq_u32 s13, %d' % (248 * 8 + 7)); a('s_cselect_b32 s14, 1024, s14')
    a('s_lshl_b32 s21, s14, 11'); a('s_lshl_b32 s15, s3, 4'); a('s_add_u32 s21, s21, s15')
    a('s_ashr_i32 s13, s40, 31'); a('s_not_b32 s13, s13'); a('s_or_b32 s13, s13, 0x80000000'); a('s_xor_b32 s13, s40, s13'); a('s_and_b32 s13, s13, 0xfffff800')
    a('v_mov_b32 v11, s13'); rbf(a, 11)
    a('v_mul_f32 v11, %s, v11' % fh(-1.4426950408889634))
    a('v_exp_f32 v11, v11'); a('v_add_f32 v11, 1.0, v11'); a('v_rcp_f32 v11, v11'); rbf(a, 11)
    a('v_lshrrev_b32 v4, 1, v15'); a('v_mul_u32_u24 v4, %d, v4' % (4 * OS)); a('v_and_b32 v5, 1, v15'); a('v_lshl_add_u32 v4, v5, 4, v4')
    a('v_add_u32 v5, %d, v4' % (128 * OS)); a('v_cmp_gt_u32 vcc, 48, v15'); a('v_cndmask_b32 v5, -16, v5, vcc')
    a('s_lshr_b32 s40, s3, 5'); a('s_mul_i32 s40, s40, %d' % OS); a('s_and_b32 s15, s3, 31'); a('s_lshl_b32 s15, s15, 5'); a('s_add_u32 s40, s40, s15')
    a('s_add_u32 s40, s40, 0x%x' % (TP_ + OP2))
    if DLATE:
        a.label('fk_bd')
        bd_reads('b')
    a.label('fk_wait1')
    a('s_waitcnt lgkmcnt(0)'); a('s_barrier')
    stamp(a, 16)
    for kk in range(4): a('ds_read_b128 %s, v9 offset:%d' % (v(AH + 4 * kk, 4), 32 * kk))
    for kk in range(4):
        a('s_waitcnt lgkmcnt(%d)' % (3 - kk))
        a('v_mfma_f32_32x32x16_bf16 %s, %s, %s, %s' % (v(D2R, 16), v(AH + 4 * kk, 4), v(BD + 4 * kk, 4), '0' if kk == 0 else v(D2R, 16)))
    a('v_and_b32 %s, -2, %s' % (v(D2R), v(D2R)))
    quad_gather(a, D2R, 1)
    a('s_mov_b32 exec_lo, 0x11111111'); a('s_mov_b32 exec_hi, 0')
    a('buffer_store_dwordx4 %s, v6, s[24:27], s41 offen sc1' % v(D2R, 4))
    a('s_mov_b64 exec, -1')
    if OUTAT == 'end': out_store()
    stamp(a, 17)
    a('s_cmp_lg_u32 s16, 7'); a('s_cbranch_scc1 fk_fin')
    a('s_cmp_gt_u32 s3, 127'); a('s_cbranch_scc1 fk_fin')
    PQ = 16
    a('s_mov_b32 s42, 0')
    a('s_waitcnt vmcnt(%d)' % (2 if OUTAT == 'end' else 0))
    if SL2: a('s_sleep %d' % SL2)
    a.label('fk_poll2')
    a('buffer_load_dwordx4 %s, v4, s[24:27], s40 offen sc1' % v(PQ, 4))
    a('buffer_load_dwordx4 %s, v5, s[24:27], s40 offen sc1' % v(PQ + 4, 4))
    phase_check(a, list(range(PQ, PQ + 8)), 6, 42, 'fk_poll2', 'fk_got2')
    stamp(a, 18)
    for h in range(2): a('v_pk_add_f32 %s, %s, %s' % (v(PQ + 2 * h, 2), v(PQ + 2 * h, 2), v(PQ + 4 + 2 * h, 2)))
    for i in range(2): a('v_permlane32_swap_b32 %s, %s' % (v(PQ + i), v(PQ + 2 + i)))
    for i in range(2): a('v_add_f32 %s, %s, %s' % (v(PQ + i), v(PQ + i), v(PQ + 2 + i)))
    a('v_permlane16_swap_b32 %s, %s' % (v(PQ), v(PQ + 1)))
    a('v_add_f32 %s, %s, %s' % (v(PQ), v(PQ), v(PQ + 1)))
    a('v_add_f32_dpp %s, %s, %s quad_perm:[2,3,0,1] %s' % (v(PQ), v(PQ), v(PQ), DPPF))
    a('v_add_f32_dpp %s, %s, %s row_ror:4 %s' % (v(PQ), v(PQ), v(PQ), DPPF))
    a('v_add_f32_dpp %s, %s, %s row_ror:8 %s' % (v(PQ), v(PQ), v(PQ), DPPF))
    rbf(a, PQ); a('v_mul_f32 %s, %s, v11' % (v(PQ), v(PQ))); rbf(a, PQ)
    a('v_add_f32 %s, %s, v2' % (v(PQ), v(PQ))); rbf(a, PQ)
    a('v_add_f32 %s, %s, v3' % (v(PQ), v(PQ))); rbf(a, PQ)
    a('s_mov_b32 exec_lo, 0x00030003'); a('s_mov_b32 exec_hi, 0x00030003')
    a('buffer_store_short_d16_hi %s, v12, s[28:31], s21 offen' % v(PQ))
    if OUTAT in ('p1', 'end'):
        a('s_branch fk_fin')
        a.label('fk_lateout')
        out_store()
    a.label('fk_fin')
    stamp_dump(a, 'x')
    a.label('fk_end')
    a('s_endpgm')

def main(path):
    a = Asm()
    ref = open('%s/%s.s.ref' % (optval('ref', '/code'), NAME)).read().splitlines()
    for l in ref:
        if l.startswith('; Override'): break
        a.raw(l)
    if LIST: a.raw('; @launch kernel=%s grid=(256,1,1) block=(512,1,1) lds=%d' % (KN, LDSB))
    else: a.raw('; @launch grid=(256,1,1) block=(512,1,1) lds=%d' % LDSB)
    a.raw('.amdgcn_target "amdgcn-amd-amdhsa--gfx950"'); a.raw('.text')
    gen(a)
    a.raw('.section .rodata,"a"')
    a.raw('\n'.join(['.p2align 6', '.amdhsa_kernel %s' % KN, '  .amdhsa_next_free_vgpr 256',
        '  .amdhsa_next_free_sgpr 102', '  .amdhsa_accum_offset 256', '  .amdhsa_group_segment_fixed_size 0',
        '  .amdhsa_kernarg_size 104', '  .amdhsa_user_sgpr_count 2', '  .amdhsa_user_sgpr_kernarg_segment_ptr 1',
        '  .amdhsa_system_sgpr_workgroup_id_x 1', '.end_amdhsa_kernel', '']))
    open(path, 'w').write(a.text())
    print('wrote', path, 'lines', len(a.lines), 'nops', a.nops, 'lds', LDSB)

if __name__ == '__main__':
    ps = [x for x in sys.argv[1:] if x.endswith('.s')]
    main(ps[0] if ps else '/code/%s.s' % NAME)
```

```python
import struct, sys
from asmlib import Asm

NAME = 'sequential_preLN__spectral_fnet__moe_arch_mod__prompt'
def fh(x): return '0x%08x' % struct.unpack('<I', struct.pack('<f', x))[0]
OPT = set(a for a in sys.argv[1:] if a.startswith('--'))
def optval(name, default):
    for o in OPT:
        if o.startswith('--%s=' % name): return o[len(name) + 3:]
    return default
STAMPS = '--stamps' in OPT
LIST = '--list' in OPT or STAMPS
OUTF = {'plain': '', 'nt': ' nt', 'sc1': ' sc1'}[optval('out', 'nt')]
OUTAT = optval('outat', 'bf')
KN = 'fk_kernel' if LIST else NAME + '_kernel'

KEYS = 0x9000; G5 = 0x11000; RB = 0x13000
OHN, OH, OP1, OP2 = 0, 2048, 4096, 5120
OS = 9344
YS = 8320
WOFF = 0x20000; YOFF = WOFF + 256 * OS; COFF = YOFF + 256 * YS; WSB = COFF + 256 * OS
SEP = optval('sep', 'all').replace('none', '')
TC_ = COFF if SEP == 'all' else WOFF; TP_ = COFF if SEP else WOFF
CLAMP = 'v_min_u32' if SEP == 'all' else 'v_and_b32'
LG, LD, LX = 0, 65536, 98304
LX1024 = LX + 5 * 4096
LWS = LX1024 + 2048
LA2 = LWS + 9472
RS = 2064
LROW = LA2 + 8192
LWR = LROW + 8 * RS
LG5 = LX + 4 * 4096
LMISC = LWR + 2048
LG5S, LY5, LKEY, LWIN, LG5E, LACT, LHN, LSIG = LMISC, LMISC + 32, LMISC + 64, LMISC + 80, LMISC + 96, LMISC + 128, LMISC + 256, LMISC + 768
LDSB = LMISC + 896
assert LDSB <= 163840

def v(i, n=1): return 'v%d' % i if n == 1 else 'v[%d:%d]' % (i, i + n - 1)
def s(i, n=1): return 's%d' % i if n == 1 else 's[%d:%d]' % (i, i + n - 1)
DPPF = 'row_mask:0xf bank_mask:0xf'
ROWRED = ['quad_perm:[1,0,3,2] ' + DPPF, 'quad_perm:[2,3,0,1] ' + DPPF, 'row_half_mirror ' + DPPF, 'row_mirror ' + DPPF]
def wave_reduce(a, regs, op='v_add_f32'):
    for pat in ROWRED + ['row_bcast:15 row_mask:0xa bank_mask:0xf', 'row_bcast:31 row_mask:0xc bank_mask:0xf']:
        for r in regs: a('%s_dpp %s, %s, %s %s' % (op, v(r), v(r), v(r), pat))
def rbf(a, r): a('v_cvt_pk_bf16_f32 %s, 0, %s' % (v(r), v(r)))
def angles(a, mulreg, basereg, ks, tmp):
    for i, k in enumerate(ks):
        if k == 0: a('v_mov_b32 %s, %s' % (v(tmp + i), v(basereg)))
        else: a('v_fmamk_f32 %s, %s, %s, %s' % (v(tmp + i), v(mulreg), fh(float(k)), v(basereg)))
def kr(r): return (r & 3) + 8 * (r >> 2)
def gen_c2s2(a, vln_f, vlh4_f, C2, S2, tmp):
    c, b = tmp, tmp + 1
    a('v_mul_f32 %s, %s, %s' % (v(c), fh(1.0 / 32), v(vln_f)))
    a('v_mul_f32 %s, %s, %s' % (v(b), v(c), v(vlh4_f)))
    ang = tmp + 2
    angles(a, c, b, [kr(r) for r in range(16)], ang)
    for r in range(16): a('v_cos_f32 %s, %s' % (v(ang + 16 + r), v(ang + r)))
    for p in range(8): a('v_cvt_pk_f16_f32 %s, %s, %s' % (v(C2 + p), v(ang + 16 + 2 * p), v(ang + 17 + 2 * p)))
    for r in range(16): a('v_sin_f32 %s, %s' % (v(ang + 16 + r), v(ang + r)))
    for p in range(8): a('v_cvt_pk_f16_f32 %s, %s, %s' % (v(S2 + p), v(ang + 16 + 2 * p), v(ang + 17 + 2 * p)))
def reduce4(a, A, B, C, D):
    a('v_permlane32_swap_b32 %s, %s' % (v(A), v(B))); a('v_permlane32_swap_b32 %s, %s' % (v(C), v(D)))
    a('v_add_f32 %s, %s, %s' % (v(A), v(A), v(B))); a('v_add_f32 %s, %s, %s' % (v(C), v(C), v(D)))
    a('v_permlane16_swap_b32 %s, %s' % (v(A), v(C)))
    a('v_add_f32 %s, %s, %s' % (v(A), v(A), v(C)))
    for pat in ROWRED: a('v_add_f32_dpp %s, %s, %s %s' % (v(A), v(A), v(A), pat))
def ln_chain(a, tot, m, t):
    a('v_mov_b32_dpp %s, %s row_bcast:15 row_mask:0xa bank_mask:0xf' % (v(m), v(tot)))
    a('v_mul_f32 %s, %s, %s' % (v(t), fh(1.0 / 1024), v(tot)))
    a('v_mul_f32 %s, %s, %s' % (v(m), fh(1.0 / 1024), v(m)))
    a('v_fma_f32 %s, -%s, %s, %s' % (v(t), v(m), v(m), v(t)))
    a('v_max_f32 %s, 0, %s' % (v(t), v(t)))
    rbf(a, t); rbf(a, m)
    a('v_add_f32 %s, %s, %s' % (v(t), fh(1e-5), v(t))); rbf(a, t)
    a('v_sqrt_f32 %s, %s' % (v(t), v(t))); rbf(a, t)
    a('v_rcp_f32 %s, %s' % (v(t), v(t)))

NST = 20
EARLY = '--early' in OPT
def stamp(a, i, early=False):
    if '--endonly' in OPT and 0 < i < NST - 1: return
    if STAMPS and (early == EARLY or i < 12 or i == NST - 1): a('s_memrealtime s[%d:%d]' % (60 + 2 * i, 61 + 2 * i))
def stamp_dump(a, tag):
    if not STAMPS: return
    a('s_waitcnt vmcnt(0) lgkmcnt(0)')
    stamp(a, NST - 1)
    a('s_load_dwordx2 s[4:5], s[0:1], 96'); a('s_waitcnt lgkmcnt(0)')
    a('s_add_u32 s4, s4, 0x8000000'); a('s_addc_u32 s5, s5, 0'); a('s_mov_b32 s6, 0x40000'); a('s_mov_b32 s7, 0x00020000')
    a('s_lshl_b32 s12, s2, 3'); a('s_add_u32 s12, s12, s16'); a('s_lshl_b32 s12, s12, 7')
    a('s_mov_b64 exec, 1'); a('v_mov_b32 v1, 0')
    for i in range(NST):
        a('v_mov_b32 v2, s%d' % (60 + 2 * i)); a('buffer_store_dword v2, v1, s[4:7], s12 offen offset:%d' % (4 * i))

DMAF = {'': '', 'nt': ' nt', 'sc1': ' sc1', 'sc0': ' sc0', 'scnt': ' sc1 nt'}[optval('dmaf', '')]
NH = int(optval('nh', '4'))
KA = int(optval('ka', '3')); CPOST = '--cpost' in OPT
KB, KE, KC, KD = (int(x) for x in optval('win', '4,0,4,4').split(','))
PB, PE, PC, PD = (int(x) for x in optval('wpace', '99,99,99,99').split(','))
assert '--now' in OPT or 3 * NH + 4 * KA + 4 * KB + 4 * KE + 8 * KC + 7 * KD >= 96, 'units missing'
MIX = '--mix' in OPT or '--mix0' in OPT
UX = 128 if '--mix' in OPT else 0
def unit_setup(a):
    a('v_lshrrev_b32 v208, 3, v15'); a('v_and_b32 v209, 7, v15'); a('v_and_b32 v210, 2, v208'); a('v_xor_b32 v209, v210, v209')
    a('v_mul_u32_u24 v208, 7168, v208'); a('v_lshl_add_u32 v208, v209, 4, v208')
    a('v_lshrrev_b32 v210, 5, v15'); a('v_lshlrev_b32 v210, 11, v210'); a('v_and_b32 v209, 31, v15'); a('v_lshl_add_u32 v210, v209, 4, v210')
    a('s_and_b32 s12, s3, 3'); a('s_mul_i32 s100, s12, %d' % (256 * 7168)); a('s_lshl_b32 s101, s12, 9')
    if '--cbnew' not in OPT: a('s_lshr_b32 s12, s3, 2')
    else: a('s_bfe_u32 s12, s3, 0x30002'); a('s_mul_i32 s12, s12, 7'); a('s_lshr_b32 s13, s3, 5'); a('s_add_u32 s12, s12, s13')
    a('s_lshl_b32 s12, s12, 7'); a('s_add_u32 s100, s100, s12'); a('s_lshl_b32 s12, s12, 10'); a('s_add_u32 s101, s101, s12')
    a('s_xor_b32 s99, s100, %d' % UX)
uid = [0]
def window(a, first, k, wreg, wbase, pace=99, skip=None, remap=False):
    if k == 0 or first >= 96: return
    uid[0] += 1; lab = skip or 'fk_win%d' % uid[0]
    a('s_cmp_gt_u32 s3, 223'); a('s_cbranch_scc1 %s' % lab)
    a('s_mul_i32 s15, %s, %d' % (s(wreg), k)); a('s_add_u32 s15, s15, %d' % (first - wbase * k))
    if remap and not MIX: a('s_cmp_ge_u32 s15, 32'); a('s_cselect_b32 s12, 32, 0'); a('s_add_u32 s15, s15, s12')
    a('s_mov_b32 s58, 0x700000'); a('s_mov_b32 s59, 0x00020000')
    if MIX: a('s_mov_b32 s9, s15')
    for i in range(k):
        if MIX:
            a('s_cmp_ge_u32 s9, 16'); a('s_cselect_b32 s15, 16, 0'); a('s_cmp_ge_u32 s9, 32'); a('s_cselect_b32 s15, 32, s15'); a('s_add_u32 s15, s15, s9'); a('s_add_u32 s9, s9, 1')
        a('s_cmp_gt_u32 s15, 95'); a('s_cbranch_scc1 %s' % lab)
        a('s_lshl_b32 s12, s15, 10'); a('s_mov_b32 m0, s12')
        a('s_and_b32 s14, s12, 1024'); a('s_lshr_b32 s14, s14, 4'); a('v_xor_b32 v209, s14, v208')
        a('s_cmp_lt_u32 s15, 32'); a('s_cselect_b64 s[56:57], s[44:45], s[48:49]'); a('s_cselect_b32 s12, s100, s99')
        a('s_and_b32 s14, s15, 31'); a('s_mul_i32 s13, s14, %d' % (8 * 7168)); a('s_add_u32 s13, s13, s12')
        a('s_lshl_b32 s14, s14, 12'); a('s_add_u32 s14, s14, s101')
        a('s_cmp_lt_u32 s15, 64'); a('s_cselect_b64 s[56:57], s[56:57], s[52:53]'); a('s_cselect_b32 s13, s13, s14'); a('s_cselect_b64 vcc, -1, 0')
        a('v_cndmask_b32 v209, v210, v209, vcc')
        a('s_add_u32 s15, s15, 1')
        if i >= pace: a('s_waitcnt vmcnt(%d)' % pace)
        a('buffer_load_dwordx4 v209, s[56:59], s13 offen%s lds' % DMAF)
    if not skip: a.label(lab)
def window_static(a, kind, p0, k, wreg, tag):
    step = 8 * 7168 if kind == 1 else 4096
    if kind == 1 and MIX:
        a('s_and_b32 s15, s16, 3'); a('s_lshl_b32 s15, s15, 2'); a('s_add_u32 s15, s15, 16')
        a('s_lshr_b32 s12, s16, 2'); a('s_lshl_b32 s12, s12, 5'); a('s_add_u32 s12, s12, s15'); a('s_lshl_b32 s12, s12, 10')
        a('s_mul_i32 s15, s15, %d' % step)
        a('s_cmp_lt_u32 s16, 4'); a('s_cselect_b64 s[48:49], s[44:45], s[48:49]'); a('s_cselect_b32 s13, s100, s99'); a('s_add_u32 s13, s13, s15')
    else:
        a('s_mul_i32 s15, %s, %d' % (s(wreg), k)); a('s_add_u32 s15, s15, %d' % p0)
        a('s_lshl_b32 s12, s15, 10'); a('s_add_u32 s12, s12, %d' % (32768 * kind))
        a('s_mul_i32 s13, s15, %d' % step); a('s_add_u32 s13, s13, %s' % ('s99' if kind == 1 else 's101'))
    if kind == 1: a('v_xor_b32 v209, 64, v208')
    def issue():
        a('s_cmp_gt_u32 s3, 223'); a('s_cbranch_scc1 fk_ws%s' % tag)
        for i in range(k):
            a('s_mov_b32 m0, s12')
            if kind == 2 and p0 + 8 * k > 32: a('s_cmp_gt_u32 s12, %d' % (95 * 1024)); a('s_cbranch_scc1 fk_ws%s' % tag)
            else: a('s_nop 0')
            a('buffer_load_dwordx4 %s, %s, s13 offen%s lds' % ((('v209' if i & 1 else 'v208') if kind == 1 else 'v210'), s(48 if kind == 1 else 52, 4), DMAF))
            if i < k - 1: a('s_add_u32 s12, s12, 1024'); a('s_add_u32 s13, s13, %d' % step)
        a('@fk_ws%s' % tag)
    return issue
STATIC = '--nostatic' not in OPT and 3 * NH + 4 * KA + 4 * KB == 40 and KB and (32 - 3 * NH - 4 * KA) % KB == 0 and KE == 0 and KC == 4
UA = 3 * NH; UB = UA + 4 * KA; UE = UB + 4 * KB; UC = UE + 4 * KE; UD = UC + 8 * KC
LATE = UC < 64 and '--now' not in OPT
DLATE = UD >= 64 and UD < 96 and KD > 0 and '--dlate' in OPT
BASE = int(optval('base', '0'), 0)
DOT = '--dotffn' in OPT
N1, NB, NF, NE = (int(x) for x in optval('spf', '0,0,0,0').split(','))
L1 = 3 * N1; L2 = L1 + 3 * 14 * NB; L3 = L2 + 4 * NF
def spf_base(a, d, first, per, wreg, woff=0):
    assert per % 2 == 0 and first % 2 == 0
    a('s_mul_i32 %s, %s, %d' % (s(d), s(wreg), per // 2 * 7168)); a('s_add_u32 %s, %s, %d' % (s(d), s(d), (first - per * woff) // 2 * 7168)); a('s_add_u32 %s, %s, s100' % (s(d), s(d)))
    a('s_cmp_gt_u32 s3, 223'); a('s_cselect_b32 %s, 0x700000, %s' % (s(d), s(d)))
def spf(d, i): return 's_buffer_load_dword %s, s[48:51], %s offset:%d' % (s(d + 1), s(d), (i >> 1) * 7168 + 64 * (i & 1))
CAFTER = '--cbefore' not in OPT
XT = '--xtrig' in OPT
XF = ' nt' if '--xnt' in OPT else ''
YD = int(optval('yd', '1'))
SPLIT = '--nosplit' not in OPT
DAFTER = '--dafter' in OPT
SLR = int(optval('slr', '0'))
SLW, SLY, SLK, SL2 = (int(x) for x in optval('sl', '0,0,0,0').split(','))
WNT = ' nt' if '--wnt' in OPT else ''
CNT = ' nt' if '--cnt' in OPT else ''
WOUT = '--wout' in OPT
WSRD = 's[28:31]' if WOUT else 's[24:27]'
if WOUT: WOFF = 0
def rebase(a):
    if BASE: a('s_add_u32 s24, s24, 0x%x' % BASE); a('s_addc_u32 s25, s25, 0')
def chkpos(a, d):
    a('s_bfe_u32 %s, s3, 0x30002' % s(d)); a('s_lshl_b32 %s, %s, 7' % (s(d), s(d))); a('s_lshr_b32 s12, s3, 5'); a('s_lshl_b32 s12, s12, 4')
    a('s_add_u32 %s, %s, s12' % (s(d), s(d))); a('s_and_b32 s12, s3, 3'); a('s_lshl_b32 s12, s12, 2'); a('s_add_u32 %s, %s, s12' % (s(d), s(d)))
    a('s_add_u32 %s, %s, 8192' % (s(d), s(d)))
def piece_sum(a, d, r, tag):
    a('v_add3_u32 %s, %s, %s, %s' % (v(d), v(r), v(r + 1), v(r + 2)))
    a('v_add_u32 %s, %s, %s' % (v(d), v(d), v(r + 3)))
    return ['v_add_u32_dpp %s, %s, %s quad_perm:[1,0,3,2] %s' % (v(d), v(d), v(d), DPPF)]
def quad_gather(a, r, step):
    for i in range(1, 4): a('v_mov_b32_dpp %s, %s row_shl:%d %s' % (v(r + i), v(r), i * step, DPPF))
def poll_tail(a, cnt, lab, got):
    a('s_add_u32 %s, %s, 1' % (s(cnt), s(cnt)))
    a('s_cbranch_vccz %s' % got)
    if SLR: a('s_sleep %d' % SLR)
    a('s_cmp_le_u32 %s, 0x40000' % s(cnt)); a('s_cbranch_scc1 %s' % lab)
    a.label(got)
def phase_check(a, regs, tmp, cnt, lab, got):
    if SEP == 'all': return poll_check(a, regs, tmp, cnt, lab, got)
    a('s_waitcnt vmcnt(0)')
    r = list(regs)
    if len(r) == 2: a('v_or_b32 %s, %s, %s' % (v(tmp), v(r[0]), v(r[1]))); r = []
    else: a('v_or3_b32 %s, %s, %s, %s' % (v(tmp), v(r[0]), v(r[1]), v(r[2]))); r = r[3:]
    while r:
        if len(r) >= 2: a('v_or3_b32 %s, %s, %s, %s' % (v(tmp), v(tmp), v(r[0]), v(r[1]))); r = r[2:]
        else: a('v_or_b32 %s, %s, %s' % (v(tmp), v(tmp), v(r[0]))); r = []
    a('v_and_b32 %s, 1, %s' % (v(tmp), v(tmp)))
    a('v_cmp_eq_u32 vcc, 1, %s' % v(tmp))
    poll_tail(a, cnt, lab, got)
def poll_check(a, regs, tmp, cnt, lab, got, wait=True):
    a('s_add_u32 %s, %s, 1' % (s(cnt), s(cnt)))
    if wait: a('s_waitcnt vmcnt(0)')
    r = list(regs)
    if len(r) == 1: a('v_cmp_eq_u32 vcc, -1, %s' % v(r[0]))
    else:
        if len(r) == 2: a('v_max_u32 %s, %s, %s' % (v(tmp), v(r[0]), v(r[1]))); r = []
        else: a('v_max3_u32 %s, %s, %s, %s' % (v(tmp), v(r[0]), v(r[1]), v(r[2]))); r = r[3:]
        while r:
            if len(r) >= 2: a('v_max3_u32 %s, %s, %s, %s' % (v(tmp), v(tmp), v(r[0]), v(r[1]))); r = r[2:]
            else: a('v_max_u32 %s, %s, %s' % (v(tmp), v(tmp), v(r[0]))); r = []
        a('v_cmp_eq_u32 vcc, -1, %s' % v(tmp))
    a('s_cbranch_vccz %s' % got)
    if SLR: a('s_sleep %d' % SLR)
    a('s_cmp_le_u32 %s, 0x40000' % s(cnt)); a('s_cbranch_scc1 %s' % lab)
    a.label(got)

def gen(a):
    a.raw('.globl %s' % KN); a.raw('.p2align 8'); a.raw('.type %s,@function' % KN)
    a.lines.append(KN + ':')
    a('s_cmp_gt_u32 s2, 255'); a('s_cbranch_scc1 fk_end')
    if STAMPS:
        for i in range(NST): a('s_mov_b32 s%d, 0' % (60 + 2 * i))
    stamp(a, 0)
    a('s_load_dwordx2 s[8:9], s[0:1], 0'); a('s_load_dwordx2 s[24:25], s[0:1], 96')
    a('s_load_dwordx2 s[32:33], s[0:1], 48'); a('s_load_dwordx2 s[44:45], s[0:1], 56'); a('s_load_dwordx2 s[48:49], s[0:1], 64')
    a('s_load_dwordx2 s[52:53], s[0:1], 72'); a('s_load_dwordx2 s[28:29], s[0:1], 80')
    if '--nocodepf' not in OPT:
        a('s_getpc_b64 s[40:41]'); a.lines.append('fk_pc:')
        a('s_mov_b32 s42, fk_end-fk_pc'); a('s_mov_b32 s43, 0x00020000')
        a('v_lshlrev_b32 v250, 6, v0')
        a('buffer_load_dword v251, v250, s[40:43], 0 offen')
    a('v_lshrrev_b32 v1, 6, v0'); a('v_and_b32 v15, 63, v0')
    a('v_readfirstlane_b32 s16, v1')
    a('s_and_b32 s3, s2, 0xe0'); a('s_and_b32 s17, s2, 7'); a('s_lshl_b32 s17, s17, 2'); a('s_or_b32 s3, s3, s17')
    a('s_bfe_u32 s17, s2, 0x20003'); a('s_or_b32 s3, s3, s17')
    a('s_lshr_b32 s17, s3, 4'); a('s_add_u32 s17, s17, 1'); a('s_cmp_ge_u32 s3, 248'); a('s_cselect_b32 s17, 0, s17')
    a('s_cmp_ge_u32 s3, 240'); a('s_cselect_b32 s18, 7, 15'); a('s_and_b32 s18, s18, s3'); a('s_lshl_b32 s18, s18, 7')
    a('s_add_u32 s18, s18, s17')
    a('v_and_b32 v1, 31, v15'); a('v_lshrrev_b32 v2, 5, v15')
    a('v_lshlrev_b32 v14, 4, v15')
    for r, n in ((8, 2048 * 2048), (24, WSB), (28, 2048 * 2048), (32, 2048), (44, 1024 * 7168), (48, 1024 * 7168), (52, 3584 * 2048)):
        a('s_mov_b32 %s, 0x%x' % (s(r + 2), n)); a('s_mov_b32 %s, 0x00020000' % s(r + 3))
    a('s_cmp_eq_u32 s3, 255'); a('s_cselect_b32 s12, 5, 4')
    a('s_cmp_ge_u32 s16, s12'); a('s_cbranch_scc1 fk_H')
    XA, XB = 16, 32
    F1, TC, TS, B3, C2, S2 = 48, 56, 72, 88, 96, 104
    X, D1, D2, D3, Q16, GA = 112, 128, 144, 160, 176, 184
    T = 128
    a('s_cmp_eq_u32 s16, 4'); a('s_cbranch_scc1 fk_lowp')
    a('s_setprio 3')
    a('@fk_lowp')
    a('s_lshl_b32 s19, s16, 5'); a('s_add_u32 s19, s19, s18')
    a('s_sub_u32 s20, 2048, s19'); a('s_and_b32 s20, s20, 2047')
    a('s_lshl_b32 s21, s19, 11'); a('s_lshl_b32 s22, s20, 11')
    a('s_lshl_b32 s12, s16, 12'); a('s_add_u32 s12, s12, %d' % LX)
    a('s_mov_b32 m0, s12')
    for i in range(32): a('v_mov_b32 %s, 0' % v(XA + i))
    a('v_cvt_f32_u32 v200, v1')
    a('v_lshlrev_b32 v7, 2, v2'); a('v_cvt_f32_u32 v7, v7')
    a('v_lshrrev_b32 v8, 1, v1'); a('v_and_b32 v9, 1, v1')
    a('v_lshlrev_b32 v205, 2, v15'); a('v_and_b32 v205, 63, v205'); a('v_add_u32 v205, %d, v205' % LSIG)
    a('ds_write_b32 v205, v16'); a('ds_write_b32 v205, v16 offset:64')
    a('s_waitcnt lgkmcnt(0)')
    rebase(a)
    stamp(a, 1)
    for i, so in enumerate((21, 21, 22, 22)):
        if i: a('s_add_u32 s13, s12, %d' % (1024 * i)); a('s_mov_b32 m0, s13')
        if i & 1: a('s_add_u32 s14, %s, 1024' % s(so))
        a('buffer_load_dwordx4 v14, s[8:11], %s offen%s lds' % (s(14) if i & 1 else s(so), XF))
    a('s_barrier')
    def put(base, n):
        for q in range(n // 4): a('ds_write_b128 v206, %s offset:%d' % (v(base + 4 * q, 4), 1024 * ((base - F1) // 4 + q)))
    a('v_add_u32 v206, %d, v14' % LROW)
    a('s_lshl_b32 s13, s16, 2'); a('s_add_u32 s13, s13, %d' % LSIG); a('v_mov_b32 v201, s13'); a('v_mov_b32 v202, 1')
    a('s_cmp_eq_u32 s16, 1'); a('s_cbranch_scc1 fk_j1')
    a('s_cmp_eq_u32 s16, 2'); a('s_cbranch_scc1 fk_j2')
    a('s_cmp_eq_u32 s16, 3'); a('s_cbranch_scc1 fk_j3')
    a('s_cmp_eq_u32 s16, 4'); a('s_cbranch_scc1 fk_jend')
    a('v_cmp_eq_u32 vcc, 1, v1')
    a('v_cndmask_b32 v10, v8, 16, vcc'); a('v_cndmask_b32 v11, v9, 0, vcc')
    a('v_cvt_f32_u32 v10, v10'); a('v_cvt_f32_u32 v11, v11')
    a('v_mul_f32 v10, %s, v10' % fh(1.0 / 32)); a('v_mul_f32 v11, %s, v11' % fh(0.25))
    a('v_add_f32 v12, v7, v7'); a('v_fma_f32 v11, v10, v12, v11')
    angles(a, 10, 11, list(range(8)) + list(range(16, 24)), T)
    for i in range(16): a('v_cos_f32 %s, %s' % (v(T + 16 + i), v(T + i)))
    for p in range(8): a('v_cvt_pk_f16_f32 %s, %s, %s' % (v(F1 + p), v(T + 16 + 2 * p), v(T + 17 + 2 * p)))
    put(F1, 8)
    a('s_branch fk_jsig')
    a.label('fk_j1')
    a('v_cvt_f32_u32 v10, v8'); a('v_lshlrev_b32 v11, 31, v9')
    a('v_mul_f32 v10, %s, v10' % fh(1.0 / 1024)); a('v_xor_b32 v10, v11, v10'); a('v_mul_f32 v11, v10, v7')
    angles(a, 10, 11, [kr(r) for r in range(16)], T)
    for r in range(16): a('v_cos_f32 %s, %s' % (v(TC + r), v(T + r)))
    put(TC, 16)
    for r in range(16): a('v_sin_f32 %s, %s' % (v(TS + r), v(T + r)))
    put(TS, 16)
    a('s_branch fk_jsig')
    a.label('fk_j2')
    gen_c2s2(a, 200, 7, C2, S2, T)
    put(C2, 16)
    a('s_branch fk_jsig')
    a.label('fk_j3')
    a('v_or_b32 v10, 16, v1'); a('v_cvt_f32_u32 v10, v10'); a('v_mov_b32 v11, %s' % fh(1.0 / 64))
    a('v_fmamk_f32 v10, v10, %s, v11' % fh(1.0 / 32))
    a('v_cmp_gt_u32 vcc, 16, v1'); a('v_mov_b32 v12, %s' % fh(-0.25)); a('v_cndmask_b32 v12, 0, v12, vcc')
    a('v_fma_f32 v11, v10, v7, v12')
    angles(a, 10, 11, [kr(r) for r in range(16)], T)
    for r in range(16): a('v_cos_f32 %s, %s' % (v(T + 16 + r), v(T + r)))
    for p in range(8): a('v_cvt_pk_f16_f32 %s, %s, %s' % (v(B3 + p), v(T + 16 + 2 * p), v(T + 17 + 2 * p)))
    put(B3, 8)
    a.label('fk_jsig')
    a('ds_write_b32 v201, v202 offset:32')
    a.label('fk_jend')
    a('v_lshlrev_b32 v3, 9, v2'); a('v_lshl_add_u32 v3, v1, 1, v3')
    a('v_sub_u32 v4, 576, v3'); a('v_sub_u32 v5, 2048, v3'); a('v_and_b32 v5, 2047, v5')
    a('v_add_u32 v3, s12, v3'); a('v_add_u32 v4, s12, v4'); a('v_add_u32 v5, s12, v5')
    a('s_lshl_b32 s13, s16, 10'); a('s_sub_u32 s14, %d, s13' % (7168 + 64))
    a('s_cmp_ge_u32 s3, 248'); a('s_cselect_b32 s15, 1024, 0'); a('s_add_u32 s14, s14, s15')
    a('s_cmp_eq_u32 s14, %d' % (8192 + 64)); a('s_cselect_b32 s14, %d, s14' % (4096 + 64))
    a('s_cmp_eq_u32 s19, s20'); a('s_cselect_b32 s14, %d, s14' % (8192 + 64))
    a('s_cmp_eq_u32 s16, 4'); a('s_cselect_b32 s13, %d, s13' % (8192 + 64))
    a('s_cmp_lg_u32 s19, 0'); a('s_cbranch_scc1 fk_noz')
    a('v_add_u32 v8, %d, v14' % (LWS + 4096 + 64)); a('ds_write_b128 v8, v[16:19]')
    a('@fk_noz')
    a('s_add_u32 s13, s13, %d' % LWS); a('s_add_u32 s14, s14, %d' % LWS)
    a('v_cmp_gt_u32 vcc, 16, v1')
    a('v_mov_b32 v8, s13'); a('v_mov_b32 v9, s14')
    a('v_cndmask_b32 v10, v9, v8, vcc'); a('v_cndmask_b32 v11, v8, v9, vcc')
    a('v_lshl_add_u32 v10, v15, 2, v10'); a('v_lshl_add_u32 v11, v15, 2, v11')
    a('v_lshrrev_b32 v6, 1, v15'); a('v_and_b32 v8, 1, v15'); a('v_mul_u32_u24 v9, %d, v8' % (4096 + 64))
    a('v_and_b32 v12, 15, v6'); a('v_lshl_add_u32 v12, v12, 4, v2'); a('v_mul_u32_u24 v12, %d, v12' % OS)
    a('v_mul_u32_u24 v192, %d, v8' % (2 * OS)); a('v_add_u32 v192, v192, v12')
    a('v_lshl_add_u32 v12, v8, 4, v12')
    a('v_lshrrev_b32 v194, 3, v15'); a('v_lshlrev_b32 v193, 4, v194'); a('v_lshl_add_u32 v193, v8, 7, v193')
    a('v_and_b32 v6, 3, v6'); a('v_lshl_add_u32 v9, v6, 2, v9'); a('v_lshl_add_u32 v9, v194, 7, v9')
    a('v_lshlrev_b32 v194, 10, v194'); a('v_and_b32 v6, 7, v15'); a('v_lshl_add_u32 v194, v6, 4, v194')
    a('s_lshl_b32 s13, s16, 5'); a('s_add_u32 s13, s13, %d' % LWS); a('v_add_u32 v6, s13, v9')
    a('s_mul_i32 s36, s3, %d' % OS); a('s_lshl_b32 s13, s16, 8'); a('s_add_u32 s36, s36, s13'); a('s_add_u32 s36, s36, 0x%x' % WOFF)
    a('s_mul_i32 s37, s16, %d' % (4 * OS)); a('s_add_u32 s37, s37, 0x%x' % WOFF)
    chkpos(a, 23)
    a('s_add_u32 s23, s23, s37')
    a('s_lshl_b32 s14, s3, 5'); a('s_add_u32 s37, s37, s14')
    a('s_add_u32 s38, s37, %d' % (2 * OS))
    a('s_lshl_b32 s13, s16, 11'); a('s_add_u32 s13, s13, %d' % LA2); a('v_add_u32 v7, s13, v14')
    a('v_cmp_eq_u32 s[58:59], 1, v8')
    a('s_cmp_eq_u32 s19, s20'); a('s_cselect_b32 s39, 0.5, 1.0')
    a('s_lshl_b32 s13, s16, 2'); a('s_add_u32 s13, s13, %d' % LG5S); a('v_mov_b32 v9, s13')
    a('s_mov_b32 s57, 47')
    a.label('fk_spinc')
    a('ds_read_b32 v203, v205'); a('s_waitcnt lgkmcnt(0)'); a('v_cmp_eq_u32 vcc, 0, v203')
    a('s_and_b32 s13, vcc_lo, 0xf00'); a('s_cbranch_scc1 fk_spinc')
    for q in range(16):
        a('ds_read_b128 %s, v206 offset:%d' % (v(F1 + 4 * q, 4), 1024 * q))
        if q == 11: a('s_waitcnt lgkmcnt(8)')
    stamp(a, 2)
    a('s_waitcnt vmcnt(0) lgkmcnt(0)')
    if XT: a('ds_write_b32 v205, v202 offset:64')
    stamp(a, 3)
    for j in range(2):
        for i in range(8):
            a('ds_read_u16_d16_hi %s, v3 offset:%d' % (v(XA + 8 * j + i), 1024 * j + 64 * i))
    a('s_waitcnt lgkmcnt(2)')
    for j in range(2):
        for i in range(8):
            if j == 0 and i == 0: a('ds_read_u16_d16_hi %s, v5 offset:2048' % v(XB))
            else: a('ds_read_u16_d16_hi %s, v4 offset:%d' % (v(XB + 8 * j + i), 2048 + 1024 * (1 - j) + 64 * (7 - i)))
            if j == 1 and i == 4: a('s_waitcnt lgkmcnt(8)')
    def sums(R, t):
        for i in range(4): a('v_pk_add_f32 %s, %s, %s' % (v(t + 2 * i, 2), v(R + 4 * i, 2), v(R + 4 * i + 2, 2)))
        a('v_pk_mul_f32 %s, %s, %s' % (v(t + 8, 2), v(R, 2), v(R, 2)))
        a('v_pk_mul_f32 %s, %s, %s' % (v(t + 10, 2), v(R + 2, 2), v(R + 2, 2)))
        for i in range(2, 8):
            acc = t + 8 + 2 * (i & 1)
            a('v_pk_fma_f32 %s, %s, %s, %s' % (v(acc, 2), v(R + 2 * i, 2), v(R + 2 * i, 2), v(acc, 2)))
        a('v_pk_add_f32 %s, %s, %s' % (v(t, 2), v(t, 2), v(t + 2, 2))); a('v_pk_add_f32 %s, %s, %s' % (v(t + 4, 2), v(t + 4, 2), v(t + 6, 2)))
        a('v_pk_add_f32 %s, %s, %s' % (v(t + 8, 2), v(t + 8, 2), v(t + 10, 2)))
        a('v_pk_add_f32 %s, %s, %s' % (v(t, 2), v(t, 2), v(t + 4, 2)))
        a('v_add_f32 %s, %s, %s' % (v(t + 8), v(t + 8), v(t + 9)))
        a('v_add_f32 %s, %s, %s' % (v(t), v(t), v(t + 1)))
    sums(XA, T)
    a('s_waitcnt lgkmcnt(0)')
    sums(XB, T + 12)
    reduce4(a, T, T + 12, T + 8, T + 20)
    ln_chain(a, T, T + 1, T + 2)
    a('v_mul_f32 %s, %s, %s' % (v(T + 2), fh(1.0 / 128), v(T + 2)))
    a('v_mul_f32 %s, %s, %s' % (v(T + 1), v(T + 1), v(T + 2)))
    a('v_readlane_b32 s4, %s, 16' % v(T + 2)); a('v_readlane_b32 s6, %s, 48' % v(T + 2))
    a('v_readlane_b32 s13, %s, 16' % v(T + 1)); a('v_readlane_b32 s14, %s, 48' % v(T + 1))
    a('v_mov_b32 %s, s13' % v(T + 4)); a('v_add_f32 %s, s14, %s' % (v(T + 4), v(T + 4)))
    for i in range(8):
        a('v_pk_fma_f32 %s, %s, s[6:7], %s op_sel_hi:[1,0,0] neg_lo:[0,0,1] neg_hi:[0,0,1]' % (v(XB + 2 * i, 2), v(XB + 2 * i, 2), v(T + 4, 2)))
    for i in range(8):
        a('v_pk_fma_f32 %s, %s, s[4:5], %s op_sel_hi:[1,0,1]' % (v(XA + 2 * i, 2), v(XA + 2 * i, 2), v(XB + 2 * i, 2)))
    for p in range(8): a('v_cvt_pk_f16_f32 %s, %s, %s' % (v(Q16 + p), v(XA + 2 * p), v(XA + 2 * p + 1)))
    a('v_mfma_f32_32x32x16_f16 %s, %s, %s, 0' % (v(X, 16), v(Q16, 4), v(F1, 4)))
    a('v_mfma_f32_32x32x16_f16 %s, %s, %s, %s' % (v(X, 16), v(Q16 + 4, 4), v(F1 + 4, 4), v(X, 16)))
    W = XA
    for r in range(8): a('v_pk_mul_f32 %s, %s, %s' % (v(W + 2 * r, 2), v(X + 2 * r, 2), v(TC + 2 * r, 2)))
    for r in range(8): a('v_fmac_f32_dpp %s, %s, %s quad_perm:[1,0,3,2] %s' % (v(W + r), v(X + r), v(TS + r), DPPF))
    for p in range(4): a('v_cvt_pk_f16_f32 %s, %s, %s' % (v(Q16 + p), v(W + 2 * p), v(W + 2 * p + 1)))
    a('v_fmac_f32_dpp %s, %s, %s quad_perm:[1,0,3,2] %s' % (v(W + 8), v(X + 8), v(TS + 8), DPPF))
    a('v_fmac_f32_dpp %s, %s, %s quad_perm:[1,0,3,2] %s' % (v(W + 9), v(X + 9), v(TS + 9), DPPF))
    mm = [(D1, C2), (D2, S2), (D3, B3)]
    rest = ['v_fmac_f32_dpp %s, %s, %s quad_perm:[1,0,3,2] %s' % (v(W + r), v(X + r), v(TS + r), DPPF) for r in range(10, 16)]
    rest += ['v_cvt_pk_f16_f32 %s, %s, %s' % (v(Q16 + p), v(W + 2 * p), v(W + 2 * p + 1)) for p in range(4, 8)]
    for n, (Dd, B) in enumerate(mm):
        a('v_mfma_f32_32x32x16_f16 %s, %s, %s, 0' % (v(Dd, 16), v(Q16, 4), v(B, 4)))
        for x in rest[4 * n:4 * n + 4]: a(x)
    for (Dd, B) in mm:
        a('v_mfma_f32_32x32x16_f16 %s, %s, %s, %s' % (v(Dd, 16), v(Q16 + 4, 4), v(B + 4, 4), v(Dd, 16)))
    a('v_cmp_gt_u32 vcc, 16, v15')
    a('v_cmp_gt_u32 s[40:41], 32, v15')
    Z = XA
    P = XB
    def zz(u):
        a('v_pk_add_f32 %s, %s, %s op_sel:[0,1] op_sel_hi:[1,0] neg_hi:[0,1]' % (v(Z + 2 * u, 2), v(D1 + 2 * u, 2), v(D2 + 2 * u, 2)))
    def pp(p):
        A_, B_ = v(Z + 4 * p, 2), v(Z + 4 * p + 2, 2)
        a('v_pk_add_f32 %s, %s, %s op_sel:[0,1] op_sel_hi:[1,0] neg_lo:[0,1]' % (v(P + 4 * p, 2), A_, B_))
        a('v_pk_add_f32 %s, %s, %s op_sel:[0,1] op_sel_hi:[1,0] neg_hi:[1,0]' % (v(P + 4 * p + 2, 2), A_, B_))
        a('v_cvt_pk_f16_f32 %s, %s, %s' % (v(Q16 + 2 * p), v(P + 4 * p), v(P + 4 * p + 1)))
        a('v_cvt_pk_f16_f32 %s, %s, %s' % (v(Q16 + 2 * p + 1), v(P + 4 * p + 2), v(P + 4 * p + 3)))
        a('ds_write_b32 v10, %s offset:%d' % (v(Q16 + 2 * p), 256 * p))
        a('ds_write_b32 v11, %s offset:%d' % (v(Q16 + 2 * p + 1), 256 * p))
    ZR, ZI = Z, Z + 1
    for p in (1, 2, 3):
        zz(2 * p); zz(2 * p + 1); pp(p)
    zz(0); zz(1)
    a('v_mul_f32 v8, s39, %s' % v(D1))
    a('v_mov_b32 v3, %s' % v(D3 + 1))
    a('v_permlane16_swap_b32 v4, v3')
    a('v_cndmask_b32 v5, %s, %s, vcc' % (v(D3 + 1), v(D1)))
    a('v_cndmask_b32 v4, v4, %s, vcc' % v(D2))
    a('v_cndmask_b32 %s, %s, v5, s[40:41]' % (v(ZR), v(ZR)))
    a('v_cndmask_b32 %s, %s, -v4, s[40:41]' % (v(ZI), v(ZI)))
    pp(0)
    a('s_mov_b64 exec, 0x10000')
    a('ds_write_b32 v9, v8')
    a('ds_write_b32 v201, v202')
    a('s_mov_b64 exec, -1')
    a('s_cmp_eq_u32 s16, 4'); a('s_cbranch_scc1 fk_w4')
    stamp(a, 4)
    a.label('fk_spin')
    a('ds_read_b32 v3, v205'); a('s_waitcnt lgkmcnt(0)'); a('v_cmp_eq_u32 vcc, 0, v3')
    a('s_and_b32 s13, vcc_lo, s57'); a('s_cbranch_scc1 fk_spin')
    a.label('fk_staged')
    stamp(a, 12, True)
    for q in range(2):
        a('ds_read2st64_b32 %s, %s offset0:0 offset1:4' % (v(GA + 4 * q, 2), 'v8' if q else 'v6'))
        a('ds_read2st64_b32 %s, %s offset0:8 offset1:12' % (v(GA + 4 * q + 2, 2), 'v8' if q else 'v6'))
        if q == 0: a('v_add_u32 v8, 16, v6')
    a('v_readlane_b32 s43, v3, 7')
    for q in range(2):
        a('s_waitcnt lgkmcnt(%d)' % (2 - 2 * q))
        if SEP != 'all':
            for i in range(4): a('v_or_b32 %s, 1, %s' % (v(GA + 4 * q + i), v(GA + 4 * q + i)))
        a(('buffer_store_dwordx4 %s, v194, ' + WSRD + ', s36 offen offset:%d sc1' + WNT) % (v(GA + 4 * q, 4), 128 * q))
    d0 = piece_sum(a, 3, GA, 0); d1 = piece_sum(a, 4, GA + 4, 0)
    a('s_add_u32 s36, s36, 8192')
    a(d0[0]); a(d1[0])
    a('v_cndmask_b32 v3, v3, v4, s[58:59]'); a('v_add_u32 v196, s43, v3')
    quad_gather(a, 196, 2)
    a('s_mov_b32 exec_lo, 0x03030303'); a('s_mov_b32 exec_hi, 0x03030303')
    a('buffer_store_dwordx4 v[196:199], v193, ' + WSRD + ', s36 offen sc1' + WNT)
    a('s_mov_b64 exec, -1')
    a('s_cmp_lg_u32 s16, 0'); a('s_cbranch_scc1 fk_nog5')
    a('v_and_b32 v9, 16, v14'); a('v_add_u32 v9, %d, v9' % LG5S)
    a('ds_read_b128 v[16:19], v9')
    a('s_lshl_b32 s13, s3, 4'); a('s_add_u32 s13, s13, 0x%x' % G5)
    a.label('fk_g5s')
    a('ds_read_b32 v3, v205'); a('s_waitcnt lgkmcnt(0)'); a('v_cmp_eq_u32 vcc, 0, v3')
    a('s_and_b32 s14, vcc_lo, 64'); a('s_cbranch_scc1 fk_g5s')
    for i in range(4): a('v_min_u32 %s, -2, %s' % (v(16 + i), v(16 + i)))
    a('s_mov_b64 exec, 1')
    a('buffer_store_dwordx4 v[16:19], v14, s[24:27], s13 offen sc1')
    a('s_mov_b64 exec, -1')
    a.label('fk_nog5')
    unit_setup(a)
    a('s_mov_b64 s[4:5], s[58:59]')
    window(a, UA, KA, 16, 0)
    if NF:
        spf_base(a, 21, L2, NF, 16)
        for i in range(NF): a(spf(21, i))
    a('s_mov_b32 s42, 0')
    a('s_waitcnt vmcnt(0)')
    if NB: a('v_mov_b32 v3, %d' % (LSIG + 60)); a('ds_write_b32 v3, v202')
    stamp(a, 5)
    if SLW: a('s_sleep %d' % SLW)
    a.label('fk_pollw')
    a(('buffer_load_dwordx4 %s, v12, ' + WSRD + ', s37 offen sc1') % v(GA, 4))
    a(('buffer_load_dwordx4 %s, v12, ' + WSRD + ', s38 offen sc1') % v(GA + 4, 4))
    a('buffer_load_dword v5, v192, ' + WSRD + ', s23 offen sc1')
    a('s_waitcnt vmcnt(1)')
    d0 = piece_sum(a, 3, GA, 0); d1 = piece_sum(a, 4, GA + 4, 0)
    a('ds_write_b128 v7, %s' % v(GA, 4))
    a(d0[0]); a(d1[0])
    a('ds_write_b128 v7, %s offset:1024' % v(GA + 4, 4))
    a('v_cndmask_b32 v3, v3, v4, s[4:5]'); a('v_add_u32 v3, s43, v3')
    a('s_waitcnt vmcnt(0)')
    a('v_cmp_ne_u32 vcc, v3, v5')
    poll_tail(a, 42, 'fk_pollw', 'fk_gotw')
    stamp(a, 6)
    a('s_waitcnt lgkmcnt(0)')
    a('s_barrier')
    a('s_setprio 0')
    stamp(a, 7)
    a('s_or_b32 s13, s3, s16'); a('s_cbranch_scc1 fk_nobump')
    a('v_mov_b32 v3, s43'); a('s_mov_b64 exec, 1')
    a('buffer_store_dword v3, v14, s[24:27], 0 offen sc1')
    a('s_mov_b64 exec, -1')
    a.label('fk_nobump')
    a('s_lshl_b32 s13, s16, 10'); a('s_add_u32 s14, s13, 0x%x' % G5); a('s_add_u32 s13, s13, %d' % LG5)
    a('v_add_u32 v7, s13, v14'); a('v_mov_b32 v3, 4096'); a('s_mov_b32 s15, 0x%x' % G5); a('v_mov_b32 v8, %d' % LG5E)
    a('buffer_load_dwordx4 %s, v14, s[24:27], s14 offen sc1' % v(GA, 4))
    a('buffer_load_dword %s, v3, s[24:27], s15 offen sc1' % v(GA + 4))
    a('s_mov_b32 s40, s14'); a('s_mov_b32 s41, s15')
    window(a, UB, KB, 16, 0, PB, remap=STATIC)
    a('s_mov_b32 s42, 0')
    a('s_cmp_gt_u32 s3, 223'); a('s_cbranch_scc1 fk_pollg')
    a('s_waitcnt vmcnt(%d)' % (min(KB, PB + 1) if UB + 4 * KB <= 96 else 0))
    a('s_branch fk_chkg')
    a.label('fk_pollg')
    a('buffer_load_dwordx4 %s, v14, s[24:27], s40 offen sc1' % v(GA, 4))
    a('buffer_load_dword %s, v3, s[24:27], s41 offen sc1' % v(GA + 4))
    a('s_waitcnt vmcnt(0)')
    a.label('fk_chkg')
    poll_check(a, list(range(GA, GA + 5)), 4, 42, 'fk_pollg', 'fk_gotg', wait=False)
    a('ds_write_b128 v7, %s' % v(GA, 4)); a('ds_write_b32 v8, %s' % v(GA + 4))
    stamp(a, 14, True)
    a('s_branch fk_common')
    a.label('fk_w4')
    for p in range(4): a('v_min_u32 %s, -2, %s' % (v(GA + p), v(Q16 + 2 * p)))
    a('v_min_u32 v8, -2, v8'); a('v_mov_b32 v4, 4096'); a('s_mov_b32 s14, 0x%x' % RB); a('s_mov_b32 s15, 0x%x' % G5)
    a.label('fk_w4s')
    a('ds_read_b32 v3, v205'); a('s_waitcnt lgkmcnt(0)'); a('v_cmp_eq_u32 vcc, 0, v3')
    a('s_and_b32 s13, vcc_lo, 32'); a('s_cbranch_scc1 fk_w4s')
    a('buffer_store_dwordx4 %s, v14, s[24:27], s14 offen sc1' % v(GA, 4))
    a('s_mov_b64 exec, 0x10000')
    a('buffer_store_dword v8, v4, s[24:27], s15 offen sc1')
    a('s_mov_b64 exec, -1')
    a('s_branch fk_Hconst')
    a.label('fk_H')
    A, B1, TC, TS, C2, S2, V, D1, D2, T16, AD, CS = 16, 48, 80, 96, 112, 120, 128, 144, 160, 176, 184, 192
    a('s_barrier')
    if BASE: a('s_waitcnt lgkmcnt(0)'); rebase(a)
    a('s_cmp_lg_u32 s16, 7'); a('s_cbranch_scc1 fk_Hconst')
    for i in range(4): a('v_mov_b32 %s, -1' % v(4 + i))
    a('v_mov_b32 v3, %d' % LKEY); a('v_mov_b32 v8, 0'); a('ds_write_b32 v3, v8')
    a('v_lshlrev_b32 v3, 12, v15'); a('s_lshl_b32 s13, s3, 4'); a('s_add_u32 s14, s13, 0x%x' % KEYS); a('s_add_u32 s15, s13, 0x%x' % G5)
    a('v_mov_b32 v201, %d' % (LSIG + 20)); a('v_mov_b32 v204, 1')
    a('s_waitcnt lgkmcnt(0)')
    stamp(a, 1)
    a('s_load_dword s56, s[24:25], 0')
    if '--wwarm' in OPT:
        a('s_mul_i32 s36, s3, %d' % OS); a('s_add_u32 s36, s36, 0x%x' % WOFF); a('s_add_u32 s37, s36, 4096'); a('s_add_u32 s40, s36, 8192')
        for i in range(9): a('buffer_store_dwordx4 v[4:7], v14, s[24:27], %s offen offset:%d sc1' % (s((36, 37, 40)[i >> 2]), 1024 * (i & 3)))
    a('s_mov_b64 exec, 0xff')
    a('buffer_store_dwordx4 v[4:7], v3, s[24:27], s14 offen sc1')
    a('s_cmp_eq_u32 s3, 255'); a('s_cselect_b32 exec_lo, 3, 1')
    a('buffer_store_dwordx4 v[4:7], v14, s[24:27], s15 offen sc1')
    a('s_mov_b64 exec, -1')
    for i in range(2):
        a('s_mov_b32 m0, %d' % (LWR + 1024 * i)); a('s_mov_b32 s12, %d' % (1024 * i))
        a('buffer_load_dwordx4 v14, s[32:35], s12 offen lds')
    a('s_cmp_eq_u32 s3, 255'); a('s_cselect_b32 s12, 0x%x, s26' % RB)
    a('buffer_store_dwordx4 v[4:7], v14, s[24:27], s12 offen sc1')
    a('s_cmp_lg_u32 s3, 248'); a('s_cbranch_scc1 fk_no1024')
    for i in range(2):
        a('s_mov_b32 m0, %d' % (LX1024 + 1024 * i)); a('s_mov_b32 s14, %d' % (1024 * 2048 + 1024 * i))
        a('buffer_load_dwordx4 v14, s[8:11], s14 offen lds')
    a.label('fk_no1024')
    a('s_mul_i32 s38, s3, %d' % YS); a('s_add_u32 s38, s38, 0x%x' % YOFF); a('s_add_u32 s39, s38, 4096')
    if YD:
        a('s_waitcnt vmcnt(0) lgkmcnt(0)')
        a('s_add_u32 s57, s56, 1'); a('v_mov_b32 v202, s57'); a('ds_write_b32 v201, v202 offset:8'); a('ds_write_b32 v201, v204')
        if YD > 1: a('s_sleep %d' % YD)
    for i in range(8): a('buffer_store_dwordx4 v[4:7], v14, s[24:27], %s offen offset:%d sc1%s' % (s(38 + (i >> 2)), 1024 * (i & 3), CNT))
    if SEP:
        a('s_mul_i32 s38, s3, %d' % OS); a('s_add_u32 s38, s38, 0x%x' % COFF); a('s_add_u32 s39, s38, 4096')
        for i in (range(6) if SEP == 'all' else (4, 5)): a('buffer_store_dwordx4 v[4:7], v14, s[24:27], %s offen offset:%d sc1' % (s(38 + (i >> 2)), 1024 * (i & 3)))
    a('s_waitcnt lgkmcnt(0)')
    a('s_add_u32 s56, s56, 1'); a('v_mov_b32 v202, s56')
    a('ds_write_b32 v201, v202 offset:8')
    if SPLIT:
        a('s_waitcnt vmcnt(%d)' % (8 + {'': 0, 'p': 2, 'all': 6}[SEP]))
        a('ds_write_b32 v201, v204')
        a('s_waitcnt vmcnt(0)')
        a('ds_write_b32 v201, v204 offset:4')
    else:
        a('s_waitcnt vmcnt(0)')
        a('ds_write_b32 v201, v204'); a('ds_write_b32 v201, v204 offset:4')
    stamp(a, 2)
    a.label('fk_Hconst')
    a('s_sub_u32 s20, s16, 4')
    unit_setup(a)
    a('s_and_b32 s12, s20, 1'); a('s_lshl_b32 s12, s12, 6'); a('v_xor_b32 v206, s12, v208'); a('v_xor_b32 v207, 64, v206')
    a('s_mov_b32 s6, 0x700000'); a('s_mov_b32 s7, 0x00020000')
    a('s_cmp_gt_u32 s3, 223'); a('s_cselect_b32 s36, 3, s20')
    a('s_waitcnt lgkmcnt(0)')
    PACE = int(optval('pace', '99')); GAP = int(optval('gap', '8')); FIRST = int(optval('first', '4')); DELAY = int(optval('delay', '80'))
    def gu(n):
        g = ['s_cmp_eq_u32 s36, 3', 's_cbranch_scc1 fk_gu%d' % n, 's_add_u32 s37, s20, %d' % (3 * n),
             's_lshl_b32 s12, s37, 10', 's_mov_b32 m0, s12']
        va = 'v207' if n & 1 else 'v206'
        if n < 21:
            g += ['s_cmp_lt_u32 s37, 32', 's_cselect_b64 s[4:5], s[44:45], s[48:49]',
                  's_and_b32 s37, s37, 31', 's_mul_i32 s37, s37, %d' % (8 * 7168), 's_add_u32 s37, s37, s100']
            assert not MIX or 3 * n + 2 < 16
        elif n == 21:
            g += ['s_cmp_eq_u32 s20, 0', 's_cselect_b64 s[4:5], s[48:49], s[52:53]', 's_cselect_b64 s[8:9], -1, 0',
                  's_lshl_b32 s12, s20, 12', 's_add_u32 s12, s12, s101', 's_sub_u32 s12, s12, 4096', 's_add_u32 s37, s100, %d' % (31 * 8 * 7168),
                  's_cmp_eq_u32 s20, 0', 's_cselect_b32 s37, s37, s12', 'v_cndmask_b32 v209, v210, v207, s[8:9]']
            va = 'v209'
        else:
            g += ['s_mov_b64 s[4:5], s[52:53]', 's_sub_u32 s37, s37, 64', 's_lshl_b32 s37, s37, 12', 's_add_u32 s37, s37, s101']
            va = 'v210'
        if n >= PACE: g.append('s_waitcnt vmcnt(%d)' % PACE)
        g.append('buffer_load_dwordx4 %s, s[4:7], s37 offen%s lds' % (va, DMAF))
        g.append('@fk_gu%d' % n)
        return g
    assert NH <= 32
    trig = []
    if XT: trig = ['v_mov_b32 v211, %d' % (LSIG + 64), '@fk_xt', 's_sleep 1', 'ds_read_b32 v212, v211', 's_waitcnt lgkmcnt(0)', 'v_readfirstlane_b32 s12, v212', 's_nop 1', 's_cmp_eq_u32 s12, 0', 's_cbranch_scc1 fk_xt']
    groups = [trig + sum([gu(n) for n in range(min(FIRST, NH))], [])] + [gu(n) for n in range(FIRST, NH)]
    if N1:
        spf_base(a, 21, 0, N1, 20)
        a('s_cmp_eq_u32 s16, 7'); a('s_cselect_b32 s21, 0x700000, s21')
        groups += [[spf(21, i)] for i in range(N1)]
    a.inject(groups, GAP); a.cnt = GAP - DELAY
    a('v_lshrrev_b32 v4, 1, v1')
    a('v_and_b32 v5, 1, v4'); a('v_lshrrev_b32 v6, 2, v4'); a('v_lshl_add_u32 v5, v6, 1, v5')
    a('v_and_b32 v6, 2, v4'); a('v_lshl_add_u32 v5, v6, 2, v5')
    a('s_and_b32 s13, s20, 1'); a('s_mul_i32 s13, s13, 15'); a('v_xor_b32 v5, s13, v5')
    a('s_lshl_b32 s13, s20, 4'); a('v_add_u32 v5, s13, v5')
    a('v_cvt_f32_u32 v5, v5')
    a('v_and_b32 v9, 1, v1')
    a('v_lshlrev_b32 v7, 2, v2'); a('v_cvt_f32_u32 v7, v7')
    a('v_cvt_f32_u32 v10, v9')
    a('v_mul_f32 v8, %s, v5' % fh(1.0 / 64))
    a('v_mul_f32 v10, %s, v10' % fh(0.25))
    a('v_fma_f32 v10, v8, v7, v10')
    T = V
    for half in range(2):
        ks = [8 * kap + u for kap in range(4 * half, 4 * half + 4) for u in range(4)]
        angles(a, 8, 10, ks, T)
        for i in range(16): a('v_cos_f32 %s, %s' % (v(T + 16 + i), v(T + i)))
        for i in range(16): a('v_sin_f32 %s, %s' % (v(T + 32 + i), v(T + i)))
        for i in range(16): a('v_cvt_pk_f16_f32 %s, %s, %s' % (v(B1 + 16 * half + i), v(T + 16 + i), v(T + 32 + i)))
    a('v_lshlrev_b32 v11, 31, v9')
    a('v_mul_f32 v10, %s, v5' % fh(1.0 / 2048)); a('v_xor_b32 v10, v11, v10'); a('v_mul_f32 v11, v10, v7')
    angles(a, 10, 11, [kr(r) for r in range(16)], T)
    for r in range(16): a('v_cos_f32 %s, %s' % (v(TC + r), v(T + r)))
    for r in range(16): a('v_sin_f32 %s, %s' % (v(TS + r), v(T + r)))
    a('v_sub_u32 v4, 31, v1'); a('v_subrev_u32 v5, 1, v1')
    a('v_cmp_lt_u32 vcc, 16, v1')
    a('v_cndmask_b32 v4, v5, v4, vcc'); a('v_and_b32 v4, 15, v4')
    a('v_lshlrev_b32 v4, 5, v4'); a('v_add_u32 v4, %d, v4' % LA2)
    a('v_lshlrev_b32 v5, 9, v2')
    a('v_add_u32 v6, v4, v5')
    a('v_sub_u32 v7, v4, v5'); a('v_add_u32 v7, %d, v7' % (15 * 512 + 16))
    a('v_cmp_eq_u32 s[38:39], 0, v1')
    a('v_mov_b32 v8, 4096')
    a('v_cndmask_b32 v8, 0, v8, s[38:39]')
    a('v_add_u32 v6, v6, v8'); a('v_add_u32 v7, v7, v8')
    a('v_and_b32 v8, 15, v1'); a('v_cmp_eq_u32 s[38:39], 0, v8')
    a('s_or_b64 s[40:41], s[38:39], vcc')
    for k in range(8):
        a('v_add_u32 %s, %d, v6' % (v(AD + k), 1024 * k)); a('v_subrev_u32 v8, %d, v7' % (1024 * k))
        a('v_cndmask_b32 %s, %s, v8, %s' % (v(AD + k), v(AD + k), 'vcc' if k < 4 else 's[40:41]'))
    for k in range(4, 8): a('v_add_u32 %s, 512, %s' % (v(212 + k - 4), v(AD + k)))
    a('v_subrev_u32 v8, 4096, v212'); a('v_cmp_eq_u32 vcc, 0, v2'); a('v_cndmask_b32 v212, v212, v8, vcc')
    def posD(d, x, t):
        a('v_and_b32 %s, 3, %s' % (v(t), v(x))); a('v_lshlrev_b32 %s, 2, %s' % (v(t), v(t))); a('v_lshlrev_b32 %s, 3, %s' % (v(d), v(x))); a('v_sub_u32 %s, %s, %s' % (v(d), v(d), v(t)))
    def posM(d, x, t):
        a('v_and_b32 %s, 3, %s' % (v(t), v(x))); a('v_mul_u32_u24 %s, 12, %s' % (v(t), v(t))); a('v_lshlrev_b32 %s, 3, %s' % (v(d), v(x))); a('v_sub_u32 %s, %s, %s' % (v(d), v(d), v(t))); a('v_add_u32 %s, 28, %s' % (v(d), v(d)))
    a('s_lshr_b32 s13, s20, 1'); a('v_lshl_add_u32 v3, v1, 1, s13')
    a('s_and_b32 s13, s20, 1'); a('s_sub_u32 s14, 64, s13')
    posD(4, 3, 8)
    a('v_sub_u32 v5, 63, v3'); posM(6, 5, 8)
    a('v_sub_u32 v5, s14, v3'); posM(7, 5, 8)
    a('v_cmp_gt_u32 vcc, 32, v3'); a('v_cndmask_b32 v7, v7, v4, vcc')
    a('v_cmp_eq_u32 vcc, 32, v5'); a('v_cndmask_b32 v7, v7, 28, vcc')
    a('s_cmp_eq_u32 s13, 0'); a('s_cselect_b32 s14, 256, 0'); a('s_cselect_b32 s15, 576, 0')
    a('s_cselect_b64 s[38:39], -1, 0')
    a('s_add_u32 s14, s14, %d' % (240 * 32)); a('s_sub_u32 s15, %d, s15' % LWS)
    a('v_cmp_gt_u32 vcc, 32, v3'); a('v_cndmask_b32 v7, v7, v4, vcc')
    a('v_add_u32 v7, s14, v7')
    a('v_cndmask_b32 v4, v6, v4, s[38:39]'); a('v_lshl_add_u32 v4, v2, 12, v4')
    for r in (4, 7): a('v_lshrrev_b32 v8, 7, %s' % v(r)); a('v_lshl_add_u32 %s, v8, 4, %s' % (v(r), v(r)))
    a('v_add_u32 v11, s15, v4'); a('v_add_u32 v7, %d, v7' % LWS)
    a('v_add_u32 v12, %d, v11' % (7 * 576))
    a('v_cmp_eq_u32 vcc, s13, v2')
    a('s_and_b64 s[40:41], vcc, s[38:39]'); a('s_andn2_b64 s[38:39], vcc, s[38:39]')
    a('v_cndmask_b32 v10, v11, v7, s[40:41]'); a('v_cndmask_b32 v12, v12, v7, s[38:39]')
    a('s_lshl_b32 s23, s20, 5'); a('s_add_u32 s23, s23, s18')
    def y5cos():
        a('v_and_b32 v3, 15, v15'); a('v_lshrrev_b32 v4, 4, v15'); a('v_lshl_add_u32 v3, v3, 7, v4'); a('v_add_u32 v3, 1, v3')
        a('v_cmp_le_u32 vcc, 56, v15'); a('v_mov_b32 v4, %d' % (2048 - 1040)); a('v_cndmask_b32 v4, 0, v4, vcc'); a('v_add_u32 v4, v3, v4')
        for r in (3, 4):
            a('v_mul_u32_u24 %s, s23, %s' % (v(r), v(r))); a('v_and_b32 %s, 2047, %s' % (v(r), v(r)))
            a('v_cvt_f32_u32 %s, %s' % (v(r), v(r))); a('v_mul_f32 %s, %s, %s' % (v(r), fh(1.0 / 2048), v(r)))
        a('v_cvt_f32_u32 v5, s23'); a('v_mul_f32 v5, %s, v5' % fh(1.0 / 2048))
        angles(a, 5, 3, [32 * w + 4 * q for q in range(3) for w in range(4)], CS)
        angles(a, 5, 4, [32 * w + 12 for w in range(4)], CS + 12)
        for i in range(16): a('v_cos_f32 %s, %s' % (v(CS + i), v(CS + i)))
    a.inject_flush()
    stamp(a, 5)
    y5cos()
    a('v_add_u32 v9, %d, v14' % LROW); a('v_mov_b32 v3, %d' % (LSIG + 40))
    if NB:
        a('s_cmp_eq_u32 s36, 3'); a('s_cbranch_scc1 fk_spx')
        spf_base(a, 21, L1, 14 * NB, 20)
        for b in range(NB):
            a('ds_read_b32 v4, v3 offset:20'); a('s_waitcnt lgkmcnt(0)'); a('v_readfirstlane_b32 s13, v4')
            a('s_cmp_lg_u32 s13, 0'); a('s_cbranch_scc1 fk_spx')
            for i in range(14): a(spf(21, 14 * b + i))
        a.label('fk_spx')
    a.label('fk_c2s')
    a('ds_read_b32 v4, v3'); a('s_waitcnt lgkmcnt(0)'); a('v_readfirstlane_b32 s13, v4')
    a('s_cmp_eq_u32 s13, 0'); a('s_cbranch_scc1 fk_c2s')
    for q in range(4): a('ds_read_b128 %s, v9 offset:%d' % (v(C2 + 4 * q, 4), 1024 * (12 + q)))
    a('s_setprio 2')
    a('s_waitcnt lgkmcnt(0)')
    stamp(a, 6)
    a('s_barrier')
    stamp(a, 7)
    for k in range(8): a('ds_read_b128 %s, %s' % (v(A + 4 * k, 4), v(AD + k)))
    a('s_mov_b32 exec_lo, 1'); a('s_mov_b32 exec_hi, 1')
    for k in range(4, 8): a('ds_read_b32 %s, %s' % (v(A + 4 * k), v(212 + k - 4)))
    a('s_mov_b64 exec, -1')
    for k in range(8):
        a('s_waitcnt lgkmcnt(%d)' % (11 - k if k < 4 else 7 - k))
        a('v_mfma_f32_32x32x16_f16 %s, %s, %s, %s' % (v(V, 16), v(A + 4 * k, 4), v(B1 + 4 * k, 4), '0' if k == 0 else v(V, 16)))
    W = A
    for r in range(8): a('v_pk_mul_f32 %s, %s, %s' % (v(W + 2 * r, 2), v(V + 2 * r, 2), v(TC + 2 * r, 2)))
    for r in range(8): a('v_fmac_f32_dpp %s, %s, %s quad_perm:[1,0,3,2] %s' % (v(W + r), v(V + r), v(TS + r), DPPF))
    for p in range(4): a('v_cvt_pk_f16_f32 %s, %s, %s' % (v(T16 + p), v(W + 2 * p), v(W + 2 * p + 1)))
    rest = ['v_fmac_f32_dpp %s, %s, %s quad_perm:[1,0,3,2] %s' % (v(W + r), v(V + r), v(TS + r), DPPF) for r in range(8, 16)]
    rest += ['v_cvt_pk_f16_f32 %s, %s, %s' % (v(T16 + p), v(W + 2 * p), v(W + 2 * p + 1)) for p in range(4, 8)]
    for x in rest[0:2]: a(x)
    a('v_mfma_f32_32x32x16_f16 %s, %s, %s, 0' % (v(D1, 16), v(T16, 4), v(C2, 4)))
    for x in rest[2:7]: a(x)
    a('v_mfma_f32_32x32x16_f16 %s, %s, %s, 0' % (v(D2, 16), v(T16, 4), v(S2, 4)))
    for x in rest[7:]: a(x)
    for (Dd, B) in ((D1, C2), (D2, S2)):
        a('v_mfma_f32_32x32x16_f16 %s, %s, %s, %s' % (v(Dd, 16), v(T16 + 4, 4), v(B + 4, 4), v(Dd, 16)))
    for u in range(8):
        a('v_pk_add_f32 %s, %s, %s op_sel:[0,1] op_sel_hi:[1,0] neg_hi:[0,1]' % (v(A + 2 * u, 2), v(D1 + 2 * u, 2), v(D2 + 2 * u, 2)))
    for u in range(8):
        a('v_cvt_pk_f16_f32 %s, %s, %s' % (v(B1 + u), v(A + 2 * u), v(A + 2 * u + 1)))
        if u == 0: a('ds_write_b32 v10, %s' % v(B1))
        elif u == 7: a('ds_write_b32 v12, %s' % v(B1 + 7))
        else: a('ds_write_b32 v11, %s offset:%d' % (v(B1 + u), 576 * u))
    stamp(a, 14, True)
    a.label('fk_common')
    a('v_lshlrev_b32 v4, 4, v0'); a('v_lshrrev_b32 v5, 3, v0'); a('v_lshl_add_u32 v5, v5, 4, v4'); a('v_add_u32 v5, %d, v5' % LWS)
    a('s_mul_i32 s17, s3, %d' % YS); a('s_add_u32 s17, s17, 0x%x' % YOFF)
    a('s_waitcnt lgkmcnt(0)'); a('s_barrier')
    stamp(a, 8)
    a('s_setprio 0')
    a('ds_read_b128 v[16:19], v5')
    XR, WP, YR, H, HN, HP, TMP, OUT = 20, 28, 36, 48, 64, 80, 96, 112
    a('s_sub_u32 s13, 7, s16'); a('s_cmp_lt_u32 s16, 4'); a('s_cselect_b32 s13, s16, s13'); a('s_cselect_b32 s14, 0, 2048')
    a('s_lshl_b32 s21, s13, 5'); a('s_add_u32 s21, s21, s18'); a('s_sub_u32 s22, 2048, s21'); a('s_and_b32 s22, s22, 2047')
    a('s_cmp_lt_u32 s16, 4'); a('s_cselect_b32 s21, s21, s22')
    a('s_lshl_b32 s13, s13, 12'); a('s_add_u32 s13, s13, s14'); a('s_add_u32 s13, s13, %d' % LX)
    a('s_lshl_b32 s14, s3, 3'); a('s_add_u32 s19, s14, s16')
    a('s_cmp_eq_u32 s19, %d' % (248 * 8 + 7)); a('s_cselect_b32 s21, 1024, s21'); a('s_cselect_b32 s13, %d, s13' % LX1024)
    a('s_lshl_b32 s22, s21, 11')
    a('v_add_u32 v6, s13, v14'); a('v_add_u32 v7, %d, v14' % LWR)
    a('s_waitcnt lgkmcnt(0)')
    for i in range(4): a('v_min_u32 %s, -2, %s' % (v(16 + i), v(16 + i)))
    a('buffer_store_dwordx4 v[16:19], v4, s[24:27], s17 offen sc1')
    a('ds_read_b128 %s, v6' % v(XR, 4)); a('ds_read_b128 %s, v6 offset:1024' % v(XR + 4, 4))
    a('ds_read_b128 %s, v7' % v(WP, 4)); a('ds_read_b128 %s, v7 offset:1024' % v(WP + 4, 4))
    a('s_cmp_lt_u32 s16, 4'); a('s_cbranch_scc1 fk_noy5')
    window(a, UE, KE, 16, 4, PE)
    G5R = 128
    a('v_add_u32 v3, %d, v14' % LG5); a('v_mov_b32 v4, %d' % LG5E)
    for q in range(4): a('ds_read_b128 %s, v3 offset:%d' % (v(G5R + 4 * q, 4), 1024 * q))
    a('ds_read_b32 v9, v4')
    a('s_lshl_b32 s38, s20, 2'); a('s_sub_u32 s39, 28, s38')
    a('s_waitcnt lgkmcnt(0)')
    a.label('fk_y5')
    for kk in range(2): a('v_pk_mul_f32 %s, %s, %s' % (v(144 + 2 * kk, 2), v(G5R + 2 * kk, 2), v(CS + 2 * kk, 2)))
    for kk in range(2, 8): a('v_pk_fma_f32 %s, %s, %s, %s' % (v(144 + 2 * (kk & 1), 2), v(G5R + 2 * kk, 2), v(CS + 2 * kk, 2), v(144 + 2 * (kk & 1), 2)))
    a('v_pk_add_f32 v[144:145], v[144:145], v[146:147]')
    a('v_add_f32 v144, v144, v145')
    a('s_lshl_b32 s13, s23, 31'); a('v_xor_b32 v12, s13, v9')
    wave_reduce(a, [144])
    a('v_add_f32 v144, v144, v12'); a('v_add_f32 v144, v144, v144'); a('v_cvt_f16_f32 v144, v144')
    a('s_add_u32 s13, s38, %d' % LY5); a('s_add_u32 s14, s39, %d' % LY5)
    a('v_mov_b32 v10, s13'); a('v_mov_b32 v11, s14')
    a('s_mov_b32 exec_lo, 0'); a('s_mov_b32 exec_hi, 0x80000000')
    a('ds_write_b32 v10, v144'); a('ds_write_b32 v11, v144')
    a('s_mov_b64 exec, -1')
    a('s_cmp_lg_u32 s23, 0'); a('s_cbranch_scc1 fk_noy5')
    a('s_mov_b32 s23, 1024'); a('s_mov_b32 s38, 28')
    y5cos()
    a('s_branch fk_y5')
    a.label('fk_noy5')
    a('v_lshrrev_b32 v1, 1, v0'); a('v_and_b32 v45, 1, v0')
    a('v_lshrrev_b32 v2, 4, v1'); a('v_and_b32 v3, 15, v1')
    a('v_cmp_gt_u32 vcc, 8, v3')
    a('v_sub_u32 v6, 16, v3'); a('v_and_b32 v6, 7, v6'); a('v_sub_u32 v5, 31, v2')
    a('v_cndmask_b32 v6, v6, v3, vcc'); a('v_cndmask_b32 v5, v5, v2, vcc')
    a('v_lshl_add_u32 v4, v6, 5, v5'); a('v_and_b32 v12, 63, v4'); a('v_lshrrev_b32 v13, 6, v4'); a('v_lshlrev_b32 v13, 2, v13'); a('v_lshl_add_u32 v12, v12, 4, v13')
    a('s_mov_b32 s23, 0x%x' % RB); a('s_mov_b32 s42, 0')
    a('buffer_load_dword v47, v12, s[24:27], s23 offen sc1')
    a('v_mul_u32_u24 v4, %d, v4' % YS); a('v_lshl_add_u32 v4, v45, 4, v4')
    a('s_lshl_b32 s17, s3, 5'); a('s_add_u32 s17, s17, 0x%x' % YOFF)
    a('v_cndmask_b32 v6, -1, 1, vcc')
    a('v_cmp_eq_u32 vcc, 8, v3')
    a('v_mul_u32_u24 v46, %d, v45' % (4 * RS)); a('v_add_u32 v46, %d, v46' % LROW)
    a('v_cndmask_b32 v6, v6, 15, vcc')
    a('v_lshlrev_b32 v9, 2, v1'); a('v_lshl_add_u32 v10, v6, 1, v9')
    a('v_add_u32 v9, v46, v9'); a('v_add_u32 v10, v46, v10')
    a('s_mul_i32 s36, s16, %d' % RS); a('s_add_u32 s36, s36, %d' % LROW); a('v_add_u32 v5, s36, v14')
    a('s_sub_u32 s36, 7, s16'); a('s_cmp_eq_u32 s21, 0'); a('s_cselect_b32 s36, 0, s36'); a('s_cmp_eq_u32 s21, 1024'); a('s_cselect_b32 s36, 7, s36')
    a('s_mul_i32 s36, s36, %d' % RS); a('s_add_u32 s36, s36, %d' % (LROW + 1008)); a('v_sub_u32 v11, s36, v14')
    a('s_lshl_b32 s36, s16, 2'); a('s_add_u32 s36, s36, %d' % LY5); a('v_mov_b32 v6, s36')
    a('s_mov_b32 s36, 0xffff0000'); a('s_mov_b32 s37, 0x3f803f80'); a('s_mov_b32 s38, %s' % fh(64.0))
    a('s_waitcnt lgkmcnt(0)')
    for k in range(8):
        a('v_lshlrev_b32 %s, 16, %s' % (v(H + 2 * k), v(XR + k))); a('v_and_b32 %s, s36, %s' % (v(H + 2 * k + 1), v(XR + k)))
    a('v_mov_b32 v44, 0')
    for k in range(8): a('v_dot2c_f32_bf16 v44, s37, %s' % v(WP + k))
    wave_reduce(a, [44])
    a('v_readlane_b32 s39, v44, 63')
    if NE:
        spf_base(a, 57, L3, NE, 16)
        for i in range(NE): a(spf(57, i))
    a('s_and_b32 s13, s18, 1'); a('s_mul_i32 s40, s13, 0x80008000')
    a('s_branch fk_chkr1')
    a.label('fk_pollr1')
    a('buffer_load_dword v47, v12, s[24:27], s23 offen sc1')
    a.label('fk_chkr1')
    poll_check(a, [47], 46, 42, 'fk_pollr1', 'fk_gotr1')
    a('v_xor_b32 v47, s40, v47')
    a('s_mov_b32 s42, 0')
    stamp(a, 9)
    if SLY: a('s_sleep %d' % SLY)
    def scatter():
        for u in range(4):
            a('ds_write_b16 v9, %s offset:%d' % (v(YR + u), u * RS))
            a('ds_write_b16_d16_hi v10, %s offset:%d' % (v(YR + u), u * RS))
    a.label('fk_polly')
    a('buffer_load_dwordx4 %s, v4, s[24:27], s17 offen sc1' % v(YR, 4))
    poll_check(a, list(range(YR, YR + 4)), 46, 42, 'fk_polly', 'fk_goty')
    for u in range(4): a('v_pk_add_f16 %s, %s, v47' % (v(YR + u), v(YR + u)))
    scatter()
    stamp(a, 10)
    if CAFTER and STATIC: cissue = window_static(a, 1, 0, 4, 16, 'c')
    if not CAFTER:
        if STATIC: window_static(a, 1, 0, 4, 16, 'c')()
        else: window(a, UC, KC, 16, 0, PC)
    a('v_mov_b32 v2, 0'); a('v_mov_b32 v3, 0'); a('v_mov_b32 v4, 0'); a('v_mov_b32 v7, 0')
    a('v_mov_b32 v12, %d' % LKEY)
    a('s_waitcnt lgkmcnt(0)')
    a('s_barrier')
    stamp(a, 11)
    a('ds_read_b128 %s, v5' % v(YR, 4)); a('ds_read_b128 %s, v11' % v(YR + 4, 4)); a('ds_read_b32 v44, v6')
    if CAFTER:
        if STATIC: cissue()
        else: window(a, UC, KC, 16, 0, PC)
    def mix(e, r, hi):
        a('v_fma_mix_f32 %s, %s, s38, %s op_sel:[%d,0,0] op_sel_hi:[1,0,0]' % (v(H + e), v(r), v(H + e), hi))
    a('s_waitcnt lgkmcnt(2)')
    for k in range(4): mix(2 * k, YR + k, 0); mix(2 * k + 1, YR + k, 1)
    a('s_waitcnt lgkmcnt(0)')
    stamp(a, 15, True)
    a('v_readfirstlane_b32 s13, v44')
    a('v_mov_b32_dpp v8, %s wave_shr:1 row_mask:0xf bank_mask:0xf' % v(YR + 4))
    for j in (3, 2, 1, 0):
        mix(15 - 2 * j, YR + 4 + j, 1)
        if j: mix(16 - 2 * j, YR + 4 + j, 0)
        if j == 2: a('v_writelane_b32 v8, s13, 0')
    mix(8, 8, 0)
    for k in [0, 1, 2, 3, 5, 6, 7, 4]: a('v_cvt_pk_bf16_f32 %s, %s, %s' % (v(HP + k), v(H + 2 * k), v(H + 2 * k + 1)))
    for k in [0, 1, 2, 3, 5, 6, 7, 4]:
        a('v_dot2c_f32_bf16 v2, s37, %s' % v(HP + k)); a('v_dot2c_f32_bf16 v3, %s, %s' % (v(HP + k), v(HP + k)))
        a('v_dot2c_f32_bf16 v4, %s, %s' % (v(HP + k), v(WP + k)))
    reduce4(a, 2, 4, 3, 7)
    a('v_readlane_b32 s13, v2, 32')
    ln_chain(a, 2, 8, 9)
    a('v_mov_b32 v10, s13'); a('v_fma_f32 v10, -v8, s39, v10'); a('v_mul_f32 v10, v10, v9'); a('v_mul_f32 v8, v8, v9')
    a('v_readlane_b32 s43, v10, 16'); a('v_readlane_b32 s4, v9, 16'); a('v_readlane_b32 s6, v8, 16')
    a('s_ashr_i32 s13, s43, 31'); a('s_or_b32 s13, s13, 0x80000000'); a('s_xor_b32 s43, s43, s13')
    a('s_and_b32 s43, s43, 0xfffff800'); a('s_or_b32 s43, s43, s19'); a('s_min_u32 s43, s43, -2')
    a('v_mov_b32 v2, s43')
    a('s_mov_b64 exec, 1')
    a('ds_max_u32 v12, v2')
    a('s_mov_b64 exec, -1')
    stamp(a, 16, True)
    a('v_mov_b32 v10, s6'); a('v_add_f32 v8, 1.0, v9')
    a('v_lshlrev_b32 v4, 12, v15'); a('s_lshl_b32 s17, s3, 4'); a('s_add_u32 s17, s17, 0x%x' % KEYS)
    a('v_readlane_b32 s14, v8, 16')
    a('s_waitcnt lgkmcnt(0)')
    a('s_barrier')
    a('ds_read_b32 v3, v12')
    for k in range(8):
        a('v_lshlrev_b32 %s, 16, %s' % (v(H + 2 * k), v(HP + k))); a('v_and_b32 %s, s36, %s' % (v(H + 2 * k + 1), v(HP + k)))
    a('s_waitcnt lgkmcnt(0)')
    a('v_readfirstlane_b32 s13, v3')
    stamp(a, 12)
    stamp(a, 17, True)
    def out_regs():
        for k in range(8):
            a('v_pk_fma_f32 %s, %s, s[14:15], v[10:11] op_sel_hi:[1,0,0] neg_lo:[0,0,1] neg_hi:[0,0,1]' % (v(HN + 2 * k, 2), v(H + 2 * k, 2)))
        for k in range(8): a('v_cvt_pk_bf16_f32 %s, %s, %s' % (v(OUT + k), v(HN + 2 * k), v(HN + 2 * k + 1)))
    def out_store():
        a('buffer_store_dwordx4 %s, v14, s[28:31], s22 offen%s' % (v(OUT, 4), OUTF))
        a('buffer_store_dwordx4 %s, v14, s[28:31], s22 offen offset:1024%s' % (v(OUT + 4, 4), OUTF))
    AH, BF, BD, ACC, KEY, PP, D2R = 16, 128, 160, 176, 180, 184, 192
    def frag_preload():
        a('v_lshrrev_b32 v1, 4, v15'); a('v_bfe_u32 v2, v15, 2, 2')
        a('v_lshl_add_u32 v8, v1, 3, v2'); a('v_lshlrev_b32 v8, 7, v8')
        a('v_and_b32 v3, 2, v2'); a('v_xor_b32 v9, s16, v3'); a('v_and_b32 v3, 1, v1'); a('v_lshlrev_b32 v4, 2, v3'); a('v_xor_b32 v9, v4, v9')
        a('v_lshl_add_u32 v8, v9, 4, v8'); a('v_and_b32 v9, 1, v15'); a('v_lshl_add_u32 v8, v9, 3, v8')
        a('v_bfe_u32 v9, v15, 1, 1'); a('v_lshl_add_u32 v8, v9, 15, v8')
        a('v_lshrrev_b32 v7, 1, v1'); a('v_lshl_add_u32 v7, v7, 3, v2'); a('v_lshlrev_b32 v7, 9, v7'); a('v_lshl_add_u32 v7, v3, 5, v7')
        a('v_and_b32 v3, 3, v15'); a('v_lshl_add_u32 v7, v3, 3, v7'); a('s_lshl_b32 s15, s16, 6'); a('s_add_u32 s15, s15, %d' % LD); a('v_add_u32 v7, s15, v7')
        a('v_lshlrev_b32 v9, 4, v1'); a('v_add_u32 v9, %d, v9' % LHN)
    def landed_add():
        if LATE:
            a('v_mov_b32 v1, %d' % (LSIG + 48)); a('v_mov_b32 v2, 1'); a('s_mov_b64 exec, 1'); a('ds_add_u32 v1, v2'); a('s_mov_b64 exec, -1')
    def frag_reads(tag):
        if LATE:
            a.label('fk_land' + tag)
            a('ds_read_b32 v2, v1'); a('s_waitcnt lgkmcnt(0)'); a('v_readfirstlane_b32 s15, v2')
            a('s_cmp_lt_u32 s15, 8'); a('s_cbranch_scc1 fk_land' + tag)
        for k in range(8):
            a('ds_read_b64_tr_b16 %s, v8 offset:%d' % (v(BF + 4 * k, 2), 4096 * k))
            a('ds_read_b64_tr_b16 %s, v8 offset:%d' % (v(BF + 4 * k + 2, 2), 4096 * k + 512))
            if k == 5: a('s_waitcnt lgkmcnt(4)')
    a('s_cmp_lg_u32 s13, s43'); a('s_cbranch_scc1 fk_other')
    a('s_mov_b64 exec, 0xff')
    a('buffer_store_dword v2, v4, s[24:27], s17 offen sc1')
    a('s_mov_b64 exec, -1')
    for k in range(8):
        a('v_pk_fma_f32 %s, %s, s[4:5], v[10:11] op_sel_hi:[1,0,0] neg_lo:[0,0,1] neg_hi:[0,0,1]' % (v(HN + 2 * k, 2), v(H + 2 * k, 2)))
    for k in range(8): a('v_cvt_pk_bf16_f32 %s, %s, %s' % (v(TMP + k), v(HN + 2 * k), v(HN + 2 * k + 1)))
    for k in range(8): a((CLAMP + ' %s, -2, %s') % (v(TMP + k), v(TMP + k)))
    a('s_mul_i32 s13, s3, %d' % OS); a('s_add_u32 s13, s13, 0x%x' % TC_)
    a('buffer_store_dwordx4 %s, v14, s[24:27], s13 offen sc1' % v(TMP, 4))
    a('buffer_store_dwordx4 %s, v14, s[24:27], s13 offen offset:1024 sc1' % v(TMP + 4, 4))
    for k in range(8): a((CLAMP + ' %s, -2, %s') % (v(HP + k), v(HP + k)))
    a('buffer_store_dwordx4 %s, v14, s[24:27], s13 offen offset:2048 sc1' % v(HP, 4))
    a('buffer_store_dwordx4 %s, v14, s[24:27], s13 offen offset:3072 sc1' % v(HP + 4, 4))
    out_regs()
    frag_preload()
    if not LATE: frag_reads('a')
    a('s_and_b32 s13, s2, 7'); a('s_lshl_b32 s13, s13, 12'); a('s_add_u32 s13, s13, 0x%x' % KEYS)
    a('s_mov_b32 s42, 0')
    a('s_waitcnt vmcnt(4)')
    landed_add()
    if SLK: a('s_sleep %d' % SLK)
    a.label('fk_pollk')
    for i in range(4): a('buffer_load_dword %s, v14, s[24:27], s13 offen offset:%d sc1' % (v(KEY + i), 1024 * i))
    poll_check(a, list(range(KEY, KEY + 4)), 3, 42, 'fk_pollk', 'fk_gotk')
    stamp(a, 13)
    wave_reduce(a, [3], op='v_max_u32')
    a('v_readlane_b32 s40, v3, 63')
    a('v_mov_b32 v4, %d' % LWIN)
    a('s_bfe_u32 s13, s40, 0x80003'); a('s_mul_i32 s13, s13, %d' % OS); a('s_and_b32 s14, s3, 3'); a('s_lshl_b32 s14, s14, 9')
    a('s_add_u32 s13, s13, s14'); a('s_add_u32 s13, s13, 0x%x' % TC_)
    a('v_lshlrev_b32 v5, 3, v15'); a('v_mov_b32 v3, s40')
    a('s_cmp_gt_u32 s3, 223'); a('s_cbranch_scc1 fk_norow')
    a('s_mov_b32 s42, 0')
    if LATE:
        a('buffer_load_dwordx2 %s, v5, s[24:27], s13 offen sc1' % v(KEY, 2))
        if DAFTER: a('ds_write_b32 v1, v3 offset:8')
        frag_reads('a')
        a('s_branch fk_chkr')
    a.label('fk_pollr')
    a('buffer_load_dwordx2 %s, v5, s[24:27], s13 offen sc1' % v(KEY, 2))
    a.label('fk_chkr')
    phase_check(a, [KEY, KEY + 1], 6, 42, 'fk_pollr', 'fk_gotr')
    a('v_add_u32 v5, %d, v5' % LHN)
    a('ds_write_b64 v5, %s' % v(KEY, 2))
    a.label('fk_norow')
    if DAFTER: a('ds_write_b32 v1, v3 offset:8')
    a('ds_write_b32 v4, v3')
    a('s_waitcnt lgkmcnt(0)')
    a('s_barrier')
    a('s_cmp_eq_u32 s40, s43')
    if OUTAT == 'early':
        a('s_cbranch_scc1 fk_ffn')
        out_store()
    else: a('s_cselect_b32 s22, 0x400000, s22')
    a('s_branch fk_ffn')
    a.label('fk_other')
    out_regs()
    if OUTAT == 'early': out_store()
    a('s_and_b32 s13, s13, 7'); a('s_cmp_gt_u32 s16, s13'); a('s_cselect_b32 s13, 1, 0'); a('s_sub_u32 s17, s16, s13')
    if '--dfirst' in OPT:
        window_static(a, 2, 8, KD, 17, 'd')()
        frag_preload()
        a('s_cmp_gt_u32 s17, 5'); a('s_cbranch_scc0 fk_df4')
        a('s_waitcnt vmcnt(0)')
        a('@fk_df4')
        a('s_waitcnt vmcnt(4)')
        landed_add()
        frag_reads('b')
        a('s_waitcnt lgkmcnt(0)' if DLATE else 's_waitcnt vmcnt(0) lgkmcnt(0)')
    elif UD >= 64:
        if LATE: a('s_waitcnt vmcnt(0)')
        frag_preload()
        landed_add()
        if DAFTER:
            frag_reads('b')
            a.label('fk_daf')
            a('s_sleep 1')
            a('ds_read_b32 v2, v1 offset:8'); a('s_waitcnt lgkmcnt(0)'); a('v_readfirstlane_b32 s15, v2')
            a('s_cmp_eq_u32 s15, 0'); a('s_cbranch_scc1 fk_daf')
        if STATIC: window_static(a, 2, 8, KD, 17, 'd')()
        else: window(a, UD, KD, 17, 0, PD)
        if not DAFTER: frag_reads('b')
        a('s_waitcnt lgkmcnt(0)' if DLATE else 's_waitcnt vmcnt(0) lgkmcnt(0)')
    else:
        window(a, UD, KD, 17, 0, PD)
        frag_preload()
        a('s_waitcnt vmcnt(0)')
        landed_add()
        frag_reads('b')
        a('s_waitcnt lgkmcnt(0)')
    a('s_barrier')
    a.label('fk_ffn')
    stamp(a, 14)
    for k in range(8): a('ds_read_b128 %s, v9 offset:%d' % (v(AH + 4 * k, 4), 64 * k))
    if OUTAT == 'bf': out_store()
    a('s_cmp_gt_u32 s3, 223'); a('s_cbranch_scc1 %s' % ('fk_lateout' if OUTAT in ('p1', 'end') else 'fk_fin'))
    a('v_mov_b32 v3, %d' % LWIN); a('ds_read_b32 v12, v3')
    a('v_lshlrev_b32 v4, 3, v15')
    a('s_mul_i32 s41, s3, %d' % OS); a('s_lshl_b32 s14, s16, 6'); a('s_add_u32 s13, s41, s14'); a('s_add_u32 s13, s13, 0x%x' % (TP_ + OP1))
    if DOT:
        a('v_mov_b32 %s, 0' % v(ACC)); a('v_mov_b32 %s, 0' % v(ACC + 1))
        for k in range(8):
            a('s_waitcnt lgkmcnt(%d)' % (8 - k))
            for j in range(4): a('v_dot2c_f32_bf16 %s, %s, %s' % (v(ACC + (j & 1)), v(AH + 4 * k + j), v(BF + 4 * k + j)))
        a('v_mov_b32 v3, 0'); a('v_mov_b32 v13, 0'); a('s_nop 0')
        a('v_add_f32 %s, %s, %s' % (v(ACC), v(ACC), v(ACC + 1)))
        a('v_permlane32_swap_b32 %s, v3' % v(ACC)); a('v_add_f32 %s, %s, v3' % (v(ACC), v(ACC)))
        a('v_permlane16_swap_b32 %s, v13' % v(ACC)); a('v_add_f32 %s, %s, v13' % (v(ACC), v(ACC)))
    else:
        for k in range(8):
            a('s_waitcnt lgkmcnt(%d)' % (8 - k))
            a('v_mfma_f32_16x16x32_bf16 %s, %s, %s, %s' % (v(ACC, 4), v(AH + 4 * k, 4), v(BF + 4 * k, 4), '0' if k == 0 else v(ACC, 4)))
    a('v_lshlrev_b32 v5, 3, v15'); a('v_lshlrev_b32 v6, 2, v15')
    a('v_lshrrev_b32 v9, 5, v15'); a('v_lshlrev_b32 v9, 4, v9'); a('v_add_u32 v9, %d, v9' % LACT)
    a('s_lshl_b32 s14, s16, 7'); a('s_add_u32 s41, s41, s14'); a('s_add_u32 s41, s41, 0x%x' % (TP_ + OP2))
    a((CLAMP + ' %s, -2, %s') % (v(ACC), v(ACC)))
    a('v_mov_b32_dpp %s, %s row_shl:8 %s' % (v(ACC + 1), v(ACC), DPPF))
    a('v_mov_b32_dpp %s, %s row_shl:1 %s' % (v(ACC + 2), v(ACC), DPPF))
    a('v_mov_b32_dpp %s, %s row_shl:9 %s' % (v(ACC + 3), v(ACC), DPPF))
    a('s_mov_b64 exec, 0x55')
    a('buffer_store_dwordx4 %s, v4, s[24:27], s13 offen sc1' % v(ACC, 4))
    a('s_mov_b64 exec, -1')
    if OUTAT == 'p1': out_store()
    def bd_reads(tag, add=True):
        if DLATE:
            if add:
                a('s_waitcnt vmcnt(0)')
                a('s_mov_b64 exec, 1'); a('ds_add_u32 v1, v8'); a('s_mov_b64 exec, -1')
            a.label('fk_dl' + tag)
            a('ds_read_b32 v13, v1'); a('s_waitcnt lgkmcnt(0)'); a('v_readfirstlane_b32 s15, v13')
            a('s_cmp_lt_u32 s15, 8'); a('s_cbranch_scc1 fk_dl' + tag)
        for kk in range(4):
            a('ds_read_b64_tr_b16 %s, v7 offset:%d' % (v(BD + 4 * kk, 2), 8192 * kk))
            a('ds_read_b64_tr_b16 %s, v7 offset:%d' % (v(BD + 4 * kk + 2, 2), 8192 * kk + 2048))
    a('v_mov_b32 v1, %d' % (LSIG + 52)); a('v_mov_b32 v8, 1')
    if not DLATE: bd_reads('')
    a('s_cmp_eq_u32 s16, 7'); a('s_cbranch_scc1 fk_c1')
    a('s_cmp_lg_u32 s16, 0'); a('s_cbranch_scc1 %s' % ('fk_bd' if DLATE else 'fk_wait1'))
    a('s_and_b32 s13, s3, -4'); a('s_mul_i32 s13, s13, %d' % OS); a('s_add_u32 s36, s13, 0x%x' % (TP_ + OP1))
    for i in range(1, 4): a('s_add_u32 %s, s36, %d' % (s(36 + i), i * OS))
    if UX:
        a('s_and_b32 s13, s3, -4'); a('s_xor_b32 s13, s13, 4'); a('s_mul_i32 s13, s13, %d' % OS); a('s_add_u32 s56, s13, 0x%x' % (TP_ + OP1 + 4))
        for i in range(1, 4): a('s_add_u32 %s, s56, %d' % (s(56 + i), i * OS))
    a('s_mov_b32 s42, 0')
    a('v_lshrrev_b32 v10, 2, v5'); a('v_add_u32 v10, %d, v10' % LACT)
    a('s_waitcnt vmcnt(%d)' % (2 if OUTAT == 'p1' else 0))
    if DLATE: a('s_mov_b64 exec, 1'); a('ds_add_u32 v1, v8'); a('s_mov_b64 exec, -1')
    a.label('fk_poll1')
    if UX:
        for i in range(4):
            a('buffer_load_dword %s, v5, s[24:27], %s offen sc1' % (v(PP + 2 * i), s(36 + i)))
            a('buffer_load_dword %s, v5, s[24:27], %s offen sc1' % (v(PP + 2 * i + 1), s(56 + i)))
    else:
        for i in range(4): a('buffer_load_dwordx2 %s, v5, s[24:27], %s offen sc1' % (v(PP + 2 * i, 2), s(36 + i)))
    phase_check(a, list(range(PP, PP + 8)), 11, 42, 'fk_poll1', 'fk_got1')
    stamp(a, 15)
    a('v_pk_add_f32 %s, %s, %s' % (v(PP, 2), v(PP, 2), v(PP + 2, 2))); a('v_pk_add_f32 %s, %s, %s' % (v(PP + 4, 2), v(PP + 4, 2), v(PP + 6, 2)))
    a('v_pk_add_f32 %s, %s, %s' % (v(PP, 2), v(PP, 2), v(PP + 4, 2)))
    rbf(a, PP); rbf(a, PP + 1)
    a('v_mul_f32 %s, %s, %s' % (v(PP + 2), fh(-1.4426950408889634), v(PP)))
    a('v_exp_f32 %s, %s' % (v(PP + 2), v(PP + 2)))
    a('v_add_f32 %s, 1.0, %s' % (v(PP + 2), v(PP + 2)))
    a('v_rcp_f32 %s, %s' % (v(PP + 2), v(PP + 2)))
    a('v_mul_f32 %s, %s, %s' % (v(PP), v(PP), v(PP + 2)))
    rbf(a, PP)
    a('v_mul_f32 %s, %s, %s' % (v(PP), v(PP), v(PP + 1)))
    rbf(a, PP)
    a('ds_write_b16_d16_hi v10, %s' % v(PP))
    if DLATE: bd_reads('a', False)
    a('s_branch fk_wait1')
    a.label('fk_c1')
    a('s_cmp_gt_u32 s3, 127'); a('s_cbranch_scc1 %s' % ('fk_bd' if DLATE else 'fk_wait1'))
    a('s_waitcnt lgkmcnt(0)')
    a('v_readfirstlane_b32 s40, v12')
    a('v_lshrrev_b32 v10, 4, v15'); a('v_and_b32 v11, 1, v15'); a('v_lshl_add_u32 v12, v11, 2, v10'); a('v_lshlrev_b32 v12, 1, v12')
    a('v_and_b32 v11, 12, v12'); a('v_and_b32 v10, 1, v10')
    a('s_bfe_u32 s13, s40, 0x80003'); a('s_mul_i32 s14, s13, %d' % OS); a('s_lshl_b32 s15, s3, 4'); a('s_add_u32 s14, s14, s15'); a('s_add_u32 s14, s14, 0x%x' % TC_)
    a('s_mov_b32 s42, 0')
    a.label('fk_pollh')
    a('buffer_load_dword v2, v11, s[24:27], s14 offen sc1')
    a('buffer_load_dword v3, v11, s[24:27], s14 offen offset:2048 sc1')
    phase_check(a, [2, 3], 4, 42, 'fk_pollh', 'fk_goth')
    a('v_cmp_eq_u32 vcc, 1, v10')
    for r in (2, 3):
        a('v_lshlrev_b32 v4, 16, %s' % v(r)); a('v_and_b32 %s, s36, %s' % (v(r), v(r))); a('v_cndmask_b32 %s, v4, %s, vcc' % (v(r), v(r)))
    a('s_lshr_b32 s14, s13, 4'); a('s_add_u32 s14, s14, 1'); a('s_cmp_ge_u32 s13, 248'); a('s_cselect_b32 s14, 0, s14')
    a('s_cmp_ge_u32 s13, 240'); a('s_cselect_b32 s15, 7, 15'); a('s_and_b32 s15, s15, s13'); a('s_lshl_b32 s15, s15, 7'); a('s_add_u32 s14, s14, s15')
    a('s_and_b32 s13, s40, 7'); a('s_sub_u32 s15, 7, s13'); a('s_min_u32 s15, s15, s13'); a('s_lshl_b32 s15, s15, 5'); a('s_add_u32 s14, s14, s15')
    a('s_sub_u32 s15, 2048, s14'); a('s_and_b32 s15, s15, 2047'); a('s_cmp_lt_u32 s13, 4'); a('s_cselect_b32 s14, s14, s15')
    a('s_and_b32 s13, s40, 0x7ff'); a('s_cmp_eq_u32 s13, %d' % (248 * 8 + 7)); a('s_cselect_b32 s14, 1024, s14')
    a('s_lshl_b32 s21, s14, 11'); a('s_lshl_b32 s15, s3, 4'); a('s_add_u32 s21, s21, s15')
    if '--finwarm' in OPT: a('buffer_load_dword v250, v12, s[28:31], s21 offen')
    a('s_ashr_i32 s13, s40, 31'); a('s_not_b32 s13, s13'); a('s_or_b32 s13, s13, 0x80000000'); a('s_xor_b32 s13, s40, s13'); a('s_and_b32 s13, s13, 0xfffff800')
    a('v_mov_b32 v11, s13'); rbf(a, 11)
    a('v_mul_f32 v11, %s, v11' % fh(-1.4426950408889634))
    a('v_exp_f32 v11, v11'); a('v_add_f32 v11, 1.0, v11'); a('v_rcp_f32 v11, v11'); rbf(a, 11)
    a('v_lshrrev_b32 v4, 1, v15'); a('v_mul_u32_u24 v4, %d, v4' % (4 * OS)); a('v_and_b32 v5, 1, v15'); a('v_lshl_add_u32 v4, v5, 4, v4')
    a('v_add_u32 v5, %d, v4' % (128 * OS)); a('v_cmp_gt_u32 vcc, 48, v15'); a('v_cndmask_b32 v5, -16, v5, vcc')
    a('s_lshr_b32 s40, s3, 5'); a('s_mul_i32 s40, s40, %d' % OS); a('s_and_b32 s15, s3, 31'); a('s_lshl_b32 s15, s15, 5'); a('s_add_u32 s40, s40, s15')
    a('s_add_u32 s40, s40, 0x%x' % (TP_ + OP2))
    if DLATE:
        a.label('fk_bd')
        bd_reads('b')
    a.label('fk_wait1')
    a('s_waitcnt lgkmcnt(0)'); a('s_barrier')
    stamp(a, 16)
    for kk in range(4): a('ds_read_b128 %s, v9 offset:%d' % (v(AH + 4 * kk, 4), 32 * kk))
    if DOT:
        a('v_mov_b32 %s, 0' % v(D2R)); a('v_mov_b32 %s, 0' % v(D2R + 1)); a('v_mov_b32 v13, 0')
        for kk in range(4):
            a('s_waitcnt lgkmcnt(%d)' % (3 - kk))
            for j in range(4): a('v_dot2c_f32_bf16 %s, %s, %s' % (v(D2R + (j & 1)), v(AH + 4 * kk + j), v(BD + 4 * kk + j)))
        a('v_add_f32 %s, %s, %s' % (v(D2R), v(D2R), v(D2R + 1)))
        a('v_permlane32_swap_b32 %s, v13' % v(D2R)); a('v_add_f32 %s, %s, v13' % (v(D2R), v(D2R)))
    else:
        for kk in range(4):
            a('s_waitcnt lgkmcnt(%d)' % (3 - kk))
            a('v_mfma_f32_32x32x16_bf16 %s, %s, %s, %s' % (v(D2R, 16), v(AH + 4 * kk, 4), v(BD + 4 * kk, 4), '0' if kk == 0 else v(D2R, 16)))
    a((CLAMP + ' %s, -2, %s') % (v(D2R), v(D2R)))
    quad_gather(a, D2R, 1)
    a('s_mov_b32 exec_lo, 0x11111111'); a('s_mov_b32 exec_hi, 0')
    a('buffer_store_dwordx4 %s, v6, s[24:27], s41 offen sc1' % v(D2R, 4))
    a('s_mov_b64 exec, -1')
    if OUTAT == 'end': out_store()
    stamp(a, 17)
    a('s_cmp_lg_u32 s16, 7'); a('s_cbranch_scc1 fk_fin')
    a('s_cmp_gt_u32 s3, 127'); a('s_cbranch_scc1 fk_fin')
    PQ = 16
    a('s_mov_b32 s42, 0')
    a('s_waitcnt vmcnt(%d)' % (2 if OUTAT == 'end' else 0))
    if SL2: a('s_sleep %d' % SL2)
    a.label('fk_poll2')
    a('buffer_load_dwordx4 %s, v4, s[24:27], s40 offen sc1' % v(PQ, 4))
    a('buffer_load_dwordx4 %s, v5, s[24:27], s40 offen sc1' % v(PQ + 4, 4))
    phase_check(a, list(range(PQ, PQ + 8)), 6, 42, 'fk_poll2', 'fk_got2')
    stamp(a, 18)
    for h in range(2): a('v_pk_add_f32 %s, %s, %s' % (v(PQ + 2 * h, 2), v(PQ + 2 * h, 2), v(PQ + 4 + 2 * h, 2)))
    for i in range(2): a('v_permlane32_swap_b32 %s, %s' % (v(PQ + i), v(PQ + 2 + i)))
    for i in range(2): a('v_add_f32 %s, %s, %s' % (v(PQ + i), v(PQ + i), v(PQ + 2 + i)))
    a('v_permlane16_swap_b32 %s, %s' % (v(PQ), v(PQ + 1)))
    a('v_add_f32 %s, %s, %s' % (v(PQ), v(PQ), v(PQ + 1)))
    a('v_add_f32_dpp %s, %s, %s quad_perm:[2,3,0,1] %s' % (v(PQ), v(PQ), v(PQ), DPPF))
    a('v_add_f32_dpp %s, %s, %s row_ror:4 %s' % (v(PQ), v(PQ), v(PQ), DPPF))
    a('v_add_f32_dpp %s, %s, %s row_ror:8 %s' % (v(PQ), v(PQ), v(PQ), DPPF))
    rbf(a, PQ); a('v_mul_f32 %s, %s, v11' % (v(PQ), v(PQ))); rbf(a, PQ)
    a('v_add_f32 %s, %s, v2' % (v(PQ), v(PQ))); rbf(a, PQ)
    a('v_add_f32 %s, %s, v3' % (v(PQ), v(PQ))); rbf(a, PQ)
    a('s_mov_b32 exec_lo, 0x00030003'); a('s_mov_b32 exec_hi, 0x00030003')
    a('buffer_store_short_d16_hi %s, v12, s[28:31], s21 offen%s' % (v(PQ), {'': '', 'sc1': ' sc1', 'nt': ' nt'}[optval('fin', '')]))
    if OUTAT in ('p1', 'end'):
        a('s_branch fk_fin')
        a.label('fk_lateout')
        out_store()
    a.label('fk_fin')
    stamp_dump(a, 'x')
    a.label('fk_end')
    a('s_endpgm')

def main(path):
    a = Asm()
    ref = open('%s/%s.s.ref' % (optval('ref', '/code'), NAME)).read().splitlines()
    for l in ref:
        if l.startswith('; Override'): break
        a.raw(l)
    if LIST: a.raw('; @launch kernel=%s grid=(256,1,1) block=(512,1,1) lds=%d' % (KN, LDSB))
    else: a.raw('; @launch grid=(256,1,1) block=(512,1,1) lds=%d' % LDSB)
    a.raw('.amdgcn_target "amdgcn-amd-amdhsa--gfx950"'); a.raw('.text')
    gen(a)
    a.raw('.section .rodata,"a"')
    a.raw('\n'.join(['.p2align 6', '.amdhsa_kernel %s' % KN, '  .amdhsa_next_free_vgpr 256',
        '  .amdhsa_next_free_sgpr 102', '  .amdhsa_accum_offset 256', '  .amdhsa_group_segment_fixed_size 0',
        '  .amdhsa_kernarg_size 104', '  .amdhsa_user_sgpr_count 2', '  .amdhsa_user_sgpr_kernarg_segment_ptr 1',
        '  .amdhsa_system_sgpr_workgroup_id_x 1', '.end_amdhsa_kernel', '']))
    open(path, 'w').write(a.text())
    print('wrote', path, 'lines', len(a.lines), 'nops', a.nops, 'lds', LDSB)

if __name__ == '__main__':
    ps = [x for x in sys.argv[1:] if x.endswith('.s')]
    main(ps[0] if ps else '/code/%s.s' % NAME)
```
